```python
import torch

def _softmax(x, axis=-1):
    return torch.softmax(x, dim=axis)
def _gelu(x):
    return torch.nn.functional.gelu(x, approximate="tanh")
def _silu(x):
    return torch.nn.functional.silu(x)
def _sigmoid(x):
    return torch.sigmoid(x)
def _layernorm(x, axis=-1, eps=1e-5):
    m = x.mean(dim=axis, keepdim=True)
    v = x.var(dim=axis, keepdim=True, unbiased=False)
    return (x - m) / torch.sqrt(v + eps)
def _scatter_add(tgt, idx, src, axis=0):
    return tgt.clone().index_add_(axis, idx, src)
def _segment_sum(src, seg, n):
    out = torch.zeros((n,) + src.shape[1:], dtype=src.dtype)
    return out.index_add_(0, seg, src)
def _pad(x, pw):
    flat = tuple(v for pair in reversed(pw) for v in pair)
    return torch.nn.functional.pad(x, flat)

kernel_name = 'standalone__detection_seg_dino__vision'

def setup_inputs():

    _w = (lambda a: (lambda t: t.to(torch.bfloat16) if t.is_floating_point() else t)(torch.as_tensor(a)))
    H = W = (256 // 2) * 2
    C = 384
    Nq = 16
    sc = C ** -0.5
    return {
        "q": _w((lambda *s: torch.randn(*s, dtype=torch.bfloat16) * 0.05)(1, Nq, C)),
        "f0": _w((lambda *s: torch.randn(*s, dtype=torch.bfloat16) * 0.8)(1, H, W, C)),
        "f1": _w((lambda *s: torch.randn(*s, dtype=torch.bfloat16) * 0.8)(1, H // 2, W // 2, C)),
        "wq": _w((lambda *s: torch.randn(*s, dtype=torch.bfloat16) * 1.6)(C, C) * sc),
        "wk": _w((lambda *s: torch.randn(*s, dtype=torch.bfloat16) * 1.6)(C, C) * sc),
        "wv": _w((lambda *s: torch.randn(*s, dtype=torch.bfloat16) * 0.8)(C, C) * sc),
        "wo": _w((lambda *s: torch.randn(*s, dtype=torch.bfloat16) * 0.8)(C, C) * sc),
    }

def reference(q, f0, f1, wq, wk, wv, wo):
    B, H, W, C = f0.shape
    f1u = (lambda x, n, axis: torch.repeat_interleave(x, n, dim=axis))((lambda x, n, axis: torch.repeat_interleave(x, n, dim=axis))(f1, 2, axis=1), 2, axis=2)
    fused = f0 + f1u
    feats = _layernorm(fused.reshape(B, H * W, C), axis=-1)
    qn = _layernorm(q, axis=-1)
    Q = torch.einsum("bnc,cd->bnd", qn, wq)
    K = torch.einsum("bmc,cd->bmd", feats, wk)
    V = torch.einsum("bmc,cd->bmd", feats, wv)
    scale = C ** -0.5
    logits = torch.einsum("bnd,bmd->bnm", Q, K) * scale
    attn = _softmax(logits, axis=-1)
    ctx = torch.einsum("bnm,bmd->bnd", attn, V)
    return q + torch.einsum("bnd,dc->bnc", ctx, wo)
```

```python
class Asm:
    def __init__(self):
        self.L = []
    def __call__(self, s=""):
        for line in s.split("\n"):
            self.L.append(line)
    def text(self):
        return "\n".join(self.L) + "\n"

def header(a, launches, comment=()):
    for c in comment:
        a("; " + c)
    for l in launches:
        a(l)
    a('.amdgcn_target "amdgcn-amd-amdhsa--gfx950"')
    a(".text")

def kernel_begin(a, name):
    a(f".globl {name}\n.p2align 8\n.type {name},@function\n{name}:")

def kernel_desc(a, name, vgpr, sgpr=102, accum=None):
    accum = accum or ((vgpr + 3) // 4 * 4)
    a('.section .rodata,"a"\n.p2align 6')
    a(f".amdhsa_kernel {name}")
    a(f"  .amdhsa_next_free_vgpr {vgpr}\n  .amdhsa_next_free_sgpr {sgpr}\n  .amdhsa_accum_offset {accum}")
    a("  .amdhsa_group_segment_fixed_size 0\n  .amdhsa_kernarg_size 80\n  .amdhsa_user_sgpr_count 2")
    a("  .amdhsa_user_sgpr_kernarg_segment_ptr 1\n  .amdhsa_system_sgpr_workgroup_id_x 1")
    a("  .amdhsa_float_denorm_mode_32 3")
    a(".end_amdhsa_kernel")
    a(".text")

def srd(a, s, ptr, nbytes):
    a(f"  s_mov_b32 s{s}, s{ptr}\n  s_mov_b32 s{s+1}, s{ptr+1}\n  s_mov_b32 s{s+2}, {nbytes}\n  s_mov_b32 s{s+3}, 0x20000")
```

```python
import re

TRANS = ("v_exp_f32", "v_log_f32", "v_rcp_f32", "v_rsq_f32", "v_sqrt_f32", "v_sin_f32", "v_cos_f32", "v_rcp_iflag_f32")
REG_RE = re.compile(r"\b([vsa])(\d+)\b|\b([vsa])\[(\d+):(\d+)\]|\b(vcc|exec|m0|vcc_lo|vcc_hi|exec_lo|exec_hi)\b")

def regs_of(tok):
    out = []
    for m in REG_RE.finditer(tok):
        if m.group(1):
            out.append((m.group(1), int(m.group(2))))
        elif m.group(3):
            out += [(m.group(3), i) for i in range(int(m.group(4)), int(m.group(5)) + 1)]
        else:
            n = m.group(6)
            if n.startswith("vcc"): out += [("s", 106), ("s", 107)]
            elif n.startswith("exec"): out += [("s", 126), ("s", 127)]
            else: out.append(("s", 124))
    return out

class I:
    def __init__(self, text):
        self.text = text
        t = text.split(";")[0].strip()
        self.label = None
        self.op = None
        self.w = set(); self.r = set()
        self.cls = "none"
        self.target = None
        self.srcc = set(); self.srcab = set(); self.passes = 0
        if not t or t.startswith("."):
            return
        if t.endswith(":"):
            self.label = t[:-1]; return
        parts = t.split(None, 1)
        op = parts[0]; self.op = op
        args = [x.strip() for x in parts[1].split(",")] if len(parts) > 1 else []
        base = re.sub(r"_(e32|e64|dpp|sdwa)$", "", op)
        self.base = base
        self.dpp = ("row_" in t or "quad_perm" in t or op.endswith("_dpp"))
        if op.startswith("v_mfma"):
            self.cls = "sgemm" if op.endswith("_f32") and "x4_f32" in op else "xdl"
            self.passes = {"v_mfma_f32_16x16x32_bf16": 4, "v_mfma_f32_16x16x32_f16": 4, "v_mfma_f32_16x16x16_bf16": 4, "v_mfma_f32_16x16x16_f16": 4,
                           "v_mfma_f32_32x32x16_bf16": 8, "v_mfma_f32_16x16x4_f32": 8}[op]
            self.w = set(regs_of(args[0])); self.srcab = set(regs_of(args[1]) + regs_of(args[2])); self.srcc = set(regs_of(args[3]))
            self.cd = args[3].split()[0] == args[0]
            self.r = self.srcab | self.srcc
        elif op.startswith("v_"):
            self.cls = "valu"
            if base.startswith("v_dot2"): self.cls = "dot"
            if base in TRANS: self.trans = True
            nd = 1
            if base.startswith("v_cmp"):
                self.w = set(regs_of(args[0])); rest = args[1:]
                if base.startswith("v_cmpx"): self.w |= {("s", 126), ("s", 127)}
            elif base in ("v_add_co_u32", "v_sub_co_u32", "v_addc_co_u32", "v_subb_co_u32", "v_subrev_co_u32"):
                self.w = set(regs_of(args[0]) + regs_of(args[1])); rest = args[2:]
            elif base in ("v_permlane32_swap_b32", "v_permlane16_swap_b32"):
                self.w = set(regs_of(args[0]) + regs_of(args[1])); rest = args
            else:
                self.w = set(regs_of(args[0])); rest = args[1:]
            for x in rest: self.r |= set(regs_of(x.split(" ")[0] if not x.startswith("-") and not x.startswith("abs") else x))
            if base in ("v_fmac_f32", "v_dot2c_f32_bf16", "v_mac_f32", "v_writelane_b32") or self.dpp: self.r |= set(regs_of(args[0]))
            if base == "v_cndmask_b32" and len(args) == 3: self.r |= {("s", 106), ("s", 107)}
        elif op.startswith("ds_"):
            self.cls = "ds"
            if op.startswith("ds_read") or op.startswith("ds_bpermute") or op.startswith("ds_swizzle"):
                self.w = set(regs_of(args[0]))
                for x in args[1:]: self.r |= set(regs_of(x.split(" ")[0]))
            else:
                for x in args: self.r |= set(regs_of(x.split(" ")[0]))
        elif op.startswith("buffer_") or op.startswith("global_"):
            self.cls = "vmem"
            toks = [x.split(" ")[0] for x in args]
            mods = parts[1] if len(parts) > 1 else ""
            if op in ("buffer_wbl2", "buffer_inv"):
                pass
            elif "load" in op and " lds" not in (" " + mods) and "_lds_" not in op:
                self.w = set(regs_of(toks[0]))
                for x in toks[1:]: self.r |= set(regs_of(x))
            elif "load" in op:
                for x in toks: self.r |= set(regs_of(x))
                self.ldsdma = True
            elif "atomic" in op:
                for x in toks: self.r |= set(regs_of(x))
                if " sc0" in mods and op.startswith("buffer"): self.w = set(regs_of(toks[0]))
            else:
                for x in toks: self.r |= set(regs_of(x))
                if op.endswith("x4") or op.endswith("x3"):
                    self.wide = set(regs_of(toks[0] if op.startswith("buffer") else toks[1]))
        elif op.startswith("s_"):
            self.cls = "salu"
            if op in ("s_branch",) or op.startswith("s_cbranch"):
                self.target = args[0]
            elif op == "s_nop":
                self.nop = int(args[0], 0) + 1
            elif op.startswith("s_cmp") or op in ("s_waitcnt", "s_barrier", "s_endpgm", "s_setprio", "s_sleep"):
                for x in args: self.r |= set(regs_of(x)) if not op == "s_waitcnt" else set()
            elif op.startswith("s_load") or op in ("s_memtime", "s_memrealtime"):
                self.w = set(regs_of(args[0]))
                for x in args[1:]: self.r |= set(regs_of(x))
            else:
                self.w = set(regs_of(args[0]))
                for x in args[1:]: self.r |= set(regs_of(x))
                if "saveexec" in op: self.w |= {("s", 126), ("s", 127)}
    def states(self):
        if self.op is None: return 0
        return getattr(self, "nop", 1)

def need(p, c):
    n = 0
    vw = {x for x in p.w if x[0] in "va"}
    sw = {x for x in p.w if x[0] == "s"}
    c_touch = c.r | c.w
    isval = c.cls in ("valu", "dot")
    ismf = c.cls in ("xdl", "sgemm")
    if p.cls in ("valu", "dot"):
        if ismf and vw & c.r: n = max(n, 2)
        if isval and c.dpp and vw & c.r: n = max(n, 2)
        if isval and c.base.startswith("v_permlane") and vw & c.r: n = max(n, 2)
        if isval and c.base in ("v_readlane_b32", "v_readfirstlane_b32") and vw & c.r: n = max(n, 1)
        if sw:
            if isval and sw & c.r: n = max(n, 4 if c.base in ("v_readlane_b32", "v_writelane_b32") else 2)
            if c.cls == "vmem" and sw & c.r: n = max(n, 5)
            if ("s", 126) in sw and isval and c.dpp: n = max(n, 5)
            if ("s", 126) in sw and ismf: n = max(n, 4)
        if getattr(p, "trans", False) and isval and not getattr(c, "trans", False) and vw & c.r: n = max(n, 1)
    if p.cls == "dot" and vw & c_touch:
        if c.cls == "dot" and c.base == p.base:
            args = c.text.split(";")[0].strip().split(None, 1)[1].split(",")
            ab = set(regs_of(args[1])) | set(regs_of(args[2]))
            if vw & ab: n = max(n, 3)
        else:
            n = max(n, 3)
    if p.cls == "xdl":
        tab = {4: (0, 6, 6, 8, 8), 8: (0, 10, 10, 12, 12)}[p.passes]
        if ismf:
            if vw & c.srcab: n = max(n, tab[3])
            if vw & c.srcc:
                same = c.cls == "xdl" and c.srcc == vw and c.passes == p.passes
                n = max(n, tab[0] if same else tab[1])
            elif vw & c.w: n = max(n, tab[1])
        elif c.cls in ("valu", "dot", "ds", "vmem") and vw & c_touch: n = max(n, tab[4])
        if c.cls in ("valu", "dot") and p.srcc & c.w: n = max(n, {4: 3, 8: 7}[p.passes])
    if p.cls == "sgemm":
        if ismf:
            if vw & c.srcab: n = max(n, 10)
            if vw & c.srcc:
                if c.cls == "sgemm": n = max(n, 0 if c.srcc == vw else 8)
            elif vw & c.w: n = max(n, 8)
        elif c.cls in ("valu", "dot", "ds", "vmem") and vw & c_touch: n = max(n, 10)
    if getattr(p, "wide", None):
        if p.wide & c.w: n = max(n, 2 if c.cls in ("valu", "dot") else 1)
    if p.cls == "salu" and ("s", 124) in p.w and getattr(c, "ldsdma", False): n = max(n, 1)
    return n

WINDOW = 22

def shortfall(prev, c):
    dist = 0; short = 0
    for p in reversed(prev):
        if p.op is None: continue
        k = need(p, c)
        if k > dist: short = max(short, k - dist)
        dist += p.states()
        if dist > WINDOW: break
    return short

def fix(lines, verbose=False):
    ins = [I(x) for x in lines]
    out = []
    added = 0
    for c in ins:
        if c.op is not None:
            s = shortfall(out[-40:], c)
            if s:
                out.append(I(f"  s_nop {s-1}")); added += 1
                if verbose: print("nop", s, "before", c.text)
        out.append(c)
    for guard in range(200):
        labels = {x.label: i for i, x in enumerate(out) if x.label}
        changed = False
        for p, b in enumerate(out):
            if b.target is None or b.target not in labels: continue
            q = labels[b.target]
            hist = out[max(0, p - 40):p + 1]
            hid = {id(x) for x in hist}
            seq = list(hist); worst = 0; cnt = 0
            for c in out[q:q + 60]:
                if c.op is None: continue
                dist = 0
                for x in reversed(seq):
                    if x.op is None: continue
                    k = need(x, c)
                    if k > dist and id(x) in hid: worst = max(worst, k - dist)
                    dist += x.states()
                    if dist > WINDOW: break
                seq.append(c); cnt += 1
                if cnt > WINDOW or c.op == "s_branch" or c.op == "s_endpgm": break
            if worst:
                out.insert(p, I(f"  s_nop {worst-1}")); added += 1; changed = True
                if verbose: print("edge nop", worst, "before", b.text)
                break
        if not changed: break
    return [x.text for x in out], added
```

```python
import sys
from asmlib import Asm
import hazard

KNAME = "standalone__detection_seg_dino__vision_kernel"

NH, NS, NPAIR = 24, 228, 9
F0_BYTES, F1_BYTES, W_BYTES, Q_BYTES = 50331648, 12582912, 294912, 12288
WS_BYTES = 268435456

NONCE_OFF = 0
RQ_OFF, RQK_OFF, RCTX_OFF = 4096, 20480, 36864
LSE_OFF = 65536
PART_OFF = 131072
PART_STRIDE = NS * 128
STAMP_OFF = 8 << 20

SLOT = 12288
STG = 12 * SLOT
TOP = 13 * SLOT
MX = TOP
RED = TOP + 512
NONCE_LDS = TOP + 1536
RED2 = TOP + 2048
MXW = TOP + 1600
LDS_BYTES = 163840

SENT = -1
LOG2E = 1.4426950408889634
import struct
def f32(x): return "0x%08x" % struct.unpack("<I", struct.pack("<f", x))[0]

class Cfg:
    nt = True
    stamp = False

S_WAVE = 3
P_Q, P_F0, P_F1, P_WQ, P_WK, P_WV, P_WO, P_OUT, P_DBG, P_WS = 4, 6, 8, 10, 12, 14, 16, 18, 20, 22
R_A, R_B, R_WS, R_DBG, R_C, R_D, R_E, R_F = 24, 28, 32, 36, 40, 44, 48, 52
S_IDX = 56
S_ONELO, S_ONEHI = 57, 58
S_NONCE, S_SPIN = 70, 71
STAMP0 = 80
SPIN_CAP = 200000

def srd(a, s, ptr, nbytes):
    a(f"  s_mov_b32 s{s}, s{ptr}\n  s_mov_b32 s{s+1}, s{ptr+1}\n  s_mov_b32 s{s+2}, {nbytes}\n  s_mov_b32 s{s+3}, 0x20000")

def vr(b, n=4): return f"v[{b}:{b+n-1}]"

class G:
    def __init__(self, cfg):
        self.cfg = cfg
        self.a = Asm()
        self.uid = 0
        self.nstamp = 0
    def lab(self, name):
        self.uid += 1
        return f"L_{name}_{self.uid}"
    def stamp(self, i):
        if self.cfg.stamp:
            self.a(f"  s_memrealtime s[{STAMP0+2*i}:{STAMP0+2*i+1}]\n  s_waitcnt lgkmcnt(0)")
    def stamp_init(self):
        if self.cfg.stamp:
            for i in range(10): self.a(f"  s_mov_b32 s{STAMP0+2*i}, 0\n  s_mov_b32 s{STAMP0+2*i+1}, 0")
    def stamp_flush(self):
        if not self.cfg.stamp: return
        a = self.a
        a("  s_lshl_b32 s60, s2, 3\n  s_add_u32 s60, s60, s3\n  s_lshl_b32 s60, s60, 6")
        a(f"  s_add_u32 s60, s60, {STAMP_OFF}")
        a("  v_mov_b32 v1, 0")
        for i in range(10):
            a(f"  v_mov_b32 v2, s{STAMP0+2*i}\n  buffer_store_dword v2, v1, s[{R_WS}:{R_WS+3}], s60 offen offset:{4*i}\n  s_nop 0")

    def allred_g(self, x, t, op):
        a = self.a
        a(f"  v_mov_b32 v{t}, v{x}\n  v_permlane16_swap_b32 v{t}, v{x}\n  {op} v{x}, v{t}, v{x}")
        a(f"  v_mov_b32 v{t}, v{x}\n  v_permlane32_swap_b32 v{t}, v{x}\n  {op} v{x}, v{t}, v{x}")

    def valid_check(self, base, n, t, retry):
        a = self.a
        a(f"  v_max3_u32 v{t}, v{base}, v{base+1}, v{base+2}")
        i = 3
        while i + 1 < n:
            a(f"  v_max3_u32 v{t}, v{t}, v{base+i}, v{base+i+1}"); i += 2
        if i < n: a(f"  v_max_u32 v{t}, v{t}, v{base+i}")
        a(f"  v_cmp_eq_u32 vcc, -1, v{t}")
        a(f"  s_cbranch_vccnz {retry}")

    def spin_guard(self, done):
        self.a(f"  s_add_u32 s{S_SPIN}, s{S_SPIN}, 1\n  s_cmp_gt_u32 s{S_SPIN}, {SPIN_CAP}\n  s_cbranch_scc1 {done}")

    def wait_count(self):
        a = self.a
        lp, dn = self.lab("cnt"), self.lab("cntd")
        a(f"  v_mov_b32 v18, 0\n  s_mov_b32 s{S_SPIN}, 0")
        a(f"{lp}:")
        a(f"  buffer_load_dwordx2 v[16:17], v18, s[{R_DBG}:{R_DBG+3}], 0 offen sc1")
        self.spin_guard(dn)
        a("  s_waitcnt vmcnt(0)")
        a(f"  v_readfirstlane_b32 s60, v16\n  v_readfirstlane_b32 s{S_NONCE}, v17")
        a(f"  s_cmp_lt_u32 s60, {NH}\n  s_cbranch_scc1 {lp}")
        a(f"{dn}:\n  s_waitcnt vmcnt(0)")

    def prologue(self):
        a = self.a
        a(f"  s_cmp_ge_u32 s2, {NH+NS}\n  s_cbranch_scc1 L_end")
        a("  s_load_dwordx16 s[4:19], s[0:1], 0\n  s_load_dwordx4 s[20:23], s[0:1], 64")
        a("  v_lshrrev_b32 v1, 6, v0\n  v_and_b32 v0, 63, v0")
        a(f"  v_readfirstlane_b32 s{S_WAVE}, v1")
        a(f"  s_mov_b32 s{S_ONELO}, 0x00003f80\n  s_mov_b32 s{S_ONEHI}, 0x3f800000")
        self.stamp_init()
        self.stamp(0)
        a(f"  s_cmp_lt_u32 s2, {NH}\n  s_cbranch_scc1 L_helper")

    V_OFF1, V_OFF0, V_WA0, V_WA1 = 2, 3, 4, 5
    V_RA = 6
    V_PA = 10
    V_PADDR, V_MXW, V_MXR = 13, 14, 15
    V_BUF = (16, 36)
    V_PU = 56
    V_TMP = 64
    V_OUT = 72
    V_QK = 80
    V_A = 128
    V_ACC = 176
    V_S, V_SUM, V_SQ4, V_SQ = 188, 192, 196, 200
    V_MU, V_RS, V_LG = 204, 208, 212
    V_ONES = 216
    V_M, V_L, V_AM, V_QS, V_AL, V_T0, V_T1, V_T2 = 220, 221, 222, 223, 224, 225, 226, 227
    V_MXV = 228
    V_ONEF = 236
    V_L16 = 237
    V_TA = 240
    S_QBASE = 61

    def issue_task(self, k, buf):
        a = self.a
        nt = " nt" if self.cfg.nt else ""
        b = self.V_BUF[buf]
        a(f"  s_add_u32 s62, s{self.S_QBASE}, {2*k}")
        a("  s_mul_i32 s63, s62, 3072\n  s_lshr_b32 s64, s62, 5\n  s_mul_i32 s64, s64, 393216")
        a("  s_and_b32 s65, s62, 31\n  s_mul_i32 s65, s65, 6144\n  s_add_u32 s64, s64, s65\n  s_add_u32 s65, s64, 196608")
        a(f"  buffer_load_dwordx4 {vr(b)}, v{self.V_OFF1}, s[{R_B}:{R_B+3}], s63 offen{nt}")
        for t in range(4):
            so = "s64" if t < 2 else "s65"
            off = f" offset:768" if t & 1 else ""
            a(f"  buffer_load_dwordx4 {vr(b+4+4*t)}, v{self.V_OFF0}, s[{R_A}:{R_A+3}], {so} offen{off}{nt}")

    def fuse_task(self, k, buf, newer):
        a = self.a
        b = self.V_BUF[buf]; u = self.V_PU; t8 = self.V_TMP
        a(f"  s_waitcnt vmcnt({newer+4})")
        for i in range(4):
            a(f"  v_lshlrev_b32 v{u+2*i}, 16, v{b+i}\n  v_and_b32 v{u+2*i+1}, 0xffff0000, v{b+i}")
        for t in range(4):
            c = b + 4 + 4 * t; o = self.V_OUT + 4 * (t & 1)
            a(f"  s_waitcnt vmcnt({newer+3-t})")
            for i in range(4):
                a(f"  v_dot2_f32_bf16 v{t8+2*i}, v{c+i}, s{S_ONELO}, v{u+2*i}")
                a(f"  v_dot2_f32_bf16 v{t8+2*i+1}, v{c+i}, s{S_ONEHI}, v{u+2*i+1}")
            for i in range(4):
                a(f"  v_cvt_pk_bf16_f32 v{o+i}, v{t8+2*i}, v{t8+2*i+1}")
            wa = self.V_WA1 if t & 1 else self.V_WA0
            a(f"  ds_write_b128 v{wa}, {vr(o)} offset:{t*3072}")
        d = 24576 if (k % 6) != 5 else -5 * 24576
        a(f"  v_add_u32 v{self.V_WA0}, {d & 0xffffffff:#x}, v{self.V_WA0}\n  v_add_u32 v{self.V_WA1}, {d & 0xffffffff:#x}, v{self.V_WA1}")

    def stream_consts(self):
        a = self.a
        a("  v_and_b32 v240, 15, v0\n  v_lshrrev_b32 v241, 4, v0")
        a("  v_and_b32 v242, 7, v240\n  v_lshlrev_b32 v242, 1, v242")
        a("  v_mul_u32_u24 v243, 768, v240")
        for m in range(4):
            a(f"  v_add_u32 v244, {4*m}, v241\n  v_xor_b32 v244, v244, v242\n  v_lshl_add_u32 v{self.V_RA+m}, v244, 4, v243")
        a("  v_lshrrev_b32 v242, 2, v240\n  v_lshl_add_u32 v242, v241, 2, v242")
        a("  v_mul_u32_u24 v243, 768, v242")
        a("  v_and_b32 v242, 7, v242\n  v_lshlrev_b32 v242, 1, v242")
        a("  v_and_b32 v244, 3, v240\n  v_lshrrev_b32 v245, 1, v244\n  v_and_b32 v244, 1, v244")
        a("  v_lshl_add_u32 v243, v244, 3, v243")
        for tau in range(3):
            a(f"  s_mul_i32 s62, s{S_WAVE}, 3\n  s_add_u32 s62, s62, {tau}")
            a("  s_lshl_b32 s63, s62, 1\n  s_and_b32 s63, s63, 14\n  s_lshr_b32 s62, s62, 3\n  s_lshl_b32 s62, s62, 8")
            a("  v_xor_b32 v244, s63, v242\n  v_or_b32 v244, v244, v245\n  v_lshl_add_u32 v244, v244, 4, v243")
            a(f"  v_add_u32 v{self.V_PA+tau}, s62, v244")
        a(f"  v_lshlrev_b32 v{self.V_L16}, 4, v0")
        a(f"  v_add_u32 v{self.V_PADDR}, {STG}, v{self.V_L16}")
        a(f"  v_lshlrev_b32 v244, 5, v240\n  v_add_u32 v{self.V_MXR}, {MX}, v244")
        a(f"  s_lshl_b32 s62, s{S_WAVE}, 2\n  v_add_u32 v{self.V_MXW}, s62, v{self.V_MXR}")
        for i in range(4): a(f"  v_mov_b32 v{self.V_ONES+i}, 0x3f803f80")
        a(f"  v_mov_b32 v{self.V_ONEF}, 1.0")
        for i in range(12): a(f"  v_mov_b32 v{self.V_ACC+i}, 0")
        a(f"  v_mov_b32 v{self.V_M}, 0xff800000\n  v_mov_b32 v{self.V_L}, 0\n  v_mov_b32 v{self.V_AM}, 0")

    def s_phase(self, s_base, s_bias):
        a = self.a
        A, QK = self.V_A, self.V_QK
        S, SUM, SQ4, SQ, MU, RS, LG = self.V_S, self.V_SUM, self.V_SQ4, self.V_SQ, self.V_MU, self.V_RS, self.V_LG
        for m in range(4): a(f"  v_add_u32 v{self.V_TA+m}, s{s_base}, v{self.V_RA+m}")
        for j in range(12): a(f"  ds_read_b128 {vr(A+4*j)}, v{self.V_TA+(j&3)} offset:{(j>>2)*256}")
        for j in range(12):
            a(f"  s_waitcnt lgkmcnt({11-j})")
            c1 = "0" if j == 0 else vr(S); c2 = "0" if j == 0 else vr(SUM)
            a(f"  v_mfma_f32_16x16x32_bf16 {vr(S)}, {vr(A+4*j)}, {vr(QK+4*j)}, {c1}")
            a(f"  v_mfma_f32_16x16x32_bf16 {vr(SUM)}, {vr(A+4*j)}, {vr(self.V_ONES)}, {c2}")
            for i in range(4):
                c3 = "0" if j == 0 else f"v{SQ4+i}"
                a(f"  v_dot2_f32_bf16 v{SQ4+i}, v{A+4*j+i}, v{A+4*j+i}, {c3}")
        a(f"  v_add_f32 v{SQ4}, v{SQ4}, v{SQ4+1}\n  v_add_f32 v{SQ4+2}, v{SQ4+2}, v{SQ4+3}\n  v_add_f32 v{SQ4}, v{SQ4}, v{SQ4+2}")
        a(f"  v_mfma_f32_16x16x4_f32 {vr(SQ)}, v{SQ4}, v{self.V_ONEF}, 0")
        inv = f32(1.0 / 384.0)
        for r in range(4): a(f"  v_mul_f32 v{MU+r}, {inv}, v{SUM+r}")
        for r in range(4): a(f"  v_fma_f32 v{LG+r}, -v{MU+r}, v{self.V_QS}, v{S+r}")
        for r in range(4): a(f"  v_mul_f32 v{RS+r}, {inv}, v{SQ+r}")
        for r in range(4): a(f"  v_fma_f32 v{RS+r}, -v{MU+r}, v{MU+r}, v{RS+r}")
        for r in range(4): a(f"  v_max_f32 v{RS+r}, 0, v{RS+r}")
        for r in range(4): a(f"  v_add_f32 v{RS+r}, {f32(1e-5)}, v{RS+r}")
        for r in range(4): a(f"  v_rsq_f32 v{RS+r}, v{RS+r}")
        for r in range(4): a(f"  v_fma_f32 v{LG+r}, v{LG+r}, v{RS+r}, s{s_bias}")
        T0, T1 = self.V_T0, self.V_T1
        a(f"  v_max3_f32 v{T0}, v{LG}, v{LG+1}, v{LG+2}\n  v_max_f32 v{T0}, v{T0}, v{LG+3}")
        self.allred_g(T0, T1, "v_max_f32")
        a(f"  ds_write_b32 v{self.V_MXW}, v{T0}")

    def batch(self, T, w0, slot0_s, pair0_imm, last=False, dyn_pair=None):
        a = self.a
        skip1, skip2 = self.lab("nos"), self.lab("nop")
        M, L, AM, AL, T0, T1 = self.V_M, self.V_L, self.V_AM, self.V_AL, self.V_T0, self.V_T1
        LG, RS, MU, MXV = self.V_LG, self.V_RS, self.V_MU, self.V_MXV
        a(f"  s_sub_u32 s72, s{S_WAVE}, {w0}\n  s_cmp_ge_u32 s72, {T}\n  s_cbranch_scc1 {skip1}")
        a(f"  s_mul_i32 s73, s72, {SLOT}\n  s_add_u32 s73, s73, s{slot0_s}")
        a(f"  s_lshr_b32 s62, s72, 1\n  s_add_u32 s62, s62, s74\n  s_cmp_lt_u32 s62, 2048\n  s_cselect_b32 s75, 0, {f32(-1e30)}")
        self.s_phase(73, 75)
        a(f"{skip1}:")
        a("  s_waitcnt lgkmcnt(0)\n  s_barrier")
        if T == 8:
            a(f"  ds_read_b128 {vr(MXV)}, v{self.V_MXR}\n  ds_read_b128 {vr(MXV+4)}, v{self.V_MXR} offset:16\n  s_waitcnt lgkmcnt(0)")
            a(f"  v_max3_f32 v{T0}, v{MXV}, v{MXV+1}, v{MXV+2}\n  v_max3_f32 v{T1}, v{MXV+3}, v{MXV+4}, v{MXV+5}")
            a(f"  v_max3_f32 v{T0}, v{T0}, v{MXV+6}, v{MXV+7}\n  v_max3_f32 v{T0}, v{T0}, v{T1}, v{M}")
        elif T == 4:
            a(f"  ds_read_b128 {vr(MXV)}, v{self.V_MXR} offset:{4*w0}\n  s_waitcnt lgkmcnt(0)")
            a(f"  v_max3_f32 v{T0}, v{MXV}, v{MXV+1}, v{MXV+2}\n  v_max3_f32 v{T0}, v{T0}, v{MXV+3}, v{M}")
        else:
            a(f"  ds_read_b64 {vr(MXV,2)}, v{self.V_MXR} offset:{4*w0}\n  s_waitcnt lgkmcnt(0)")
            a(f"  v_max3_f32 v{T0}, v{MXV}, v{MXV+1}, v{M}")
        a(f"  v_sub_f32 v{AL}, v{M}, v{T0}\n  v_exp_f32 v{AL}, v{AL}\n  v_mov_b32 v{M}, v{T0}")
        a(f"  s_cmp_ge_u32 s72, {T}")
        a(f"  v_mul_f32 v{L}, v{AL}, v{L}\n  v_mul_f32 v{AM}, v{AL}, v{AM}")
        a(f"  s_cbranch_scc1 {skip2}")
        for r in range(4): a(f"  v_sub_f32 v{LG+r}, v{LG+r}, v{M}")
        for r in range(4): a(f"  v_exp_f32 v{LG+r}, v{LG+r}")
        a(f"  v_add_f32 v{T0}, v{LG}, v{LG+1}\n  v_add_f32 v{T1}, v{LG+2}, v{LG+3}\n  v_add_f32 v{T0}, v{T0}, v{T1}\n  v_add_f32 v{L}, v{L}, v{T0}")
        for r in range(4): a(f"  v_mul_f32 v{LG+r}, v{LG+r}, v{RS+r}")
        for r in range(4): a(f"  v_fma_f32 v{AM}, v{LG+r}, v{MU+r}, v{AM}")
        a(f"  v_cvt_pk_bf16_f32 v{MXV}, v{LG}, v{LG+1}\n  v_cvt_pk_bf16_f32 v{MXV+1}, v{LG+2}, v{LG+3}")
        a(f"  s_lshr_b32 s62, s72, 1\n  s_lshl_b32 s62, s62, 10\n  s_and_b32 s63, s72, 1\n  s_lshl_b32 s63, s63, 3\n  s_add_u32 s62, s62, s63")
        a(f"  v_add_u32 v{T1}, s62, v{self.V_PADDR}\n  ds_write_b64 v{T1}, {vr(MXV,2)}")
        a(f"{skip2}:")
        for i in range(12): a(f"  v_mul_f32 v{self.V_ACC+i}, v{AL}, v{self.V_ACC+i}")
        if last:
            a(f"  v_mov_b32 v{MXV+2}, v{L}\n  v_mov_b32 v{MXV+3}, v{AM}")
            self.allred_g(MXV+2, T0, "v_add_f32")
            self.allred_g(MXV+3, T0, "v_add_f32")
            a(f"  v_and_b32 v{T0}, 15, v0\n  v_lshlrev_b32 v{T0}, 6, v{T0}\n  s_lshl_b32 s62, s{S_WAVE}, 3\n  s_add_u32 s62, s62, {RED}")
            a(f"  v_add_u32 v{T0}, s62, v{T0}\n  ds_write_b64 v{T0}, {vr(MXV+2,2)}")
        a("  s_waitcnt lgkmcnt(0)\n  s_barrier")
        A = self.V_A
        npair = T // 2
        def reads(s):
            o = A + 16 * (s & 1)
            a(f"  ds_read_b128 {vr(o)}, v{self.V_PADDR} offset:{s*1024}")
            a(f"  s_add_u32 s62, s{slot0_s}, {s*2*SLOT}")
            for tau in range(3):
                a(f"  v_add_u32 v{self.V_TA+tau}, s62, v{self.V_PA+tau}")
                a(f"  ds_read_b64_tr_b16 {vr(o+4+4*tau,2)}, v{self.V_TA+tau}")
                a(f"  ds_read_b64_tr_b16 {vr(o+6+4*tau,2)}, v{self.V_TA+tau} offset:{SLOT}")
        reads(0)
        for s in range(npair):
            if s + 1 < npair:
                reads(s + 1); base = 7
            else:
                base = 0
            o = A + 16 * (s & 1)
            for tau in range(3):
                a(f"  s_waitcnt lgkmcnt({base + 4 - 2*tau})")
                a(f"  v_mfma_f32_16x16x32_bf16 {vr(self.V_ACC+4*tau)}, {vr(o+4+4*tau)}, {vr(o)}, {vr(self.V_ACC+4*tau)}")

    def streamer(self):
        a = self.a
        a(f"  s_sub_u32 s{S_IDX}, s2, {NH}")
        a("  s_waitcnt lgkmcnt(0)")
        srd(a, R_A, P_F0, F0_BYTES); srd(a, R_B, P_F1, F1_BYTES)
        a(f"  s_cmp_ge_u32 s{S_WAVE}, 6\n  s_cbranch_scc1 L_sgather")
        a(f"  s_cmp_ge_u32 s{S_WAVE}, 3\n  s_cselect_b32 s60, 1, 0\n  s_mul_i32 s62, s60, 3\n  s_sub_u32 s63, s{S_WAVE}, s62")
        a(f"  s_mul_i32 s{self.S_QBASE}, s{S_IDX}, {2*NPAIR}\n  s_add_u32 s{self.S_QBASE}, s{self.S_QBASE}, s60")
        a("  s_lshl_b32 s63, s63, 8")
        a("  v_and_b32 v240, 15, v0\n  v_lshrrev_b32 v241, 4, v0")
        a("  v_lshl_add_u32 v242, v240, 4, s63")
        a(f"  v_mul_u32_u24 v243, 768, v241\n  v_add_u32 v{self.V_OFF1}, v242, v243")
        a(f"  v_lshl_add_u32 v{self.V_OFF0}, v243, 1, v242")
        a(f"  s_mul_i32 s76, s60, {SLOT}\n  s_add_u32 s76, s76, s63")
        self.issue_task(0, 0)
        self.issue_task(1, 1)
        srd(a, R_WS, P_WS, WS_BYTES); srd(a, R_DBG, P_DBG, 256)
        a("  v_and_b32 v240, 15, v0\n  v_lshrrev_b32 v241, 4, v0\n  v_lshlrev_b32 v242, 1, v241\n  v_xor_b32 v242, v240, v242")
        a(f"  v_mul_u32_u24 v243, 768, v241\n  v_add_u32 v243, s76, v243")
        a(f"  v_lshl_add_u32 v{self.V_WA0}, v242, 4, v243\n  v_xor_b32 v242, 8, v242\n  v_lshl_add_u32 v{self.V_WA1}, v242, 4, v243")
        self.stream_consts()
        for k in range(6):
            self.fuse_task(k, k & 1, 5)
            self.issue_task(k + 2, k & 1)
            if k in (0, 2): self.stamp(1 + k // 2)
        a("  s_waitcnt lgkmcnt(0)")
        self.stamp(3)
        a("  s_branch L_sb0")
        a("L_sgather:")
        a(f"  v_mov_b32 v{self.V_OFF1}, 0\n  v_mov_b32 v{self.V_OFF0}, 0\n  v_mov_b32 v{self.V_WA0}, 0\n  v_mov_b32 v{self.V_WA1}, 0\n  s_mov_b32 s{self.S_QBASE}, 0")
        srd(a, R_WS, P_WS, WS_BYTES); srd(a, R_DBG, P_DBG, 256)
        self.stream_consts()
        self.wait_count()
        self.stamp(1)
        a(f"  s_sub_u32 s62, s{S_WAVE}, 6\n  s_mul_i32 s62, s62, 6144\n  s_add_u32 s63, s62, {RQK_OFF}\n  s_add_u32 s64, s63, 4096")
        a(f"  s_mov_b32 s{S_SPIN}, 0")
        lp, dn = self.lab("qk"), self.lab("qkd")
        a(f"{lp}:")
        for j in range(6):
            so = "s63" if j < 4 else "s64"
            a(f"  buffer_load_dwordx4 {vr(self.V_A+4*j)}, v{self.V_L16}, s[{R_WS}:{R_WS+3}], {so} offen offset:{(j&3)*1024} sc1")
        self.spin_guard(dn)
        a("  s_waitcnt vmcnt(0)")
        self.valid_check(self.V_A, 24, self.V_T0, lp)
        a(f"{dn}:\n  s_waitcnt vmcnt(0)")
        a(f"  v_add_u32 v{self.V_T0}, s62, v{self.V_PADDR}")
        for j in range(6):
            a(f"  ds_write_b128 v{self.V_T0}, {vr(self.V_A+4*j)} offset:{j*1024}")
        a(f"  v_mov_b32 v{self.V_T0}, {NONCE_LDS}\n  v_mov_b32 v{self.V_T1}, s{S_NONCE}\n  ds_write_b32 v{self.V_T0}, v{self.V_T1}")
        a("  s_waitcnt lgkmcnt(0)")
        self.stamp(3)
        a("L_sb0:\n  s_barrier")
        for j in range(12):
            a(f"  ds_read_b128 {vr(self.V_QK+4*j)}, v{self.V_PADDR} offset:{j*1024}")
        a(f"  v_mov_b32 v{self.V_T0}, {NONCE_LDS}\n  ds_read_b32 v{self.V_T1}, v{self.V_T0}")
        a("  s_waitcnt lgkmcnt(0)")
        a(f"  v_readfirstlane_b32 s{S_NONCE}, v{self.V_T1}")
        SQ4 = self.V_SQ4
        for j in range(12):
            for i in range(4):
                c3 = "0" if j == 0 else f"v{SQ4+i}"
                a(f"  v_dot2_f32_bf16 v{SQ4+i}, v{self.V_QK+4*j+i}, v{self.V_ONES}, {c3}")
        a(f"  v_add_f32 v{SQ4}, v{SQ4}, v{SQ4+1}\n  v_add_f32 v{SQ4+2}, v{SQ4+2}, v{SQ4+3}\n  v_add_f32 v{self.V_QS}, v{SQ4}, v{SQ4+2}")
        self.allred_g(self.V_QS, self.V_T0, "v_add_f32")
        a(f"  s_mul_i32 s77, s{S_IDX}, {NPAIR}")
        self.stamp(4)
        a("  s_mov_b32 s78, 0\n  s_mov_b32 s74, s77")
        self.batch(8, 0, 78, 0)
        a(f"  s_mov_b32 s78, {8*SLOT}\n  s_add_u32 s74, s77, 4")
        self.batch(4, 0, 78, 0)
        self.stamp(5)
        for k in range(6, 9):
            sk = self.lab("nof")
            a(f"  s_cmp_ge_u32 s{S_WAVE}, 6\n  s_cbranch_scc1 {sk}")
            self.fuse_task(k, k & 1, 5 if k < 8 else 0)
            if k + 2 <= 8: self.issue_task(k + 2, k & 1)
            a(f"{sk}:")
            a("  s_waitcnt lgkmcnt(0)\n  s_barrier")
            if k == 8: self.stamp(6)
            a(f"  s_mov_b32 s78, {(k-6)*2*SLOT}\n  s_add_u32 s74, s77, {k}")
            self.batch(2, 6, 78, 0, last=(k == 8))
        self.stamp(7)
        self.publish()
        self.stamp(8)
        a(f"  s_cmp_ge_u32 s{S_IDX}, 128\n  s_cbranch_scc1 L_sdone")
        self.reducer()
        a("L_sdone:")
        self.stamp(9)
        self.stamp_flush()
        a("  s_endpgm")

    def publish(self):
        a = self.a
        MXV, T0, T1, T2 = self.V_MXV, self.V_T0, self.V_T1, self.V_T2
        A = self.V_A
        a(f"  v_and_b32 v{T0}, 15, v0\n  v_lshlrev_b32 v{T1}, 6, v{T0}\n  v_add_u32 v{T1}, {RED}, v{T1}")
        for i in range(4): a(f"  ds_read_b128 {vr(A+4*i)}, v{T1} offset:{16*i}")
        a(f"  v_lshlrev_b32 v{T2}, 3, v{T0}\n  v_add_u32 v{T2}, s{S_WAVE}, v{T2}")
        a(f"  s_mov_b32 s62, {PART_STRIDE}\n  v_mul_lo_u32 v{T2}, v{T2}, s62")
        a(f"  v_lshrrev_b32 v{T1}, 4, v0\n  v_lshl_add_u32 v{T2}, v{T1}, 4, v{T2}")
        a(f"  s_lshl_b32 s62, s{S_IDX}, 7\n  s_add_u32 s62, s62, {PART_OFF}")
        a("  s_waitcnt lgkmcnt(0)")
        for o in (0, 1):
            a(f"  v_add_f32 v{A+o}, v{A+o}, v{A+2+o}\n  v_add_f32 v{A+4+o}, v{A+4+o}, v{A+6+o}\n  v_add_f32 v{A+8+o}, v{A+8+o}, v{A+10+o}\n  v_add_f32 v{A+12+o}, v{A+12+o}, v{A+14+o}")
            a(f"  v_add_f32 v{A+o}, v{A+o}, v{A+4+o}\n  v_add_f32 v{A+8+o}, v{A+8+o}, v{A+12+o}\n  v_add_f32 v{A+o}, v{A+o}, v{A+8+o}")
        a(f"  v_rcp_f32 v{A+2}, v{A}\n  v_log_f32 v{A+3}, v{A}")
        ACC = self.V_ACC
        for i in range(12): a(f"  v_sub_f32 v{ACC+i}, v{ACC+i}, v{A+1}")
        for i in range(12): a(f"  v_mul_f32 v{ACC+i}, v{A+2}, v{ACC+i}")
        U = A + 8
        for i in range(3): a(f"  v_cvt_pk_f16_f32 v{U+i}, v{ACC+2*i}, v{ACC+2*i+1}")
        for i in range(3): a(f"  v_cvt_pk_f16_f32 v{U+4+i}, v{ACC+6+2*i}, v{ACC+7+2*i}")
        a(f"  v_mov_b32 v{U+3}, s{S_NONCE}\n  v_mov_b32 v{U+7}, s{S_NONCE}")
        a(f"  buffer_store_dwordx4 {vr(U)}, v{T2}, s[{R_WS}:{R_WS+3}], s62 offen sc1")
        a(f"  buffer_store_dwordx4 {vr(U+4)}, v{T2}, s[{R_WS}:{R_WS+3}], s62 offen offset:64 sc1")
        sk = self.lab("nolse")
        a(f"  s_cmp_lg_u32 s{S_WAVE}, 0\n  s_cbranch_scc1 {sk}")
        a(f"  v_add_f32 v{A+4}, v{self.V_M}, v{A+3}\n  v_mov_b32 v{A+5}, s{S_NONCE}")
        a(f"  v_lshlrev_b32 v{T1}, 11, v{T0}\n  s_lshl_b32 s62, s{S_IDX}, 3\n  s_add_u32 s62, s62, {LSE_OFF}")
        a("  v_cmp_gt_u32 vcc, 16, v0\n  s_and_saveexec_b64 s[64:65], vcc")
        a(f"  buffer_store_dwordx2 {vr(A+4,2)}, v{T1}, s[{R_WS}:{R_WS+3}], s62 offen sc1")
        a("  s_mov_b64 exec, s[64:65]")
        a(f"{sk}:")

    def reducer(self):
        a = self.a
        D = 16
        E = 32
        W = 40
        V = 44
        AD, AE, T0, T1, VM = 52, 53, 54, 55, 56
        a(f"  v_lshrrev_b32 v{T0}, 3, v0\n  s_lshl_b32 s62, s{S_WAVE}, 5\n  v_add_u32 v{VM}, s62, v{T0}")
        a(f"  v_and_b32 v{T1}, 7, v0\n  v_lshlrev_b32 v{T1}, 4, v{T1}\n  v_lshl_add_u32 v{AD}, v{VM}, 7, v{T1}")
        a(f"  v_lshlrev_b32 v{AE}, 3, v{VM}")
        a(f"  s_mul_i32 s62, s{S_IDX}, {PART_STRIDE}\n  s_add_u32 s62, s62, {PART_OFF}")
        a(f"  s_lshr_b32 s63, s{S_IDX}, 3\n  s_lshl_b32 s63, s63, 11\n  s_add_u32 s63, s63, {LSE_OFF}")
        masks = (64, 66, 68, 72)
        for it in range(4):
            a(f"  v_add_u32 v{T0}, {8*it}, v{VM}\n  v_cmp_gt_u32 s[{masks[it]}:{masks[it]+1}], {NS}, v{T0}" if False else
              f"  v_add_u32 v{T0}, {8*it}, v{VM}\n  s_mov_b32 s74, {NS}\n  v_cmp_gt_u32 s[{masks[it]}:{masks[it]+1}], s74, v{T0}")
        lp, dn = self.lab("red"), self.lab("redd")
        a(f"  s_mov_b32 s{S_SPIN}, 0")
        a(f"{lp}:")
        for it in range(4):
            a(f"  buffer_load_dwordx4 {vr(D+4*it)}, v{AD}, s[{R_WS}:{R_WS+3}], s62 offen offset:{it*1024} sc1")
            a(f"  buffer_load_dwordx2 {vr(E+2*it,2)}, v{AE}, s[{R_WS}:{R_WS+3}], s63 offen offset:{it*64} sc1")
        self.spin_guard(dn)
        a("  s_waitcnt vmcnt(0)")
        a("  s_mov_b64 s[74:75], 0")
        for it in range(4):
            a(f"  v_cmp_ne_u32 vcc, s{S_NONCE}, v{D+4*it+3}\n  v_cmp_ne_u32 s[76:77], s{S_NONCE}, v{E+2*it+1}")
            a(f"  s_or_b64 s[76:77], s[76:77], vcc\n  s_and_b64 s[76:77], s[76:77], s[{masks[it]}:{masks[it]+1}]\n  s_or_b64 s[74:75], s[74:75], s[76:77]")
        a(f"  s_cmp_lg_u64 s[74:75], 0\n  s_cbranch_scc1 {lp}")
        a(f"{dn}:\n  s_waitcnt vmcnt(0)")
        a(f"  v_mov_b32 v{T1}, 0xff800000")
        for it in range(4):
            a(f"  v_cndmask_b32 v{E+2*it}, v{T1}, v{E+2*it}, s[{masks[it]}:{masks[it]+1}]")
        a(f"  v_max3_f32 v{T0}, v{E}, v{E+2}, v{E+4}\n  v_max_f32 v{T0}, v{T0}, v{E+6}")
        a(f"  v_max_f32_dpp v{T0}, v{T0}, v{T0} row_ror:8 row_mask:0xf bank_mask:0xf")
        self.allred_g(T0, T1, "v_max_f32")
        for it in range(4): a(f"  v_sub_f32 v{W+it}, v{E+2*it}, v{T0}")
        for it in range(4): a(f"  v_exp_f32 v{W+it}, v{W+it}")
        for it in range(4):
            for q in range(3):
                a(f"  v_cndmask_b32 v{D+4*it+q}, 0, v{D+4*it+q}, s[{masks[it]}:{masks[it]+1}]")
        for it in range(4):
            for q in range(3):
                c0 = "0" if it == 0 else f"v{V+2*q}"; c1 = "0" if it == 0 else f"v{V+2*q+1}"
                a(f"  v_fma_mix_f32 v{V+2*q}, v{D+4*it+q}, v{W+it}, {c0} op_sel_hi:[1,0,0]")
                a(f"  v_fma_mix_f32 v{V+2*q+1}, v{D+4*it+q}, v{W+it}, {c1} op_sel:[1,0,0] op_sel_hi:[1,0,0]")
        a(f"  v_add_f32 v{V+6}, v{W}, v{W+1}\n  v_add_f32 v{V+7}, v{W+2}, v{W+3}\n  v_add_f32 v{V+6}, v{V+6}, v{V+7}\n  v_mov_b32 v{V+7}, 0")
        for x, y in ((0, 2), (1, 3), (4, 6), (5, 7)):
            a(f"  v_permlane32_swap_b32 v{V+x}, v{V+y}\n  v_add_f32 v{V+x}, v{V+x}, v{V+y}")
        for x, y in ((0, 4), (1, 5)):
            a(f"  v_permlane16_swap_b32 v{V+x}, v{V+y}\n  v_add_f32 v{V+x}, v{V+x}, v{V+y}")
        for x in (0, 1):
            a(f"  v_add_f32_dpp v{V+x}, v{V+x}, v{V+x} row_ror:8 row_mask:0xf bank_mask:0xf")
        a(f"  v_lshrrev_b32 v{T1}, 4, v0\n  v_lshlrev_b32 v{T1}, 3, v{T1}\n  v_and_b32 v{AD}, 7, v0\n  v_add_u32 v{T1}, v{T1}, v{AD}")
        a(f"  s_lshl_b32 s62, s{S_WAVE}, 8\n  s_add_u32 s62, s62, {RED2}\n  v_lshlrev_b32 v{AE}, 3, v{T1}\n  v_add_u32 v{AD}, s62, v{AE}")
        a(f"  ds_write_b64 v{AD}, {vr(V,2)}")
        a(f"  s_lshl_b32 s62, s{S_WAVE}, 2\n  s_add_u32 s62, s62, {MXW}\n  v_mov_b32 v{AD}, s62\n  ds_write_b32 v{AD}, v{T0}")
        a("  s_waitcnt lgkmcnt(0)\n  s_barrier")
        a(f"  s_cmp_lg_u32 s{S_WAVE}, 0\n  s_cbranch_scc1 L_sdone")
        a(f"  v_add_u32 v{AE}, {RED2}, v{AE}\n  v_mov_b32 v{AD}, {MXW}")
        a(f"  ds_read_b128 {vr(W)}, v{AD}\n  ds_read_b128 {vr(W+4)}, v{AD} offset:16")
        for w in range(8): a(f"  ds_read_b64 {vr(D+2*w,2)}, v{AE} offset:{256*w}")
        a("  s_waitcnt lgkmcnt(8)")
        a(f"  v_max3_f32 v{T0}, v{W}, v{W+1}, v{W+2}\n  v_max3_f32 v{AD}, v{W+3}, v{W+4}, v{W+5}\n  v_max3_f32 v{T0}, v{T0}, v{W+6}, v{W+7}\n  v_max_f32 v{T0}, v{T0}, v{AD}")
        for w in range(8): a(f"  v_sub_f32 v{W+w}, v{W+w}, v{T0}")
        for w in range(8): a(f"  v_exp_f32 v{W+w}, v{W+w}")
        a("  s_waitcnt lgkmcnt(0)")
        a(f"  v_mul_f32 v{E}, v{D}, v{W}\n  v_mul_f32 v{E+1}, v{D+1}, v{W}")
        for w in range(1, 8):
            a(f"  v_fma_f32 v{E}, v{D+2*w}, v{W+w}, v{E}\n  v_fma_f32 v{E+1}, v{D+2*w+1}, v{W+w}, v{E+1}")
        a(f"  v_readlane_b32 s62, v{E}, 48")
        a(f"  v_rcp_f32 v{T0}, s62")
        a(f"  v_mul_f32 v{E}, v{E}, v{T0}\n  v_mul_f32 v{E+1}, v{E+1}, v{T0}")
        a(f"  v_cvt_pk_bf16_f32 v{E}, v{E}, v{E+1}\n  v_min_u32 v{E}, -2, v{E}")
        a(f"  v_lshrrev_b32 v{T0}, 4, v0")
        a(f"  v_and_b32 v{T1}, 1, v{T0}\n  v_lshlrev_b32 v{T1}, 1, v{T1}\n  v_lshrrev_b32 v{AD}, 1, v{T0}\n  v_add_u32 v{T1}, v{T1}, v{AD}")
        a(f"  v_bfe_u32 v{AD}, v0, 2, 1\n  v_mul_u32_u24 v{AD}, 3, v{AD}\n  v_add_u32 v{T1}, v{T1}, v{AD}")
        a(f"  v_lshrrev_b32 v{AD}, 1, v{T1}\n  v_lshlrev_b32 v{AD}, 4, v{AD}\n  v_and_b32 v{T1}, 1, v{T1}\n  v_lshl_add_u32 v{AD}, v{T1}, 1, v{AD}")
        a(f"  v_and_b32 v{T1}, 3, v0\n  v_lshl_add_u32 v{AD}, v{T1}, 2, v{AD}")
        a(f"  s_and_b32 s62, s{S_IDX}, 7\n  s_mul_i32 s62, s62, 48\n  v_add_u32 v{AD}, s62, v{AD}")
        a(f"  v_lshrrev_b32 v{T1}, 5, v{AD}\n  v_lshlrev_b32 v{T1}, 10, v{T1}")
        a(f"  v_bfe_u32 v{AE}, v{AD}, 3, 2\n  v_lshl_add_u32 v{T1}, v{AE}, 8, v{T1}")
        a(f"  v_and_b32 v{AD}, 7, v{AD}\n  v_lshl_add_u32 v{T1}, v{AD}, 1, v{T1}")
        a(f"  s_lshr_b32 s62, s{S_IDX}, 3\n  s_lshl_b32 s62, s62, 4\n  s_add_u32 s62, s62, {RCTX_OFF}")
        a(f"  v_and_b32 v{AD}, 8, v0\n  v_cmp_eq_u32 vcc, 0, v{AD}\n  v_cmp_gt_u32 s[64:65], 48, v0\n  s_and_b64 vcc, vcc, s[64:65]")
        a("  s_and_saveexec_b64 s[66:67], vcc")
        a(f"  buffer_store_dword v{E}, v{T1}, s[{R_WS}:{R_WS+3}], s62 offen sc1")
        a("  s_mov_b64 exec, s[66:67]")

    def helper(self):
        a = self.a
        WQ_LDS, WO_LDS, WT_LDS = 0, 12288, 24576
        L16, N, Gq, T0, T1, T2, T3 = 1, 2, 3, 4, 5, 6, 7
        QF, WKF, AF, TR = 16, 64, 112, 160
        D1, D2, ST, ONES = 208, 212, 216, 224
        a("L_helper:")
        a(f"  s_mov_b32 s{S_IDX}, s2")
        a(f"  v_lshlrev_b32 v{L16}, 4, v0\n  v_and_b32 v{N}, 15, v0\n  v_lshrrev_b32 v{Gq}, 4, v0")
        a("  s_waitcnt lgkmcnt(0)")
        srd(a, R_WS, P_WS, WS_BYTES); srd(a, R_DBG, P_DBG, 256)
        srd(a, R_A, P_Q, Q_BYTES); srd(a, R_B, P_WQ, W_BYTES); srd(a, R_C, P_WK, W_BYTES)
        srd(a, R_D, P_WV, W_BYTES); srd(a, R_E, P_WO, W_BYTES); srd(a, R_F, P_OUT, Q_BYTES)
        FL = 8
        a(f"  s_lshr_b32 s60, s{S_IDX}, 1\n  s_lshl_b32 s60, s60, 10\n  s_and_b32 s61, s{S_IDX}, 1\n  s_lshl_b32 s61, s61, 9\n  s_add_u32 s60, s60, s61")
        a(f"  v_lshrrev_b32 v{T0}, 1, v{Gq}\n  v_lshlrev_b32 v{T0}, 8, v{T0}\n  v_lshl_add_u32 v{T0}, v{N}, 4, v{T0}")
        a(f"  v_and_b32 v{T1}, 1, v{Gq}\n  v_lshl_add_u32 v{T0}, v{T1}, 3, v{T0}\n  v_add_u32 v{FL}, s60, v{T0}")
        RM = 9
        a(f"  v_mul_u32_u24 v{RM}, 768, v{N}\n  v_lshl_add_u32 v{RM}, v{Gq}, 4, v{RM}")
        TA = 10
        a(f"  v_lshrrev_b32 v{T0}, 2, v{N}\n  v_lshl_add_u32 v{T0}, v{Gq}, 3, v{T0}\n  v_lshlrev_b32 v{T0}, 5, v{T0}")
        a(f"  v_and_b32 v{T1}, 3, v{N}\n  v_lshl_add_u32 v{TA}, v{T1}, 3, v{T0}")
        DS = 11
        a(f"  v_lshrrev_b32 v{T0}, 1, v0\n  v_mul_u32_u24 v{T0}, 768, v{T0}\n  v_and_b32 v{T1}, 1, v0\n  v_lshl_add_u32 v{T0}, v{T1}, 4, v{T0}")
        a(f"  s_lshl_b32 s61, s{S_IDX}, 5\n  v_add_u32 v{DS}, s61, v{T0}")
        for i in range(4): a(f"  v_mov_b32 v{ONES+i}, 0x3f803f80")
        a(f"  s_cmp_eq_u32 s{S_WAVE}, 0\n  s_cbranch_scc1 L_h0")
        a(f"  s_cmp_eq_u32 s{S_WAVE}, 1\n  s_cbranch_scc1 L_h1")
        a(f"  s_cmp_eq_u32 s{S_WAVE}, 2\n  s_cbranch_scc0 L_hbar")
        for k in range(12):
            a(f"  s_mov_b32 m0, {WO_LDS + k*1024}\n  s_mov_b32 s62, {k*32*768}")
            a(f"  buffer_load_dwordx4 v{DS}, s[{R_E}:{R_E+3}], s62 offen lds")
        a("  s_waitcnt vmcnt(0)\n  s_branch L_hbar")
        a("L_h1:")
        a(f"  v_mov_b32 v{T0}, -1\n  v_mov_b32 v{T0+1}, -1\n  v_mov_b32 v{T0+2}, -1\n  v_mov_b32 v{T0+3}, -1\n  v_mov_b32 v12, 0")
        a(f"  s_mov_b32 s62, {RQ_OFF}\n  s_mov_b32 s63, {RQK_OFF}")
        a(f"  buffer_store_dwordx2 {vr(T0,2)}, v{FL}, s[{R_WS}:{R_WS+3}], s62 offen sc1")
        a(f"  buffer_store_dwordx2 {vr(T0,2)}, v{FL}, s[{R_WS}:{R_WS+3}], s63 offen sc1")
        a(f"  s_lshl_b32 s62, s{S_IDX}, 9\n  s_add_u32 s62, s62, {RCTX_OFF}")
        a("  v_cmp_gt_u32 vcc, 32, v0\n  s_and_saveexec_b64 s[64:65], vcc")
        a(f"  buffer_store_dwordx4 {vr(T0)}, v{L16}, s[{R_WS}:{R_WS+3}], s62 offen sc1")
        a("  s_mov_b64 exec, s[64:65]")
        nn = self.lab("nononce")
        a(f"  s_cmp_lg_u32 s{S_IDX}, 0\n  s_cbranch_scc1 {nn}")
        a(f"  buffer_load_dword v13, v12, s[{R_WS}:{R_WS+3}], 0 offen sc1\n  s_waitcnt vmcnt(0)\n  v_add_u32 v13, 1, v13")
        a(f"  buffer_store_dword v13, v12, s[{R_WS}:{R_WS+3}], 0 offen sc1")
        a(f"  buffer_store_dword v13, v12, s[{R_DBG}:{R_DBG+3}], 0 offen offset:4 sc1")
        a(f"{nn}:")
        a("  s_waitcnt vmcnt(0)")
        a("  v_mov_b32 v13, 1\n  v_cmp_eq_u32 vcc, 0, v0\n  s_and_saveexec_b64 s[64:65], vcc")
        a(f"  buffer_atomic_add v13, v12, s[{R_DBG}:{R_DBG+3}], 0 offen sc1")
        a("  s_mov_b64 exec, s[64:65]\n  s_branch L_hbar")
        a("L_h0:")
        for j in range(12):
            a(f"  buffer_load_dwordx4 {vr(QF+4*j)}, v{RM}, s[{R_A}:{R_A+3}], 0 offen offset:{j*64}")
        for k in range(12):
            a(f"  s_mov_b32 m0, {WQ_LDS + k*1024}\n  s_mov_b32 s62, {k*32*768}")
            a(f"  buffer_load_dwordx4 v{DS}, s[{R_B}:{R_B+3}], s62 offen lds")
        a(f"  s_mul_i32 s62, s{S_IDX}, {16*768}")
        for j in range(12):
            a(f"  buffer_load_dwordx4 {vr(WKF+4*j)}, v{RM}, s[{R_C}:{R_C+3}], s62 offen offset:{j*64}")
        a("  s_waitcnt vmcnt(24)")
        for j in range(12):
            for i in range(4):
                c0 = "0" if j == 0 else f"v{ST+i}"; c1 = "0" if j == 0 else f"v{ST+4+i}"
                a(f"  v_dot2_f32_bf16 v{ST+i}, v{QF+4*j+i}, v{ONES}, {c0}")
                a(f"  v_dot2_f32_bf16 v{ST+4+i}, v{QF+4*j+i}, v{QF+4*j+i}, {c1}")
        a(f"  v_add_f32 v{ST}, v{ST}, v{ST+1}\n  v_add_f32 v{ST+2}, v{ST+2}, v{ST+3}\n  v_add_f32 v{ST}, v{ST}, v{ST+2}")
        a(f"  v_add_f32 v{ST+4}, v{ST+4}, v{ST+5}\n  v_add_f32 v{ST+6}, v{ST+6}, v{ST+7}\n  v_add_f32 v{ST+4}, v{ST+4}, v{ST+6}")
        self.allred_g(ST, T0, "v_add_f32")
        self.allred_g(ST+4, T0, "v_add_f32")
        inv = f32(1.0 / 384.0)
        a(f"  v_mul_f32 v{ST}, {inv}, v{ST}\n  v_mul_f32 v{ST+4}, {inv}, v{ST+4}\n  v_fma_f32 v{ST+4}, -v{ST}, v{ST}, v{ST+4}")
        a(f"  v_max_f32 v{ST+4}, 0, v{ST+4}\n  v_add_f32 v{ST+4}, {f32(1e-5)}, v{ST+4}\n  v_rsq_f32 v{ST+4}, v{ST+4}")
        a("  s_waitcnt vmcnt(12)")
        self.stamp(1)
        for j in range(12):
            a(f"  ds_read_b64_tr_b16 {vr(TR+4*j,2)}, v{TA} offset:{WQ_LDS + j*1024}")
            a(f"  ds_read_b64_tr_b16 {vr(TR+4*j+2,2)}, v{TA} offset:{WQ_LDS + j*1024 + 128}")
            if j == 6: a("  s_waitcnt lgkmcnt(0)")
        a("  s_waitcnt lgkmcnt(0)")
        for j in range(12):
            c1 = "0" if j == 0 else vr(D1); c2 = "0" if j == 0 else vr(D2)
            a(f"  v_mfma_f32_16x16x32_bf16 {vr(D1)}, {vr(TR+4*j)}, {vr(QF+4*j)}, {c1}")
            a(f"  v_mfma_f32_16x16x32_bf16 {vr(D2)}, {vr(TR+4*j)}, {vr(ONES)}, {c2}")
        for r in range(4): a(f"  v_fma_f32 v{D1+r}, -v{ST}, v{D2+r}, v{D1+r}")
        for r in range(4): a(f"  v_mul_f32 v{D1+r}, v{ST+4}, v{D1+r}")
        a(f"  v_cvt_pk_bf16_f32 v{D2}, v{D1}, v{D1+1}\n  v_cvt_pk_bf16_f32 v{D2+1}, v{D1+2}, v{D1+3}")
        a(f"  v_min_u32 v{D2}, -2, v{D2}\n  v_min_u32 v{D2+1}, -2, v{D2+1}")
        self.wait_count()
        a(f"  s_mov_b32 s62, {RQ_OFF}")
        a(f"  buffer_store_dwordx2 {vr(D2,2)}, v{FL}, s[{R_WS}:{R_WS+3}], s62 offen sc1")
        self.stamp(2)
        lp, dn = self.lab("q"), self.lab("qd")
        a(f"  s_mov_b32 s{S_SPIN}, 0\n  s_mov_b32 s63, {RQ_OFF+4096}\n  s_mov_b32 s64, {RQ_OFF+8192}")
        a(f"{lp}:")
        for j in range(12):
            so = ("s62", "s63", "s64")[j >> 2]
            a(f"  buffer_load_dwordx4 {vr(AF+4*j)}, v{L16}, s[{R_WS}:{R_WS+3}], {so} offen offset:{(j&3)*1024} sc1")
        self.spin_guard(dn)
        a("  s_waitcnt vmcnt(0)")
        self.valid_check(AF, 48, T0, lp)
        a(f"{dn}:\n  s_waitcnt vmcnt(0)")
        self.stamp(3)
        for j in range(12):
            c1 = "0" if j < 2 else vr(D1 if j % 2 == 0 else D2)
            a(f"  v_mfma_f32_16x16x32_bf16 {vr(D1 if j % 2 == 0 else D2)}, {vr(WKF+4*j)}, {vr(AF+4*j)}, {c1}")
        sc = f32(384 ** -0.5 * LOG2E)
        for r in range(4): a(f"  v_add_f32 v{D1+r}, v{D1+r}, v{D2+r}")
        for r in range(4): a(f"  v_mul_f32 v{D1+r}, {sc}, v{D1+r}")
        a(f"  v_cvt_pk_bf16_f32 v{D2}, v{D1}, v{D1+1}\n  v_cvt_pk_bf16_f32 v{D2+1}, v{D1+2}, v{D1+3}")
        a(f"  v_min_u32 v{D2}, -2, v{D2}\n  v_min_u32 v{D2+1}, -2, v{D2+1}")
        a(f"  s_mov_b32 s62, {RQK_OFF}")
        a(f"  buffer_store_dwordx2 {vr(D2,2)}, v{FL}, s[{R_WS}:{R_WS+3}], s62 offen sc1")
        self.stamp(4)
        a("L_hbar:\n  s_barrier")
        for j in range(12):
            a(f"  ds_read_b64_tr_b16 {vr(TR+4*j,2)}, v{TA} offset:{WO_LDS + j*1024}")
            a(f"  ds_read_b64_tr_b16 {vr(TR+4*j+2,2)}, v{TA} offset:{WO_LDS + j*1024 + 128}")
            if j == 6: a("  s_waitcnt lgkmcnt(0)")
        WV = 16
        a(f"  s_mul_i32 s62, s{S_WAVE}, {48*768}")
        for tau in range(3):
            for j in range(12):
                a(f"  buffer_load_dwordx4 {vr(WV+48*tau+4*j)}, v{RM}, s[{R_D}:{R_D+3}], s62 offen offset:{j*64}")
            a(f"  s_add_u32 s62, s62, {16*768}")
        a("  s_waitcnt lgkmcnt(0)")
        a(f"  v_mul_u32_u24 v{T0}, 784, v{N}\n  v_lshl_add_u32 v{T0}, v{Gq}, 3, v{T0}\n  s_mul_i32 s62, s{S_WAVE}, 96\n  s_add_u32 s62, s62, {WT_LDS}\n  v_add_u32 v{T0}, s62, v{T0}")
        for tau in range(3):
            a(f"  s_waitcnt vmcnt({24-12*tau})")
            for j in range(12):
                c1 = "0" if j == 0 else vr(D1)
                a(f"  v_mfma_f32_16x16x32_bf16 {vr(D1)}, {vr(WV+48*tau+4*j)}, {vr(TR+4*j)}, {c1}")
            a(f"  v_cvt_pk_bf16_f32 v{D2}, v{D1}, v{D1+1}\n  v_cvt_pk_bf16_f32 v{D2+1}, v{D1+2}, v{D1+3}")
            a(f"  ds_write_b64 v{T0}, {vr(D2,2)} offset:{tau*32}")
        a("  s_waitcnt lgkmcnt(0)\n  s_barrier")
        self.stamp(5)
        a(f"  s_cmp_lg_u32 s{S_WAVE}, 0\n  s_cbranch_scc1 L_hdone")
        a(f"  v_mul_u32_u24 v{T0}, 784, v{N}\n  v_lshl_add_u32 v{T0}, v{Gq}, 4, v{T0}\n  v_add_u32 v{T0}, {WT_LDS}, v{T0}")
        for j in range(12): a(f"  ds_read_b128 {vr(WKF+4*j)}, v{T0} offset:{j*64}")
        a(f"  v_mul_u32_u24 v{T1}, 768, v{N}\n  v_lshl_add_u32 v{T1}, v{Gq}, 3, v{T1}\n  s_lshl_b32 s61, s{S_IDX}, 5")
        a(f"  buffer_load_dwordx2 {vr(QF,2)}, v{T1}, s[{R_A}:{R_A+3}], s61 offen")
        a("  s_waitcnt vmcnt(0) lgkmcnt(0)")
        a(f"  v_lshlrev_b32 v{QF+4}, 16, v{QF}\n  v_and_b32 v{QF+5}, 0xffff0000, v{QF}\n  v_lshlrev_b32 v{QF+6}, 16, v{QF+1}\n  v_and_b32 v{QF+7}, 0xffff0000, v{QF+1}")
        lp, dn = self.lab("c"), self.lab("cd")
        a(f"  s_mov_b32 s{S_SPIN}, 0\n  s_mov_b32 s62, {RCTX_OFF}\n  s_mov_b32 s63, {RCTX_OFF+4096}\n  s_mov_b32 s64, {RCTX_OFF+8192}")
        a(f"{lp}:")
        for j in range(12):
            so = ("s62", "s63", "s64")[j >> 2]
            a(f"  buffer_load_dwordx4 {vr(AF+4*j)}, v{L16}, s[{R_WS}:{R_WS+3}], {so} offen offset:{(j&3)*1024} sc1")
        self.spin_guard(dn)
        a("  s_waitcnt vmcnt(0)")
        self.valid_check(AF, 48, T0, lp)
        a(f"{dn}:\n  s_waitcnt vmcnt(0)")
        self.stamp(6)
        for j in range(12):
            c1 = vr(QF+4) if j == 0 else ("0" if j == 1 else vr(D1 if j % 2 == 0 else D2))
            a(f"  v_mfma_f32_16x16x32_bf16 {vr(D1 if j % 2 == 0 else D2)}, {vr(WKF+4*j)}, {vr(AF+4*j)}, {c1}")
        for r in range(4): a(f"  v_add_f32 v{D1+r}, v{D1+r}, v{D2+r}")
        a(f"  v_cvt_pk_bf16_f32 v{D2}, v{D1}, v{D1+1}\n  v_cvt_pk_bf16_f32 v{D2+1}, v{D1+2}, v{D1+3}")
        a(f"  buffer_store_dwordx2 {vr(D2,2)}, v{T1}, s[{R_F}:{R_F+3}], s61 offen")
        a("L_hdone:")
        self.stamp(9)
        self.stamp_flush()
        a("  s_endpgm")

    def build(self):
        a = self.a
        hdr = open("standalone__detection_seg_dino__vision.s.ref").read().split("\n")
        for line in hdr:
            if line.startswith("; @launch"): break
            a(line)
        a("; @" + f"launch grid=(256,1,1) block=(512,1,1) lds={LDS_BYTES}")
        a('.amdgcn_target "amdgcn-amd-amdhsa--gfx950"\n.text')
        a(f".globl {KNAME}\n.p2align 8\n.type {KNAME},@function\n{KNAME}:")
        n0 = len(a.L)
        self.prologue()
        self.streamer()
        self.helper()
        a("L_end:\n  s_endpgm")
        body, added = hazard.fix(a.L[n0:])
        a.L = a.L[:n0] + body
        a('.section .rodata,"a"\n.p2align 6')
        a(f".amdhsa_kernel {KNAME}")
        a("  .amdhsa_next_free_vgpr 256\n  .amdhsa_next_free_sgpr 102\n  .amdhsa_accum_offset 256")
        a("  .amdhsa_group_segment_fixed_size 0\n  .amdhsa_kernarg_size 80\n  .amdhsa_user_sgpr_count 2")
        a("  .amdhsa_user_sgpr_kernarg_segment_ptr 1\n  .amdhsa_system_sgpr_workgroup_id_x 1")
        a("  .amdhsa_float_denorm_mode_32 3")
        a(".end_amdhsa_kernel")
        return a.text(), added

def generate(path, **kw):
    cfg = Cfg()
    for k, v in kw.items(): setattr(cfg, k, v)
    text, added = G(cfg).build()
    open(path, "w").write(text)
    return added

if __name__ == "__main__":
    path = sys.argv[1] if len(sys.argv) > 1 else "standalone__detection_seg_dino__vision.s"
    kw = {}
    for x in sys.argv[2:]:
        k, v = x.split("="); kw[k] = eval(v)
    print("nops added:", generate(path, **kw))
```

```python
import re

TRANS = ("v_exp_f32", "v_log_f32", "v_rcp_f32", "v_rsq_f32", "v_sqrt_f32", "v_sin_f32", "v_cos_f32", "v_rcp_iflag_f32")
REG_RE = re.compile(r"\b([vsa])(\d+)\b|\b([vsa])\[(\d+):(\d+)\]|\b(vcc|exec|m0|vcc_lo|vcc_hi|exec_lo|exec_hi)\b")

def regs_of(tok):
    out = []
    for m in REG_RE.finditer(tok):
        if m.group(1):
            out.append((m.group(1), int(m.group(2))))
        elif m.group(3):
            out += [(m.group(3), i) for i in range(int(m.group(4)), int(m.group(5)) + 1)]
        else:
            n = m.group(6)
            if n.startswith("vcc"): out += [("s", 106), ("s", 107)]
            elif n.startswith("exec"): out += [("s", 126), ("s", 127)]
            else: out.append(("s", 124))
    return out

class I:
    def __init__(self, text):
        self.text = text
        t = text.split(";")[0].strip()
        self.label = None
        self.op = None
        self.w = set(); self.r = set()
        self.cls = "none"
        self.target = None
        self.srcc = set(); self.srcab = set(); self.passes = 0
        if not t or t.startswith("."):
            return
        if t.endswith(":"):
            self.label = t[:-1]; return
        parts = t.split(None, 1)
        op = parts[0]; self.op = op
        args = [x.strip() for x in parts[1].split(",")] if len(parts) > 1 else []
        base = re.sub(r"_(e32|e64|dpp|sdwa)$", "", op)
        self.base = base
        self.dpp = ("row_" in t or "quad_perm" in t or op.endswith("_dpp"))
        if op.startswith("v_mfma"):
            self.cls = "sgemm" if op.endswith("_f32") and "x4_f32" in op else "xdl"
            self.passes = {"v_mfma_f32_16x16x32_bf16": 4, "v_mfma_f32_16x16x32_f16": 4, "v_mfma_f32_16x16x16_bf16": 4, "v_mfma_f32_16x16x16_f16": 4,
                           "v_mfma_f32_32x32x16_bf16": 8, "v_mfma_f32_16x16x4_f32": 8}[op]
            self.w = set(regs_of(args[0])); self.srcab = set(regs_of(args[1]) + regs_of(args[2])); self.srcc = set(regs_of(args[3]))
            self.cd = args[3].split()[0] == args[0]
            self.r = self.srcab | self.srcc
        elif op.startswith("v_"):
            self.cls = "valu"
            if base.startswith("v_dot2"): self.cls = "dot"
            if base in TRANS: self.trans = True
            nd = 1
            if base.startswith("v_cmp"):
                self.w = set(regs_of(args[0])); rest = args[1:]
                if base.startswith("v_cmpx"): self.w |= {("s", 126), ("s", 127)}
            elif base in ("v_add_co_u32", "v_sub_co_u32", "v_addc_co_u32", "v_subb_co_u32", "v_subrev_co_u32"):
                self.w = set(regs_of(args[0]) + regs_of(args[1])); rest = args[2:]
            elif base in ("v_permlane32_swap_b32", "v_permlane16_swap_b32"):
                self.w = set(regs_of(args[0]) + regs_of(args[1])); rest = args
            else:
                self.w = set(regs_of(args[0])); rest = args[1:]
            for x in rest: self.r |= set(regs_of(x.split(" ")[0] if not x.startswith("-") and not x.startswith("abs") else x))
            if base in ("v_fmac_f32", "v_dot2c_f32_bf16", "v_mac_f32", "v_writelane_b32") or self.dpp: self.r |= set(regs_of(args[0]))
            if base == "v_cndmask_b32" and len(args) == 3: self.r |= {("s", 106), ("s", 107)}
        elif op.startswith("ds_"):
            self.cls = "ds"
            if op.startswith("ds_read") or op.startswith("ds_bpermute") or op.startswith("ds_swizzle"):
                self.w = set(regs_of(args[0]))
                for x in args[1:]: self.r |= set(regs_of(x.split(" ")[0]))
            else:
                for x in args: self.r |= set(regs_of(x.split(" ")[0]))
        elif op.startswith("buffer_") or op.startswith("global_"):
            self.cls = "vmem"
            toks = [x.split(" ")[0] for x in args]
            mods = parts[1] if len(parts) > 1 else ""
            if op in ("buffer_wbl2", "buffer_inv"):
                pass
            elif "load" in op and " lds" not in (" " + mods) and "_lds_" not in op:
                self.w = set(regs_of(toks[0]))
                for x in toks[1:]: self.r |= set(regs_of(x))
            elif "load" in op:
                for x in toks: self.r |= set(regs_of(x))
                self.ldsdma = True
            elif "atomic" in op:
                for x in toks: self.r |= set(regs_of(x))
                if " sc0" in mods and op.startswith("buffer"): self.w = set(regs_of(toks[0]))
            else:
                for x in toks: self.r |= set(regs_of(x))
                if op.endswith("x4") or op.endswith("x3"):
                    self.wide = set(regs_of(toks[0] if op.startswith("buffer") else toks[1]))
        elif op.startswith("s_"):
            self.cls = "salu"
            if op in ("s_branch",) or op.startswith("s_cbranch"):
                self.target = args[0]
            elif op == "s_call_b64":
                self.target = args[1]; self.w = set(regs_of(args[0])); self.call = True
            elif op == "s_setpc_b64":
                self.r = set(regs_of(args[0]))
                m = re.search(r"; ret (.+)$", text)
                self.ret = m.group(1).split() if m else None
            elif op == "s_nop":
                self.nop = int(args[0], 0) + 1
            elif op.startswith("s_cmp") or op in ("s_waitcnt", "s_barrier", "s_endpgm", "s_setprio", "s_sleep"):
                for x in args: self.r |= set(regs_of(x)) if not op == "s_waitcnt" else set()
            elif op.startswith("s_load") or op in ("s_memtime", "s_memrealtime"):
                self.w = set(regs_of(args[0]))
                for x in args[1:]: self.r |= set(regs_of(x))
            else:
                self.w = set(regs_of(args[0]))
                for x in args[1:]: self.r |= set(regs_of(x))
                if "saveexec" in op: self.w |= {("s", 126), ("s", 127)}
    def states(self):
        if self.op is None: return 0
        return getattr(self, "nop", 1)

def need(p, c):
    n = 0
    vw = {x for x in p.w if x[0] in "va"}
    sw = {x for x in p.w if x[0] == "s"}
    c_touch = c.r | c.w
    isval = c.cls in ("valu", "dot")
    ismf = c.cls in ("xdl", "sgemm")
    if p.cls in ("valu", "dot"):
        if ismf and vw & c.r: n = max(n, 2)
        if isval and c.dpp and vw & c.r: n = max(n, 2)
        if isval and c.base.startswith("v_permlane") and vw & c.r: n = max(n, 2)
        if isval and c.base in ("v_readlane_b32", "v_readfirstlane_b32") and vw & c.r: n = max(n, 1)
        if sw:
            if isval and sw & c.r: n = max(n, 4 if c.base in ("v_readlane_b32", "v_writelane_b32") else 2)
            if c.cls == "vmem" and sw & c.r: n = max(n, 5)
            if ("s", 126) in sw and isval and c.dpp: n = max(n, 5)
            if ("s", 126) in sw and ismf: n = max(n, 4)
        if getattr(p, "trans", False) and isval and not getattr(c, "trans", False) and vw & c.r: n = max(n, 1)
    if p.cls == "dot" and vw & c_touch:
        if c.cls == "dot" and c.base == p.base:
            args = c.text.split(";")[0].strip().split(None, 1)[1].split(",")
            ab = set(regs_of(args[1])) | set(regs_of(args[2]))
            if vw & ab: n = max(n, 3)
        else:
            n = max(n, 3)
    if p.cls == "xdl":
        tab = {4: (0, 6, 6, 8, 8), 8: (0, 10, 10, 12, 12)}[p.passes]
        if ismf:
            if vw & c.srcab: n = max(n, tab[3])
            if vw & c.srcc:
                same = c.cls == "xdl" and c.srcc == vw and c.passes == p.passes
                n = max(n, tab[0] if same else tab[1])
            elif vw & c.w: n = max(n, tab[1])
        elif c.cls in ("valu", "dot", "ds", "vmem") and vw & c_touch: n = max(n, tab[4])
        if c.cls in ("valu", "dot") and p.srcc & c.w: n = max(n, {4: 3, 8: 7}[p.passes])
    if p.cls == "sgemm":
        if ismf:
            if vw & c.srcab: n = max(n, 10)
            if vw & c.srcc:
                if c.cls == "sgemm": n = max(n, 0 if c.srcc == vw else 8)
            elif vw & c.w: n = max(n, 8)
        elif c.cls in ("valu", "dot", "ds", "vmem") and vw & c_touch: n = max(n, 10)
    if getattr(p, "wide", None):
        if p.wide & c.w: n = max(n, 2 if c.cls in ("valu", "dot") else 1)
    if p.cls == "salu" and ("s", 124) in p.w and getattr(c, "ldsdma", False): n = max(n, 1)
    return n

WINDOW = 22

def shortfall(prev, c):
    dist = 0; short = 0
    for p in reversed(prev):
        if p.op is None: continue
        if p.op in ("s_branch", "s_endpgm", "s_setpc_b64"): break
        k = need(p, c)
        if k > dist: short = max(short, k - dist)
        dist += p.states()
        if dist > WINDOW: break
    return short

def fix(lines, verbose=False):
    ins = [I(x) for x in lines]
    out = []
    added = 0
    for c in ins:
        if c.op is not None:
            s = shortfall(out[-40:], c)
            if s:
                out.append(I(f"  s_nop {s-1}")); added += 1
                if verbose: print("nop", s, "before", c.text)
        out.append(c)
    for guard in range(200):
        labels = {x.label: i for i, x in enumerate(out) if x.label}
        changed = False
        for p, b in enumerate(out):
            targets = []
            if b.target is not None and b.target in labels: targets.append(labels[b.target])
            if getattr(b, "ret", None):
                targets += [i + 1 for i, x in enumerate(out) if getattr(x, "call", False) and x.target in b.ret]
            if not targets: continue
            worst = 0
            hist = out[max(0, p - 40):p + 1]
            hid = {id(x) for x in hist}
            for q in targets:
                seq = list(hist); cnt = 0
                for c in out[q:q + 60]:
                    if c.op is None: continue
                    dist = 0
                    for x in reversed(seq):
                        if x.op is None: continue
                        k = need(x, c)
                        if k > dist and id(x) in hid: worst = max(worst, k - dist)
                        dist += x.states()
                        if dist > WINDOW: break
                    seq.append(c); cnt += 1
                    if cnt > WINDOW or c.op in ("s_branch", "s_endpgm", "s_setpc_b64"): break
            if worst:
                out.insert(p, I(f"  s_nop {worst-1}")); added += 1; changed = True
                if verbose: print("edge nop", worst, "before", b.text)
                break
        if not changed: break
    return [x.text for x in out], added
```

```python
import sys, struct
from asmlib import Asm
import hazard

KNAME = "standalone__detection_seg_dino__vision_kernel"

NH, NS, NPAIR = 24, 228, 9
F0_BYTES, F1_BYTES, W_BYTES, Q_BYTES = 50331648, 12582912, 294912, 12288
WS_BYTES = 268435456

NONCE_OFF = 0
HINT_OFF = 1024
RQ_OFF, RQK_OFF, RCTX_OFF = 4096, 20480, 36864
LSE_OFF = 65536
PART_OFF = 131072
PART_STRIDE = NS * 128
STAMP_OFF = 8 << 20

SLOT = 12288
STG = 12 * SLOT
TOP = 13 * SLOT
STAT = TOP
NONCE_LDS = TOP + 1536
MXW = TOP + 1600
MX = TOP + 2048
RED = TOP + 2560
RED2 = STG + 4096
LDS_BYTES = 163840
H_QI, H_WKI, H_WQI, H_WOI, H_WT, H_WV = 0, 12288, 24576, 36864, 49152, 65536

LOG2E = 1.4426950408889634
def f32(x): return "0x%08x" % struct.unpack("<I", struct.pack("<f", x))[0]

class Cfg:
    nt = True
    stamp = False
    depth = 5
    hx0 = 0
    hnx = 4
    hint = True
    codepf = True
    hnt = False

S_WAVE = 3
P_Q, P_F0, P_F1, P_WQ, P_WK, P_WV, P_WO, P_OUT, P_DBG, P_WS = 4, 6, 8, 10, 12, 14, 16, 18, 20, 22
R_A, R_B, R_WS, R_DBG, R_C, R_D, R_E, R_F = 24, 28, 32, 36, 40, 44, 48, 52
S_IDX, S_ONELO, S_ONEHI = 56, 57, 58
S_K, S_QBASE, S_LINK = 66, 67, 68
S_NONCE, S_SPIN = 70, 71
S_TI, S_TB, S_PB, S_BIAS, S_T, S_P0, S_SB, S_W0, S_NP, S_PVB, S_LAST = 72, 73, 74, 75, 76, 77, 78, 79, 80, 81, 59
S_SST = 48
S_QMASK = 50
SETA, SETB = 40, 44
STAMP0 = 82
SPIN_CAP = 200000

def srd(a, s, ptr, nbytes):
    a(f"  s_mov_b32 s{s}, s{ptr}\n  s_mov_b32 s{s+1}, s{ptr+1}\n  s_mov_b32 s{s+2}, {nbytes}\n  s_mov_b32 s{s+3}, 0x20000")
def vr(b, n=4): return f"v[{b}:{b+n-1}]"
def sr(b, n=4): return f"s[{b}:{b+n-1}]"

class G:
    def __init__(self, cfg):
        self.cfg = cfg; self.a = Asm(); self.uid = 0
    def lab(self, name):
        self.uid += 1
        return f"L_{name}_{self.uid}"
    def stamp(self, i):
        if self.cfg.stamp:
            self.a(f"  s_memrealtime s[{STAMP0+2*i}:{STAMP0+2*i+1}]\n  s_waitcnt lgkmcnt(0)")
    def stamp_init(self):
        if self.cfg.stamp:
            for i in range(20): self.a(f"  s_mov_b32 s{STAMP0+i}, 0")
    def stamp_flush(self):
        if not self.cfg.stamp: return
        a = self.a
        a("  s_lshl_b32 s60, s2, 3\n  s_add_u32 s60, s60, s3\n  s_lshl_b32 s60, s60, 6")
        a(f"  s_add_u32 s60, s60, {STAMP_OFF}\n  v_mov_b32 v1, 0")
        for i in range(10):
            a(f"  v_mov_b32 v2, s{STAMP0+2*i}\n  buffer_store_dword v2, v1, {sr(R_WS)}, s60 offen offset:{4*i}\n  s_nop 0")

    def allred_g(self, x, t, op):
        a = self.a
        a(f"  v_mov_b32 v{t}, v{x}\n  v_permlane16_swap_b32 v{t}, v{x}\n  {op} v{x}, v{t}, v{x}")
        a(f"  v_mov_b32 v{t}, v{x}\n  v_permlane32_swap_b32 v{t}, v{x}\n  {op} v{x}, v{t}, v{x}")
    def valid_check(self, base, n, t, retry):
        a = self.a
        a(f"  v_max3_u32 v{t}, v{base}, v{base+1}, v{base+2}")
        h = n // 2
        a(f"  v_max3_u32 v{t+1}, v{base+h}, v{base+h+1}, v{base+h+2}")
        i, k = 3, h + 3
        while i < h or k < n:
            if i + 1 < h: a(f"  v_max3_u32 v{t}, v{t}, v{base+i}, v{base+i+1}"); i += 2
            elif i < h: a(f"  v_max_u32 v{t}, v{t}, v{base+i}"); i += 1
            if k + 1 < n: a(f"  v_max3_u32 v{t+1}, v{t+1}, v{base+k}, v{base+k+1}"); k += 2
            elif k < n: a(f"  v_max_u32 v{t+1}, v{t+1}, v{base+k}"); k += 1
        a(f"  v_max_u32 v{t}, v{t}, v{t+1}\n  v_cmp_eq_u32 vcc, -1, v{t}\n  s_cbranch_vccnz {retry}")
    def spin_guard(self, done):
        self.a(f"  s_add_u32 s{S_SPIN}, s{S_SPIN}, 1\n  s_cmp_gt_u32 s{S_SPIN}, {SPIN_CAP}\n  s_cbranch_scc1 {done}")
    def wait_count(self, vd, vz):
        a = self.a
        lp, dn = self.lab("cnt"), self.lab("cntd")
        a(f"  s_mov_b32 s{S_SPIN}, 0\n{lp}:")
        a(f"  buffer_load_dword v{vd}, v{vz}, {sr(R_DBG)}, 0 offen sc1")
        self.spin_guard(dn)
        a(f"  s_waitcnt vmcnt(0)\n  v_readfirstlane_b32 s60, v{vd}")
        a(f"  s_cmp_lt_u32 s60, {NH}\n  s_cbranch_scc1 {lp}")
        a(f"{dn}:\n  s_waitcnt vmcnt(0)")
    def gather_frags(self, nfr, dst, vaddr, off0, t, name):
        a = self.a
        lp, dn = self.lab(name), self.lab(name + "d")
        a(f"  s_add_u32 s63, s{off0}, 4096\n  s_add_u32 s64, s{off0}, 8192\n  s_mov_b32 s{S_SPIN}, 0\n{lp}:")
        for j in range(nfr):
            so = (f"s{off0}", "s63", "s64")[j >> 2]
            a(f"  buffer_load_dwordx4 {vr(dst+4*j)}, v{vaddr}, {sr(R_WS)}, {so} offen offset:{(j&3)*1024} sc1")
        self.spin_guard(dn)
        a("  s_waitcnt vmcnt(0)")
        self.valid_check(dst, 4 * nfr, t, lp)
        a(f"{dn}:\n  s_waitcnt vmcnt(0)")

    def prologue(self):
        a = self.a; cfg = self.cfg
        a("  s_cmp_ge_u32 s2, 256\n  s_cbranch_scc1 L_end")
        a("  s_load_dwordx16 s[4:19], s[0:1], 0\n  s_load_dwordx4 s[20:23], s[0:1], 64")
        a("  v_lshrrev_b32 v1, 6, v0\n  v_and_b32 v0, 63, v0")
        a(f"  v_readfirstlane_b32 s{S_WAVE}, v1")
        a(f"  s_mov_b32 s{S_ONELO}, 0x00003f80\n  s_mov_b32 s{S_ONEHI}, 0x3f800000")
        self.stamp_init(); self.stamp(0)
        rows = NH // cfg.hnx
        a(f"  s_and_b32 s60, s2, 7\n  s_lshr_b32 s61, s2, 3\n  s_sub_u32 s62, s60, {cfg.hx0}")
        a(f"  s_cmp_lt_u32 s61, {rows}\n  s_cbranch_scc0 L_late")
        a(f"  s_cmp_lt_u32 s62, {cfg.hnx}\n  s_cbranch_scc0 L_early")
        a(f"  s_mul_i32 s{S_IDX}, s61, {cfg.hnx}\n  s_add_u32 s{S_IDX}, s{S_IDX}, s62\n  s_branch L_helper")
        a("L_early:")
        a(f"  s_cmp_lt_u32 s60, {cfg.hx0}\n  s_cselect_b32 s62, 0, {cfg.hnx}\n  s_sub_u32 s62, s60, s62")
        a(f"  s_mul_i32 s{S_IDX}, s61, {8-cfg.hnx}\n  s_add_u32 s{S_IDX}, s{S_IDX}, s62\n  s_branch L_stream")
        a(f"L_late:\n  s_sub_u32 s{S_IDX}, s2, {NH}")
        a(f"  s_cmp_ge_u32 s{S_IDX}, {NS}\n  s_cbranch_scc1 L_end")
        a("L_stream:")

    def code_prefetch(self, vt, vd):
        if not self.cfg.codepf: return
        a = self.a
        l = self.lab("pc")
        a(f"  s_getpc_b64 s[60:61]\n{l}:")
        a(f"  s_sub_u32 s60, s60, {l}-{KNAME}\n  s_subb_u32 s61, s61, 0")
        a(f"  s_lshr_b32 s62, s2, 3\n  s_lshl_b32 s62, s62, 10\n  v_lshl_add_u32 v{vt}, v0, 4, s62")
        a(f"  v_min_u32 v{vt}, L_code_end-{KNAME}-16, v{vt}")
        a(f"  global_load_dwordx4 {vr(vd)}, v{vt}, s[60:61]")

    V_OFF1, V_OFF0, V_SA = 2, 3, 255
    V_WA = (4, 5, 253, 254)
    V_RA, V_PA = 6, 10
    V_PADDR, V_MXW, V_MXR = 13, 14, 15
    V_ST = 128
    V_BUF = (16, 36)
    V_PU, V_TMP, V_OUT = 56, 64, 72
    V_QK, V_A, V_ACC = 80, 128, 176
    V_S, V_SUM, V_SQ4, V_SQ, V_MU, V_RS, V_LG = 188, 192, 196, 200, 204, 208, 212
    V_ONES = 216
    V_M, V_AL, V_L2, V_AM2, V_QS, V_CINV, V_CEPS, V_BIAS = 220, 222, 224, 226, 228, 230, 232, 234
    V_T0, V_T1, V_T2, V_ONEF = 236, 237, 238, 239
    V_MXV, V_TA, V_L16 = 240, 248, 252
    V_STR = 1

    def task_bases(self, st, kconst, kreg=True):
        a = self.a
        if kreg: a(f"  s_add_u32 s62, s{S_K}, {kconst}")
        else: a(f"  s_mov_b32 s62, {kconst}")
        a(f"  s_lshl_b32 s63, s62, 1\n  s_add_u32 s63, s63, s{S_QBASE}")
        a(f"  s_mul_i32 s{st}, s63, 3072\n  s_lshr_b32 s64, s63, 5\n  s_mul_i32 s64, s64, 393216")
        a(f"  s_and_b32 s65, s63, 31\n  s_mul_i32 s65, s65, 6144\n  s_add_u32 s{st+1}, s64, s65")
        a(f"  s_cmp_gt_u32 s62, {NPAIR-1}\n  s_cselect_b32 s{st}, 0x80000000, s{st}\n  s_cselect_b32 s{st+1}, 0x80000000, s{st+1}")
        a(f"  s_add_u32 s{st+2}, s{st+1}, 196608")
    def issue_piece(self, st, par, i):
        a = self.a
        nt = " nt" if self.cfg.nt else ""
        b = self.V_BUF[par] + 4 * i
        if i == 0:
            a(f"  buffer_load_dwordx4 {vr(b)}, v{self.V_OFF1}, {sr(R_B)}, s{st} offen{nt}")
        else:
            t = i - 1
            off = " offset:768" if t & 1 else ""
            a(f"  buffer_load_dwordx4 {vr(b)}, v{self.V_OFF0}, {sr(R_A)}, s{st+1+(t>>1)} offen{off}{nt}")

    def fuse_sub(self, par):
        a = self.a; d = self.cfg.depth
        b = self.V_BUF[par]; u = self.V_PU; t8 = self.V_TMP
        SS, SQ, R, U = self.V_ST, self.V_ST + 4, self.V_ST + 8, self.V_ST + 12
        a0 = d // 5
        a(f"L_fuse{par}:")
        a(f"  s_mov_b32 s{SETA}, s{SETB}\n  s_mov_b32 s{SETA+1}, s{SETB+1}\n  s_mov_b32 s{SETA+2}, s{SETB+2}")
        self.task_bases(SETB, a0 + 1)
        def nxt(i):
            aa, pi = (i + d) // 5, (i + d) % 5
            self.issue_piece(SETA if aa == a0 else SETB, par ^ (aa & 1), pi)
        def dpp(dst, src, ctrl, bank):
            a(f"  v_add_f32_dpp v{dst}, v{src}, v{src} {ctrl} row_mask:0xf bank_mask:{bank:#x}")
        a(f"  s_waitcnt vmcnt({d-1})")
        for i in range(4):
            a(f"  v_lshlrev_b32 v{u+2*i}, 16, v{b+i}\n  v_and_b32 v{u+2*i+1}, 0xffff0000, v{b+i}")
        nxt(0)
        for t in range(4):
            c = b + 4 + 4 * t; o = self.V_OUT + 4 * (t & 1)
            a(f"  s_waitcnt vmcnt({d-1})")
            for i in range(4):
                a(f"  v_dot2_f32_bf16 v{t8+2*i}, v{c+i}, s{S_ONELO}, v{u+2*i}")
                a(f"  v_dot2_f32_bf16 v{t8+2*i+1}, v{c+i}, s{S_ONEHI}, v{u+2*i+1}")
            nxt(t + 1)
            for i in range(4):
                a(f"  v_cvt_pk_bf16_f32 v{o+i}, v{t8+2*i}, v{t8+2*i+1}")
            a(f"  ds_write_b128 v{self.V_WA[t]}, {vr(o)} offset:{t*768}")
            if t > 0: dpp(R + t - 1, SS + t - 1, "row_ror:8", 0x3)
            for i in range(4):
                a(f"  v_dot2_f32_bf16 v{SS+t}, v{o+i}, v{self.V_ONES}, {'0' if i == 0 else 'v%d' % (SS+t)}")
                a(f"  v_dot2_f32_bf16 v{SQ+t}, v{o+i}, v{o+i}, {'0' if i == 0 else 'v%d' % (SQ+t)}")
            if t > 0: dpp(R + t - 1, SQ + t - 1, "row_ror:8", 0xc)
        WA = self.V_WA
        a(f"  s_mov_b32 s62, 24576\n  s_cmp_eq_u32 s{S_K}, 5\n  s_cselect_b32 s62, {(-5*24576) & 0xffffffff:#x}, s62")
        dpp(U, R, "row_half_mirror", 0x5)
        dpp(R + 3, SS + 3, "row_ror:8", 0x3)
        a(f"  v_add_u32 v{WA[0]}, s62, v{WA[0]}")
        dpp(U, R + 1, "row_half_mirror", 0xa)
        dpp(R + 3, SQ + 3, "row_ror:8", 0xc)
        dpp(U + 1, R + 2, "row_half_mirror", 0x5)
        a(f"  v_add_u32 v{WA[1]}, s62, v{WA[1]}")
        dpp(U, U, "quad_perm:[1,0,3,2]", 0xf)
        dpp(U + 1, R + 3, "row_half_mirror", 0xa)
        a(f"  v_add_u32 v{WA[2]}, s62, v{WA[2]}")
        dpp(U, U, "quad_perm:[2,3,0,1]", 0xf)
        dpp(U + 1, U + 1, "quad_perm:[1,0,3,2]", 0xf)
        a(f"  v_add_u32 v{WA[3]}, s62, v{WA[3]}\n  s_mov_b64 exec, s[{S_QMASK}:{S_QMASK+1}]\n  ds_add_f32 v{self.V_SA}, v{U}\n  s_mov_b64 exec, -1")
        dpp(U + 1, U + 1, "quad_perm:[2,3,0,1]", 0xf)
        a(f"  s_mov_b32 s62, 256\n  s_cmp_eq_u32 s{S_K}, 5\n  s_cselect_b32 s62, {(-5*256) & 0xffffffff:#x}, s62\n  s_add_u32 s{S_K}, s{S_K}, 1")
        a(f"  s_mov_b64 exec, s[{S_QMASK}:{S_QMASK+1}]\n  ds_add_f32 v{self.V_SA}, v{U+1} offset:8\n  s_mov_b64 exec, -1")
        a(f"  v_add_u32 v{self.V_SA}, s62, v{self.V_SA}")
        a(f"  s_setpc_b64 s[{S_LINK}:{S_LINK+1}]")

    def stream_consts(self):
        a = self.a
        a("  v_and_b32 v240, 15, v0\n  v_lshrrev_b32 v241, 4, v0")
        a("  v_and_b32 v242, 7, v240\n  v_lshlrev_b32 v242, 1, v242\n  v_mul_u32_u24 v243, 768, v240")
        for m in range(4):
            a(f"  v_add_u32 v244, {4*m}, v241\n  v_xor_b32 v244, v244, v242\n  v_lshl_add_u32 v{self.V_RA+m}, v244, 4, v243")
        a("  v_lshrrev_b32 v242, 2, v240\n  v_lshl_add_u32 v242, v241, 2, v242\n  v_mul_u32_u24 v243, 768, v242")
        a("  v_and_b32 v242, 7, v242\n  v_lshlrev_b32 v242, 1, v242")
        a("  v_and_b32 v244, 3, v240\n  v_lshrrev_b32 v245, 1, v244\n  v_and_b32 v244, 1, v244\n  v_lshl_add_u32 v243, v244, 3, v243")
        for tau in range(3):
            a(f"  s_mul_i32 s62, s{S_WAVE}, 3\n  s_add_u32 s62, s62, {tau}")
            a("  s_lshl_b32 s63, s62, 1\n  s_and_b32 s63, s63, 14\n  s_lshr_b32 s62, s62, 3\n  s_lshl_b32 s62, s62, 8")
            a(f"  v_xor_b32 v244, s63, v242\n  v_or_b32 v244, v244, v245\n  v_lshl_add_u32 v244, v244, 4, v243\n  v_add_u32 v{self.V_PA+tau}, s62, v244")
        a(f"  v_lshlrev_b32 v{self.V_L16}, 4, v0\n  v_add_u32 v{self.V_PADDR}, {STG}, v{self.V_L16}\n  v_lshlrev_b32 v{self.V_STR}, 4, v241")
        a(f"  v_lshlrev_b32 v244, 5, v240\n  v_add_u32 v{self.V_MXR}, {MX}, v244")
        a(f"  s_lshl_b32 s62, s{S_WAVE}, 2\n  v_add_u32 v{self.V_MXW}, s62, v{self.V_MXR}")
        for i in range(4): a(f"  v_mov_b32 v{self.V_ONES+i}, 0x3f803f80")
        a(f"  v_mov_b32 v{self.V_ONEF}, 1.0\n  v_mov_b32 v{self.V_CINV}, {f32(1/384)}\n  v_mov_b32 v{self.V_CEPS}, {f32(1e-5)}")
        for i in range(12): a(f"  v_mov_b32 v{self.V_ACC+i}, 0")
        a(f"  v_mov_b32 v{self.V_M}, 0xff800000")
        for r in (self.V_L2, self.V_L2+1, self.V_AM2, self.V_AM2+1, self.V_M+1, self.V_AL+1, self.V_QS+1, self.V_CINV+1, self.V_CEPS+1, self.V_BIAS+1):
            a(f"  v_mov_b32 v{r}, 0")

    def pk(self, op, d, x, y, z=None, bc=(), neg=()):
        n = 2 if z is None else 3
        ops = [x, y] + ([z] if z is not None else [])
        s = f"  {op} {vr(d,2)}, " + ", ".join(vr(o, 2) for o in ops)
        if bc: s += " op_sel_hi:[" + ",".join("0" if i in bc else "1" for i in range(n)) + "]"
        if neg:
            m = "[" + ",".join("1" if i in neg else "0" for i in range(n)) + "]"
            s += f" neg_lo:{m} neg_hi:{m}"
        self.a(s)

    def batch_sub(self):
        a = self.a
        A, QK = self.V_A, self.V_QK
        S, SUM, SQ4, SQ, MU, RS, LG = self.V_S, self.V_SUM, self.V_SQ4, self.V_SQ, self.V_MU, self.V_RS, self.V_LG
        M, AL, L2, AM2, T0, T1, MXV = self.V_M, self.V_AL, self.V_L2, self.V_AM2, self.V_T0, self.V_T1, self.V_MXV
        a("L_batch:")
        a(f"  s_sub_u32 s{S_TI}, s{S_WAVE}, s{S_W0}\n  s_cmp_ge_u32 s{S_TI}, s{S_T}\n  s_cbranch_scc1 L_b_nos")
        a(f"  s_mul_i32 s{S_TB}, s{S_TI}, {SLOT}\n  s_add_u32 s{S_TB}, s{S_TB}, s{S_SB}")
        for m in range(4): a(f"  v_add_u32 v{self.V_TA+m}, s{S_TB}, v{self.V_RA+m}")
        a(f"  s_mul_i32 s62, s{S_TI}, 128\n  s_add_u32 s62, s62, s{S_SST}\n  v_add_u32 v{T1}, s62, v{self.V_STR}")
        a(f"  ds_read_b128 {vr(SUM)}, v{T1}\n  ds_read_b128 {vr(SQ)}, v{T1} offset:64")
        for j in range(12): a(f"  ds_read_b128 {vr(A+4*j)}, v{self.V_TA+(j&3)} offset:{(j>>2)*256}")
        a(f"  s_lshr_b32 s62, s{S_TI}, 1\n  s_add_u32 s62, s62, s{S_PB}\n  s_cmp_lt_u32 s62, 2048\n  s_cselect_b32 s{S_BIAS}, 0, {f32(-1e30)}")
        a(f"  v_mov_b32 v{self.V_BIAS}, s{S_BIAS}")
        for i in range(4): a(f"  v_mov_b32 v{SQ4+i}, 0")
        a("  s_waitcnt lgkmcnt(12)")
        stat = []
        for h in (0, 2): stat.append(lambda h=h: self.pk("v_pk_mul_f32", MU + h, SUM + h, self.V_CINV, bc=(1,)))
        for h in (0, 2): stat.append(lambda h=h: self.pk("v_pk_fma_f32", RS + h, SQ + h, self.V_CINV, self.V_CEPS, bc=(1, 2)))
        for h in (0, 2): stat.append(lambda h=h: self.pk("v_pk_fma_f32", RS + h, MU + h, MU + h, RS + h, neg=(0,)))
        for r in range(4): stat.append(lambda r=r: a(f"  v_max_f32 v{RS+r}, v{self.V_CEPS}, v{RS+r}"))
        for r in range(4): stat.append(lambda r=r: a(f"  v_rsq_f32 v{RS+r}, v{RS+r}"))
        for h in (0, 2): stat.append(lambda h=h: self.pk("v_pk_mul_f32", SUM + h, MU + h, self.V_QS, bc=(1,)))
        for j in range(12):
            a(f"  s_waitcnt lgkmcnt({11-j})")
            a(f"  v_mfma_f32_16x16x32_bf16 {vr(S)}, {vr(A+4*j)}, {vr(QK+4*j)}, {'0' if j == 0 else vr(S)}")
            for _ in range(2):
                if stat: stat.pop(0)()
        a(f"  ds_write_b128 v{T1}, {vr(SQ4)}\n  ds_write_b128 v{T1}, {vr(SQ4)} offset:64")
        for h in (0, 2): self.pk("v_pk_add_f32", LG + h, S + h, SUM + h, neg=(1,))
        for h in (0, 2): self.pk("v_pk_fma_f32", LG + h, LG + h, RS + h, self.V_BIAS, bc=(2,))
        a(f"  v_max3_f32 v{T0}, v{LG}, v{LG+1}, v{LG+2}\n  v_max_f32 v{T0}, v{T0}, v{LG+3}")
        self.allred_g(T0, T1, "v_max_f32")
        a(f"  ds_write_b32 v{self.V_MXW}, v{T0}")
        a("L_b_nos:\n  s_waitcnt lgkmcnt(0)\n  s_barrier")
        a(f"  ds_read_b128 {vr(MXV)}, v{self.V_MXR}\n  ds_read_b128 {vr(MXV+4)}, v{self.V_MXR} offset:16")
        a(f"  s_lshr_b32 s62, s{S_TI}, 1\n  s_lshl_b32 s62, s62, 10\n  s_and_b32 s63, s{S_TI}, 1\n  s_lshl_b32 s63, s63, 3\n  s_add_u32 s62, s62, s63")
        a(f"  v_add_u32 v{self.V_T2}, s62, v{self.V_PADDR}")
        a("  s_waitcnt lgkmcnt(0)")
        a(f"  v_max3_f32 v{T0}, v{MXV}, v{MXV+1}, v{MXV+2}\n  v_max3_f32 v{T1}, v{MXV+3}, v{MXV+4}, v{MXV+5}")
        a(f"  v_max3_f32 v{T0}, v{T0}, v{MXV+6}, v{MXV+7}\n  v_max3_f32 v{T0}, v{T0}, v{T1}, v{M}")
        a(f"  v_sub_f32 v{AL}, v{M}, v{T0}\n  v_mov_b32 v{M}, v{T0}\n  v_exp_f32 v{AL}, v{AL}")
        a(f"  s_cmp_ge_u32 s{S_TI}, s{S_T}\n  s_cbranch_scc1 L_b_nop")
        for h in (0, 2): self.pk("v_pk_add_f32", LG + h, LG + h, M, bc=(1,), neg=(1,))
        for r in range(4): a(f"  v_exp_f32 v{LG+r}, v{LG+r}")
        self.pk("v_pk_mul_f32", L2, L2, AL, bc=(1,)); self.pk("v_pk_mul_f32", AM2, AM2, AL, bc=(1,))
        self.pk("v_pk_add_f32", L2, L2, LG); self.pk("v_pk_add_f32", L2, L2, LG + 2)
        for h in (0, 2): self.pk("v_pk_mul_f32", LG + h, LG + h, RS + h)
        a(f"  v_cvt_pk_bf16_f32 v{MXV}, v{LG}, v{LG+1}\n  v_cvt_pk_bf16_f32 v{MXV+1}, v{LG+2}, v{LG+3}")
        a(f"  ds_write_b64 v{self.V_T2}, {vr(MXV,2)}")
        for h in (0, 2): self.pk("v_pk_fma_f32", AM2, LG + h, MU + h, AM2)
        a("  s_branch L_b_acc")
        a("L_b_nop:")
        self.pk("v_pk_mul_f32", L2, L2, AL, bc=(1,)); self.pk("v_pk_mul_f32", AM2, AM2, AL, bc=(1,))
        a("L_b_acc:")
        for i in range(0, 12, 2): self.pk("v_pk_mul_f32", self.V_ACC + i, self.V_ACC + i, AL, bc=(1,))
        a(f"  s_cmp_eq_u32 s{S_LAST}, 0\n  s_cbranch_scc1 L_b_bar")
        a(f"  v_add_f32 v{MXV+2}, v{L2}, v{L2+1}\n  v_add_f32 v{MXV+3}, v{AM2}, v{AM2+1}")
        self.allred_g(MXV + 2, T0, "v_add_f32"); self.allred_g(MXV + 3, T1, "v_add_f32")
        a(f"  v_and_b32 v{T0}, 15, v0\n  v_lshlrev_b32 v{T0}, 6, v{T0}\n  s_lshl_b32 s62, s{S_WAVE}, 3\n  s_add_u32 s62, s62, {RED}")
        a(f"  v_add_u32 v{T0}, s62, v{T0}\n  ds_write_b64 v{T0}, {vr(MXV+2,2)}")
        a("L_b_bar:\n  s_waitcnt lgkmcnt(0)\n  s_barrier")
        a(f"  s_lshr_b32 s{S_NP}, s{S_T}, 1\n  s_mov_b32 s{S_PVB}, s{S_SB}\n  v_mov_b32 v{T0}, v{self.V_PADDR}")
        a("L_b_pv:")
        a(f"  ds_read_b128 {vr(A)}, v{T0}")
        for tau in range(3):
            a(f"  v_add_u32 v{self.V_TA+tau}, s{S_PVB}, v{self.V_PA+tau}")
            a(f"  ds_read_b64_tr_b16 {vr(A+4+4*tau,2)}, v{self.V_TA+tau}")
            a(f"  ds_read_b64_tr_b16 {vr(A+6+4*tau,2)}, v{self.V_TA+tau} offset:{SLOT}")
        a(f"  s_add_u32 s{S_PVB}, s{S_PVB}, {2*SLOT}\n  v_add_u32 v{T0}, 1024, v{T0}\n  s_sub_u32 s{S_NP}, s{S_NP}, 1\n  s_cmp_lg_u32 s{S_NP}, 0")
        for tau in range(3):
            a(f"  s_waitcnt lgkmcnt({4 - 2*tau})")
            a(f"  v_mfma_f32_16x16x32_bf16 {vr(self.V_ACC+4*tau)}, {vr(A+4+4*tau)}, {vr(A)}, {vr(self.V_ACC+4*tau)}")
        a("  s_cbranch_scc1 L_b_pv")
        a(f"  s_setpc_b64 s[{S_LINK}:{S_LINK+1}]")

    def call_batch(self, T, w0, slot0, pair_add, last):
        self.a(f"  s_mov_b32 s{S_T}, {T}\n  s_mov_b32 s{S_W0}, {w0}\n  s_mov_b32 s{S_SB}, {slot0*SLOT}\n  s_mov_b32 s{S_SST}, {STAT + slot0*128}\n  s_add_u32 s{S_PB}, s{S_P0}, {pair_add}\n  s_mov_b32 s{S_LAST}, {int(last)}")
        self.a(f"  s_call_b64 s[{S_LINK}:{S_LINK+1}], L_batch")

    def streamer(self):
        a = self.a; cfg = self.cfg; d = cfg.depth
        a("  s_waitcnt lgkmcnt(0)")
        srd(a, R_A, P_F0, F0_BYTES); srd(a, R_B, P_F1, F1_BYTES)
        a(f"  s_cmp_ge_u32 s{S_WAVE}, 6\n  s_cbranch_scc1 L_sgather")
        a(f"  s_cmp_ge_u32 s{S_WAVE}, 3\n  s_cselect_b32 s60, 1, 0\n  s_mul_i32 s62, s60, 3\n  s_sub_u32 s61, s{S_WAVE}, s62")
        a(f"  s_mul_i32 s{S_QBASE}, s{S_IDX}, {2*NPAIR}\n  s_add_u32 s{S_QBASE}, s{S_QBASE}, s60\n  s_lshl_b32 s61, s61, 8")
        a("  v_and_b32 v240, 15, v0\n  v_lshrrev_b32 v241, 4, v0\n  v_lshl_add_u32 v242, v240, 4, s61")
        a(f"  v_mul_u32_u24 v243, 768, v241\n  v_add_u32 v{self.V_OFF1}, v242, v243\n  v_lshl_add_u32 v{self.V_OFF0}, v243, 1, v242")
        a(f"  s_mov_b32 s{S_K}, 0\n  s_mov_b32 s{S_QMASK}, 0x11111111\n  s_mov_b32 s{S_QMASK+1}, 0x11111111")
        self.task_bases(SETA, 0, False)
        for x in range(min(d, 5)): self.issue_piece(SETA, 0, x)
        self.task_bases(SETB, 1, False)
        for x in range(5, d): self.issue_piece(SETB, 1, x - 5)
        if d // 5 == 2: self.task_bases(SETB, 2, False)
        a(f"  s_mul_i32 s60, s60, {SLOT}\n  s_add_u32 s60, s60, s61")
        srd(a, R_WS, P_WS, WS_BYTES); srd(a, R_DBG, P_DBG, 256)
        a("  v_and_b32 v240, 15, v0\n  v_lshrrev_b32 v241, 4, v0\n  v_and_b32 v242, 1, v241\n  v_lshlrev_b32 v242, 3, v242\n  v_xor_b32 v242, v240, v242")
        a(f"  v_mul_u32_u24 v243, 3072, v241\n  v_add_u32 v243, s60, v243")
        for t in range(4):
            a(f"  v_xor_b32 v244, {2*t}, v242\n  v_lshl_add_u32 v{self.V_WA[t]}, v244, 4, v243")
        a(f"  v_bfe_u32 v242, v0, 3, 1\n  v_lshlrev_b32 v242, 6, v242\n  v_bfe_u32 v243, v0, 2, 1\n  v_lshl_add_u32 v243, v241, 2, v243\n  v_lshl_add_u32 v242, v243, 2, v242")
        a(f"  s_cmp_ge_u32 s{S_WAVE}, 3\n  s_cselect_b32 s62, {STAT+128}, {STAT}" .replace(f"{STAT+128}, {STAT}", f"128, 0") + f"\n  s_add_u32 s62, s62, {STAT}\n  v_add_u32 v{self.V_SA}, s62, v242")
        a("  s_barrier")
        self.stream_consts()
        a(f"  s_mov_b32 s{S_NP}, 3\nL_ph1:")
        a(f"  s_call_b64 s[{S_LINK}:{S_LINK+1}], L_fuse0")
        a(f"  s_call_b64 s[{S_LINK}:{S_LINK+1}], L_fuse1")
        a(f"  s_sub_u32 s{S_NP}, s{S_NP}, 1\n  s_cmp_lg_u32 s{S_NP}, 0\n  s_cbranch_scc1 L_ph1")
        a("  s_waitcnt lgkmcnt(0)")
        self.stamp(3)
        a("  s_branch L_sb0")
        a("L_sgather:")
        for r in (self.V_OFF1, self.V_OFF0, self.V_SA) + self.V_WA: a(f"  v_mov_b32 v{r}, 0")
        for i in range(4): a(f"  v_mov_b32 v{20+i}, 0")
        a(f"  v_lshlrev_b32 v24, 4, v0\n  v_add_u32 v24, {STAT}, v24\n  ds_write_b128 v24, v[20:23]\n  v_cmp_gt_u32 vcc, 32, v0\n  s_and_saveexec_b64 s[64:65], vcc")
        a("  ds_write_b128 v24, v[20:23] offset:1024\n  s_mov_b64 exec, s[64:65]\n  s_waitcnt lgkmcnt(0)\n  s_barrier")
        a(f"  s_mov_b32 s{S_QBASE}, 0\n  s_mov_b32 s{S_K}, 0\n  s_mov_b32 s{S_QMASK}, 0\n  s_mov_b32 s{S_QMASK+1}, 0")
        for r in range(3): a(f"  s_mov_b32 s{SETA+r}, 0\n  s_mov_b32 s{SETB+r}, 0")
        srd(a, R_WS, P_WS, WS_BYTES); srd(a, R_DBG, P_DBG, 256)
        a(f"  buffer_load_dword v17, v{self.V_OFF1}, {sr(R_WS)}, 0 offen offset:{NONCE_OFF} sc1")
        self.code_prefetch(18, 20)
        self.stream_consts()
        self.wait_count(16, self.V_OFF1)
        a(f"  v_add_u32 v17, 1, v17\n  v_mov_b32 v{self.V_T0}, {NONCE_LDS}\n  ds_write_b32 v{self.V_T0}, v17")
        self.stamp(1)
        a(f"  s_sub_u32 s61, s{S_WAVE}, 6\n  s_mul_i32 s61, s61, 6144\n  s_add_u32 s62, s61, {RQK_OFF}")
        self.gather_frags(6, self.V_A, self.V_L16, 62, self.V_T0, "qk")
        a(f"  v_add_u32 v{self.V_T0}, s61, v{self.V_PADDR}")
        for j in range(6): a(f"  ds_write_b128 v{self.V_T0}, {vr(self.V_A+4*j)} offset:{j*1024}")
        a("  s_waitcnt lgkmcnt(0)")
        self.stamp(3)
        a("L_sb0:\n  s_barrier")
        for j in range(12): a(f"  ds_read_b128 {vr(self.V_QK+4*j)}, v{self.V_PADDR} offset:{j*1024}")
        a(f"  v_mov_b32 v{self.V_T0}, {NONCE_LDS}\n  ds_read_b32 v{self.V_T1}, v{self.V_T0}")
        SQ4 = self.V_SQ4
        for j in range(12):
            a(f"  s_waitcnt lgkmcnt({12-j})")
            for i in range(4):
                a(f"  v_dot2_f32_bf16 v{SQ4+i}, v{self.V_QK+4*j+i}, v{self.V_ONES}, {'0' if j == 0 else 'v%d' % (SQ4+i)}")
        self.pk("v_pk_add_f32", SQ4, SQ4, SQ4 + 2)
        a(f"  v_add_f32 v{self.V_QS}, v{SQ4}, v{SQ4+1}")
        self.allred_g(self.V_QS, self.V_T0, "v_add_f32")
        a(f"  s_waitcnt lgkmcnt(0)\n  v_readfirstlane_b32 s{S_NONCE}, v{self.V_T1}")
        a(f"  s_mul_i32 s{S_P0}, s{S_IDX}, {NPAIR}")
        self.stamp(4)
        self.call_batch(8, 0, 0, 0, False)
        self.call_batch(4, 0, 8, 4, False)
        self.stamp(5)
        for k in range(6, 9):
            sk = self.lab("nof")
            a(f"  s_cmp_ge_u32 s{S_WAVE}, 6\n  s_cbranch_scc1 {sk}")
            a(f"  s_call_b64 s[{S_LINK}:{S_LINK+1}], L_fuse{k & 1}")
            a(f"{sk}:\n  s_waitcnt lgkmcnt(0)\n  s_barrier")
            if k == 8: self.stamp(6)
            self.call_batch(2, 6, (k - 6) * 2, k, k == 8)
        self.stamp(7)
        self.publish()
        self.stamp(8)
        a(f"  s_cmp_ge_u32 s{S_IDX}, 128\n  s_cbranch_scc1 L_sdone")
        self.reducer()
        a("L_sdone:")
        self.stamp(9); self.stamp_flush()
        a("  s_endpgm")
        self.fuse_sub(0); self.fuse_sub(1); self.batch_sub()

    def publish(self):
        a = self.a; cfg = self.cfg
        T0, T1, T2, A, ACC = self.V_T0, self.V_T1, self.V_T2, self.V_A, self.V_ACC
        a("  s_waitcnt vmcnt(0)")
        a(f"  v_and_b32 v{T0}, 15, v0\n  v_lshlrev_b32 v{T1}, 6, v{T0}\n  v_add_u32 v{T1}, {RED}, v{T1}")
        for i in range(4): a(f"  ds_read_b128 {vr(A+4*i)}, v{T1} offset:{16*i}")
        a(f"  v_lshlrev_b32 v{T2}, 3, v{T0}\n  v_add_u32 v{T2}, s{S_WAVE}, v{T2}\n  s_mov_b32 s62, {PART_STRIDE}\n  v_mul_lo_u32 v{T2}, v{T2}, s62")
        a(f"  v_lshrrev_b32 v{T1}, 4, v0\n  v_lshl_add_u32 v{T2}, v{T1}, 4, v{T2}")
        a(f"  s_lshl_b32 s62, s{S_IDX}, 7\n  s_add_u32 s62, s62, {PART_OFF}")
        U = A + 24
        a(f"  v_mov_b32 v{U+3}, s{S_NONCE}\n  v_mov_b32 v{U+7}, s{S_NONCE}\n  v_mov_b32 v{U+9}, s{S_NONCE}")
        a("  s_waitcnt lgkmcnt(0)")
        for i in (0, 4, 8, 12): self.pk("v_pk_add_f32", A + i, A + i, A + i + 2)
        self.pk("v_pk_add_f32", A, A, A + 4); self.pk("v_pk_add_f32", A + 8, A + 8, A + 12); self.pk("v_pk_add_f32", A, A, A + 8)
        a(f"  v_rcp_f32 v{A+2}, v{A}\n  v_log_f32 v{A+5}, v{A}\n  v_mul_f32 v{A+4}, v{A+1}, v{A+2}")
        for i in range(0, 12, 2): self.pk("v_pk_fma_f32", ACC + i, ACC + i, A + 2, A + 4, bc=(1, 2), neg=(2,))
        for i in range(3): a(f"  v_cvt_pk_f16_f32 v{U+i}, v{ACC+2*i}, v{ACC+2*i+1}")
        a(f"  buffer_store_dwordx4 {vr(U)}, v{T2}, {sr(R_WS)}, s62 offen sc1")
        for i in range(3): a(f"  v_cvt_pk_f16_f32 v{U+4+i}, v{ACC+6+2*i}, v{ACC+7+2*i}")
        a(f"  buffer_store_dwordx4 {vr(U+4)}, v{T2}, {sr(R_WS)}, s62 offen offset:64 sc1")
        sk = self.lab("nolse")
        a(f"  s_cmp_lg_u32 s{S_WAVE}, 0\n  s_cbranch_scc1 {sk}")
        a(f"  v_add_f32 v{U+8}, v{self.V_M}, v{A+5}")
        a(f"  v_lshlrev_b32 v{T1}, 11, v{T0}\n  s_lshl_b32 s62, s{S_IDX}, 3\n  s_add_u32 s62, s62, {LSE_OFF}")
        a("  v_cmp_gt_u32 vcc, 16, v0\n  s_and_saveexec_b64 s[64:65], vcc")
        a(f"  buffer_store_dwordx2 {vr(U+8,2)}, v{T1}, {sr(R_WS)}, s62 offen sc1")
        if cfg.hint:
            a(f"  s_mov_b64 exec, 1\n  v_mov_b32 v{T0}, 1\n  s_and_b32 s62, s{S_IDX}, 7\n  s_lshl_b32 s62, s62, 7\n  s_add_u32 s62, s62, {HINT_OFF}\n  v_mov_b32 v{T1}, s62")
            a(f"  buffer_atomic_add v{T0}, v{T1}, {sr(R_WS)}, 0 offen sc1")
        a("  s_mov_b64 exec, s[64:65]")
        a(f"{sk}:")

    def reducer(self):
        a = self.a; cfg = self.cfg
        D, E, W, V = 16, 32, 40, 44
        AD, AE, T0, T1, VM, SA = 52, 56, 60, 61, 62, 63
        MASK = 40
        a(f"  v_lshrrev_b32 v{T0}, 3, v0\n  s_lshl_b32 s62, s{S_WAVE}, 5\n  v_add_u32 v{VM}, s62, v{T0}")
        a(f"  v_and_b32 v{T1}, 7, v0\n  v_lshlrev_b32 v{T1}, 4, v{T1}\n  s_mov_b32 s62, {NS}")
        for it in range(4):
            a(f"  v_add_u32 v{T0}, {8*it}, v{VM}\n  v_cmp_gt_u32 s[{MASK+2*it}:{MASK+2*it+1}], s62, v{T0}\n  v_cndmask_b32 v{T0}, 0, v{T0}, s[{MASK+2*it}:{MASK+2*it+1}]")
            a(f"  v_lshl_add_u32 v{AD+it}, v{T0}, 7, v{T1}\n  v_lshlrev_b32 v{AE+it}, 3, v{T0}")
        X, Y = 64, 65
        a(f"  v_lshrrev_b32 v{T0}, 4, v0\n  v_and_b32 v{T1}, 1, v{T0}\n  v_lshlrev_b32 v{T1}, 1, v{T1}\n  v_lshrrev_b32 v{X}, 1, v{T0}\n  v_add_u32 v{T1}, v{T1}, v{X}")
        a(f"  v_bfe_u32 v{X}, v0, 2, 1\n  v_mul_u32_u24 v{X}, 3, v{X}\n  v_add_u32 v{T1}, v{T1}, v{X}")
        a(f"  v_lshrrev_b32 v{X}, 1, v{T1}\n  v_lshlrev_b32 v{X}, 4, v{X}\n  v_and_b32 v{T1}, 1, v{T1}\n  v_lshl_add_u32 v{X}, v{T1}, 1, v{X}")
        a(f"  v_and_b32 v{T1}, 3, v0\n  v_lshl_add_u32 v{X}, v{T1}, 2, v{X}")
        a(f"  s_and_b32 s62, s{S_IDX}, 7\n  s_mul_i32 s62, s62, 48\n  v_add_u32 v{X}, s62, v{X}")
        a(f"  v_lshrrev_b32 v{T1}, 5, v{X}\n  v_lshlrev_b32 v{T1}, 10, v{T1}\n  v_bfe_u32 v{Y}, v{X}, 3, 2\n  v_lshl_add_u32 v{T1}, v{Y}, 8, v{T1}")
        a(f"  v_and_b32 v{X}, 7, v{X}\n  v_lshl_add_u32 v{SA}, v{X}, 1, v{T1}")
        a(f"  v_lshrrev_b32 v{T1}, 4, v0\n  v_lshlrev_b32 v{T1}, 3, v{T1}\n  v_and_b32 v{X}, 7, v0\n  v_add_u32 v{T1}, v{T1}, v{X}\n  v_lshlrev_b32 v{Y}, 3, v{T1}")
        a(f"  s_lshl_b32 s62, s{S_WAVE}, 8\n  s_add_u32 s62, s62, {RED2}\n  v_add_u32 v{X}, s62, v{Y}\n  v_add_u32 v{Y}, {RED2}, v{Y}")
        if cfg.hint:
            lp, dn = self.lab("hint"), self.lab("hintd")
            a(f"  v_and_b32 v{T0}, 7, v0\n  v_lshlrev_b32 v{T1}, 7, v{T0}\n  v_add_u32 v{T1}, {HINT_OFF}, v{T1}")
            a(f"  v_cmp_gt_u32 vcc, {NS % 8}, v{T0}\n  v_mov_b32 v{VM}, {NS // 8}\n  v_addc_co_u32 v{VM}, vcc, 0, v{VM}, vcc")
            a(f"  s_mov_b32 s{S_SPIN}, 0\n{lp}:")
            a(f"  buffer_load_dword v{T0}, v{T1}, {sr(R_WS)}, 0 offen sc1")
            self.spin_guard(dn)
            a(f"  s_waitcnt vmcnt(0)\n  v_cmp_lt_u32 vcc, v{T0}, v{VM}\n  s_cbranch_vccnz {lp}")
            a(f"{dn}:")
        a(f"  s_mul_i32 s62, s{S_IDX}, {PART_STRIDE}\n  s_add_u32 s62, s62, {PART_OFF}")
        a(f"  s_lshr_b32 s63, s{S_IDX}, 3\n  s_lshl_b32 s63, s63, 11\n  s_add_u32 s63, s63, {LSE_OFF}")
        lp, dn = self.lab("red"), self.lab("redd")
        a(f"  s_mov_b32 s{S_SPIN}, 0\n{lp}:")
        for it in range(4):
            a(f"  buffer_load_dwordx4 {vr(D+4*it)}, v{AD+it}, {sr(R_WS)}, s62 offen sc1")
            a(f"  buffer_load_dwordx2 {vr(E+2*it,2)}, v{AE+it}, {sr(R_WS)}, s63 offen sc1")
        self.spin_guard(dn)
        a("  s_waitcnt vmcnt(0)")
        N = S_NONCE
        a(f"  v_xor_b32 v{T0}, s{N}, v{D+3}\n  v_xor_b32 v{T1}, s{N}, v{E+1}")
        for it in range(1, 4):
            a(f"  v_xor_b32 v{W}, s{N}, v{D+4*it+3}\n  v_xor_b32 v{W+1}, s{N}, v{E+2*it+1}\n  v_or3_b32 v{T0}, v{T0}, v{W}, v{W+1}")
        a(f"  v_or_b32 v{T0}, v{T0}, v{T1}\n  v_cmp_ne_u32 vcc, 0, v{T0}\n  s_cbranch_vccnz {lp}")
        a(f"{dn}:\n  s_waitcnt vmcnt(0)")
        a(f"  v_mov_b32 v{T1}, 0xff800000")
        for it in range(4):
            a(f"  v_cndmask_b32 v{E+2*it}, v{T1}, v{E+2*it}, s[{MASK+2*it}:{MASK+2*it+1}]")
        a(f"  v_max3_f32 v{T0}, v{E}, v{E+2}, v{E+4}\n  v_max_f32 v{T0}, v{T0}, v{E+6}")
        a(f"  v_max_f32_dpp v{T0}, v{T0}, v{T0} row_ror:8 row_mask:0xf bank_mask:0xf")
        self.allred_g(T0, T1, "v_max_f32")
        for it in range(4): a(f"  v_sub_f32 v{W+it}, v{E+2*it}, v{T0}")
        for it in range(4): a(f"  v_exp_f32 v{W+it}, v{W+it}")
        a(f"  s_lshl_b32 s62, s{S_WAVE}, 2\n  s_add_u32 s62, s62, {MXW}\n  v_mov_b32 v{T1}, s62\n  ds_write_b32 v{T1}, v{T0}")
        for it in range(4):
            for q in range(3):
                c0 = "0" if it == 0 else f"v{V+2*q}"; c1 = "0" if it == 0 else f"v{V+2*q+1}"
                a(f"  v_fma_mix_f32 v{V+2*q}, v{D+4*it+q}, v{W+it}, {c0} op_sel_hi:[1,0,0]")
                a(f"  v_fma_mix_f32 v{V+2*q+1}, v{D+4*it+q}, v{W+it}, {c1} op_sel:[1,0,0] op_sel_hi:[1,0,0]")
        self.pk("v_pk_add_f32", W, W, W + 2)
        a(f"  v_add_f32 v{V+6}, v{W}, v{W+1}\n  v_mov_b32 v{V+7}, 0")
        for x, y in ((0, 2), (1, 3), (4, 6), (5, 7)): a(f"  v_permlane32_swap_b32 v{V+x}, v{V+y}")
        for x, y in ((0, 2), (1, 3), (4, 6), (5, 7)): a(f"  v_add_f32 v{V+x}, v{V+x}, v{V+y}")
        for x, y in ((0, 4), (1, 5)): a(f"  v_permlane16_swap_b32 v{V+x}, v{V+y}")
        for x, y in ((0, 4), (1, 5)): a(f"  v_add_f32 v{V+x}, v{V+x}, v{V+y}")
        for x in (0, 1): a(f"  v_add_f32_dpp v{V+x}, v{V+x}, v{V+x} row_ror:8 row_mask:0xf bank_mask:0xf")
        a(f"  ds_write_b64 v{X}, {vr(V,2)}\n  s_waitcnt lgkmcnt(0)\n  s_barrier")
        a(f"  s_cmp_lg_u32 s{S_WAVE}, 0\n  s_cbranch_scc1 L_sdone")
        a(f"  v_mov_b32 v{T1}, {MXW}\n  ds_read_b128 {vr(W)}, v{T1}\n  ds_read_b128 {vr(W+4)}, v{T1} offset:16")
        for w in range(8): a(f"  ds_read_b64 {vr(D+2*w,2)}, v{Y} offset:{256*w}")
        a(f"  s_lshr_b32 s63, s{S_IDX}, 3\n  s_lshl_b32 s63, s63, 4\n  s_add_u32 s63, s63, {RCTX_OFF}")
        a(f"  v_and_b32 v{X}, 8, v0\n  v_cmp_eq_u32 vcc, 0, v{X}\n  v_cmp_gt_u32 s[64:65], 48, v0\n  s_and_b64 s[64:65], vcc, s[64:65]")
        a("  s_waitcnt lgkmcnt(8)")
        a(f"  v_max3_f32 v{T0}, v{W}, v{W+1}, v{W+2}\n  v_max3_f32 v{T1}, v{W+3}, v{W+4}, v{W+5}\n  v_max3_f32 v{T0}, v{T0}, v{W+6}, v{W+7}\n  v_max_f32 v{T0}, v{T0}, v{T1}")
        for w in range(0, 8, 2): self.pk("v_pk_add_f32", W + w, W + w, T0, bc=(1,), neg=(1,))
        for w in range(8): a(f"  v_exp_f32 v{W+w}, v{W+w}")
        a("  s_waitcnt lgkmcnt(0)")
        for w in range(8):
            base = W + (w & ~1)
            sel = "op_sel:[0,1,0] op_sel_hi:[1,1,1]" if w & 1 else "op_sel_hi:[1,0,1]"
            if w == 0: a(f"  v_pk_mul_f32 {vr(E,2)}, {vr(D,2)}, {vr(base,2)} op_sel_hi:[1,0]")
            else: a(f"  v_pk_fma_f32 {vr(E,2)}, {vr(D+2*w,2)}, {vr(base,2)}, {vr(E,2)} {sel}")
        a(f"  v_readlane_b32 s62, v{E}, 48\n  v_rcp_f32 v{T0}, s62")
        self.pk("v_pk_mul_f32", E, E, T0, bc=(1,))
        a(f"  v_cvt_pk_bf16_f32 v{E}, v{E}, v{E+1}\n  v_min_u32 v{E}, -2, v{E}")
        a("  s_mov_b64 exec, s[64:65]")
        a(f"  buffer_store_dword v{E}, v{SA}, {sr(R_WS)}, s63 offen sc1")
        a("  s_mov_b64 exec, -1")

    def img_dma(self, srdr, lds, soff, vs0, vs1):
        for th in range(3):
            for q4 in range(4):
                self.img_dma1(srdr, lds, soff, vs0, vs1, th, q4)
    def img_dma1(self, srdr, lds, soff, vs0, vs1, th, q4, ldsreg=None):
        a = self.a
        if ldsreg is None: a(f"  s_mov_b32 m0, {lds + th*4096 + q4*1024}")
        else: a(f"  s_add_u32 m0, s{ldsreg}, {th*4096 + q4*1024}")
        a(f"  s_add_u32 s62, s{soff}, {q4*3072 + th*256}")
        a(f"  buffer_load_dwordx4 v{vs1 if q4 & 1 else vs0}, {sr(srdr)}, s62 offen{' nt' if self.cfg.hnt else ''} lds")

    def helper(self):
        a = self.a; cfg = self.cfg
        L16, N, Gq, T0, T1, T2, T3 = 1, 2, 3, 4, 5, 6, 7
        FL, TA, DS, VS0, VS1, ZERO = 8, 10, 11, 12, 13, 14
        IA = 16
        QF, AF, TR = 20, 68, 160
        WKF = 116
        D1, D2, D3, ST, ONES = 208, 212, 216, 220, 224
        a("L_helper:")
        a(f"  v_lshlrev_b32 v{L16}, 4, v0\n  v_and_b32 v{N}, 15, v0\n  v_lshrrev_b32 v{Gq}, 4, v0\n  v_mov_b32 v{ZERO}, 0")
        a(f"  v_lshlrev_b32 v{T0}, 1, v{Gq}\n  v_xor_b32 v{T0}, v{N}, v{T0}\n  v_mul_u32_u24 v{T1}, 768, v{Gq}")
        a(f"  v_lshl_add_u32 v{VS0}, v{T0}, 4, v{T1}\n  v_xor_b32 v{T0}, 8, v{T0}\n  v_lshl_add_u32 v{VS1}, v{T0}, 4, v{T1}")
        a(f"  v_lshrrev_b32 v{T0}, 1, v0\n  v_mul_u32_u24 v{T0}, 768, v{T0}\n  v_and_b32 v{T1}, 1, v0\n  v_lshl_add_u32 v{T0}, v{T1}, 4, v{T0}")
        a(f"  s_lshl_b32 s61, s{S_IDX}, 5\n  v_add_u32 v{DS}, s61, v{T0}")
        a(f"  s_lshr_b32 s60, s{S_IDX}, 1\n  s_lshl_b32 s60, s60, 10\n  s_and_b32 s61, s{S_IDX}, 1\n  s_lshl_b32 s61, s61, 9\n  s_add_u32 s60, s60, s61")
        a(f"  v_lshrrev_b32 v{T0}, 1, v{Gq}\n  v_lshlrev_b32 v{T0}, 8, v{T0}\n  v_lshl_add_u32 v{T0}, v{N}, 4, v{T0}")
        a(f"  v_and_b32 v{T1}, 1, v{Gq}\n  v_lshl_add_u32 v{T0}, v{T1}, 3, v{T0}\n  v_add_u32 v{FL}, s60, v{T0}")
        a("  s_waitcnt lgkmcnt(0)")
        srd(a, R_WS, P_WS, WS_BYTES)
        a(f"  s_cmp_eq_u32 s{S_WAVE}, 0\n  s_cbranch_scc1 L_h0a")
        a(f"  s_cmp_eq_u32 s{S_WAVE}, 1\n  s_cbranch_scc1 L_h1a")
        a(f"  s_cmp_eq_u32 s{S_WAVE}, 2\n  s_cbranch_scc1 L_h2a")
        a(f"  s_cmp_eq_u32 s{S_WAVE}, 3\n  s_cbranch_scc1 L_h3a")
        a(f"  s_cmp_eq_u32 s{S_WAVE}, 4\n  s_cbranch_scc1 L_h4a")
        self.code_prefetch(T0, 20)
        a("  s_waitcnt vmcnt(0)\n  s_branch L_hb1")
        a("L_h0a:")
        srd(a, R_A, P_Q, Q_BYTES)
        a("  s_mov_b32 s60, 0")
        self.img_dma(R_A, H_QI, 60, VS0, VS1)
        a(f"  buffer_load_dword v15, v{ZERO}, {sr(R_WS)}, 0 offen offset:{NONCE_OFF} sc1")
        a("  s_waitcnt vmcnt(0)\n  s_branch L_hb1")
        a("L_h1a:")
        srd(a, R_B, P_WQ, W_BYTES)
        for k in range(12):
            a(f"  s_mov_b32 m0, {H_WQI + k*1024}\n  s_mov_b32 s62, {k*32*768}\n  buffer_load_dwordx4 v{DS}, {sr(R_B)}, s62 offen{' nt' if cfg.hnt else ''} lds")
        a("  s_waitcnt vmcnt(0)\n  s_branch L_hb1")
        a("L_h2a:")
        srd(a, R_C, P_WK, W_BYTES)
        a(f"  s_mul_i32 s60, s{S_IDX}, {16*768}")
        self.img_dma(R_C, H_WKI, 60, VS0, VS1)
        a("  s_waitcnt vmcnt(0)\n  s_branch L_hb1")
        a("L_h3a:")
        srd(a, R_E, P_WO, W_BYTES)
        for k in range(12):
            a(f"  s_mov_b32 m0, {H_WOI + k*1024}\n  s_mov_b32 s62, {k*32*768}\n  buffer_load_dwordx4 v{DS}, {sr(R_E)}, s62 offen{' nt' if cfg.hnt else ''} lds")
        a("  s_branch L_hb1")
        a("L_h4a:")
        srd(a, R_DBG, P_DBG, 256)
        a(f"  v_mov_b32 v{T0}, -1\n  v_mov_b32 v{T0+1}, -1\n  v_mov_b32 v{T0+2}, -1\n  v_mov_b32 v{T0+3}, -1")
        a(f"  s_mov_b32 s62, {RQ_OFF}\n  s_mov_b32 s63, {RQK_OFF}")
        a(f"  buffer_store_dwordx2 {vr(T0,2)}, v{FL}, {sr(R_WS)}, s62 offen sc1")
        a(f"  buffer_store_dwordx2 {vr(T0,2)}, v{FL}, {sr(R_WS)}, s63 offen sc1")
        a(f"  s_lshl_b32 s62, s{S_IDX}, 9\n  s_add_u32 s62, s62, {RCTX_OFF}")
        a("  v_cmp_gt_u32 vcc, 32, v0\n  s_and_saveexec_b64 s[64:65], vcc")
        a(f"  buffer_store_dwordx4 {vr(T0)}, v{L16}, {sr(R_WS)}, s62 offen sc1")
        a("  s_mov_b64 exec, s[64:65]")
        if cfg.hint:
            nn = self.lab("nohint")
            a(f"  s_cmp_lg_u32 s{S_IDX}, 0\n  s_cbranch_scc1 {nn}")
            a(f"  v_lshlrev_b32 v9, 7, v0\n  v_add_u32 v9, {HINT_OFF}, v9\n  v_cmp_gt_u32 vcc, 8, v0\n  s_and_saveexec_b64 s[64:65], vcc")
            a(f"  buffer_store_dword v{ZERO}, v9, {sr(R_WS)}, 0 offen sc1\n  s_mov_b64 exec, s[64:65]\n{nn}:")
        a(f"  s_waitcnt vmcnt(0)\n  v_mov_b32 v9, 1\n  s_mov_b64 exec, 1")
        a(f"  buffer_atomic_add v9, v{ZERO}, {sr(R_DBG)}, 0 offen sc1\n  s_mov_b64 exec, -1")
        a("L_hb1:")
        self.stamp(7)
        srd(a, R_DBG, P_DBG, 256); srd(a, R_A, P_Q, Q_BYTES); srd(a, R_D, P_WV, W_BYTES); srd(a, R_F, P_OUT, Q_BYTES)
        a(f"  v_and_b32 v{T0}, 7, v{N}\n  v_lshlrev_b32 v{T0}, 1, v{T0}\n  v_lshlrev_b32 v{T1}, 8, v{N}")
        for m in range(4):
            a(f"  v_add_u32 v{T2}, {4*m}, v{Gq}\n  v_xor_b32 v{T2}, v{T2}, v{T0}\n  v_lshl_add_u32 v{IA+m}, v{T2}, 4, v{T1}")
        a(f"  v_lshrrev_b32 v{T0}, 2, v{N}\n  v_lshl_add_u32 v{T0}, v{Gq}, 3, v{T0}\n  v_lshlrev_b32 v{T0}, 5, v{T0}")
        a(f"  v_and_b32 v{T1}, 3, v{N}\n  v_lshl_add_u32 v{TA}, v{T1}, 3, v{T0}")
        for i in range(4): a(f"  v_mov_b32 v{ONES+i}, 0x3f803f80")
        a("  s_barrier")
        self.stamp(1)
        a(f"  s_cmp_lg_u32 s{S_WAVE}, 0\n  s_cbranch_scc1 L_hb2")
        a(f"  buffer_load_dword v9, v{ZERO}, {sr(R_DBG)}, 0 offen sc1")
        for j in range(12):
            a(f"  ds_read_b128 {vr(QF+4*j)}, v{IA+(j&3)} offset:{H_QI + (j>>2)*4096}")
        def tr(j):
            a(f"  ds_read_b64_tr_b16 {vr(TR+4*j,2)}, v{TA} offset:{H_WQI + j*1024}")
            a(f"  ds_read_b64_tr_b16 {vr(TR+4*j+2,2)}, v{TA} offset:{H_WQI + j*1024 + 128}")
        tr(0)
        a("  s_waitcnt lgkmcnt(2)")
        for j in range(12):
            if j + 1 < 12: tr(j + 1)
            for i in (0, 1): a(f"  v_dot2_f32_bf16 v{ST+i}, v{QF+4*j+i}, v{QF+4*j+i}, {'0' if j == 0 else 'v%d' % (ST+i)}")
            a(f"  v_mfma_f32_16x16x32_bf16 {vr(D3)}, {vr(ONES)}, {vr(QF+4*j)}, {'0' if j == 0 else vr(D3)}")
            for i in (2, 3): a(f"  v_dot2_f32_bf16 v{ST+i}, v{QF+4*j+i}, v{QF+4*j+i}, {'0' if j == 0 else 'v%d' % (ST+i)}")
            a(f"  s_waitcnt lgkmcnt({2 if j + 1 < 12 else 0})")
            a(f"  v_mfma_f32_16x16x32_bf16 {vr(D1)}, {vr(TR+4*j)}, {vr(QF+4*j)}, {'0' if j == 0 else vr(D1)}")
            a(f"  v_mfma_f32_16x16x32_bf16 {vr(D2)}, {vr(TR+4*j)}, {vr(ONES)}, {'0' if j == 0 else vr(D2)}")
        for j in range(12):
            a(f"  ds_read_b128 {vr(WKF+4*j)}, v{IA+(j&3)} offset:{H_WKI + (j>>2)*4096}")
        self.pk("v_pk_add_f32", ST, ST, ST + 2)
        a(f"  v_add_f32 v{ST}, v{ST}, v{ST+1}")
        self.allred_g(ST, T0, "v_add_f32")
        inv = f32(1.0 / 384.0)
        a(f"  v_mul_f32 v{D3}, {inv}, v{D3}\n  v_mul_f32 v{ST}, {inv}, v{ST}\n  v_fma_f32 v{ST}, -v{D3}, v{D3}, v{ST}")
        a(f"  v_max_f32 v{ST}, 0, v{ST}\n  v_add_f32 v{ST}, {f32(1e-5)}, v{ST}\n  v_rsq_f32 v{ST}, v{ST}")
        for r in range(4): a(f"  v_fma_f32 v{D1+r}, -v{D3}, v{D2+r}, v{D1+r}")
        for r in range(4): a(f"  v_mul_f32 v{D1+r}, v{ST}, v{D1+r}")
        a(f"  v_cvt_pk_bf16_f32 v{D2}, v{D1}, v{D1+1}\n  v_cvt_pk_bf16_f32 v{D2+1}, v{D1+2}, v{D1+3}")
        a(f"  v_min_u32 v{D2}, -2, v{D2}\n  v_min_u32 v{D2+1}, -2, v{D2+1}\n  s_mov_b32 s62, {RQ_OFF}")
        a(f"  buffer_store_dwordx2 {vr(D2,2)}, v{FL}, {sr(R_WS)}, s62 offen sc1")
        self.stamp(2)
        hv = self.lab("havecnt")
        a(f"  s_waitcnt vmcnt(1)\n  v_readfirstlane_b32 s60, v9\n  s_cmp_ge_u32 s60, {NH}\n  s_cbranch_scc1 {hv}")
        self.wait_count(9, ZERO)
        a(f"{hv}:\n  s_mov_b32 s62, {RQ_OFF}")
        self.gather_frags(12, AF, L16, 62, T0, "q")
        self.stamp(3)
        a("  s_waitcnt lgkmcnt(0)")
        for j in range(12):
            dd = D1 if j % 2 == 0 else D2
            a(f"  v_mfma_f32_16x16x32_bf16 {vr(dd)}, {vr(WKF+4*j)}, {vr(AF+4*j)}, {'0' if j < 2 else vr(dd)}")
        sc = f32(384 ** -0.5 * LOG2E)
        for r in range(4): a(f"  v_add_f32 v{D1+r}, v{D1+r}, v{D2+r}")
        for r in range(4): a(f"  v_mul_f32 v{D1+r}, {sc}, v{D1+r}")
        a(f"  v_cvt_pk_bf16_f32 v{D2}, v{D1}, v{D1+1}\n  v_cvt_pk_bf16_f32 v{D2+1}, v{D1+2}, v{D1+3}")
        a(f"  v_min_u32 v{D2}, -2, v{D2}\n  v_min_u32 v{D2+1}, -2, v{D2+1}\n  s_mov_b32 s62, {RQK_OFF}")
        a(f"  buffer_store_dwordx2 {vr(D2,2)}, v{FL}, {sr(R_WS)}, s62 offen sc1")
        self.stamp(4)
        a("L_hb2:\n  s_waitcnt vmcnt(0)\n  s_barrier")
        a(f"  s_mul_i32 s60, s{S_WAVE}, {48*768}\n  s_mul_i32 s61, s{S_WAVE}, 12288\n  s_add_u32 s61, s61, {H_WV}")
        for th in range(3):
            for q4 in range(4): self.img_dma1(R_D, 0, 60, VS0, VS1, th, q4, ldsreg=61)
        for j in range(12):
            a(f"  ds_read_b64_tr_b16 {vr(TR+4*j,2)}, v{TA} offset:{H_WOI + j*1024}")
            a(f"  ds_read_b64_tr_b16 {vr(TR+4*j+2,2)}, v{TA} offset:{H_WOI + j*1024 + 128}")
            if j == 6: a("  s_waitcnt lgkmcnt(0)")
        for m in range(4): a(f"  v_add_u32 v{IA+m}, s61, v{IA+m}")
        a(f"  v_mul_u32_u24 v{T0}, 784, v{N}\n  v_lshl_add_u32 v{T0}, v{Gq}, 3, v{T0}\n  s_mul_i32 s62, s{S_WAVE}, 96\n  s_add_u32 s62, s62, {H_WT}\n  v_add_u32 v{T3}, s62, v{T0}")
        for tau in range(3):
            if tau < 2: a(f"  s_add_u32 s60, s60, {16*768}")
            for th in range(3):
                a(f"  s_waitcnt vmcnt({8 if tau < 2 else 8 - 4*th})")
                for m in range(4): a(f"  ds_read_b128 {vr(WKF+4*m)}, v{IA+m} offset:{th*4096}")
                a("  s_waitcnt lgkmcnt(0)")
                if tau < 2:
                    for q4 in range(4): self.img_dma1(R_D, 0, 60, VS0, VS1, th, q4, ldsreg=61)
                for m in range(4):
                    j = 4 * th + m
                    a(f"  v_mfma_f32_16x16x32_bf16 {vr(D1)}, {vr(WKF+4*m)}, {vr(TR+4*j)}, {'0' if j == 0 else vr(D1)}")
            a(f"  v_cvt_pk_bf16_f32 v{D2}, v{D1}, v{D1+1}\n  v_cvt_pk_bf16_f32 v{D2+1}, v{D1+2}, v{D1+3}")
            a(f"  ds_write_b64 v{T3}, {vr(D2,2)} offset:{tau*32}")
        a("  s_waitcnt lgkmcnt(0)\n  s_barrier")
        self.stamp(5)
        a(f"  s_cmp_lg_u32 s{S_WAVE}, 0\n  s_cbranch_scc1 L_hdone")
        a(f"  v_mul_u32_u24 v{T0}, 784, v{N}\n  v_lshl_add_u32 v{T0}, v{Gq}, 4, v{T0}\n  v_add_u32 v{T0}, {H_WT}, v{T0}")
        for j in range(12): a(f"  ds_read_b128 {vr(WKF+4*j)}, v{T0} offset:{j*64}")
        a(f"  v_mul_u32_u24 v{T3}, 768, v{N}\n  v_lshl_add_u32 v{T3}, v{Gq}, 3, v{T3}\n  s_lshl_b32 s61, s{S_IDX}, 5")
        a(f"  buffer_load_dwordx2 {vr(QF,2)}, v{T3}, {sr(R_A)}, s61 offen")
        a("  s_waitcnt vmcnt(0) lgkmcnt(0)")
        a(f"  v_lshlrev_b32 v{QF+4}, 16, v{QF}\n  v_and_b32 v{QF+5}, 0xffff0000, v{QF}\n  v_lshlrev_b32 v{QF+6}, 16, v{QF+1}\n  v_and_b32 v{QF+7}, 0xffff0000, v{QF+1}")
        a(f"  v_add_u32 v15, 1, v15\n  s_mov_b32 s62, {RCTX_OFF}")
        self.gather_frags(12, AF, L16, 62, T0, "c")
        self.stamp(6)
        for j in range(12):
            dd = D1 if j % 2 == 0 else D2
            c1 = vr(QF+4) if j == 0 else ("0" if j == 1 else vr(dd))
            a(f"  v_mfma_f32_16x16x32_bf16 {vr(dd)}, {vr(WKF+4*j)}, {vr(AF+4*j)}, {c1}")
        for h in (0, 2): self.pk("v_pk_add_f32", D1 + h, D1 + h, D2 + h)
        a(f"  v_cvt_pk_bf16_f32 v{D2}, v{D1}, v{D1+1}\n  v_cvt_pk_bf16_f32 v{D2+1}, v{D1+2}, v{D1+3}")
        a(f"  buffer_store_dwordx2 {vr(D2,2)}, v{T3}, {sr(R_F)}, s61 offen")
        nn = self.lab("nononce")
        a(f"  s_cmp_lg_u32 s{S_IDX}, 0\n  s_cbranch_scc1 {nn}")
        a(f"  buffer_store_dword v15, v{ZERO}, {sr(R_WS)}, 0 offen offset:{NONCE_OFF} sc1\n{nn}:")
        a("L_hdone:")
        self.stamp(9); self.stamp_flush()
        a("  s_endpgm")

    def build(self):
        a = self.a
        hdr = open("standalone__detection_seg_dino__vision.s.ref").read().split("\n")
        for line in hdr:
            if line.startswith("; @launch"): break
            a(line)
        a("; @" + f"launch grid=(256,1,1) block=(512,1,1) lds={LDS_BYTES}")
        a('.amdgcn_target "amdgcn-amd-amdhsa--gfx950"\n.text')
        a(f".globl {KNAME}\n.p2align 8\n.type {KNAME},@function\n{KNAME}:")
        n0 = len(a.L)
        self.prologue(); self.streamer(); self.helper()
        a("L_end:\n  s_endpgm\nL_code_end:")
        body, added = hazard.fix(a.L[n0:])
        a.L = a.L[:n0] + body
        a('.section .rodata,"a"\n.p2align 6')
        a(f".amdhsa_kernel {KNAME}")
        a("  .amdhsa_next_free_vgpr 256\n  .amdhsa_next_free_sgpr 102\n  .amdhsa_accum_offset 256")
        a("  .amdhsa_group_segment_fixed_size 0\n  .amdhsa_kernarg_size 80\n  .amdhsa_user_sgpr_count 2")
        a("  .amdhsa_user_sgpr_kernarg_segment_ptr 1\n  .amdhsa_system_sgpr_workgroup_id_x 1")
        a("  .amdhsa_float_denorm_mode_32 3")
        a(".end_amdhsa_kernel")
        return a.text(), added

def generate(path, **kw):
    cfg = Cfg()
    for k, v in kw.items(): setattr(cfg, k, v)
    text, added = G(cfg).build()
    open(path, "w").write(text)
    return added

if __name__ == "__main__":
    path = sys.argv[1] if len(sys.argv) > 1 else "standalone__detection_seg_dino__vision.s"
    kw = {}
    for x in sys.argv[2:]:
        k, v = x.split("="); kw[k] = eval(v)
    print("nops added:", generate(path, **kw))
```

```python
import sys, struct
from asmlib import Asm
import hazard

KNAME = "standalone__detection_seg_dino__vision_kernel"

NH, NS, NPAIR = 24, 228, 9
F0_BYTES, F1_BYTES, W_BYTES, Q_BYTES = 50331648, 12582912, 294912, 12288
WS_BYTES = 268435456

NONCE_OFF = 0
HINT_OFF = 1024
RQ_OFF, RQK_OFF, RCTX_OFF = 4096, 20480, 36864
LSE_OFF = 65536
PART_OFF = 131072
PART_STRIDE = NS * 128
STAMP_OFF = 8 << 20

SLOT = 12288
STG = 12 * SLOT
TOP = 13 * SLOT
STAT = TOP
NONCE_LDS = TOP + 1536
MXW = TOP + 1600
MX = TOP + 2048
RED = TOP + 2560
RED2 = STG + 4096
LDS_BYTES = 163840
H_QI, H_WKI, H_WQI, H_WOI, H_WT, H_WV = 0, 12288, 24576, 36864, 49152, 65536

LOG2E = 1.4426950408889634
def f32(x): return "0x%08x" % struct.unpack("<I", struct.pack("<f", x))[0]

class Cfg:
    nt = True
    stamp = False
    depth = 5
    hx0 = 0
    hnx = 4
    hint = True
    codepf = True
    dbgstamp = False
    hnt = False

S_WAVE = 3
P_Q, P_F0, P_F1, P_WQ, P_WK, P_WV, P_WO, P_OUT, P_DBG, P_WS = 4, 6, 8, 10, 12, 14, 16, 18, 20, 22
R_A, R_B, R_WS, R_DBG, R_C, R_D, R_E, R_F = 24, 28, 32, 36, 40, 44, 48, 52
S_IDX, S_ONELO, S_ONEHI = 56, 57, 58
S_K, S_QBASE, S_LINK = 66, 67, 68
S_NONCE, S_SPIN = 70, 71
S_TI, S_TB, S_PB, S_BIAS, S_T, S_P0, S_SB, S_W0, S_NP, S_PVB, S_LAST = 72, 73, 74, 75, 76, 77, 78, 79, 80, 81, 59
S_SST = 48
S_QMASK = 50
SETA, SETB = 40, 44
STAMP0 = 82
SPIN_CAP = 200000

def srd(a, s, ptr, nbytes):
    a(f"  s_mov_b32 s{s}, s{ptr}\n  s_mov_b32 s{s+1}, s{ptr+1}\n  s_mov_b32 s{s+2}, {nbytes}\n  s_mov_b32 s{s+3}, 0x20000")
def vr(b, n=4): return f"v[{b}:{b+n-1}]"
def sr(b, n=4): return f"s[{b}:{b+n-1}]"

class G:
    def __init__(self, cfg):
        self.cfg = cfg; self.a = Asm(); self.uid = 0
    def lab(self, name):
        self.uid += 1
        return f"L_{name}_{self.uid}"
    def stamp(self, i):
        if self.cfg.stamp:
            self.a(f"  s_memrealtime s[{STAMP0+2*i}:{STAMP0+2*i+1}]\n  s_waitcnt lgkmcnt(0)")
    def stamp_init(self):
        if self.cfg.stamp:
            for i in range(20): self.a(f"  s_mov_b32 s{STAMP0+i}, 0")
    def stamp_flush(self, dbg=None):
        if not self.cfg.stamp: return
        a = self.a
        if self.cfg.dbgstamp and dbg:
            who, wave, first, which = dbg
            sk = self.lab("nodbg")
            a(f"  s_cmp_lg_u32 s{S_IDX}, {who}\n  s_cbranch_scc1 {sk}\n  s_cmp_lg_u32 s{S_WAVE}, {wave}\n  s_cbranch_scc1 {sk}")
            srd(a, R_DBG, P_DBG, 256)
            a("  v_mov_b32 v1, 0")
            for i, st in enumerate(which):
                a(f"  v_mov_b32 v2, s{STAMP0+2*st}\n  buffer_store_dword v2, v1, {sr(R_DBG)}, 0 offen offset:{4*(first+i)}\n  s_nop 0")
            a(f"{sk}:")
        if self.cfg.dbgstamp: return
        a("  s_lshl_b32 s60, s2, 3\n  s_add_u32 s60, s60, s3\n  s_lshl_b32 s60, s60, 6")
        a(f"  s_add_u32 s60, s60, {STAMP_OFF}\n  v_mov_b32 v1, 0")
        for i in range(10):
            a(f"  v_mov_b32 v2, s{STAMP0+2*i}\n  buffer_store_dword v2, v1, {sr(R_WS)}, s60 offen offset:{4*i}\n  s_nop 0")

    def allred_g(self, x, t, op):
        a = self.a
        a(f"  v_mov_b32 v{t}, v{x}\n  v_permlane16_swap_b32 v{t}, v{x}\n  {op} v{x}, v{t}, v{x}")
        a(f"  v_mov_b32 v{t}, v{x}\n  v_permlane32_swap_b32 v{t}, v{x}\n  {op} v{x}, v{t}, v{x}")
    def valid_check(self, base, n, t, retry):
        a = self.a
        a(f"  v_max3_u32 v{t}, v{base}, v{base+1}, v{base+2}")
        h = n // 2
        a(f"  v_max3_u32 v{t+1}, v{base+h}, v{base+h+1}, v{base+h+2}")
        i, k = 3, h + 3
        while i < h or k < n:
            if i + 1 < h: a(f"  v_max3_u32 v{t}, v{t}, v{base+i}, v{base+i+1}"); i += 2
            elif i < h: a(f"  v_max_u32 v{t}, v{t}, v{base+i}"); i += 1
            if k + 1 < n: a(f"  v_max3_u32 v{t+1}, v{t+1}, v{base+k}, v{base+k+1}"); k += 2
            elif k < n: a(f"  v_max_u32 v{t+1}, v{t+1}, v{base+k}"); k += 1
        a(f"  v_max_u32 v{t}, v{t}, v{t+1}\n  v_cmp_eq_u32 vcc, -1, v{t}\n  s_cbranch_vccnz {retry}")
    def spin_guard(self, done):
        self.a(f"  s_add_u32 s{S_SPIN}, s{S_SPIN}, 1\n  s_cmp_gt_u32 s{S_SPIN}, {SPIN_CAP}\n  s_cbranch_scc1 {done}")
    def wait_count(self, vd, vz):
        a = self.a
        lp, dn = self.lab("cnt"), self.lab("cntd")
        a(f"  s_mov_b32 s{S_SPIN}, 0\n{lp}:")
        a(f"  buffer_load_dword v{vd}, v{vz}, {sr(R_DBG)}, 0 offen sc1")
        self.spin_guard(dn)
        a(f"  s_waitcnt vmcnt(0)\n  v_readfirstlane_b32 s60, v{vd}")
        a(f"  s_cmp_lt_u32 s60, {NH}\n  s_cbranch_scc1 {lp}")
        a(f"{dn}:\n  s_waitcnt vmcnt(0)")
    def gather_frags(self, nfr, dst, vaddr, off0, t, name):
        a = self.a
        lp, dn = self.lab(name), self.lab(name + "d")
        a(f"  s_add_u32 s63, s{off0}, 4096\n  s_add_u32 s64, s{off0}, 8192\n  s_mov_b32 s{S_SPIN}, 0\n{lp}:")
        for j in range(nfr):
            so = (f"s{off0}", "s63", "s64")[j >> 2]
            a(f"  buffer_load_dwordx4 {vr(dst+4*j)}, v{vaddr}, {sr(R_WS)}, {so} offen offset:{(j&3)*1024} sc1")
        self.spin_guard(dn)
        a("  s_waitcnt vmcnt(0)")
        self.valid_check(dst, 4 * nfr, t, lp)
        a(f"{dn}:\n  s_waitcnt vmcnt(0)")

    def prologue(self):
        a = self.a; cfg = self.cfg
        a("  s_cmp_ge_u32 s2, 256\n  s_cbranch_scc1 L_end")
        a("  s_load_dwordx16 s[4:19], s[0:1], 0\n  s_load_dwordx4 s[20:23], s[0:1], 64")
        a("  v_lshrrev_b32 v1, 6, v0\n  v_and_b32 v0, 63, v0")
        a(f"  v_readfirstlane_b32 s{S_WAVE}, v1")
        a(f"  s_mov_b32 s{S_ONELO}, 0x00003f80\n  s_mov_b32 s{S_ONEHI}, 0x3f800000")
        self.stamp_init(); self.stamp(0)
        rows = NH // cfg.hnx
        a(f"  s_and_b32 s60, s2, 7\n  s_lshr_b32 s61, s2, 3\n  s_sub_u32 s62, s60, {cfg.hx0}")
        a(f"  s_cmp_lt_u32 s61, {rows}\n  s_cbranch_scc0 L_late")
        a(f"  s_cmp_lt_u32 s62, {cfg.hnx}\n  s_cbranch_scc0 L_early")
        a(f"  s_mul_i32 s{S_IDX}, s61, {cfg.hnx}\n  s_add_u32 s{S_IDX}, s{S_IDX}, s62\n  s_branch L_helper")
        a("L_early:")
        a(f"  s_cmp_lt_u32 s60, {cfg.hx0}\n  s_cselect_b32 s62, 0, {cfg.hnx}\n  s_sub_u32 s62, s60, s62")
        a(f"  s_mul_i32 s{S_IDX}, s61, {8-cfg.hnx}\n  s_add_u32 s{S_IDX}, s{S_IDX}, s62\n  s_branch L_stream")
        a(f"L_late:\n  s_sub_u32 s{S_IDX}, s2, {NH}")
        a(f"  s_cmp_ge_u32 s{S_IDX}, {NS}\n  s_cbranch_scc1 L_end")
        a("L_stream:")

    def code_prefetch(self, vt, vd):
        if not self.cfg.codepf: return
        a = self.a
        l = self.lab("pc")
        a(f"  s_getpc_b64 s[60:61]\n{l}:")
        a(f"  s_sub_u32 s60, s60, {l}-{KNAME}\n  s_subb_u32 s61, s61, 0")
        a(f"  s_lshr_b32 s62, s2, 3\n  s_lshl_b32 s62, s62, 10\n  v_lshl_add_u32 v{vt}, v0, 4, s62")
        a(f"  v_min_u32 v{vt}, L_code_end-{KNAME}-16, v{vt}")
        a(f"  global_load_dwordx4 {vr(vd)}, v{vt}, s[60:61]")

    V_OFF1, V_OFF0, V_SA = 2, 3, 255
    V_WA = (4, 5, 253, 254)
    V_RA, V_PA = 6, 10
    V_PADDR, V_MXW, V_MXR = 13, 14, 15
    V_ST = 128
    V_BUF = (16, 36)
    V_PU, V_TMP, V_OUT = 56, 64, 72
    V_QK, V_A, V_ACC = 80, 128, 176
    V_S, V_SUM, V_SQ4, V_SQ, V_MU, V_RS, V_LG = 188, 192, 196, 200, 204, 208, 212
    V_ONES = 216
    V_M, V_AL, V_L2, V_AM2, V_QS, V_CINV, V_CEPS, V_BIAS = 220, 222, 224, 226, 228, 230, 232, 234
    V_T0, V_T1, V_T2, V_ONEF = 236, 237, 238, 239
    V_MXV, V_TA, V_L16 = 240, 248, 252
    V_STR = 1

    def task_bases(self, st, kconst, kreg=True):
        a = self.a
        if kreg: a(f"  s_add_u32 s62, s{S_K}, {kconst}")
        else: a(f"  s_mov_b32 s62, {kconst}")
        a(f"  s_lshl_b32 s63, s62, 1\n  s_add_u32 s63, s63, s{S_QBASE}")
        a(f"  s_mul_i32 s{st}, s63, 3072\n  s_lshr_b32 s64, s63, 5\n  s_mul_i32 s64, s64, 393216")
        a(f"  s_and_b32 s65, s63, 31\n  s_mul_i32 s65, s65, 6144\n  s_add_u32 s{st+1}, s64, s65")
        a(f"  s_cmp_gt_u32 s62, {NPAIR-1}\n  s_cselect_b32 s{st}, 0x80000000, s{st}\n  s_cselect_b32 s{st+1}, 0x80000000, s{st+1}")
        a(f"  s_add_u32 s{st+2}, s{st+1}, 196608")
    def issue_piece(self, st, par, i):
        a = self.a
        nt = " nt" if self.cfg.nt else ""
        b = self.V_BUF[par] + 4 * i
        if i == 0:
            a(f"  buffer_load_dwordx4 {vr(b)}, v{self.V_OFF1}, {sr(R_B)}, s{st} offen{nt}")
        else:
            t = i - 1
            off = " offset:768" if t & 1 else ""
            a(f"  buffer_load_dwordx4 {vr(b)}, v{self.V_OFF0}, {sr(R_A)}, s{st+1+(t>>1)} offen{off}{nt}")

    def fuse_sub(self, par):
        a = self.a; d = self.cfg.depth
        b = self.V_BUF[par]; u = self.V_PU; t8 = self.V_TMP
        SS, SQ, R, U = self.V_ST, self.V_ST + 4, self.V_ST + 8, self.V_ST + 12
        a0 = d // 5
        a(f"L_fuse{par}:")
        a(f"  s_mov_b32 s{SETA}, s{SETB}\n  s_mov_b32 s{SETA+1}, s{SETB+1}\n  s_mov_b32 s{SETA+2}, s{SETB+2}")
        self.task_bases(SETB, a0 + 1)
        def nxt(i):
            aa, pi = (i + d) // 5, (i + d) % 5
            self.issue_piece(SETA if aa == a0 else SETB, par ^ (aa & 1), pi)
        def dpp(dst, src, ctrl, bank):
            a(f"  v_add_f32_dpp v{dst}, v{src}, v{src} {ctrl} row_mask:0xf bank_mask:{bank:#x}")
        a(f"  s_waitcnt vmcnt({d-1})")
        for i in range(4):
            a(f"  v_lshlrev_b32 v{u+2*i}, 16, v{b+i}\n  v_and_b32 v{u+2*i+1}, 0xffff0000, v{b+i}")
        nxt(0)
        for t in range(4):
            c = b + 4 + 4 * t; o = self.V_OUT + 4 * (t & 1)
            a(f"  s_waitcnt vmcnt({d-1})")
            for i in range(4):
                a(f"  v_dot2_f32_bf16 v{t8+2*i}, v{c+i}, s{S_ONELO}, v{u+2*i}")
                a(f"  v_dot2_f32_bf16 v{t8+2*i+1}, v{c+i}, s{S_ONEHI}, v{u+2*i+1}")
            nxt(t + 1)
            for i in range(4):
                a(f"  v_cvt_pk_bf16_f32 v{o+i}, v{t8+2*i}, v{t8+2*i+1}")
            a(f"  ds_write_b128 v{self.V_WA[t]}, {vr(o)} offset:{t*768}")
            if t > 0: dpp(R + t - 1, SS + t - 1, "row_ror:8", 0x3)
            for i in range(4):
                a(f"  v_dot2_f32_bf16 v{SS+t}, v{o+i}, v{self.V_ONES}, {'0' if i == 0 else 'v%d' % (SS+t)}")
                a(f"  v_dot2_f32_bf16 v{SQ+t}, v{o+i}, v{o+i}, {'0' if i == 0 else 'v%d' % (SQ+t)}")
            if t > 0: dpp(R + t - 1, SQ + t - 1, "row_ror:8", 0xc)
        WA = self.V_WA
        a(f"  s_mov_b32 s62, 24576\n  s_cmp_eq_u32 s{S_K}, 5\n  s_cselect_b32 s62, {(-5*24576) & 0xffffffff:#x}, s62")
        dpp(U, R, "row_half_mirror", 0x5)
        dpp(R + 3, SS + 3, "row_ror:8", 0x3)
        a(f"  v_add_u32 v{WA[0]}, s62, v{WA[0]}")
        dpp(U, R + 1, "row_half_mirror", 0xa)
        dpp(R + 3, SQ + 3, "row_ror:8", 0xc)
        dpp(U + 1, R + 2, "row_half_mirror", 0x5)
        a(f"  v_add_u32 v{WA[1]}, s62, v{WA[1]}")
        dpp(U, U, "quad_perm:[1,0,3,2]", 0xf)
        dpp(U + 1, R + 3, "row_half_mirror", 0xa)
        a(f"  v_add_u32 v{WA[2]}, s62, v{WA[2]}")
        dpp(U, U, "quad_perm:[2,3,0,1]", 0xf)
        dpp(U + 1, U + 1, "quad_perm:[1,0,3,2]", 0xf)
        a(f"  v_add_u32 v{WA[3]}, s62, v{WA[3]}\n  s_mov_b64 exec, s[{S_QMASK}:{S_QMASK+1}]\n  ds_add_f32 v{self.V_SA}, v{U}\n  s_mov_b64 exec, -1")
        dpp(U + 1, U + 1, "quad_perm:[2,3,0,1]", 0xf)
        a(f"  s_mov_b32 s62, 256\n  s_cmp_eq_u32 s{S_K}, 5\n  s_cselect_b32 s62, {(-5*256) & 0xffffffff:#x}, s62\n  s_add_u32 s{S_K}, s{S_K}, 1")
        a(f"  s_mov_b64 exec, s[{S_QMASK}:{S_QMASK+1}]\n  ds_add_f32 v{self.V_SA}, v{U+1} offset:8\n  s_mov_b64 exec, -1")
        a(f"  v_add_u32 v{self.V_SA}, s62, v{self.V_SA}")
        a(f"  s_setpc_b64 s[{S_LINK}:{S_LINK+1}]")

    def stream_consts(self):
        a = self.a
        a("  v_and_b32 v240, 15, v0\n  v_lshrrev_b32 v241, 4, v0")
        a("  v_and_b32 v242, 7, v240\n  v_lshlrev_b32 v242, 1, v242\n  v_mul_u32_u24 v243, 768, v240")
        for m in range(4):
            a(f"  v_add_u32 v244, {4*m}, v241\n  v_xor_b32 v244, v244, v242\n  v_lshl_add_u32 v{self.V_RA+m}, v244, 4, v243")
        a("  v_lshrrev_b32 v242, 2, v240\n  v_lshl_add_u32 v242, v241, 2, v242\n  v_mul_u32_u24 v243, 768, v242")
        a("  v_and_b32 v242, 7, v242\n  v_lshlrev_b32 v242, 1, v242")
        a("  v_and_b32 v244, 3, v240\n  v_lshrrev_b32 v245, 1, v244\n  v_and_b32 v244, 1, v244\n  v_lshl_add_u32 v243, v244, 3, v243")
        for tau in range(3):
            a(f"  s_mul_i32 s62, s{S_WAVE}, 3\n  s_add_u32 s62, s62, {tau}")
            a("  s_lshl_b32 s63, s62, 1\n  s_and_b32 s63, s63, 14\n  s_lshr_b32 s62, s62, 3\n  s_lshl_b32 s62, s62, 8")
            a(f"  v_xor_b32 v244, s63, v242\n  v_or_b32 v244, v244, v245\n  v_lshl_add_u32 v244, v244, 4, v243\n  v_add_u32 v{self.V_PA+tau}, s62, v244")
        a(f"  v_lshlrev_b32 v{self.V_L16}, 4, v0\n  v_add_u32 v{self.V_PADDR}, {STG}, v{self.V_L16}\n  v_lshlrev_b32 v{self.V_STR}, 4, v241")
        a(f"  v_lshlrev_b32 v244, 5, v240\n  v_add_u32 v{self.V_MXR}, {MX}, v244")
        a(f"  s_lshl_b32 s62, s{S_WAVE}, 2\n  v_add_u32 v{self.V_MXW}, s62, v{self.V_MXR}")
        for i in range(4): a(f"  v_mov_b32 v{self.V_ONES+i}, 0x3f803f80")
        a(f"  v_mov_b32 v{self.V_ONEF}, 1.0\n  v_mov_b32 v{self.V_CINV}, {f32(1/384)}\n  v_mov_b32 v{self.V_CEPS}, {f32(1e-5)}")
        for i in range(12): a(f"  v_mov_b32 v{self.V_ACC+i}, 0")
        a(f"  v_mov_b32 v{self.V_M}, 0xff800000")
        for r in (self.V_L2, self.V_L2+1, self.V_AM2, self.V_AM2+1, self.V_M+1, self.V_AL+1, self.V_QS+1, self.V_CINV+1, self.V_CEPS+1, self.V_BIAS+1):
            a(f"  v_mov_b32 v{r}, 0")

    def pk(self, op, d, x, y, z=None, bc=(), neg=()):
        n = 2 if z is None else 3
        ops = [x, y] + ([z] if z is not None else [])
        s = f"  {op} {vr(d,2)}, " + ", ".join(vr(o, 2) for o in ops)
        if bc: s += " op_sel_hi:[" + ",".join("0" if i in bc else "1" for i in range(n)) + "]"
        if neg:
            m = "[" + ",".join("1" if i in neg else "0" for i in range(n)) + "]"
            s += f" neg_lo:{m} neg_hi:{m}"
        self.a(s)

    def batch_sub(self):
        a = self.a
        A, QK = self.V_A, self.V_QK
        S, SUM, SQ4, SQ, MU, RS, LG = self.V_S, self.V_SUM, self.V_SQ4, self.V_SQ, self.V_MU, self.V_RS, self.V_LG
        M, AL, L2, AM2, T0, T1, MXV = self.V_M, self.V_AL, self.V_L2, self.V_AM2, self.V_T0, self.V_T1, self.V_MXV
        a("L_batch:")
        a(f"  s_sub_u32 s{S_TI}, s{S_WAVE}, s{S_W0}\n  s_cmp_ge_u32 s{S_TI}, s{S_T}\n  s_cbranch_scc1 L_b_nos")
        a(f"  s_mul_i32 s{S_TB}, s{S_TI}, {SLOT}\n  s_add_u32 s{S_TB}, s{S_TB}, s{S_SB}")
        for m in range(4): a(f"  v_add_u32 v{self.V_TA+m}, s{S_TB}, v{self.V_RA+m}")
        a(f"  s_mul_i32 s62, s{S_TI}, 128\n  s_add_u32 s62, s62, s{S_SST}\n  v_add_u32 v{T1}, s62, v{self.V_STR}")
        a(f"  ds_read_b128 {vr(SUM)}, v{T1}\n  ds_read_b128 {vr(SQ)}, v{T1} offset:64")
        for j in range(12): a(f"  ds_read_b128 {vr(A+4*j)}, v{self.V_TA+(j&3)} offset:{(j>>2)*256}")
        a(f"  s_lshr_b32 s62, s{S_TI}, 1\n  s_add_u32 s62, s62, s{S_PB}\n  s_cmp_lt_u32 s62, 2048\n  s_cselect_b32 s{S_BIAS}, 0, {f32(-1e30)}")
        a(f"  v_mov_b32 v{self.V_BIAS}, s{S_BIAS}")
        for i in range(4): a(f"  v_mov_b32 v{SQ4+i}, 0")
        a("  s_waitcnt lgkmcnt(12)")
        stat = []
        for h in (0, 2): stat.append(lambda h=h: self.pk("v_pk_mul_f32", MU + h, SUM + h, self.V_CINV, bc=(1,)))
        for h in (0, 2): stat.append(lambda h=h: self.pk("v_pk_fma_f32", RS + h, SQ + h, self.V_CINV, self.V_CEPS, bc=(1, 2)))
        for h in (0, 2): stat.append(lambda h=h: self.pk("v_pk_fma_f32", RS + h, MU + h, MU + h, RS + h, neg=(0,)))
        for r in range(4): stat.append(lambda r=r: a(f"  v_max_f32 v{RS+r}, v{self.V_CEPS}, v{RS+r}"))
        for r in range(4): stat.append(lambda r=r: a(f"  v_rsq_f32 v{RS+r}, v{RS+r}"))
        for h in (0, 2): stat.append(lambda h=h: self.pk("v_pk_mul_f32", SUM + h, MU + h, self.V_QS, bc=(1,)))
        for j in range(12):
            a(f"  s_waitcnt lgkmcnt({11-j})")
            a(f"  v_mfma_f32_16x16x32_bf16 {vr(S)}, {vr(A+4*j)}, {vr(QK+4*j)}, {'0' if j == 0 else vr(S)}")
            for _ in range(2):
                if stat: stat.pop(0)()
        a(f"  ds_write_b128 v{T1}, {vr(SQ4)}\n  ds_write_b128 v{T1}, {vr(SQ4)} offset:64")
        for h in (0, 2): self.pk("v_pk_add_f32", LG + h, S + h, SUM + h, neg=(1,))
        for h in (0, 2): self.pk("v_pk_fma_f32", LG + h, LG + h, RS + h, self.V_BIAS, bc=(2,))
        a(f"  v_max3_f32 v{T0}, v{LG}, v{LG+1}, v{LG+2}\n  v_max_f32 v{T0}, v{T0}, v{LG+3}")
        self.allred_g(T0, T1, "v_max_f32")
        a(f"  ds_write_b32 v{self.V_MXW}, v{T0}")
        a("L_b_nos:\n  s_waitcnt lgkmcnt(0)\n  s_barrier")
        a(f"  ds_read_b128 {vr(MXV)}, v{self.V_MXR}\n  ds_read_b128 {vr(MXV+4)}, v{self.V_MXR} offset:16")
        a(f"  s_lshr_b32 s62, s{S_TI}, 1\n  s_lshl_b32 s62, s62, 10\n  s_and_b32 s63, s{S_TI}, 1\n  s_lshl_b32 s63, s63, 3\n  s_add_u32 s62, s62, s63")
        a(f"  v_add_u32 v{self.V_T2}, s62, v{self.V_PADDR}")
        a("  s_waitcnt lgkmcnt(0)")
        a(f"  v_max3_f32 v{T0}, v{MXV}, v{MXV+1}, v{MXV+2}\n  v_max3_f32 v{T1}, v{MXV+3}, v{MXV+4}, v{MXV+5}")
        a(f"  v_max3_f32 v{T0}, v{T0}, v{MXV+6}, v{MXV+7}\n  v_max3_f32 v{T0}, v{T0}, v{T1}, v{M}")
        a(f"  v_sub_f32 v{AL}, v{M}, v{T0}\n  v_mov_b32 v{M}, v{T0}\n  v_exp_f32 v{AL}, v{AL}")
        a(f"  s_cmp_ge_u32 s{S_TI}, s{S_T}\n  s_cbranch_scc1 L_b_nop")
        for h in (0, 2): self.pk("v_pk_add_f32", LG + h, LG + h, M, bc=(1,), neg=(1,))
        for r in range(4): a(f"  v_exp_f32 v{LG+r}, v{LG+r}")
        self.pk("v_pk_mul_f32", L2, L2, AL, bc=(1,)); self.pk("v_pk_mul_f32", AM2, AM2, AL, bc=(1,))
        self.pk("v_pk_add_f32", L2, L2, LG); self.pk("v_pk_add_f32", L2, L2, LG + 2)
        for h in (0, 2): self.pk("v_pk_mul_f32", LG + h, LG + h, RS + h)
        a(f"  v_cvt_pk_bf16_f32 v{MXV}, v{LG}, v{LG+1}\n  v_cvt_pk_bf16_f32 v{MXV+1}, v{LG+2}, v{LG+3}")
        a(f"  ds_write_b64 v{self.V_T2}, {vr(MXV,2)}")
        for h in (0, 2): self.pk("v_pk_fma_f32", AM2, LG + h, MU + h, AM2)
        a("  s_branch L_b_acc")
        a("L_b_nop:")
        self.pk("v_pk_mul_f32", L2, L2, AL, bc=(1,)); self.pk("v_pk_mul_f32", AM2, AM2, AL, bc=(1,))
        a("L_b_acc:")
        for i in range(0, 12, 2): self.pk("v_pk_mul_f32", self.V_ACC + i, self.V_ACC + i, AL, bc=(1,))
        a(f"  s_cmp_eq_u32 s{S_LAST}, 0\n  s_cbranch_scc1 L_b_bar")
        a(f"  v_add_f32 v{MXV+2}, v{L2}, v{L2+1}\n  v_add_f32 v{MXV+3}, v{AM2}, v{AM2+1}")
        self.allred_g(MXV + 2, T0, "v_add_f32"); self.allred_g(MXV + 3, T1, "v_add_f32")
        a(f"  v_and_b32 v{T0}, 15, v0\n  v_lshlrev_b32 v{T0}, 6, v{T0}\n  s_lshl_b32 s62, s{S_WAVE}, 3\n  s_add_u32 s62, s62, {RED}")
        a(f"  v_add_u32 v{T0}, s62, v{T0}\n  ds_write_b64 v{T0}, {vr(MXV+2,2)}")
        a("L_b_bar:\n  s_waitcnt lgkmcnt(0)\n  s_barrier")
        a(f"  s_lshr_b32 s{S_NP}, s{S_T}, 1\n  s_mov_b32 s{S_PVB}, s{S_SB}\n  v_mov_b32 v{T0}, v{self.V_PADDR}")
        a("L_b_pv:")
        a(f"  ds_read_b128 {vr(A)}, v{T0}")
        for tau in range(3):
            a(f"  v_add_u32 v{self.V_TA+tau}, s{S_PVB}, v{self.V_PA+tau}")
            a(f"  ds_read_b64_tr_b16 {vr(A+4+4*tau,2)}, v{self.V_TA+tau}")
            a(f"  ds_read_b64_tr_b16 {vr(A+6+4*tau,2)}, v{self.V_TA+tau} offset:{SLOT}")
        a(f"  s_add_u32 s{S_PVB}, s{S_PVB}, {2*SLOT}\n  v_add_u32 v{T0}, 1024, v{T0}\n  s_sub_u32 s{S_NP}, s{S_NP}, 1\n  s_cmp_lg_u32 s{S_NP}, 0")
        for tau in range(3):
            a(f"  s_waitcnt lgkmcnt({4 - 2*tau})")
            a(f"  v_mfma_f32_16x16x32_bf16 {vr(self.V_ACC+4*tau)}, {vr(A+4+4*tau)}, {vr(A)}, {vr(self.V_ACC+4*tau)}")
        a("  s_cbranch_scc1 L_b_pv")
        a(f"  s_setpc_b64 s[{S_LINK}:{S_LINK+1}]")

    def call_batch(self, T, w0, slot0, pair_add, last):
        self.a(f"  s_mov_b32 s{S_T}, {T}\n  s_mov_b32 s{S_W0}, {w0}\n  s_mov_b32 s{S_SB}, {slot0*SLOT}\n  s_mov_b32 s{S_SST}, {STAT + slot0*128}\n  s_add_u32 s{S_PB}, s{S_P0}, {pair_add}\n  s_mov_b32 s{S_LAST}, {int(last)}")
        self.a(f"  s_call_b64 s[{S_LINK}:{S_LINK+1}], L_batch")

    def streamer(self):
        a = self.a; cfg = self.cfg; d = cfg.depth
        a("  s_waitcnt lgkmcnt(0)")
        srd(a, R_A, P_F0, F0_BYTES); srd(a, R_B, P_F1, F1_BYTES)
        a(f"  s_cmp_ge_u32 s{S_WAVE}, 6\n  s_cbranch_scc1 L_sgather")
        a(f"  s_cmp_ge_u32 s{S_WAVE}, 3\n  s_cselect_b32 s60, 1, 0\n  s_mul_i32 s62, s60, 3\n  s_sub_u32 s61, s{S_WAVE}, s62")
        a(f"  s_mul_i32 s{S_QBASE}, s{S_IDX}, {2*NPAIR}\n  s_add_u32 s{S_QBASE}, s{S_QBASE}, s60\n  s_lshl_b32 s61, s61, 8")
        a("  v_and_b32 v240, 15, v0\n  v_lshrrev_b32 v241, 4, v0\n  v_lshl_add_u32 v242, v240, 4, s61")
        a(f"  v_mul_u32_u24 v243, 768, v241\n  v_add_u32 v{self.V_OFF1}, v242, v243\n  v_lshl_add_u32 v{self.V_OFF0}, v243, 1, v242")
        a(f"  s_mov_b32 s{S_K}, 0\n  s_mov_b32 s{S_QMASK}, 0x11111111\n  s_mov_b32 s{S_QMASK+1}, 0x11111111")
        self.task_bases(SETA, 0, False)
        for x in range(min(d, 5)): self.issue_piece(SETA, 0, x)
        self.task_bases(SETB, 1, False)
        for x in range(5, d): self.issue_piece(SETB, 1, x - 5)
        if d // 5 == 2: self.task_bases(SETB, 2, False)
        a(f"  s_mul_i32 s60, s60, {SLOT}\n  s_add_u32 s60, s60, s61")
        srd(a, R_WS, P_WS, WS_BYTES); srd(a, R_DBG, P_DBG, 256)
        a("  v_and_b32 v240, 15, v0\n  v_lshrrev_b32 v241, 4, v0\n  v_and_b32 v242, 1, v241\n  v_lshlrev_b32 v242, 3, v242\n  v_xor_b32 v242, v240, v242")
        a(f"  v_mul_u32_u24 v243, 3072, v241\n  v_add_u32 v243, s60, v243")
        for t in range(4):
            a(f"  v_xor_b32 v244, {2*t}, v242\n  v_lshl_add_u32 v{self.V_WA[t]}, v244, 4, v243")
        a(f"  v_bfe_u32 v242, v0, 3, 1\n  v_lshlrev_b32 v242, 6, v242\n  v_bfe_u32 v243, v0, 2, 1\n  v_lshl_add_u32 v243, v241, 2, v243\n  v_lshl_add_u32 v242, v243, 2, v242")
        a(f"  s_cmp_ge_u32 s{S_WAVE}, 3\n  s_cselect_b32 s62, {STAT+128}, {STAT}" .replace(f"{STAT+128}, {STAT}", f"128, 0") + f"\n  s_add_u32 s62, s62, {STAT}\n  v_add_u32 v{self.V_SA}, s62, v242")
        a("  s_barrier")
        self.stream_consts()
        a(f"  s_mov_b32 s{S_NP}, 3\nL_ph1:")
        a(f"  s_call_b64 s[{S_LINK}:{S_LINK+1}], L_fuse0")
        a(f"  s_call_b64 s[{S_LINK}:{S_LINK+1}], L_fuse1")
        a(f"  s_sub_u32 s{S_NP}, s{S_NP}, 1\n  s_cmp_lg_u32 s{S_NP}, 0\n  s_cbranch_scc1 L_ph1")
        a("  s_waitcnt lgkmcnt(0)")
        self.stamp(3)
        a("  s_branch L_sb0")
        a("L_sgather:")
        for r in (self.V_OFF1, self.V_OFF0, self.V_SA) + self.V_WA: a(f"  v_mov_b32 v{r}, 0")
        for i in range(4): a(f"  v_mov_b32 v{20+i}, 0")
        a(f"  v_lshlrev_b32 v24, 4, v0\n  v_add_u32 v24, {STAT}, v24\n  ds_write_b128 v24, v[20:23]\n  v_cmp_gt_u32 vcc, 32, v0\n  s_and_saveexec_b64 s[64:65], vcc")
        a("  ds_write_b128 v24, v[20:23] offset:1024\n  s_mov_b64 exec, s[64:65]\n  s_waitcnt lgkmcnt(0)\n  s_barrier")
        a(f"  s_mov_b32 s{S_QBASE}, 0\n  s_mov_b32 s{S_K}, 0\n  s_mov_b32 s{S_QMASK}, 0\n  s_mov_b32 s{S_QMASK+1}, 0")
        for r in range(3): a(f"  s_mov_b32 s{SETA+r}, 0\n  s_mov_b32 s{SETB+r}, 0")
        srd(a, R_WS, P_WS, WS_BYTES); srd(a, R_DBG, P_DBG, 256)
        a(f"  buffer_load_dword v17, v{self.V_OFF1}, {sr(R_WS)}, 0 offen offset:{NONCE_OFF} sc1")
        self.code_prefetch(18, 20)
        self.stream_consts()
        self.wait_count(16, self.V_OFF1)
        a(f"  v_add_u32 v17, 1, v17\n  v_mov_b32 v{self.V_T0}, {NONCE_LDS}\n  ds_write_b32 v{self.V_T0}, v17")
        self.stamp(1)
        a(f"  s_sub_u32 s61, s{S_WAVE}, 6\n  s_mul_i32 s61, s61, 6144\n  s_add_u32 s62, s61, {RQK_OFF}")
        self.gather_frags(6, self.V_A, self.V_L16, 62, self.V_T0, "qk")
        a(f"  v_add_u32 v{self.V_T0}, s61, v{self.V_PADDR}")
        for j in range(6): a(f"  ds_write_b128 v{self.V_T0}, {vr(self.V_A+4*j)} offset:{j*1024}")
        a("  s_waitcnt lgkmcnt(0)")
        self.stamp(3)
        a("L_sb0:\n  s_barrier")
        for j in range(12): a(f"  ds_read_b128 {vr(self.V_QK+4*j)}, v{self.V_PADDR} offset:{j*1024}")
        a(f"  v_mov_b32 v{self.V_T0}, {NONCE_LDS}\n  ds_read_b32 v{self.V_T1}, v{self.V_T0}")
        SQ4 = self.V_SQ4
        for j in range(12):
            a(f"  s_waitcnt lgkmcnt({12-j})")
            for i in range(4):
                a(f"  v_dot2_f32_bf16 v{SQ4+i}, v{self.V_QK+4*j+i}, v{self.V_ONES}, {'0' if j == 0 else 'v%d' % (SQ4+i)}")
        self.pk("v_pk_add_f32", SQ4, SQ4, SQ4 + 2)
        a(f"  v_add_f32 v{self.V_QS}, v{SQ4}, v{SQ4+1}")
        self.allred_g(self.V_QS, self.V_T0, "v_add_f32")
        a(f"  s_waitcnt lgkmcnt(0)\n  v_readfirstlane_b32 s{S_NONCE}, v{self.V_T1}")
        a(f"  s_mul_i32 s{S_P0}, s{S_IDX}, {NPAIR}")
        self.stamp(4)
        self.call_batch(8, 0, 0, 0, False)
        self.call_batch(4, 0, 8, 4, False)
        self.stamp(5)
        for k in range(6, 9):
            sk = self.lab("nof")
            a(f"  s_cmp_ge_u32 s{S_WAVE}, 6\n  s_cbranch_scc1 {sk}")
            a(f"  s_call_b64 s[{S_LINK}:{S_LINK+1}], L_fuse{k & 1}")
            a(f"{sk}:\n  s_waitcnt lgkmcnt(0)\n  s_barrier")
            if k == 8: self.stamp(6)
            self.call_batch(2, 6, (k - 6) * 2, k, k == 8)
        self.stamp(7)
        self.publish()
        self.stamp(8)
        a(f"  s_cmp_ge_u32 s{S_IDX}, 128\n  s_cbranch_scc1 L_sdone")
        self.reducer()
        a("L_sdone:")
        self.stamp(9); self.stamp_flush((5, 6, 8, (0, 1, 3, 5, 6, 7, 8, 9)))
        a("  s_endpgm")
        self.fuse_sub(0); self.fuse_sub(1); self.batch_sub()

    def publish(self):
        a = self.a; cfg = self.cfg
        T0, T1, T2, A, ACC = self.V_T0, self.V_T1, self.V_T2, self.V_A, self.V_ACC
        a("  s_waitcnt vmcnt(0)")
        a(f"  v_and_b32 v{T0}, 15, v0\n  v_lshlrev_b32 v{T1}, 6, v{T0}\n  v_add_u32 v{T1}, {RED}, v{T1}")
        for i in range(4): a(f"  ds_read_b128 {vr(A+4*i)}, v{T1} offset:{16*i}")
        a(f"  v_lshlrev_b32 v{T2}, 3, v{T0}\n  v_add_u32 v{T2}, s{S_WAVE}, v{T2}\n  s_mov_b32 s62, {PART_STRIDE}\n  v_mul_lo_u32 v{T2}, v{T2}, s62")
        a(f"  v_lshrrev_b32 v{T1}, 4, v0\n  v_lshl_add_u32 v{T2}, v{T1}, 4, v{T2}")
        a(f"  s_lshl_b32 s62, s{S_IDX}, 7\n  s_add_u32 s62, s62, {PART_OFF}")
        U = A + 24
        a(f"  v_mov_b32 v{U+3}, s{S_NONCE}\n  v_mov_b32 v{U+7}, s{S_NONCE}\n  v_mov_b32 v{U+9}, s{S_NONCE}")
        a("  s_waitcnt lgkmcnt(0)")
        for i in (0, 4, 8, 12): self.pk("v_pk_add_f32", A + i, A + i, A + i + 2)
        self.pk("v_pk_add_f32", A, A, A + 4); self.pk("v_pk_add_f32", A + 8, A + 8, A + 12); self.pk("v_pk_add_f32", A, A, A + 8)
        a(f"  v_rcp_f32 v{A+2}, v{A}\n  v_log_f32 v{A+5}, v{A}\n  v_mul_f32 v{A+4}, v{A+1}, v{A+2}")
        for i in range(0, 12, 2): self.pk("v_pk_fma_f32", ACC + i, ACC + i, A + 2, A + 4, bc=(1, 2), neg=(2,))
        for i in range(3): a(f"  v_cvt_pk_f16_f32 v{U+i}, v{ACC+2*i}, v{ACC+2*i+1}")
        a(f"  buffer_store_dwordx4 {vr(U)}, v{T2}, {sr(R_WS)}, s62 offen sc1")
        for i in range(3): a(f"  v_cvt_pk_f16_f32 v{U+4+i}, v{ACC+6+2*i}, v{ACC+7+2*i}")
        a(f"  buffer_store_dwordx4 {vr(U+4)}, v{T2}, {sr(R_WS)}, s62 offen offset:64 sc1")
        sk = self.lab("nolse")
        a(f"  s_cmp_lg_u32 s{S_WAVE}, 0\n  s_cbranch_scc1 {sk}")
        a(f"  v_add_f32 v{U+8}, v{self.V_M}, v{A+5}")
        a(f"  v_lshlrev_b32 v{T1}, 11, v{T0}\n  s_lshl_b32 s62, s{S_IDX}, 3\n  s_add_u32 s62, s62, {LSE_OFF}")
        a("  v_cmp_gt_u32 vcc, 16, v0\n  s_and_saveexec_b64 s[64:65], vcc")
        a(f"  buffer_store_dwordx2 {vr(U+8,2)}, v{T1}, {sr(R_WS)}, s62 offen sc1")
        if cfg.hint:
            a(f"  s_mov_b64 exec, 1\n  v_mov_b32 v{T0}, 1\n  s_and_b32 s62, s{S_IDX}, 7\n  s_lshl_b32 s62, s62, 7\n  s_add_u32 s62, s62, {HINT_OFF}\n  v_mov_b32 v{T1}, s62")
            a(f"  buffer_atomic_add v{T0}, v{T1}, {sr(R_WS)}, 0 offen sc1")
        a("  s_mov_b64 exec, s[64:65]")
        a(f"{sk}:")

    def reducer(self):
        a = self.a; cfg = self.cfg
        D, E, W, V = 16, 32, 40, 44
        AD, AE, T0, T1, VM, SA = 52, 56, 60, 61, 62, 63
        MASK = 40
        a(f"  v_lshrrev_b32 v{T0}, 3, v0\n  s_lshl_b32 s62, s{S_WAVE}, 5\n  v_add_u32 v{VM}, s62, v{T0}")
        a(f"  v_and_b32 v{T1}, 7, v0\n  v_lshlrev_b32 v{T1}, 4, v{T1}\n  s_mov_b32 s62, {NS}")
        for it in range(4):
            a(f"  v_add_u32 v{T0}, {8*it}, v{VM}\n  v_cmp_gt_u32 s[{MASK+2*it}:{MASK+2*it+1}], s62, v{T0}\n  v_cndmask_b32 v{T0}, 0, v{T0}, s[{MASK+2*it}:{MASK+2*it+1}]")
            a(f"  v_lshl_add_u32 v{AD+it}, v{T0}, 7, v{T1}\n  v_lshlrev_b32 v{AE+it}, 3, v{T0}")
        X, Y = 64, 65
        a(f"  v_lshrrev_b32 v{T0}, 4, v0\n  v_and_b32 v{T1}, 1, v{T0}\n  v_lshlrev_b32 v{T1}, 1, v{T1}\n  v_lshrrev_b32 v{X}, 1, v{T0}\n  v_add_u32 v{T1}, v{T1}, v{X}")
        a(f"  v_bfe_u32 v{X}, v0, 2, 1\n  v_mul_u32_u24 v{X}, 3, v{X}\n  v_add_u32 v{T1}, v{T1}, v{X}")
        a(f"  v_lshrrev_b32 v{X}, 1, v{T1}\n  v_lshlrev_b32 v{X}, 4, v{X}\n  v_and_b32 v{T1}, 1, v{T1}\n  v_lshl_add_u32 v{X}, v{T1}, 1, v{X}")
        a(f"  v_and_b32 v{T1}, 3, v0\n  v_lshl_add_u32 v{X}, v{T1}, 2, v{X}")
        a(f"  s_and_b32 s62, s{S_IDX}, 7\n  s_mul_i32 s62, s62, 48\n  v_add_u32 v{X}, s62, v{X}")
        a(f"  v_lshrrev_b32 v{T1}, 5, v{X}\n  v_lshlrev_b32 v{T1}, 10, v{T1}\n  v_bfe_u32 v{Y}, v{X}, 3, 2\n  v_lshl_add_u32 v{T1}, v{Y}, 8, v{T1}")
        a(f"  v_and_b32 v{X}, 7, v{X}\n  v_lshl_add_u32 v{SA}, v{X}, 1, v{T1}")
        a(f"  v_lshrrev_b32 v{T1}, 4, v0\n  v_lshlrev_b32 v{T1}, 3, v{T1}\n  v_and_b32 v{X}, 7, v0\n  v_add_u32 v{T1}, v{T1}, v{X}\n  v_lshlrev_b32 v{Y}, 3, v{T1}")
        a(f"  s_lshl_b32 s62, s{S_WAVE}, 8\n  s_add_u32 s62, s62, {RED2}\n  v_add_u32 v{X}, s62, v{Y}\n  v_add_u32 v{Y}, {RED2}, v{Y}")
        if cfg.hint:
            lp, dn = self.lab("hint"), self.lab("hintd")
            a(f"  v_and_b32 v{T0}, 7, v0\n  v_lshlrev_b32 v{T1}, 7, v{T0}\n  v_add_u32 v{T1}, {HINT_OFF}, v{T1}")
            a(f"  v_cmp_gt_u32 vcc, {NS % 8}, v{T0}\n  v_mov_b32 v{VM}, {NS // 8}\n  v_addc_co_u32 v{VM}, vcc, 0, v{VM}, vcc")
            a(f"  s_mov_b32 s{S_SPIN}, 0\n{lp}:")
            a(f"  buffer_load_dword v{T0}, v{T1}, {sr(R_WS)}, 0 offen sc1")
            self.spin_guard(dn)
            a(f"  s_waitcnt vmcnt(0)\n  v_cmp_lt_u32 vcc, v{T0}, v{VM}\n  s_cbranch_vccnz {lp}")
            a(f"{dn}:")
        a(f"  s_mul_i32 s62, s{S_IDX}, {PART_STRIDE}\n  s_add_u32 s62, s62, {PART_OFF}")
        a(f"  s_lshr_b32 s63, s{S_IDX}, 3\n  s_lshl_b32 s63, s63, 11\n  s_add_u32 s63, s63, {LSE_OFF}")
        lp, dn = self.lab("red"), self.lab("redd")
        a(f"  s_mov_b32 s{S_SPIN}, 0\n{lp}:")
        for it in range(4):
            a(f"  buffer_load_dwordx4 {vr(D+4*it)}, v{AD+it}, {sr(R_WS)}, s62 offen sc1")
            a(f"  buffer_load_dwordx2 {vr(E+2*it,2)}, v{AE+it}, {sr(R_WS)}, s63 offen sc1")
        self.spin_guard(dn)
        a("  s_waitcnt vmcnt(0)")
        N = S_NONCE
        a(f"  v_xor_b32 v{T0}, s{N}, v{D+3}\n  v_xor_b32 v{T1}, s{N}, v{E+1}")
        for it in range(1, 4):
            a(f"  v_xor_b32 v{W}, s{N}, v{D+4*it+3}\n  v_xor_b32 v{W+1}, s{N}, v{E+2*it+1}\n  v_or3_b32 v{T0}, v{T0}, v{W}, v{W+1}")
        a(f"  v_or_b32 v{T0}, v{T0}, v{T1}\n  v_cmp_ne_u32 vcc, 0, v{T0}\n  s_cbranch_vccnz {lp}")
        a(f"{dn}:\n  s_waitcnt vmcnt(0)")
        a(f"  v_mov_b32 v{T1}, 0xff800000")
        for it in range(4):
            a(f"  v_cndmask_b32 v{E+2*it}, v{T1}, v{E+2*it}, s[{MASK+2*it}:{MASK+2*it+1}]")
        a(f"  v_max3_f32 v{T0}, v{E}, v{E+2}, v{E+4}\n  v_max_f32 v{T0}, v{T0}, v{E+6}")
        a(f"  v_max_f32_dpp v{T0}, v{T0}, v{T0} row_ror:8 row_mask:0xf bank_mask:0xf")
        self.allred_g(T0, T1, "v_max_f32")
        for it in range(4): a(f"  v_sub_f32 v{W+it}, v{E+2*it}, v{T0}")
        for it in range(4): a(f"  v_exp_f32 v{W+it}, v{W+it}")
        a(f"  s_lshl_b32 s62, s{S_WAVE}, 2\n  s_add_u32 s62, s62, {MXW}\n  v_mov_b32 v{T1}, s62\n  ds_write_b32 v{T1}, v{T0}")
        for it in range(4):
            for q in range(3):
                c0 = "0" if it == 0 else f"v{V+2*q}"; c1 = "0" if it == 0 else f"v{V+2*q+1}"
                a(f"  v_fma_mix_f32 v{V+2*q}, v{D+4*it+q}, v{W+it}, {c0} op_sel_hi:[1,0,0]")
                a(f"  v_fma_mix_f32 v{V+2*q+1}, v{D+4*it+q}, v{W+it}, {c1} op_sel:[1,0,0] op_sel_hi:[1,0,0]")
        self.pk("v_pk_add_f32", W, W, W + 2)
        a(f"  v_add_f32 v{V+6}, v{W}, v{W+1}\n  v_mov_b32 v{V+7}, 0")
        for x, y in ((0, 2), (1, 3), (4, 6), (5, 7)): a(f"  v_permlane32_swap_b32 v{V+x}, v{V+y}")
        for x, y in ((0, 2), (1, 3), (4, 6), (5, 7)): a(f"  v_add_f32 v{V+x}, v{V+x}, v{V+y}")
        for x, y in ((0, 4), (1, 5)): a(f"  v_permlane16_swap_b32 v{V+x}, v{V+y}")
        for x, y in ((0, 4), (1, 5)): a(f"  v_add_f32 v{V+x}, v{V+x}, v{V+y}")
        for x in (0, 1): a(f"  v_add_f32_dpp v{V+x}, v{V+x}, v{V+x} row_ror:8 row_mask:0xf bank_mask:0xf")
        a(f"  ds_write_b64 v{X}, {vr(V,2)}\n  s_waitcnt lgkmcnt(0)\n  s_barrier")
        a(f"  s_cmp_lg_u32 s{S_WAVE}, 0\n  s_cbranch_scc1 L_sdone")
        a(f"  v_mov_b32 v{T1}, {MXW}\n  ds_read_b128 {vr(W)}, v{T1}\n  ds_read_b128 {vr(W+4)}, v{T1} offset:16")
        for w in range(8): a(f"  ds_read_b64 {vr(D+2*w,2)}, v{Y} offset:{256*w}")
        a(f"  s_lshr_b32 s63, s{S_IDX}, 3\n  s_lshl_b32 s63, s63, 4\n  s_add_u32 s63, s63, {RCTX_OFF}")
        a(f"  v_and_b32 v{X}, 8, v0\n  v_cmp_eq_u32 vcc, 0, v{X}\n  v_cmp_gt_u32 s[64:65], 48, v0\n  s_and_b64 s[64:65], vcc, s[64:65]")
        a("  s_waitcnt lgkmcnt(8)")
        a(f"  v_max3_f32 v{T0}, v{W}, v{W+1}, v{W+2}\n  v_max3_f32 v{T1}, v{W+3}, v{W+4}, v{W+5}\n  v_max3_f32 v{T0}, v{T0}, v{W+6}, v{W+7}\n  v_max_f32 v{T0}, v{T0}, v{T1}")
        for w in range(0, 8, 2): self.pk("v_pk_add_f32", W + w, W + w, T0, bc=(1,), neg=(1,))
        for w in range(8): a(f"  v_exp_f32 v{W+w}, v{W+w}")
        a("  s_waitcnt lgkmcnt(0)")
        for w in range(8):
            base = W + (w & ~1)
            sel = "op_sel:[0,1,0] op_sel_hi:[1,1,1]" if w & 1 else "op_sel_hi:[1,0,1]"
            if w == 0: a(f"  v_pk_mul_f32 {vr(E,2)}, {vr(D,2)}, {vr(base,2)} op_sel_hi:[1,0]")
            else: a(f"  v_pk_fma_f32 {vr(E,2)}, {vr(D+2*w,2)}, {vr(base,2)}, {vr(E,2)} {sel}")
        a(f"  v_readlane_b32 s62, v{E}, 48\n  v_rcp_f32 v{T0}, s62")
        self.pk("v_pk_mul_f32", E, E, T0, bc=(1,))
        a(f"  v_cvt_pk_bf16_f32 v{E}, v{E}, v{E+1}\n  v_min_u32 v{E}, -2, v{E}")
        a("  s_mov_b64 exec, s[64:65]")
        a(f"  buffer_store_dword v{E}, v{SA}, {sr(R_WS)}, s63 offen sc1")
        a("  s_mov_b64 exec, -1")

    def img_dma(self, srdr, lds, soff, vs0, vs1):
        for th in range(3):
            for q4 in range(4):
                self.img_dma1(srdr, lds, soff, vs0, vs1, th, q4)
    def img_dma1(self, srdr, lds, soff, vs0, vs1, th, q4, ldsreg=None):
        a = self.a
        if ldsreg is None: a(f"  s_mov_b32 m0, {lds + th*4096 + q4*1024}")
        else: a(f"  s_add_u32 m0, s{ldsreg}, {th*4096 + q4*1024}")
        a(f"  s_add_u32 s62, s{soff}, {q4*3072 + th*256}")
        a(f"  buffer_load_dwordx4 v{vs1 if q4 & 1 else vs0}, {sr(srdr)}, s62 offen{' nt' if self.cfg.hnt else ''} lds")

    def helper(self):
        a = self.a; cfg = self.cfg
        L16, N, Gq, T0, T1, T2, T3 = 1, 2, 3, 4, 5, 6, 7
        FL, TA, DS, VS0, VS1, ZERO = 8, 10, 11, 12, 13, 14
        IA = 16
        QF, AF, TR = 20, 68, 160
        WKF = 116
        D1, D2, D3, ST, ONES = 208, 212, 216, 220, 224
        a("L_helper:")
        a(f"  v_lshlrev_b32 v{L16}, 4, v0\n  v_and_b32 v{N}, 15, v0\n  v_lshrrev_b32 v{Gq}, 4, v0\n  v_mov_b32 v{ZERO}, 0")
        a(f"  v_lshlrev_b32 v{T0}, 1, v{Gq}\n  v_xor_b32 v{T0}, v{N}, v{T0}\n  v_mul_u32_u24 v{T1}, 768, v{Gq}")
        a(f"  v_lshl_add_u32 v{VS0}, v{T0}, 4, v{T1}\n  v_xor_b32 v{T0}, 8, v{T0}\n  v_lshl_add_u32 v{VS1}, v{T0}, 4, v{T1}")
        a(f"  v_lshrrev_b32 v{T0}, 1, v0\n  v_mul_u32_u24 v{T0}, 768, v{T0}\n  v_and_b32 v{T1}, 1, v0\n  v_lshl_add_u32 v{T0}, v{T1}, 4, v{T0}")
        a(f"  s_lshl_b32 s61, s{S_IDX}, 5\n  v_add_u32 v{DS}, s61, v{T0}")
        a(f"  s_lshr_b32 s60, s{S_IDX}, 1\n  s_lshl_b32 s60, s60, 10\n  s_and_b32 s61, s{S_IDX}, 1\n  s_lshl_b32 s61, s61, 9\n  s_add_u32 s60, s60, s61")
        a(f"  v_lshrrev_b32 v{T0}, 1, v{Gq}\n  v_lshlrev_b32 v{T0}, 8, v{T0}\n  v_lshl_add_u32 v{T0}, v{N}, 4, v{T0}")
        a(f"  v_and_b32 v{T1}, 1, v{Gq}\n  v_lshl_add_u32 v{T0}, v{T1}, 3, v{T0}\n  v_add_u32 v{FL}, s60, v{T0}")
        a("  s_waitcnt lgkmcnt(0)")
        srd(a, R_WS, P_WS, WS_BYTES)
        a(f"  s_cmp_eq_u32 s{S_WAVE}, 0\n  s_cbranch_scc1 L_h0a")
        a(f"  s_cmp_eq_u32 s{S_WAVE}, 1\n  s_cbranch_scc1 L_h1a")
        a(f"  s_cmp_eq_u32 s{S_WAVE}, 2\n  s_cbranch_scc1 L_h2a")
        a(f"  s_cmp_eq_u32 s{S_WAVE}, 3\n  s_cbranch_scc1 L_h3a")
        a(f"  s_cmp_eq_u32 s{S_WAVE}, 4\n  s_cbranch_scc1 L_h4a")
        self.code_prefetch(T0, 20)
        a("  s_waitcnt vmcnt(0)\n  s_branch L_hb1")
        a("L_h0a:")
        srd(a, R_A, P_Q, Q_BYTES)
        a("  s_mov_b32 s60, 0")
        self.img_dma(R_A, H_QI, 60, VS0, VS1)
        a(f"  buffer_load_dword v15, v{ZERO}, {sr(R_WS)}, 0 offen offset:{NONCE_OFF} sc1")
        a("  s_waitcnt vmcnt(0)\n  s_branch L_hb1")
        a("L_h1a:")
        srd(a, R_B, P_WQ, W_BYTES)
        for k in range(12):
            a(f"  s_mov_b32 m0, {H_WQI + k*1024}\n  s_mov_b32 s62, {k*32*768}\n  buffer_load_dwordx4 v{DS}, {sr(R_B)}, s62 offen{' nt' if cfg.hnt else ''} lds")
        a("  s_waitcnt vmcnt(0)\n  s_branch L_hb1")
        a("L_h2a:")
        srd(a, R_C, P_WK, W_BYTES)
        a(f"  s_mul_i32 s60, s{S_IDX}, {16*768}")
        self.img_dma(R_C, H_WKI, 60, VS0, VS1)
        a("  s_waitcnt vmcnt(0)\n  s_branch L_hb1")
        a("L_h3a:")
        srd(a, R_E, P_WO, W_BYTES)
        for k in range(12):
            a(f"  s_mov_b32 m0, {H_WOI + k*1024}\n  s_mov_b32 s62, {k*32*768}\n  buffer_load_dwordx4 v{DS}, {sr(R_E)}, s62 offen{' nt' if cfg.hnt else ''} lds")
        a("  s_branch L_hb1")
        a("L_h4a:")
        srd(a, R_DBG, P_DBG, 256)
        a(f"  v_mov_b32 v{T0}, -1\n  v_mov_b32 v{T0+1}, -1\n  v_mov_b32 v{T0+2}, -1\n  v_mov_b32 v{T0+3}, -1")
        a(f"  s_mov_b32 s62, {RQ_OFF}\n  s_mov_b32 s63, {RQK_OFF}")
        a(f"  buffer_store_dwordx2 {vr(T0,2)}, v{FL}, {sr(R_WS)}, s62 offen sc1")
        a(f"  buffer_store_dwordx2 {vr(T0,2)}, v{FL}, {sr(R_WS)}, s63 offen sc1")
        a(f"  s_lshl_b32 s62, s{S_IDX}, 9\n  s_add_u32 s62, s62, {RCTX_OFF}")
        a("  v_cmp_gt_u32 vcc, 32, v0\n  s_and_saveexec_b64 s[64:65], vcc")
        a(f"  buffer_store_dwordx4 {vr(T0)}, v{L16}, {sr(R_WS)}, s62 offen sc1")
        a("  s_mov_b64 exec, s[64:65]")
        if cfg.hint:
            nn = self.lab("nohint")
            a(f"  s_cmp_lg_u32 s{S_IDX}, 0\n  s_cbranch_scc1 {nn}")
            a(f"  v_lshlrev_b32 v9, 7, v0\n  v_add_u32 v9, {HINT_OFF}, v9\n  v_cmp_gt_u32 vcc, 8, v0\n  s_and_saveexec_b64 s[64:65], vcc")
            a(f"  buffer_store_dword v{ZERO}, v9, {sr(R_WS)}, 0 offen sc1\n  s_mov_b64 exec, s[64:65]\n{nn}:")
        a(f"  s_waitcnt vmcnt(0)\n  v_mov_b32 v9, 1\n  s_mov_b64 exec, 1")
        a(f"  buffer_atomic_add v9, v{ZERO}, {sr(R_DBG)}, 0 offen sc1\n  s_mov_b64 exec, -1")
        a("L_hb1:")
        self.stamp(7)
        srd(a, R_DBG, P_DBG, 256); srd(a, R_A, P_Q, Q_BYTES); srd(a, R_D, P_WV, W_BYTES); srd(a, R_F, P_OUT, Q_BYTES)
        a(f"  v_and_b32 v{T0}, 7, v{N}\n  v_lshlrev_b32 v{T0}, 1, v{T0}\n  v_lshlrev_b32 v{T1}, 8, v{N}")
        for m in range(4):
            a(f"  v_add_u32 v{T2}, {4*m}, v{Gq}\n  v_xor_b32 v{T2}, v{T2}, v{T0}\n  v_lshl_add_u32 v{IA+m}, v{T2}, 4, v{T1}")
        a(f"  v_lshrrev_b32 v{T0}, 2, v{N}\n  v_lshl_add_u32 v{T0}, v{Gq}, 3, v{T0}\n  v_lshlrev_b32 v{T0}, 5, v{T0}")
        a(f"  v_and_b32 v{T1}, 3, v{N}\n  v_lshl_add_u32 v{TA}, v{T1}, 3, v{T0}")
        for i in range(4): a(f"  v_mov_b32 v{ONES+i}, 0x3f803f80")
        a("  s_barrier")
        self.stamp(1)
        a(f"  s_cmp_lg_u32 s{S_WAVE}, 0\n  s_cbranch_scc1 L_hb2")
        a(f"  buffer_load_dword v9, v{ZERO}, {sr(R_DBG)}, 0 offen sc1")
        for j in range(12):
            a(f"  ds_read_b128 {vr(QF+4*j)}, v{IA+(j&3)} offset:{H_QI + (j>>2)*4096}")
        def tr(j):
            a(f"  ds_read_b64_tr_b16 {vr(TR+4*j,2)}, v{TA} offset:{H_WQI + j*1024}")
            a(f"  ds_read_b64_tr_b16 {vr(TR+4*j+2,2)}, v{TA} offset:{H_WQI + j*1024 + 128}")
        tr(0)
        a("  s_waitcnt lgkmcnt(2)")
        for j in range(12):
            if j + 1 < 12: tr(j + 1)
            for i in (0, 1): a(f"  v_dot2_f32_bf16 v{ST+i}, v{QF+4*j+i}, v{QF+4*j+i}, {'0' if j == 0 else 'v%d' % (ST+i)}")
            a(f"  v_mfma_f32_16x16x32_bf16 {vr(D3)}, {vr(ONES)}, {vr(QF+4*j)}, {'0' if j == 0 else vr(D3)}")
            for i in (2, 3): a(f"  v_dot2_f32_bf16 v{ST+i}, v{QF+4*j+i}, v{QF+4*j+i}, {'0' if j == 0 else 'v%d' % (ST+i)}")
            a(f"  s_waitcnt lgkmcnt({2 if j + 1 < 12 else 0})")
            a(f"  v_mfma_f32_16x16x32_bf16 {vr(D1)}, {vr(TR+4*j)}, {vr(QF+4*j)}, {'0' if j == 0 else vr(D1)}")
            a(f"  v_mfma_f32_16x16x32_bf16 {vr(D2)}, {vr(TR+4*j)}, {vr(ONES)}, {'0' if j == 0 else vr(D2)}")
        for j in range(12):
            a(f"  ds_read_b128 {vr(WKF+4*j)}, v{IA+(j&3)} offset:{H_WKI + (j>>2)*4096}")
        self.pk("v_pk_add_f32", ST, ST, ST + 2)
        a(f"  v_add_f32 v{ST}, v{ST}, v{ST+1}")
        self.allred_g(ST, T0, "v_add_f32")
        inv = f32(1.0 / 384.0)
        a(f"  v_mul_f32 v{D3}, {inv}, v{D3}\n  v_mul_f32 v{ST}, {inv}, v{ST}\n  v_fma_f32 v{ST}, -v{D3}, v{D3}, v{ST}")
        a(f"  v_max_f32 v{ST}, 0, v{ST}\n  v_add_f32 v{ST}, {f32(1e-5)}, v{ST}\n  v_rsq_f32 v{ST}, v{ST}")
        for r in range(4): a(f"  v_fma_f32 v{D1+r}, -v{D3}, v{D2+r}, v{D1+r}")
        for r in range(4): a(f"  v_mul_f32 v{D1+r}, v{ST}, v{D1+r}")
        a(f"  v_cvt_pk_bf16_f32 v{D2}, v{D1}, v{D1+1}\n  v_cvt_pk_bf16_f32 v{D2+1}, v{D1+2}, v{D1+3}")
        a(f"  v_min_u32 v{D2}, -2, v{D2}\n  v_min_u32 v{D2+1}, -2, v{D2+1}\n  s_mov_b32 s62, {RQ_OFF}")
        a(f"  buffer_store_dwordx2 {vr(D2,2)}, v{FL}, {sr(R_WS)}, s62 offen sc1")
        self.stamp(2)
        hv = self.lab("havecnt")
        a(f"  s_waitcnt vmcnt(1)\n  v_readfirstlane_b32 s60, v9\n  s_cmp_ge_u32 s60, {NH}\n  s_cbranch_scc1 {hv}")
        self.wait_count(9, ZERO)
        a(f"{hv}:\n  s_mov_b32 s62, {RQ_OFF}")
        self.gather_frags(12, AF, L16, 62, T0, "q")
        self.stamp(3)
        a("  s_waitcnt lgkmcnt(0)")
        for j in range(12):
            dd = D1 if j % 2 == 0 else D2
            a(f"  v_mfma_f32_16x16x32_bf16 {vr(dd)}, {vr(WKF+4*j)}, {vr(AF+4*j)}, {'0' if j < 2 else vr(dd)}")
        sc = f32(384 ** -0.5 * LOG2E)
        for r in range(4): a(f"  v_add_f32 v{D1+r}, v{D1+r}, v{D2+r}")
        for r in range(4): a(f"  v_mul_f32 v{D1+r}, {sc}, v{D1+r}")
        a(f"  v_cvt_pk_bf16_f32 v{D2}, v{D1}, v{D1+1}\n  v_cvt_pk_bf16_f32 v{D2+1}, v{D1+2}, v{D1+3}")
        a(f"  v_min_u32 v{D2}, -2, v{D2}\n  v_min_u32 v{D2+1}, -2, v{D2+1}\n  s_mov_b32 s62, {RQK_OFF}")
        a(f"  buffer_store_dwordx2 {vr(D2,2)}, v{FL}, {sr(R_WS)}, s62 offen sc1")
        self.stamp(4)
        a("L_hb2:\n  s_waitcnt vmcnt(0)\n  s_barrier")
        a(f"  s_mul_i32 s60, s{S_WAVE}, {48*768}\n  s_mul_i32 s61, s{S_WAVE}, 12288\n  s_add_u32 s61, s61, {H_WV}")
        for th in range(3):
            for q4 in range(4): self.img_dma1(R_D, 0, 60, VS0, VS1, th, q4, ldsreg=61)
        for j in range(12):
            a(f"  ds_read_b64_tr_b16 {vr(TR+4*j,2)}, v{TA} offset:{H_WOI + j*1024}")
            a(f"  ds_read_b64_tr_b16 {vr(TR+4*j+2,2)}, v{TA} offset:{H_WOI + j*1024 + 128}")
            if j == 6: a("  s_waitcnt lgkmcnt(0)")
        for m in range(4): a(f"  v_add_u32 v{IA+m}, s61, v{IA+m}")
        a(f"  v_mul_u32_u24 v{T0}, 784, v{N}\n  v_lshl_add_u32 v{T0}, v{Gq}, 3, v{T0}\n  s_mul_i32 s62, s{S_WAVE}, 96\n  s_add_u32 s62, s62, {H_WT}\n  v_add_u32 v{T3}, s62, v{T0}")
        for tau in range(3):
            if tau < 2: a(f"  s_add_u32 s60, s60, {16*768}")
            for th in range(3):
                a(f"  s_waitcnt vmcnt({8 if tau < 2 else 8 - 4*th})")
                for m in range(4): a(f"  ds_read_b128 {vr(WKF+4*m)}, v{IA+m} offset:{th*4096}")
                a("  s_waitcnt lgkmcnt(0)")
                if tau < 2:
                    for q4 in range(4): self.img_dma1(R_D, 0, 60, VS0, VS1, th, q4, ldsreg=61)
                for m in range(4):
                    j = 4 * th + m
                    a(f"  v_mfma_f32_16x16x32_bf16 {vr(D1)}, {vr(WKF+4*m)}, {vr(TR+4*j)}, {'0' if j == 0 else vr(D1)}")
            a(f"  v_cvt_pk_bf16_f32 v{D2}, v{D1}, v{D1+1}\n  v_cvt_pk_bf16_f32 v{D2+1}, v{D1+2}, v{D1+3}")
            a(f"  ds_write_b64 v{T3}, {vr(D2,2)} offset:{tau*32}")
        a("  s_waitcnt lgkmcnt(0)\n  s_barrier")
        self.stamp(5)
        a(f"  s_cmp_lg_u32 s{S_WAVE}, 0\n  s_cbranch_scc1 L_hdone")
        a(f"  v_mul_u32_u24 v{T0}, 784, v{N}\n  v_lshl_add_u32 v{T0}, v{Gq}, 4, v{T0}\n  v_add_u32 v{T0}, {H_WT}, v{T0}")
        for j in range(12): a(f"  ds_read_b128 {vr(WKF+4*j)}, v{T0} offset:{j*64}")
        a(f"  v_mul_u32_u24 v{T3}, 768, v{N}\n  v_lshl_add_u32 v{T3}, v{Gq}, 3, v{T3}\n  s_lshl_b32 s61, s{S_IDX}, 5")
        a(f"  buffer_load_dwordx2 {vr(QF,2)}, v{T3}, {sr(R_A)}, s61 offen")
        a("  s_waitcnt vmcnt(0) lgkmcnt(0)")
        a(f"  v_lshlrev_b32 v{QF+4}, 16, v{QF}\n  v_and_b32 v{QF+5}, 0xffff0000, v{QF}\n  v_lshlrev_b32 v{QF+6}, 16, v{QF+1}\n  v_and_b32 v{QF+7}, 0xffff0000, v{QF+1}")
        a(f"  v_add_u32 v15, 1, v15\n  s_mov_b32 s62, {RCTX_OFF}")
        self.gather_frags(12, AF, L16, 62, T0, "c")
        self.stamp(6)
        for j in range(12):
            dd = D1 if j % 2 == 0 else D2
            c1 = vr(QF+4) if j == 0 else ("0" if j == 1 else vr(dd))
            a(f"  v_mfma_f32_16x16x32_bf16 {vr(dd)}, {vr(WKF+4*j)}, {vr(AF+4*j)}, {c1}")
        for h in (0, 2): self.pk("v_pk_add_f32", D1 + h, D1 + h, D2 + h)
        a(f"  v_cvt_pk_bf16_f32 v{D2}, v{D1}, v{D1+1}\n  v_cvt_pk_bf16_f32 v{D2+1}, v{D1+2}, v{D1+3}")
        a(f"  buffer_store_dwordx2 {vr(D2,2)}, v{T3}, {sr(R_F)}, s61 offen")
        nn = self.lab("nononce")
        a(f"  s_cmp_lg_u32 s{S_IDX}, 0\n  s_cbranch_scc1 {nn}")
        a(f"  buffer_store_dword v15, v{ZERO}, {sr(R_WS)}, 0 offen offset:{NONCE_OFF} sc1\n{nn}:")
        a("L_hdone:")
        self.stamp(9); self.stamp_flush((0, 0, 2, (0, 1, 3, 4, 5, 6)))
        a("  s_endpgm")

    def build(self):
        a = self.a
        hdr = open("standalone__detection_seg_dino__vision.s.ref").read().split("\n")
        for line in hdr:
            if line.startswith("; @launch"): break
            a(line)
        a("; @" + f"launch grid=(256,1,1) block=(512,1,1) lds={LDS_BYTES}")
        a('.amdgcn_target "amdgcn-amd-amdhsa--gfx950"\n.text')
        a(f".globl {KNAME}\n.p2align 8\n.type {KNAME},@function\n{KNAME}:")
        n0 = len(a.L)
        self.prologue(); self.streamer(); self.helper()
        a("L_end:\n  s_endpgm\nL_code_end:")
        body, added = hazard.fix(a.L[n0:])
        a.L = a.L[:n0] + body
        a('.section .rodata,"a"\n.p2align 6')
        a(f".amdhsa_kernel {KNAME}")
        a("  .amdhsa_next_free_vgpr 256\n  .amdhsa_next_free_sgpr 102\n  .amdhsa_accum_offset 256")
        a("  .amdhsa_group_segment_fixed_size 0\n  .amdhsa_kernarg_size 80\n  .amdhsa_user_sgpr_count 2")
        a("  .amdhsa_user_sgpr_kernarg_segment_ptr 1\n  .amdhsa_system_sgpr_workgroup_id_x 1")
        a("  .amdhsa_float_denorm_mode_32 3")
        a(".end_amdhsa_kernel")
        return a.text(), added

def generate(path, **kw):
    cfg = Cfg()
    for k, v in kw.items(): setattr(cfg, k, v)
    text, added = G(cfg).build()
    open(path, "w").write(text)
    return added

if __name__ == "__main__":
    path = sys.argv[1] if len(sys.argv) > 1 else "standalone__detection_seg_dino__vision.s"
    kw = {}
    for x in sys.argv[2:]:
        k, v = x.split("="); kw[k] = eval(v)
    print("nops added:", generate(path, **kw))
```

```python
import sys, struct
from asmlib import Asm
import hazard

KNAME = "standalone__detection_seg_dino__vision_kernel"

NH, NS, NPAIR = 24, 228, 9
F0_BYTES, F1_BYTES, W_BYTES, Q_BYTES = 50331648, 12582912, 294912, 12288
WS_BYTES = 268435456

NONCE_OFF = 0
HINT_OFF = 1024
RQ_OFF, RQK_OFF, RCTX_OFF = 4096, 20480, 36864
FLAG_OFF = 49152
LSE_OFF = 65536
PART_OFF = 131072
PART_STRIDE = NS * 128
STAMP_OFF = 8 << 20

SLOT = 12288
STG = 12 * SLOT
TOP = 13 * SLOT
STAT = TOP
NONCE_LDS = TOP + 1536
MXW = TOP + 1600
MX = TOP + 2048
RED = TOP + 2560
RED2 = STG + 4096
LDS_BYTES = 163840
H_QI, H_WKI, H_WQI, H_WOI, H_WT, H_WV = 0, 12288, 24576, 36864, 49152, 65536

KEYC = 0x9e3779b1
LOG2E = 1.4426950408889634
def f32(x): return "0x%08x" % struct.unpack("<I", struct.pack("<f", x))[0]

class Cfg:
    nt = True
    stamp = False
    depth = 5
    hx0 = 0
    hnx = 4
    hint = True
    codepf = True
    nostream = False
    dbgstamp = False
    pfrows = 4
    hdiag = False
    gdiag = False
    rdiag = False
    bdiag_sb = 4
    bdiag = False
    selpoll = True
    hnt = False

S_WAVE = 3
P_Q, P_F0, P_F1, P_WQ, P_WK, P_WV, P_WO, P_OUT, P_DBG, P_WS = 4, 6, 8, 10, 12, 14, 16, 18, 20, 22
R_A, R_B, R_WS, R_DBG, R_C, R_D, R_E, R_F = 24, 28, 32, 36, 40, 44, 48, 52
S_IDX, S_ONELO, S_ONEHI = 56, 57, 58
S_K, S_QBASE, S_LINK = 66, 67, 68
S_NONCE, S_SPIN = 70, 71
S_TI, S_TB, S_PB, S_BIAS, S_T, S_P0, S_SB, S_W0, S_NP, S_PVB, S_LAST = 72, 73, 74, 75, 76, 77, 78, 79, 80, 81, 59
S_SST = 48
S_QMASK = 50
SETA, SETB = 40, 44
STAMP0 = 82
SPIN_CAP = 200000
import os
if os.environ.get('CAP'): SPIN_CAP = int(os.environ['CAP'])

def srd(a, s, ptr, nbytes):
    a(f"  s_mov_b32 s{s}, s{ptr}\n  s_mov_b32 s{s+1}, s{ptr+1}\n  s_mov_b32 s{s+2}, {nbytes}\n  s_mov_b32 s{s+3}, 0x20000")
def vr(b, n=4): return f"v[{b}:{b+n-1}]"
def sr(b, n=4): return f"s[{b}:{b+n-1}]"

class G:
    def __init__(self, cfg):
        self.cfg = cfg; self.a = Asm(); self.uid = 0
    def lab(self, name):
        self.uid += 1
        return f"L_{name}_{self.uid}"
    def stamp(self, i):
        if self.cfg.stamp and not self.cfg.bdiag:
            self.a(f"  s_memrealtime s[{STAMP0+2*i}:{STAMP0+2*i+1}]\n  s_waitcnt lgkmcnt(0)")
    def cstamp(self, i):
        if self.cfg.bdiag:
            l = self.lab("cs")
            self.a(f"  s_cmp_lg_u32 s{S_SB}, {self.cfg.bdiag_sb}\n  s_cbranch_scc1 {l}\n  s_memtime s[{STAMP0+2*i}:{STAMP0+2*i+1}]\n  s_waitcnt lgkmcnt(0)\n{l}:")
    def stamp_init(self):
        if self.cfg.stamp:
            for i in range(20): self.a(f"  s_mov_b32 s{STAMP0+i}, 0")
    def stamp_flush(self, dbg=None):
        if not self.cfg.stamp: return
        a = self.a
        if self.cfg.dbgstamp and dbg:
            who, wave, first, which = dbg
            sk = self.lab("nodbg")
            a(f"  s_cmp_lg_u32 s{S_IDX}, {who}\n  s_cbranch_scc1 {sk}\n  s_cmp_lg_u32 s{S_WAVE}, {wave}\n  s_cbranch_scc1 {sk}")
            srd(a, R_DBG, P_DBG, 256)
            a("  v_mov_b32 v1, 0")
            for i, st in enumerate(which):
                a(f"  v_mov_b32 v2, s{STAMP0+2*st}\n  buffer_store_dword v2, v1, {sr(R_DBG)}, 0 offen offset:{4*(first+i)}\n  s_nop 0")
            a(f"{sk}:")
        if self.cfg.dbgstamp: return
        a("  s_lshl_b32 s60, s2, 3\n  s_add_u32 s60, s60, s3\n  s_lshl_b32 s60, s60, 6")
        a(f"  s_add_u32 s60, s60, {STAMP_OFF}\n  v_mov_b32 v1, 0")
        for i in range(10):
            a(f"  v_mov_b32 v2, s{STAMP0+2*i}\n  buffer_store_dword v2, v1, {sr(R_WS)}, s60 offen offset:{4*i}\n  s_nop 0")

    def allred_g(self, x, t, op):
        a = self.a
        a(f"  v_mov_b32 v{t}, v{x}\n  v_permlane16_swap_b32 v{t}, v{x}\n  {op} v{x}, v{t}, v{x}")
        a(f"  v_mov_b32 v{t}, v{x}\n  v_permlane32_swap_b32 v{t}, v{x}\n  {op} v{x}, v{t}, v{x}")
    def valid_check(self, base, n, t, retry):
        a = self.a
        a(f"  v_max3_u32 v{t}, v{base}, v{base+1}, v{base+2}")
        h = n // 2
        a(f"  v_max3_u32 v{t+1}, v{base+h}, v{base+h+1}, v{base+h+2}")
        i, k = 3, h + 3
        while i < h or k < n:
            if i + 1 < h: a(f"  v_max3_u32 v{t}, v{t}, v{base+i}, v{base+i+1}"); i += 2
            elif i < h: a(f"  v_max_u32 v{t}, v{t}, v{base+i}"); i += 1
            if k + 1 < n: a(f"  v_max3_u32 v{t+1}, v{t+1}, v{base+k}, v{base+k+1}"); k += 2
            elif k < n: a(f"  v_max_u32 v{t+1}, v{t+1}, v{base+k}"); k += 1
        a(f"  v_max_u32 v{t}, v{t}, v{t+1}\n  v_cmp_eq_u32 vcc, -1, v{t}\n  s_cbranch_vccnz {retry}")
    def spin_guard(self, done):
        self.a(f"  s_add_u32 s{S_SPIN}, s{S_SPIN}, 1\n  s_cmp_gt_u32 s{S_SPIN}, {SPIN_CAP}\n  s_cbranch_scc1 {done}")
    def flag_addr(self, va):
        self.a(f"  v_min_u32 v{va}, {NH-1}, v0\n  v_lshlrev_b32 v{va}, 7, v{va}\n  v_add_u32 v{va}, {FLAG_OFF}, v{va}")
    def wait_flags(self, vd, va, first_issued=False):
        a = self.a
        lp, ck, dn = self.lab("flg"), self.lab("flgc"), self.lab("flgd")
        a(f"  s_mov_b32 s{S_SPIN}, 0")
        if first_issued: a(f"  s_branch {ck}")
        a(f"{lp}:\n  buffer_load_dword v{vd}, v{va}, {sr(R_WS)}, 0 offen sc1")
        self.spin_guard(dn)
        a(f"{ck}:\n  s_waitcnt vmcnt(0)\n  v_cmp_ne_u32 vcc, s{S_NONCE}, v{vd}\n  s_cbranch_vccnz {lp}")
        a(f"{dn}:\n  s_waitcnt vmcnt(0)")
    def gather_frags(self, nfr, dst, vaddr, off0, t, name, rowmajor=False):
        a = self.a
        lp, dn = self.lab(name), self.lab(name + "d")
        a(f"  s_add_u32 s63, s{off0}, 4096\n  s_add_u32 s64, s{off0}, 8192\n  s_mov_b32 s{S_SPIN}, 0\n{lp}:")
        for j in range(nfr):
            so = (f"s{off0}", "s63", "s64")[j >> 2]
            if rowmajor: a(f"  buffer_load_dwordx4 {vr(dst+4*j)}, v{vaddr}, {sr(R_WS)}, s{off0} offen offset:{j*64} sc1")
            else: a(f"  buffer_load_dwordx4 {vr(dst+4*j)}, v{vaddr}, {sr(R_WS)}, {so} offen offset:{(j&3)*1024} sc1")
        self.spin_guard(dn)
        a("  s_waitcnt vmcnt(0)")
        self.valid_check(dst, 4 * nfr, t, lp)
        a(f"{dn}:\n  s_waitcnt vmcnt(0)")

    def prologue(self):
        a = self.a; cfg = self.cfg
        a("  s_cmp_ge_u32 s2, 256\n  s_cbranch_scc1 L_end")
        a("  s_load_dwordx16 s[4:19], s[0:1], 0\n  s_load_dwordx4 s[20:23], s[0:1], 64")
        if cfg.codepf:
            l = self.lab("pc")
            a(f"  s_cmp_ge_u32 s2, {8*cfg.pfrows}\n  s_cbranch_scc1 L_nopf")
            a(f"  s_getpc_b64 s[60:61]\n{l}:\n  s_sub_u32 s60, s60, {l}-{KNAME}\n  s_subb_u32 s61, s61, 0")
            a(f"  s_bfe_u32 s62, s2, 0x20003\n  s_lshl_b32 s62, s62, 13\n  v_lshl_add_u32 v72, v0, 4, s62")
            a(f"  v_min_u32 v72, L_code_end-{KNAME}-16, v72\n  global_load_dwordx4 v[76:79], v72, s[60:61]")
            a("L_nopf:")
        a("  v_lshrrev_b32 v1, 6, v0\n  v_and_b32 v0, 63, v0")
        a(f"  v_readfirstlane_b32 s{S_WAVE}, v1")
        a(f"  s_mov_b32 s{S_ONELO}, 0x00003f80\n  s_mov_b32 s{S_ONEHI}, 0x3f800000")
        self.stamp_init(); self.stamp(0)
        rows = NH // cfg.hnx
        a(f"  s_and_b32 s60, s2, 7\n  s_lshr_b32 s61, s2, 3\n  s_sub_u32 s62, s60, {cfg.hx0}")
        a(f"  s_cmp_lt_u32 s61, {rows}\n  s_cbranch_scc0 L_late")
        a(f"  s_cmp_lt_u32 s62, {cfg.hnx}\n  s_cbranch_scc0 L_early")
        a(f"  s_mul_i32 s{S_IDX}, s61, {cfg.hnx}\n  s_add_u32 s{S_IDX}, s{S_IDX}, s62\n  s_branch L_helper")
        a("L_early:")
        a(f"  s_cmp_lt_u32 s60, {cfg.hx0}\n  s_cselect_b32 s62, 0, {cfg.hnx}\n  s_sub_u32 s62, s60, s62")
        a(f"  s_mul_i32 s{S_IDX}, s61, {8-cfg.hnx}\n  s_add_u32 s{S_IDX}, s{S_IDX}, s62\n  s_branch L_stream")
        a(f"L_late:\n  s_sub_u32 s{S_IDX}, s2, {NH}")
        a(f"  s_cmp_ge_u32 s{S_IDX}, {NS}\n  s_cbranch_scc1 L_end")
        a("L_stream:")
        if cfg.nostream: a("  s_branch L_end")

    def code_prefetch(self, vt, vd):
        if not self.cfg.codepf: return
        a = self.a
        l = self.lab("pc")
        a(f"  s_getpc_b64 s[60:61]\n{l}:")
        a(f"  s_sub_u32 s60, s60, {l}-{KNAME}\n  s_subb_u32 s61, s61, 0")
        a(f"  s_lshr_b32 s62, s2, 3\n  s_lshl_b32 s62, s62, 10\n  v_lshl_add_u32 v{vt}, v0, 4, s62")
        a(f"  v_min_u32 v{vt}, L_code_end-{KNAME}-16, v{vt}")
        a(f"  global_load_dwordx4 {vr(vd)}, v{vt}, s[60:61]")

    V_OFF1, V_OFF0, V_SA = 2, 3, 255
    V_WA = (4, 5, 253, 254)
    V_RA, V_PA = 6, 10
    V_PADDR, V_MXW, V_MXR = 13, 14, 15
    V_ST = 128
    V_BUF = (16, 36)
    V_PU, V_TMP, V_OUT = 56, 64, 72
    V_QK, V_A, V_ACC = 80, 128, 176
    V_S, V_SUM, V_SQ4, V_SQ, V_MU, V_RS, V_LG = 188, 192, 196, 200, 204, 208, 212
    V_ONES = 216
    V_M, V_AL, V_L2, V_AM2, V_QS, V_CINV, V_CEPS, V_BIAS = 220, 222, 224, 226, 228, 230, 232, 234
    V_T0, V_T1, V_T2, V_ONEF = 236, 237, 238, 239
    V_MXV, V_TA, V_L16 = 240, 248, 252
    V_PUB = 196
    V_REDW = 198
    V_STR = 1

    def task_bases(self, st, kconst, kreg=True):
        a = self.a
        if kreg: a(f"  s_add_u32 s62, s{S_K}, {kconst}")
        else: a(f"  s_mov_b32 s62, {kconst}")
        a(f"  s_lshl_b32 s63, s62, 1\n  s_add_u32 s63, s63, s{S_QBASE}")
        a(f"  s_mul_i32 s{st}, s63, 3072\n  s_lshr_b32 s64, s63, 5\n  s_mul_i32 s64, s64, 393216")
        a(f"  s_and_b32 s65, s63, 31\n  s_mul_i32 s65, s65, 6144\n  s_add_u32 s{st+1}, s64, s65")
        a(f"  s_cmp_gt_u32 s62, {NPAIR-1}\n  s_cselect_b32 s{st}, 0x80000000, s{st}\n  s_cselect_b32 s{st+1}, 0x80000000, s{st+1}")
        a(f"  s_add_u32 s{st+2}, s{st+1}, 196608")
    def issue_piece(self, st, par, i):
        a = self.a
        nt = " nt" if self.cfg.nt else ""
        b = self.V_BUF[par] + 4 * i
        if i == 0:
            a(f"  buffer_load_dwordx4 {vr(b)}, v{self.V_OFF1}, {sr(R_B)}, s{st} offen{nt}")
        else:
            t = i - 1
            off = " offset:768" if t & 1 else ""
            a(f"  buffer_load_dwordx4 {vr(b)}, v{self.V_OFF0}, {sr(R_A)}, s{st+1+(t>>1)} offen{off}{nt}")

    def fuse_sub(self, par, d, name):
        a = self.a
        b = self.V_BUF[par]; u = self.V_PU; t8 = self.V_TMP
        SS, SQ, R, U = self.V_ST, self.V_ST + 4, self.V_ST + 8, self.V_ST + 12
        a0 = d // 5
        a(f"{name}:")
        a(f"  s_mov_b32 s{SETA}, s{SETB}\n  s_mov_b32 s{SETA+1}, s{SETB+1}\n  s_mov_b32 s{SETA+2}, s{SETB+2}")
        self.task_bases(SETB, a0 + 1)
        def nxt(i):
            aa, pi = (i + d) // 5, (i + d) % 5
            self.issue_piece(SETA if aa == a0 else SETB, par ^ (aa & 1), pi)
        def dpp(dst, src, ctrl, bank):
            a(f"  v_add_f32_dpp v{dst}, v{src}, v{src} {ctrl} row_mask:0xf bank_mask:{bank:#x}")
        a(f"  s_waitcnt vmcnt({d-1})")
        for i in range(4):
            a(f"  v_lshlrev_b32 v{u+2*i}, 16, v{b+i}\n  v_and_b32 v{u+2*i+1}, 0xffff0000, v{b+i}")
        nxt(0)
        for t in range(4):
            c = b + 4 + 4 * t; o = self.V_OUT + 4 * (t & 1)
            a(f"  s_waitcnt vmcnt({d-1})")
            for i in range(4):
                a(f"  v_dot2_f32_bf16 v{t8+2*i}, v{c+i}, s{S_ONELO}, v{u+2*i}")
                a(f"  v_dot2_f32_bf16 v{t8+2*i+1}, v{c+i}, s{S_ONEHI}, v{u+2*i+1}")
            nxt(t + 1)
            for i in range(4):
                a(f"  v_cvt_pk_bf16_f32 v{o+i}, v{t8+2*i}, v{t8+2*i+1}")
            a(f"  ds_write_b128 v{self.V_WA[t]}, {vr(o)} offset:{t*768}")
            if t > 0: dpp(R + t - 1, SS + t - 1, "row_ror:8", 0x3)
            for i in range(4):
                a(f"  v_dot2_f32_bf16 v{SS+t}, v{o+i}, v{self.V_ONES}, {'0' if i == 0 else 'v%d' % (SS+t)}")
                a(f"  v_dot2_f32_bf16 v{SQ+t}, v{o+i}, v{o+i}, {'0' if i == 0 else 'v%d' % (SQ+t)}")
            if t > 0: dpp(R + t - 1, SQ + t - 1, "row_ror:8", 0xc)
        WA = self.V_WA
        a(f"  s_mov_b32 s62, 24576\n  s_cmp_eq_u32 s{S_K}, 5\n  s_cselect_b32 s62, {(-5*24576) & 0xffffffff:#x}, s62")
        dpp(U, R, "row_half_mirror", 0x5)
        dpp(R + 3, SS + 3, "row_ror:8", 0x3)
        a(f"  v_add_u32 v{WA[0]}, s62, v{WA[0]}")
        dpp(U, R + 1, "row_half_mirror", 0xa)
        dpp(R + 3, SQ + 3, "row_ror:8", 0xc)
        dpp(U + 1, R + 2, "row_half_mirror", 0x5)
        a(f"  v_add_u32 v{WA[1]}, s62, v{WA[1]}")
        dpp(U, U, "quad_perm:[1,0,3,2]", 0xf)
        dpp(U + 1, R + 3, "row_half_mirror", 0xa)
        a(f"  v_add_u32 v{WA[2]}, s62, v{WA[2]}")
        dpp(U, U, "quad_perm:[2,3,0,1]", 0xf)
        dpp(U + 1, U + 1, "quad_perm:[1,0,3,2]", 0xf)
        a(f"  v_add_u32 v{WA[3]}, s62, v{WA[3]}\n  s_mov_b64 exec, s[{S_QMASK}:{S_QMASK+1}]\n  ds_add_f32 v{self.V_SA}, v{U}\n  s_mov_b64 exec, -1")
        dpp(U + 1, U + 1, "quad_perm:[2,3,0,1]", 0xf)
        a(f"  s_mov_b32 s62, 256\n  s_cmp_eq_u32 s{S_K}, 5\n  s_cselect_b32 s62, {(-5*256) & 0xffffffff:#x}, s62\n  s_add_u32 s{S_K}, s{S_K}, 1")
        a(f"  s_mov_b64 exec, s[{S_QMASK}:{S_QMASK+1}]\n  ds_add_f32 v{self.V_SA}, v{U+1} offset:8\n  s_mov_b64 exec, -1")
        a(f"  v_add_u32 v{self.V_SA}, s62, v{self.V_SA}")
        a(f"  s_setpc_b64 s[{S_LINK}:{S_LINK+1}]")

    def stream_consts(self):
        a = self.a
        a("  v_and_b32 v240, 15, v0\n  v_lshrrev_b32 v241, 4, v0")
        a("  v_and_b32 v242, 7, v240\n  v_lshlrev_b32 v242, 1, v242\n  v_mul_u32_u24 v243, 768, v240")
        for m in range(4):
            a(f"  v_add_u32 v244, {4*m}, v241\n  v_xor_b32 v244, v244, v242\n  v_lshl_add_u32 v{self.V_RA+m}, v244, 4, v243")
        a("  v_lshrrev_b32 v242, 2, v240\n  v_lshl_add_u32 v242, v241, 2, v242\n  v_mul_u32_u24 v243, 768, v242")
        a("  v_and_b32 v242, 7, v242\n  v_lshlrev_b32 v242, 1, v242")
        a("  v_and_b32 v244, 3, v240\n  v_lshrrev_b32 v245, 1, v244\n  v_and_b32 v244, 1, v244\n  v_lshl_add_u32 v243, v244, 3, v243")
        for tau in range(3):
            a(f"  s_mul_i32 s62, s{S_WAVE}, 3\n  s_add_u32 s62, s62, {tau}")
            a("  s_lshl_b32 s63, s62, 1\n  s_and_b32 s63, s63, 14\n  s_lshr_b32 s62, s62, 3\n  s_lshl_b32 s62, s62, 8")
            a(f"  v_xor_b32 v244, s63, v242\n  v_or_b32 v244, v244, v245\n  v_lshl_add_u32 v244, v244, 4, v243\n  v_add_u32 v{self.V_PA+tau}, s62, v244")
        a(f"  v_lshlrev_b32 v{self.V_L16}, 4, v0\n  v_add_u32 v{self.V_PADDR}, {STG}, v{self.V_L16}\n  v_lshlrev_b32 v{self.V_STR}, 4, v241")
        a(f"  v_lshlrev_b32 v244, 5, v240\n  v_add_u32 v{self.V_MXR}, {MX}, v244")
        a(f"  s_lshl_b32 s62, s{S_WAVE}, 2\n  v_add_u32 v{self.V_MXW}, s62, v{self.V_MXR}")
        for i in range(4): a(f"  v_mov_b32 v{self.V_ONES+i}, 0x3f803f80")
        a(f"  v_mov_b32 v{self.V_ONEF}, 1.0\n  v_mov_b32 v{self.V_CINV}, {f32(1/384)}\n  v_mov_b32 v{self.V_CEPS}, {f32(1e-5)}")
        for i in range(12): a(f"  v_mov_b32 v{self.V_ACC+i}, 0")
        a(f"  v_mov_b32 v{self.V_M}, 0xff800000")
        for r in (self.V_L2, self.V_L2+1, self.V_AM2, self.V_AM2+1, self.V_M+1, self.V_AL+1, self.V_QS+1, self.V_CINV+1, self.V_CEPS+1, self.V_BIAS+1):
            a(f"  v_mov_b32 v{r}, 0")

    def pk(self, op, d, x, y, z=None, bc=(), neg=()):
        n = 2 if z is None else 3
        ops = [x, y] + ([z] if z is not None else [])
        s = f"  {op} {vr(d,2)}, " + ", ".join(vr(o, 2) for o in ops)
        if bc: s += " op_sel_hi:[" + ",".join("0" if i in bc else "1" for i in range(n)) + "]"
        if neg:
            m = "[" + ",".join("1" if i in neg else "0" for i in range(n)) + "]"
            s += f" neg_lo:{m} neg_hi:{m}"
        self.a(s)

    def batch_sub(self):
        a = self.a
        A, QK = self.V_A, self.V_QK
        S, SUM, SQ4, SQ, MU, RS, LG = self.V_S, self.V_SUM, self.V_SQ4, self.V_SQ, self.V_MU, self.V_RS, self.V_LG
        M, AL, L2, AM2, T0, T1, MXV = self.V_M, self.V_AL, self.V_L2, self.V_AM2, self.V_T0, self.V_T1, self.V_MXV
        a("L_batch:")
        self.cstamp(0)
        a(f"  s_sub_u32 s{S_TI}, s{S_WAVE}, s{S_W0}\n  s_cmp_ge_u32 s{S_TI}, s{S_T}\n  s_cbranch_scc1 L_b_nos")
        a(f"  s_add_u32 s63, s{S_TI}, s{S_SB}\n  s_cmp_ge_u32 s63, 12\n  s_cselect_b32 s62, 12, 0\n  s_sub_u32 s63, s63, s62\n  s_mul_i32 s{S_TB}, s63, {SLOT}")
        for m in range(4): a(f"  v_add_u32 v{self.V_TA+m}, s{S_TB}, v{self.V_RA+m}")
        a(f"  s_lshl_b32 s62, s63, 7\n  s_add_u32 s62, s62, {STAT}\n  v_add_u32 v{T1}, s62, v{self.V_STR}")
        a(f"  ds_read_b128 {vr(SUM)}, v{T1}\n  ds_read_b128 {vr(SQ)}, v{T1} offset:64")
        for j in range(12): a(f"  ds_read_b128 {vr(A+4*j)}, v{self.V_TA+(j&3)} offset:{(j>>2)*256}")
        a(f"  s_lshr_b32 s62, s{S_TI}, 1\n  s_add_u32 s62, s62, s{S_PB}\n  s_cmp_lt_u32 s62, 2048\n  s_cselect_b32 s{S_BIAS}, 0, {f32(-1e30)}")
        a(f"  v_mov_b32 v{self.V_BIAS}, s{S_BIAS}")
        for i in range(4): a(f"  v_mov_b32 v{self.V_TA+i}, 0")
        a("  s_waitcnt lgkmcnt(12)")
        stat = []
        for h in (0, 2): stat.append(lambda h=h: self.pk("v_pk_mul_f32", MU + h, SUM + h, self.V_CINV, bc=(1,)))
        for h in (0, 2): stat.append(lambda h=h: self.pk("v_pk_fma_f32", RS + h, SQ + h, self.V_CINV, self.V_CEPS, bc=(1, 2)))
        for h in (0, 2): stat.append(lambda h=h: self.pk("v_pk_fma_f32", RS + h, MU + h, MU + h, RS + h, neg=(0,)))
        for r in range(4): stat.append(lambda r=r: a(f"  v_max_f32 v{RS+r}, v{self.V_CEPS}, v{RS+r}"))
        for r in range(4): stat.append(lambda r=r: a(f"  v_rsq_f32 v{RS+r}, v{RS+r}"))
        for h in (0, 2): stat.append(lambda h=h: self.pk("v_pk_mul_f32", SUM + h, MU + h, self.V_QS, bc=(1,)))
        for j in range(12):
            a(f"  s_waitcnt lgkmcnt({11-j})")
            a(f"  v_mfma_f32_16x16x32_bf16 {vr(S)}, {vr(A+4*j)}, {vr(QK+4*j)}, {'0' if j == 0 else vr(S)}")
            for _ in range(2):
                if stat: stat.pop(0)()
        self.cstamp(1)
        a(f"  ds_write_b128 v{T1}, {vr(self.V_TA)}\n  ds_write_b128 v{T1}, {vr(self.V_TA)} offset:64")
        for h in (0, 2): self.pk("v_pk_add_f32", LG + h, S + h, SUM + h, neg=(1,))
        for h in (0, 2): self.pk("v_pk_fma_f32", LG + h, LG + h, RS + h, self.V_BIAS, bc=(2,))
        a(f"  v_max3_f32 v{T0}, v{LG}, v{LG+1}, v{LG+2}\n  v_max_f32 v{T0}, v{T0}, v{LG+3}")
        self.allred_g(T0, T1, "v_max_f32")
        a(f"  ds_write_b32 v{self.V_MXW}, v{T0}")
        a("L_b_nos:\n  s_waitcnt lgkmcnt(0)")
        self.cstamp(2)
        a("  s_barrier")
        self.cstamp(3)
        a(f"  ds_read_b128 {vr(MXV)}, v{self.V_MXR}\n  ds_read_b128 {vr(MXV+4)}, v{self.V_MXR} offset:16")
        a(f"  s_lshr_b32 s62, s{S_TI}, 1\n  s_lshl_b32 s62, s62, 10\n  s_and_b32 s63, s{S_TI}, 1\n  s_lshl_b32 s63, s63, 3\n  s_add_u32 s62, s62, s63")
        a(f"  v_add_u32 v{self.V_T2}, s62, v{self.V_PADDR}")
        a("  s_waitcnt lgkmcnt(0)")
        a(f"  v_max3_f32 v{T0}, v{MXV}, v{MXV+1}, v{MXV+2}\n  v_max3_f32 v{T1}, v{MXV+3}, v{MXV+4}, v{MXV+5}")
        a(f"  v_max3_f32 v{T0}, v{T0}, v{MXV+6}, v{MXV+7}\n  v_max3_f32 v{T0}, v{T0}, v{T1}, v{M}")
        a(f"  v_sub_f32 v{AL}, v{M}, v{T0}\n  v_mov_b32 v{M}, v{T0}\n  v_exp_f32 v{AL}, v{AL}")
        self.cstamp(4)
        a(f"  s_cmp_ge_u32 s{S_TI}, s{S_T}\n  s_cbranch_scc1 L_b_nop")
        for h in (0, 2): self.pk("v_pk_add_f32", LG + h, LG + h, M, bc=(1,), neg=(1,))
        for r in range(4): a(f"  v_exp_f32 v{LG+r}, v{LG+r}")
        self.pk("v_pk_mul_f32", L2, L2, AL, bc=(1,)); self.pk("v_pk_mul_f32", AM2, AM2, AL, bc=(1,))
        self.pk("v_pk_add_f32", L2, L2, LG); self.pk("v_pk_add_f32", L2, L2, LG + 2)
        for h in (0, 2): self.pk("v_pk_mul_f32", LG + h, LG + h, RS + h)
        a(f"  v_cvt_pk_bf16_f32 v{MXV}, v{LG}, v{LG+1}\n  v_cvt_pk_bf16_f32 v{MXV+1}, v{LG+2}, v{LG+3}")
        a(f"  ds_write_b64 v{self.V_T2}, {vr(MXV,2)}")
        for h in (0, 2): self.pk("v_pk_fma_f32", AM2, LG + h, MU + h, AM2)
        a("  s_branch L_b_acc")
        a("L_b_nop:")
        self.pk("v_pk_mul_f32", L2, L2, AL, bc=(1,)); self.pk("v_pk_mul_f32", AM2, AM2, AL, bc=(1,))
        a("L_b_acc:")
        for i in range(0, 12, 2): self.pk("v_pk_mul_f32", self.V_ACC + i, self.V_ACC + i, AL, bc=(1,))
        a(f"  s_cmp_eq_u32 s{S_LAST}, 0\n  s_cbranch_scc1 L_b_bar")
        a(f"  v_add_f32 v{MXV+2}, v{L2}, v{L2+1}\n  v_add_f32 v{MXV+3}, v{AM2}, v{AM2+1}")
        a(f"  v_permlane16_swap_b32 v{MXV+2}, v{MXV+3}\n  v_add_f32 v{MXV+2}, v{MXV+2}, v{MXV+3}")
        a(f"  v_mov_b32 v{MXV+3}, v{MXV+2}\n  v_permlane32_swap_b32 v{MXV+3}, v{MXV+2}\n  v_add_f32 v{MXV+2}, v{MXV+2}, v{MXV+3}")
        a(f"  ds_write_b32 v{self.V_REDW}, v{MXV+2}")
        a("L_b_bar:\n  s_waitcnt lgkmcnt(0)")
        self.cstamp(5)
        a("  s_barrier")
        self.cstamp(6)
        def reads(buf, s_, poff):
            o = A + 16 * buf
            a(f"  ds_read_b128 {vr(o)}, v{self.V_PADDR} offset:{poff}")
            for tau in range(3):
                a(f"  v_add_u32 v{self.V_TA+tau}, s{s_}, v{self.V_PA+tau}")
                a(f"  ds_read_b64_tr_b16 {vr(o+4+4*tau,2)}, v{self.V_TA+tau}")
                a(f"  ds_read_b64_tr_b16 {vr(o+6+4*tau,2)}, v{self.V_TA+tau} offset:{SLOT}")
        def mfmas(buf, base):
            o = A + 16 * buf
            for tau in range(3):
                a(f"  s_waitcnt lgkmcnt({base + 4 - 2*tau})")
                a(f"  v_mfma_f32_16x16x32_bf16 {vr(self.V_ACC+4*tau)}, {vr(o+4+4*tau)}, {vr(o)}, {vr(self.V_ACC+4*tau)}")
        a(f"  s_mul_i32 s{S_PVB}, s{S_SB}, {SLOT}")
        a(f"  s_cmp_eq_u32 s{S_T}, 2\n  s_cbranch_scc1 L_b_pv1")
        for k in range(4):
            if k == 0: reads(0, S_PVB, 0)
            if k < 3:
                a(f"  s_add_u32 s{S_PVB}, s{S_PVB}, {2*SLOT}\n  s_cmp_ge_u32 s{S_PVB}, {12*SLOT}\n  s_cselect_b32 s62, {12*SLOT}, 0\n  s_sub_u32 s{S_PVB}, s{S_PVB}, s62")
                reads((k + 1) & 1, S_PVB, (k + 1) * 1024)
            mfmas(k & 1, 7 if k < 3 else 0)
        self.cstamp(7)
        a(f"  s_setpc_b64 s[{S_LINK}:{S_LINK+1}]")
        a("L_b_pv1:")
        reads(0, S_PVB, 0)
        mfmas(0, 0)
        self.cstamp(7)
        a(f"  s_setpc_b64 s[{S_LINK}:{S_LINK+1}]")

    def call_batch(self, T, w0, slot0, pair_add, last):
        self.a(f"  s_mov_b32 s{S_T}, {T}\n  s_mov_b32 s{S_W0}, {w0}\n  s_mov_b32 s{S_SB}, {slot0}\n  s_add_u32 s{S_PB}, s{S_P0}, {pair_add}\n  s_mov_b32 s{S_LAST}, {int(last)}")
        self.a(f"  s_call_b64 s[{S_LINK}:{S_LINK+1}], L_batch")

    def streamer(self):
        a = self.a; cfg = self.cfg; d = cfg.depth
        a("  s_waitcnt lgkmcnt(0)")
        srd(a, R_A, P_F0, F0_BYTES); srd(a, R_B, P_F1, F1_BYTES)
        a(f"  s_cmp_ge_u32 s{S_WAVE}, 6\n  s_cbranch_scc1 L_sgather")
        a(f"  s_cmp_ge_u32 s{S_WAVE}, 3\n  s_cselect_b32 s60, 1, 0\n  s_mul_i32 s62, s60, 3\n  s_sub_u32 s61, s{S_WAVE}, s62")
        a(f"  s_mul_i32 s{S_QBASE}, s{S_IDX}, {2*NPAIR}\n  s_add_u32 s{S_QBASE}, s{S_QBASE}, s60\n  s_lshl_b32 s61, s61, 8")
        a("  v_and_b32 v240, 15, v0\n  v_lshrrev_b32 v241, 4, v0\n  v_lshl_add_u32 v242, v240, 4, s61")
        a(f"  v_mul_u32_u24 v243, 768, v241\n  v_add_u32 v{self.V_OFF1}, v242, v243\n  v_lshl_add_u32 v{self.V_OFF0}, v243, 1, v242")
        a(f"  s_mov_b32 s{S_K}, 0\n  s_mov_b32 s{S_QMASK}, 0x11111111\n  s_mov_b32 s{S_QMASK+1}, 0x11111111")
        self.task_bases(SETA, 0, False)
        for x in range(min(d, 5)): self.issue_piece(SETA, 0, x)
        if d > 5:
            self.task_bases(SETB, 1, False)
            for x in range(5, d): self.issue_piece(SETB, 1, x - 5)
        if d // 5 != 1 or d == 5: self.task_bases(SETB, d // 5, False)
        a(f"  s_mul_i32 s60, s60, {SLOT}\n  s_add_u32 s60, s60, s61")
        srd(a, R_WS, P_WS, WS_BYTES); srd(a, R_DBG, P_DBG, 256)
        a("  v_and_b32 v240, 15, v0\n  v_lshrrev_b32 v241, 4, v0\n  v_and_b32 v242, 1, v241\n  v_lshlrev_b32 v242, 3, v242\n  v_xor_b32 v242, v240, v242")
        a(f"  v_mul_u32_u24 v243, 3072, v241\n  v_add_u32 v243, s60, v243")
        for t in range(4):
            a(f"  v_xor_b32 v244, {2*t}, v242\n  v_lshl_add_u32 v{self.V_WA[t]}, v244, 4, v243")
        a(f"  v_bfe_u32 v242, v0, 3, 1\n  v_lshlrev_b32 v242, 6, v242\n  v_bfe_u32 v243, v0, 2, 1\n  v_lshl_add_u32 v243, v241, 2, v243\n  v_lshl_add_u32 v242, v243, 2, v242")
        a(f"  s_cmp_ge_u32 s{S_WAVE}, 3\n  s_cselect_b32 s62, {STAT+128}, {STAT}" .replace(f"{STAT+128}, {STAT}", f"128, 0") + f"\n  s_add_u32 s62, s62, {STAT}\n  v_add_u32 v{self.V_SA}, s62, v242")
        a("  s_barrier")
        self.stream_consts()
        a(f"  s_mov_b32 s{S_NP}, 3\nL_ph1:")
        a(f"  s_call_b64 s[{S_LINK}:{S_LINK+1}], L_fuse0")
        a(f"  s_call_b64 s[{S_LINK}:{S_LINK+1}], L_fuse1")
        a(f"  s_sub_u32 s{S_NP}, s{S_NP}, 1\n  s_cmp_lg_u32 s{S_NP}, 0\n  s_cbranch_scc1 L_ph1")
        assert 5 <= d <= 10 or d < 5
        first = 30 + d
        self.task_bases(SETA, 6, False); self.task_bases(SETB, 7, False)
        for x in range(first, 40):
            self.issue_piece(SETA if x < 35 else SETB, (x // 5) & 1, x % 5)
        self.task_bases(SETB, 8, False)
        a("  s_waitcnt lgkmcnt(0)")
        self.stamp(3)
        a("  s_branch L_sb0")
        a("L_sgather:")
        for r in (self.V_OFF1, self.V_OFF0, self.V_SA) + self.V_WA: a(f"  v_mov_b32 v{r}, 0")
        for i in range(4): a(f"  v_mov_b32 v{20+i}, 0")
        a(f"  v_lshlrev_b32 v24, 4, v0\n  v_add_u32 v24, {STAT}, v24\n  ds_write_b128 v24, v[20:23]\n  v_cmp_gt_u32 vcc, 32, v0\n  s_and_saveexec_b64 s[64:65], vcc")
        a("  ds_write_b128 v24, v[20:23] offset:1024\n  s_mov_b64 exec, s[64:65]\n  s_waitcnt lgkmcnt(0)\n  s_barrier")
        a(f"  s_mov_b32 s{S_QBASE}, 0\n  s_mov_b32 s{S_K}, 0\n  s_mov_b32 s{S_QMASK}, 0\n  s_mov_b32 s{S_QMASK+1}, 0")
        for r in range(3): a(f"  s_mov_b32 s{SETA+r}, 0\n  s_mov_b32 s{SETB+r}, 0")
        srd(a, R_WS, P_WS, WS_BYTES); srd(a, R_DBG, P_DBG, 256)
        a(f"  buffer_load_dword v17, v{self.V_OFF1}, {sr(R_WS)}, 0 offen offset:{NONCE_OFF} sc1")
        self.flag_addr(18)
        a(f"  buffer_load_dword v16, v18, {sr(R_WS)}, 0 offen sc1")
        self.stream_consts()
        a(f"  s_waitcnt vmcnt(1)\n  v_add_u32 v17, 1, v17\n  v_mov_b32 v{self.V_T0}, {NONCE_LDS}\n  ds_write_b32 v{self.V_T0}, v17\n  v_readfirstlane_b32 s{S_NONCE}, v17")
        self.wait_flags(16, 18, first_issued=True)
        self.stamp(1)
        a(f"  s_sub_u32 s61, s{S_WAVE}, 6\n  s_mul_i32 s61, s61, 6144\n  s_add_u32 s62, s61, {RQK_OFF}")
        self.gather_frags(6, self.V_A, self.V_L16, 62, self.V_T0, "qk")
        if cfg.gdiag: a(f"  s_mov_b32 s{STAMP0+4}, s{S_SPIN}")
        a(f"  v_add_u32 v{self.V_T0}, s61, v{self.V_PADDR}")
        for j in range(6): a(f"  ds_write_b128 v{self.V_T0}, {vr(self.V_A+4*j)} offset:{j*1024}")
        a("  s_waitcnt lgkmcnt(0)")
        self.stamp(3)
        a("L_sb0:\n  s_barrier")
        for j in range(12): a(f"  ds_read_b128 {vr(self.V_QK+4*j)}, v{self.V_PADDR} offset:{j*1024}")
        a(f"  v_mov_b32 v{self.V_T0}, {NONCE_LDS}\n  ds_read_b32 v{self.V_T1}, v{self.V_T0}")
        SQ4 = self.V_SQ4
        for j in range(12):
            a(f"  s_waitcnt lgkmcnt({12-j})")
            for i in range(4):
                a(f"  v_dot2_f32_bf16 v{SQ4+i}, v{self.V_QK+4*j+i}, v{self.V_ONES}, {'0' if j == 0 else 'v%d' % (SQ4+i)}")
        self.pk("v_pk_add_f32", SQ4, SQ4, SQ4 + 2)
        a(f"  v_add_f32 v{self.V_QS}, v{SQ4}, v{SQ4+1}")
        self.allred_g(self.V_QS, self.V_T0, "v_add_f32")
        a(f"  s_waitcnt lgkmcnt(0)\n  v_readfirstlane_b32 s{S_NONCE}, v{self.V_T1}")
        a(f"  s_mul_i32 s{S_P0}, s{S_IDX}, {NPAIR}")
        self.stamp(4)
        self.call_batch(8, 0, 0, 0, False)
        a("  s_barrier")
        self.stamp(5)
        sk = self.lab("nof")
        a(f"  s_cmp_ge_u32 s{S_WAVE}, 6\n  s_cbranch_scc1 {sk}")
        a(f"  s_call_b64 s[{S_LINK}:{S_LINK+1}], L_fuseD0")
        a(f"  s_call_b64 s[{S_LINK}:{S_LINK+1}], L_fuseD1")
        a(f"{sk}:")
        self.publish_setup()
        a("  s_waitcnt lgkmcnt(0)\n  s_barrier")
        if not cfg.gdiag: self.stamp(2)
        self.call_batch(8, 0, 8, 4, False)
        if not cfg.gdiag: self.stamp(1)
        sk = self.lab("nof")
        a(f"  s_cmp_ge_u32 s{S_WAVE}, 6\n  s_cbranch_scc1 {sk}")
        a(f"  s_call_b64 s[{S_LINK}:{S_LINK+1}], L_fuseD0")
        a(f"{sk}:\n  s_waitcnt lgkmcnt(0)\n  s_barrier")
        self.stamp(6)
        self.call_batch(2, 6, 4, 8, True)
        self.stamp(7)
        self.publish()
        self.cstamp(8)
        self.stamp(8)
        a(f"  s_cmp_ge_u32 s{S_IDX}, 128\n  s_cbranch_scc1 L_sdone")
        self.reducer()
        a("L_sdone:")
        self.stamp(9); self.stamp_flush((5, 6, 8, (0, 1, 3, 5, 6, 7, 8, 9)))
        a("  s_endpgm")
        self.fuse_sub(0, 10, "L_fuseD0"); self.fuse_sub(1, 10, "L_fuseD1"); self.batch_sub()
        self.fuse_sub(0, d, "L_fuse0"); self.fuse_sub(1, d, "L_fuse1")

    def publish_setup(self):
        a = self.a
        T0, T1, T2 = self.V_T0, self.V_T1, self.V_T2
        PA0, TAGB = self.V_PUB, self.V_PUB + 1
        a(f"  v_and_b32 v{T0}, 7, v0\n  v_lshlrev_b32 v{T0}, 3, v{T0}\n  v_add_u32 v{T0}, s{S_WAVE}, v{T0}\n  s_mov_b32 s62, {PART_STRIDE}\n  v_mul_lo_u32 v{T0}, v{T0}, s62")
        a(f"  v_bfe_u32 v{T1}, v0, 3, 1\n  v_lshl_add_u32 v{T0}, v{T1}, 6, v{T0}\n  v_lshrrev_b32 v{T1}, 4, v0\n  v_lshl_add_u32 v{PA0}, v{T1}, 4, v{T0}")
        a(f"  s_mov_b32 s62, {KEYC}\n  v_mul_lo_u32 v{T1}, v{T1}, s62\n  v_add_u32 v{TAGB}, s{S_NONCE}, v{T1}")
        a(f"  v_and_b32 v{T0}, 15, v0\n  v_lshlrev_b32 v{T0}, 6, v{T0}\n  v_bfe_u32 v{T1}, v0, 4, 1\n  v_lshl_add_u32 v{T0}, v{T1}, 2, v{T0}")
        a(f"  s_lshl_b32 s62, s{S_WAVE}, 3\n  s_add_u32 s62, s62, {RED}\n  v_add_u32 v{self.V_PUB+2}, s62, v{T0}")
        a(f"  v_and_b32 v{T0}, 15, v0\n  v_lshlrev_b32 v{T0}, 6, v{T0}\n  v_add_u32 v{self.V_PUB+3}, {RED}, v{T0}")

    def publish(self):
        a = self.a; cfg = self.cfg
        A, ACC = self.V_A, self.V_ACC
        PA0, TAGB, RDA = self.V_PUB, self.V_PUB + 1, self.V_PUB + 3
        for i in range(4): a(f"  ds_read_b128 {vr(A+4*i)}, v{RDA} offset:{16*i}")
        UA, UB, TB = A + 24, A + 28, A + 32
        a(f"  s_lshl_b32 s62, s{S_IDX}, 7\n  s_add_u32 s62, s62, {PART_OFF}\n  s_add_u32 s63, s62, {64*PART_STRIDE}")
        a(f"  v_mov_b32 v{UA+3}, s{S_NONCE}")
        a("  s_waitcnt vmcnt(0) lgkmcnt(0)")
        for i in (0, 4, 8, 12): self.pk("v_pk_add_f32", A + i, A + i, A + i + 2)
        self.pk("v_pk_add_f32", A, A, A + 4); self.pk("v_pk_add_f32", A + 8, A + 8, A + 12); self.pk("v_pk_add_f32", A, A, A + 8)
        a(f"  v_rcp_f32 v{A+2}, v{A}\n  v_log_f32 v{A+5}, v{A}\n  v_mul_f32 v{A+4}, v{A+1}, v{A+2}")
        for i in range(0, 12, 2): self.pk("v_pk_fma_f32", ACC + i, ACC + i, A + 2, A + 4, bc=(1, 2), neg=(2,))
        a(f"  v_add_f32 v{A+6}, v{self.V_M}, v{A+5}")
        for i in range(3): a(f"  v_cvt_pk_f16_f32 v{UA+i}, v{ACC+2*i}, v{ACC+2*i+1}")
        for i in range(3): a(f"  v_cvt_pk_f16_f32 v{UB+i}, v{ACC+6+2*i}, v{ACC+7+2*i}")
        a(f"  v_xor_b32 v{UB+3}, v{A+6}, v{TAGB}")
        for i in range(4): a(f"  v_mov_b32 v{TB+i}, v{UB+i}")
        for i in range(3): a(f"  v_mov_b32_dpp v{UB+i}, v{UA+i} row_ror:8 row_mask:0xf bank_mask:0x3")
        a(f"  v_mov_b32_dpp v{UB+3}, v{UA+3} quad_perm:[0,1,2,3] row_mask:0xf bank_mask:0x3")
        for i in range(4): a(f"  v_mov_b32_dpp v{UA+i}, v{TB+i} row_ror:8 row_mask:0xf bank_mask:0xc")
        a(f"  buffer_store_dwordx4 {vr(UA)}, v{PA0}, {sr(R_WS)}, s62 offen sc1")
        a(f"  buffer_store_dwordx4 {vr(UB)}, v{PA0}, {sr(R_WS)}, s63 offen sc1")

    def reducer_setup(self):
        a = self.a
        AD, T0, T1, VM, SA, X, Y, KEY = self.RV
        MASK = 40
        a(f"  v_lshrrev_b32 v{T0}, 3, v0\n  s_lshl_b32 s62, s{S_WAVE}, 5\n  v_add_u32 v{VM}, s62, v{T0}")
        a(f"  v_and_b32 v{T1}, 7, v0\n  v_lshlrev_b32 v{T1}, 4, v{T1}\n  s_mov_b32 s62, {NS}")
        for it in range(4):
            a(f"  v_add_u32 v{T0}, {8*it}, v{VM}\n  v_cmp_gt_u32 s[{MASK+2*it}:{MASK+2*it+1}], s62, v{T0}\n  v_cndmask_b32 v{T0}, 0, v{T0}, s[{MASK+2*it}:{MASK+2*it+1}]")
            a(f"  v_lshl_add_u32 v{AD+it}, v{T0}, 7, v{T1}")
        a(f"  v_and_b32 v{T0}, 3, v0\n  s_mov_b32 s62, {KEYC}\n  v_mul_lo_u32 v{T0}, v{T0}, s62\n  v_add_u32 v{KEY}, s{S_NONCE}, v{T0}")
        a(f"  v_lshrrev_b32 v{T0}, 4, v0\n  v_and_b32 v{T1}, 1, v{T0}\n  v_lshlrev_b32 v{T1}, 1, v{T1}\n  v_lshrrev_b32 v{X}, 1, v{T0}\n  v_add_u32 v{T1}, v{T1}, v{X}")
        a(f"  v_bfe_u32 v{X}, v0, 2, 1\n  v_mul_u32_u24 v{X}, 3, v{X}\n  v_add_u32 v{T1}, v{T1}, v{X}")
        a(f"  v_lshrrev_b32 v{X}, 1, v{T1}\n  v_lshlrev_b32 v{X}, 4, v{X}\n  v_and_b32 v{T1}, 1, v{T1}\n  v_lshl_add_u32 v{X}, v{T1}, 1, v{X}")
        a(f"  v_and_b32 v{T1}, 3, v0\n  v_lshl_add_u32 v{X}, v{T1}, 2, v{X}")
        a(f"  s_and_b32 s62, s{S_IDX}, 7\n  s_mul_i32 s62, s62, 48\n  v_add_u32 v{X}, s62, v{X}\n  v_lshlrev_b32 v{SA}, 1, v{X}")
        a(f"  v_lshrrev_b32 v{T1}, 4, v0\n  v_lshlrev_b32 v{T1}, 3, v{T1}\n  v_and_b32 v{X}, 7, v0\n  v_add_u32 v{T1}, v{T1}, v{X}\n  v_lshlrev_b32 v{Y}, 3, v{T1}")
        a(f"  s_lshl_b32 s62, s{S_WAVE}, 8\n  s_add_u32 s62, s62, {RED2}\n  v_add_u32 v{X}, s62, v{Y}\n  v_add_u32 v{Y}, {RED2}, v{Y}")

    RV = (80, 84, 85, 86, 87, 88, 89, 90)

    def reducer(self):
        a = self.a; cfg = self.cfg
        D, E, W, V = 16, 32, 40, 44
        AD, T0, T1, VM, SA, X, Y, KEY = self.RV
        MASK = 40
        BAD = 52
        self.reducer_setup()
        if cfg.rdiag: self.stamp(1)
        a(f"  s_mul_i32 s62, s{S_IDX}, {PART_STRIDE}\n  s_add_u32 s62, s62, {PART_OFF}")
        lp, dn = self.lab("red"), self.lab("redd")
        BADS = (48, 50, 52, 54)
        for it in range(4): a(f"  s_mov_b64 s[{BADS[it]}:{BADS[it]+1}], -1")
        a(f"  s_mov_b32 s64, 0xf0f0f0f0\n  s_mov_b32 s65, 0xf0f0f0f0")
        a(f"  s_mov_b32 s{S_SPIN}, 0\n{lp}:")
        for it in range(4):
            sk = self.lab("skipld")
            a(f"  s_mov_b64 exec, s[{BADS[it]}:{BADS[it]+1}]\n  s_cbranch_execz {sk}")
            a(f"  buffer_load_dwordx4 {vr(D+4*it)}, v{AD+it}, {sr(R_WS)}, s62 offen sc1")
            a(f"{sk}:")
        a("  s_mov_b64 exec, -1")
        self.spin_guard(dn)
        a("  s_waitcnt vmcnt(0)")
        for it in range(4):
            a(f"  v_xor_b32 v{E+2*it}, v{KEY}, v{D+4*it+3}")
        for it in range(4):
            a(f"  v_mov_b32_dpp v{E+2*it+1}, v{E+2*it} quad_perm:[0,0,0,0] row_mask:0xf bank_mask:0xf")
        for it in range(4):
            a(f"  v_cmp_ne_u32 vcc, v{E+2*it}, v{E+2*it+1}\n  v_cmp_ne_u32 s[60:61], s{S_NONCE}, v{D+4*it+3}")
            a(f"  s_and_b64 vcc, vcc, s[64:65]\n  s_andn2_b64 s[60:61], s[60:61], s[64:65]\n  s_or_b64 s[{BADS[it]}:{BADS[it]+1}], vcc, s[60:61]")
        a(f"  s_or_b64 s[60:61], s[48:49], s[50:51]\n  s_or_b64 vcc, s[52:53], s[54:55]\n  s_or_b64 s[60:61], s[60:61], vcc\n  s_cbranch_scc0 {dn}")
        for it in range(4):
            b = BADS[it]
            if cfg.selpoll: a(f"  s_cmp_lg_u64 s[{b}:{b+1}], 0\n  s_cselect_b64 s[{b}:{b+1}], -1, 0")
            else: a(f"  s_mov_b64 s[{b}:{b+1}], -1")
        a(f"  s_branch {lp}")
        a(f"{dn}:\n  s_waitcnt vmcnt(0)")
        if cfg.rdiag:
            self.stamp(2)
            a(f"  s_mov_b32 s{STAMP0+6}, s{S_SPIN}")
        for it in range(4): a(f"  v_mov_b32_dpp v{E+2*it}, v{E+2*it} row_shl:4 row_mask:0xf bank_mask:0x5")
        a(f"  v_mov_b32 v{T1}, 0xff800000")
        for it in range(4):
            a(f"  v_cndmask_b32 v{E+2*it}, v{T1}, v{E+2*it}, s[{MASK+2*it}:{MASK+2*it+1}]")
        a(f"  v_max3_f32 v{T0}, v{E}, v{E+2}, v{E+4}\n  v_max_f32 v{T0}, v{T0}, v{E+6}")
        a(f"  v_max_f32_dpp v{T0}, v{T0}, v{T0} row_ror:8 row_mask:0xf bank_mask:0xf")
        self.allred_g(T0, T1, "v_max_f32")
        for it in range(4): a(f"  v_sub_f32 v{W+it}, v{E+2*it}, v{T0}")
        for it in range(4): a(f"  v_exp_f32 v{W+it}, v{W+it}")
        a(f"  s_lshl_b32 s62, s{S_WAVE}, 2\n  s_add_u32 s62, s62, {MXW}\n  v_mov_b32 v{T1}, s62\n  ds_write_b32 v{T1}, v{T0}")
        for it in range(4):
            for q in range(3):
                c0 = "0" if it == 0 else f"v{V+2*q}"; c1 = "0" if it == 0 else f"v{V+2*q+1}"
                a(f"  v_fma_mix_f32 v{V+2*q}, v{D+4*it+q}, v{W+it}, {c0} op_sel_hi:[1,0,0]")
                a(f"  v_fma_mix_f32 v{V+2*q+1}, v{D+4*it+q}, v{W+it}, {c1} op_sel:[1,0,0] op_sel_hi:[1,0,0]")
        self.pk("v_pk_add_f32", W, W, W + 2)
        a(f"  v_add_f32 v{V+6}, v{W}, v{W+1}\n  v_mov_b32 v{V+7}, 0")
        for x, y in ((0, 2), (1, 3), (4, 6), (5, 7)): a(f"  v_permlane32_swap_b32 v{V+x}, v{V+y}")
        for x, y in ((0, 2), (1, 3), (4, 6), (5, 7)): a(f"  v_add_f32 v{V+x}, v{V+x}, v{V+y}")
        for x, y in ((0, 4), (1, 5)): a(f"  v_permlane16_swap_b32 v{V+x}, v{V+y}")
        for x, y in ((0, 4), (1, 5)): a(f"  v_add_f32 v{V+x}, v{V+x}, v{V+y}")
        for x in (0, 1): a(f"  v_add_f32_dpp v{V+x}, v{V+x}, v{V+x} row_ror:8 row_mask:0xf bank_mask:0xf")
        a(f"  ds_write_b64 v{X}, {vr(V,2)}\n  s_waitcnt lgkmcnt(0)")
        if cfg.rdiag: self.stamp(4)
        a("  s_barrier")
        if cfg.rdiag: self.stamp(5)
        a(f"  s_cmp_lg_u32 s{S_WAVE}, 0\n  s_cbranch_scc1 L_sdone")
        a(f"  v_mov_b32 v{T1}, {MXW}\n  ds_read_b128 {vr(W)}, v{T1}\n  ds_read_b128 {vr(W+4)}, v{T1} offset:16")
        for w in range(8): a(f"  ds_read_b64 {vr(D+2*w,2)}, v{Y} offset:{256*w}")
        a(f"  s_lshr_b32 s63, s{S_IDX}, 3\n  s_mul_i32 s63, s63, 768\n  s_add_u32 s63, s63, {RCTX_OFF}")
        a(f"  v_and_b32 v{X}, 8, v0\n  v_cmp_eq_u32 vcc, 0, v{X}\n  v_cmp_gt_u32 s[64:65], 48, v0\n  s_and_b64 s[64:65], vcc, s[64:65]")
        a("  s_waitcnt lgkmcnt(8)")
        a(f"  v_max3_f32 v{T0}, v{W}, v{W+1}, v{W+2}\n  v_max3_f32 v{T1}, v{W+3}, v{W+4}, v{W+5}\n  v_max3_f32 v{T0}, v{T0}, v{W+6}, v{W+7}\n  v_max_f32 v{T0}, v{T0}, v{T1}")
        for w in range(0, 8, 2): self.pk("v_pk_add_f32", W + w, W + w, T0, bc=(1,), neg=(1,))
        for w in range(8): a(f"  v_exp_f32 v{W+w}, v{W+w}")
        a("  s_waitcnt lgkmcnt(0)")
        for w in range(8):
            base = W + (w & ~1)
            sel = "op_sel:[0,1,0] op_sel_hi:[1,1,1]" if w & 1 else "op_sel_hi:[1,0,1]"
            if w == 0: a(f"  v_pk_mul_f32 {vr(E,2)}, {vr(D,2)}, {vr(base,2)} op_sel_hi:[1,0]")
            else: a(f"  v_pk_fma_f32 {vr(E,2)}, {vr(D+2*w,2)}, {vr(base,2)}, {vr(E,2)} {sel}")
        a(f"  v_readlane_b32 s62, v{E}, 48\n  v_rcp_f32 v{T0}, s62")
        self.pk("v_pk_mul_f32", E, E, T0, bc=(1,))
        a(f"  v_cvt_pk_bf16_f32 v{E}, v{E}, v{E+1}\n  v_min_u32 v{E}, -2, v{E}")
        a("  s_mov_b64 exec, s[64:65]")
        a(f"  buffer_store_dword v{E}, v{SA}, {sr(R_WS)}, s63 offen sc1")
        a("  s_mov_b64 exec, -1")

    def img_dma(self, srdr, lds, soff, vs0, vs1):
        for th in range(3):
            for q4 in range(4):
                self.img_dma1(srdr, lds, soff, vs0, vs1, th, q4)
    def img_dma1(self, srdr, lds, soff, vs0, vs1, th, q4, ldsreg=None):
        a = self.a
        if ldsreg is None: a(f"  s_mov_b32 m0, {lds + th*4096 + q4*1024}")
        else: a(f"  s_add_u32 m0, s{ldsreg}, {th*4096 + q4*1024}")
        a(f"  s_add_u32 s62, s{soff}, {q4*3072 + th*256}")
        a(f"  buffer_load_dwordx4 v{vs1 if q4 & 1 else vs0}, {sr(srdr)}, s62 offen{' nt' if self.cfg.hnt else ''} lds")

    def helper(self):
        a = self.a; cfg = self.cfg
        L16, N, Gq, T0, T1, T2, T3 = 1, 2, 3, 4, 5, 6, 7
        FL, TA, DS, VS0, VS1, ZERO = 8, 10, 11, 12, 13, 14
        IA = 16
        QF, AF, TR = 20, 68, 160
        WKF = 116
        D1, D2, D3, ST, ONES = 208, 212, 216, 220, 224
        a("L_helper:")
        a(f"  v_lshlrev_b32 v{L16}, 4, v0\n  v_and_b32 v{N}, 15, v0\n  v_lshrrev_b32 v{Gq}, 4, v0\n  v_mov_b32 v{ZERO}, 0")
        a(f"  v_lshlrev_b32 v{T0}, 1, v{Gq}\n  v_xor_b32 v{T0}, v{N}, v{T0}\n  v_mul_u32_u24 v{T1}, 768, v{Gq}")
        a(f"  v_lshl_add_u32 v{VS0}, v{T0}, 4, v{T1}\n  v_xor_b32 v{T0}, 8, v{T0}\n  v_lshl_add_u32 v{VS1}, v{T0}, 4, v{T1}")
        a(f"  v_lshrrev_b32 v{T0}, 1, v0\n  v_mul_u32_u24 v{T0}, 768, v{T0}\n  v_and_b32 v{T1}, 1, v0\n  v_lshl_add_u32 v{T0}, v{T1}, 4, v{T0}")
        a(f"  s_lshl_b32 s61, s{S_IDX}, 5\n  v_add_u32 v{DS}, s61, v{T0}")
        a(f"  s_lshr_b32 s60, s{S_IDX}, 1\n  s_lshl_b32 s60, s60, 10\n  s_and_b32 s61, s{S_IDX}, 1\n  s_lshl_b32 s61, s61, 9\n  s_add_u32 s60, s60, s61")
        a(f"  v_lshrrev_b32 v{T0}, 1, v{Gq}\n  v_lshlrev_b32 v{T0}, 8, v{T0}\n  v_lshl_add_u32 v{T0}, v{N}, 4, v{T0}")
        a(f"  v_and_b32 v{T1}, 1, v{Gq}\n  v_lshl_add_u32 v{T0}, v{T1}, 3, v{T0}\n  v_add_u32 v{FL}, s60, v{T0}")
        if cfg.hdiag: self.stamp(8)
        a("  s_waitcnt lgkmcnt(0)")
        if cfg.hdiag: self.stamp(2)
        srd(a, R_WS, P_WS, WS_BYTES)
        a(f"  s_cmp_eq_u32 s{S_WAVE}, 1\n  s_cbranch_scc1 L_h1a")
        a(f"  s_cmp_eq_u32 s{S_WAVE}, 0\n  s_cbranch_scc1 L_h0a")
        a("  s_branch L_hb1")
        a("L_h1a:")
        a(f"  buffer_load_dword v9, v{ZERO}, {sr(R_WS)}, 0 offen offset:{NONCE_OFF} sc1")
        a(f"  v_mov_b32 v{T0}, -1\n  v_mov_b32 v{T0+1}, -1\n  v_mov_b32 v{T0+2}, -1\n  v_mov_b32 v{T0+3}, -1")
        a(f"  s_lshl_b32 s60, s{S_IDX}, 9\n  s_add_u32 s62, s60, {RQ_OFF}\n  s_add_u32 s63, s60, {RQK_OFF}\n  s_add_u32 s61, s60, {RCTX_OFF}")
        a("  s_mov_b32 s64, -1\n  s_mov_b32 s65, 0\n  s_mov_b64 exec, s[64:65]")
        for r in ("s62", "s63", "s61"): a(f"  buffer_store_dwordx4 {vr(T0)}, v{L16}, {sr(R_WS)}, {r} offen sc1")
        a("  s_mov_b64 exec, -1")
        srd(a, R_B, P_WQ, W_BYTES)
        for k in range(12):
            a(f"  s_mov_b32 m0, {H_WQI + k*1024}\n  s_mov_b32 s62, {k*32*768}\n  buffer_load_dwordx4 v{DS}, {sr(R_B)}, s62 offen{' nt' if cfg.hnt else ''} lds")
        a(f"  s_waitcnt vmcnt(12)\n  v_add_u32 v9, 1, v9\n  s_lshl_b32 s62, s{S_IDX}, 7\n  s_add_u32 s62, s62, {FLAG_OFF}\n  s_mov_b64 exec, 1")
        a(f"  buffer_store_dword v9, v{ZERO}, {sr(R_WS)}, s62 offen sc1\n  s_mov_b64 exec, -1")
        a("  s_waitcnt vmcnt(1)\n  s_branch L_hb1")
        a("L_h0a:")
        srd(a, R_A, P_Q, Q_BYTES)
        a("  s_mov_b32 s60, 0")
        self.img_dma(R_A, H_QI, 60, VS0, VS1)
        a(f"  buffer_load_dword v15, v{ZERO}, {sr(R_WS)}, 0 offen offset:{NONCE_OFF} sc1")
        a("  s_waitcnt vmcnt(0)\n  s_branch L_hb1")
        a("L_hb1:")
        self.stamp(7)
        srd(a, R_DBG, P_DBG, 256); srd(a, R_A, P_Q, Q_BYTES); srd(a, R_D, P_WV, W_BYTES); srd(a, R_F, P_OUT, Q_BYTES)
        a(f"  v_and_b32 v{T0}, 7, v{N}\n  v_lshlrev_b32 v{T0}, 1, v{T0}\n  v_lshlrev_b32 v{T1}, 8, v{N}")
        for m in range(4):
            a(f"  v_add_u32 v{T2}, {4*m}, v{Gq}\n  v_xor_b32 v{T2}, v{T2}, v{T0}\n  v_lshl_add_u32 v{IA+m}, v{T2}, 4, v{T1}")
        a(f"  v_lshrrev_b32 v{T0}, 2, v{N}\n  v_lshl_add_u32 v{T0}, v{Gq}, 3, v{T0}\n  v_lshlrev_b32 v{T0}, 5, v{T0}")
        a(f"  v_and_b32 v{T1}, 3, v{N}\n  v_lshl_add_u32 v{TA}, v{T1}, 3, v{T0}")
        for i in range(4): a(f"  v_mov_b32 v{ONES+i}, 0x3f803f80")
        a("  s_barrier")
        self.stamp(1)
        a(f"  s_cmp_eq_u32 s{S_WAVE}, 0\n  s_cbranch_scc1 L_h0b")
        a(f"  s_cmp_eq_u32 s{S_WAVE}, 2\n  s_cbranch_scc0 L_hb1c")
        srd(a, R_C, P_WK, W_BYTES)
        a(f"  s_mul_i32 s60, s{S_IDX}, {16*768}")
        self.img_dma(R_C, H_WKI, 60, VS0, VS1)
        a("  s_waitcnt vmcnt(0)")
        a("L_hb1c:\n  s_barrier")
        a("  s_branch L_hb2")
        a("L_h0b:")
        a(f"  v_add_u32 v15, 1, v15")
        self.flag_addr(T3)
        a(f"  v_readfirstlane_b32 s{S_NONCE}, v15\n  buffer_load_dword v9, v{T3}, {sr(R_WS)}, 0 offen sc1")
        for j in range(12):
            a(f"  ds_read_b128 {vr(QF+4*j)}, v{IA+(j&3)} offset:{H_QI + (j>>2)*4096}")
        def tr(j):
            a(f"  ds_read_b64_tr_b16 {vr(TR+4*j,2)}, v{TA} offset:{H_WQI + j*1024}")
            a(f"  ds_read_b64_tr_b16 {vr(TR+4*j+2,2)}, v{TA} offset:{H_WQI + j*1024 + 128}")
        tr(0)
        a("  s_waitcnt lgkmcnt(2)")
        for j in range(12):
            if j + 1 < 12: tr(j + 1)
            for i in (0, 1): a(f"  v_dot2_f32_bf16 v{ST+i}, v{QF+4*j+i}, v{QF+4*j+i}, {'0' if j == 0 else 'v%d' % (ST+i)}")
            a(f"  v_mfma_f32_16x16x32_bf16 {vr(D3)}, {vr(ONES)}, {vr(QF+4*j)}, {'0' if j == 0 else vr(D3)}")
            for i in (2, 3): a(f"  v_dot2_f32_bf16 v{ST+i}, v{QF+4*j+i}, v{QF+4*j+i}, {'0' if j == 0 else 'v%d' % (ST+i)}")
            a(f"  s_waitcnt lgkmcnt({2 if j + 1 < 12 else 0})")
            a(f"  v_mfma_f32_16x16x32_bf16 {vr(D1)}, {vr(TR+4*j)}, {vr(QF+4*j)}, {'0' if j == 0 else vr(D1)}")
            a(f"  v_mfma_f32_16x16x32_bf16 {vr(D2)}, {vr(TR+4*j)}, {vr(ONES)}, {'0' if j == 0 else vr(D2)}")
        self.pk("v_pk_add_f32", ST, ST, ST + 2)
        a(f"  v_add_f32 v{ST}, v{ST}, v{ST+1}")
        self.allred_g(ST, T0, "v_add_f32")
        inv = f32(1.0 / 384.0)
        a(f"  v_mul_f32 v{D3}, {inv}, v{D3}\n  v_mul_f32 v{ST}, {inv}, v{ST}\n  v_fma_f32 v{ST}, -v{D3}, v{D3}, v{ST}")
        a(f"  v_max_f32 v{ST}, 0, v{ST}\n  v_add_f32 v{ST}, {f32(1e-5)}, v{ST}\n  v_rsq_f32 v{ST}, v{ST}")
        for r in range(4): a(f"  v_fma_f32 v{D1+r}, -v{D3}, v{D2+r}, v{D1+r}")
        for r in range(4): a(f"  v_mul_f32 v{D1+r}, v{ST}, v{D1+r}")
        a(f"  v_cvt_pk_bf16_f32 v{D2}, v{D1}, v{D1+1}\n  v_cvt_pk_bf16_f32 v{D2+1}, v{D1+2}, v{D1+3}")
        a(f"  v_min_u32 v{D2}, -2, v{D2}\n  v_min_u32 v{D2+1}, -2, v{D2+1}\n  s_mov_b32 s62, {RQ_OFF}")
        a(f"  buffer_store_dwordx2 {vr(D2,2)}, v{FL}, {sr(R_WS)}, s62 offen sc1")
        self.stamp(2)
        a("  s_barrier")
        for j in range(12):
            a(f"  ds_read_b128 {vr(WKF+4*j)}, v{IA+(j&3)} offset:{H_WKI + (j>>2)*4096}")
        hv = self.lab("haveflags")
        a(f"  s_waitcnt vmcnt(1)\n  v_cmp_ne_u32 vcc, s{S_NONCE}, v9\n  s_cbranch_vccz {hv}")
        self.wait_flags(9, T3)
        a(f"{hv}:\n  s_mov_b32 s62, {RQ_OFF}")
        self.gather_frags(12, AF, L16, 62, T0, "q")
        self.stamp(3)
        a("  s_waitcnt lgkmcnt(0)\n  s_barrier")
        for j in range(12):
            dd = D1 if j % 2 == 0 else D2
            a(f"  v_mfma_f32_16x16x32_bf16 {vr(dd)}, {vr(WKF+4*j)}, {vr(AF+4*j)}, {'0' if j < 2 else vr(dd)}")
        sc = f32(384 ** -0.5 * LOG2E)
        for r in range(4): a(f"  v_add_f32 v{D1+r}, v{D1+r}, v{D2+r}")
        for r in range(4): a(f"  v_mul_f32 v{D1+r}, {sc}, v{D1+r}")
        a(f"  v_cvt_pk_bf16_f32 v{D2}, v{D1}, v{D1+1}\n  v_cvt_pk_bf16_f32 v{D2+1}, v{D1+2}, v{D1+3}")
        a(f"  v_min_u32 v{D2}, -2, v{D2}\n  v_min_u32 v{D2+1}, -2, v{D2+1}\n  s_mov_b32 s62, {RQK_OFF}")
        a(f"  buffer_store_dwordx2 {vr(D2,2)}, v{FL}, {sr(R_WS)}, s62 offen sc1")
        self.stamp(4)
        a("  s_branch L_hwvo")
        a("L_hb2:\n  s_waitcnt vmcnt(0)\n  s_barrier")
        a("L_hwvo:")
        a(f"  s_cmp_eq_u32 s{S_WAVE}, 3\n  s_cbranch_scc0 L_hwv2")
        srd(a, R_E, P_WO, W_BYTES)
        for k in range(12):
            a(f"  s_mov_b32 m0, {H_WOI + k*1024}\n  s_mov_b32 s62, {k*32*768}\n  buffer_load_dwordx4 v{DS}, {sr(R_E)}, s62 offen{' nt' if cfg.hnt else ''} lds")
        a("L_hwv2:")
        a(f"  s_mul_i32 s60, s{S_WAVE}, {48*768}\n  s_mul_i32 s61, s{S_WAVE}, 12288\n  s_add_u32 s61, s61, {H_WV}")
        for th in range(3):
            for q4 in range(4): self.img_dma1(R_D, 0, 60, VS0, VS1, th, q4, ldsreg=61)
        a("  s_waitcnt vmcnt(12)\n  s_barrier")
        for j in range(12):
            a(f"  ds_read_b64_tr_b16 {vr(TR+4*j,2)}, v{TA} offset:{H_WOI + j*1024}")
            a(f"  ds_read_b64_tr_b16 {vr(TR+4*j+2,2)}, v{TA} offset:{H_WOI + j*1024 + 128}")
            if j == 6: a("  s_waitcnt lgkmcnt(0)")
        for m in range(4): a(f"  v_add_u32 v{IA+m}, s61, v{IA+m}")
        a(f"  v_mul_u32_u24 v{T0}, 784, v{N}\n  v_lshl_add_u32 v{T0}, v{Gq}, 3, v{T0}\n  s_mul_i32 s62, s{S_WAVE}, 96\n  s_add_u32 s62, s62, {H_WT}\n  v_add_u32 v{T3}, s62, v{T0}")
        for tau in range(3):
            if tau < 2: a(f"  s_add_u32 s60, s60, {16*768}")
            for th in range(3):
                a(f"  s_waitcnt vmcnt({8 if tau < 2 else 8 - 4*th})")
                for m in range(4): a(f"  ds_read_b128 {vr(WKF+4*m)}, v{IA+m} offset:{th*4096}")
                a("  s_waitcnt lgkmcnt(0)")
                if tau < 2:
                    for q4 in range(4): self.img_dma1(R_D, 0, 60, VS0, VS1, th, q4, ldsreg=61)
                for m in range(4):
                    j = 4 * th + m
                    a(f"  v_mfma_f32_16x16x32_bf16 {vr(D1)}, {vr(WKF+4*m)}, {vr(TR+4*j)}, {'0' if j == 0 else vr(D1)}")
            a(f"  v_cvt_pk_bf16_f32 v{D2}, v{D1}, v{D1+1}\n  v_cvt_pk_bf16_f32 v{D2+1}, v{D1+2}, v{D1+3}")
            a(f"  ds_write_b64 v{T3}, {vr(D2,2)} offset:{tau*32}")
        a("  s_waitcnt lgkmcnt(0)\n  s_barrier")
        self.stamp(5)
        a(f"  s_cmp_lg_u32 s{S_WAVE}, 0\n  s_cbranch_scc1 L_hdone")
        a(f"  v_mul_u32_u24 v{T0}, 784, v{N}\n  v_lshl_add_u32 v{T0}, v{Gq}, 4, v{T0}\n  v_add_u32 v{T0}, {H_WT}, v{T0}")
        for j in range(12): a(f"  ds_read_b128 {vr(WKF+4*j)}, v{T0} offset:{j*64}")
        a(f"  v_mul_u32_u24 v{T3}, 768, v{N}\n  v_lshl_add_u32 v{T3}, v{Gq}, 3, v{T3}\n  s_lshl_b32 s61, s{S_IDX}, 5")
        a(f"  buffer_load_dwordx2 {vr(QF,2)}, v{T3}, {sr(R_A)}, s61 offen")
        a("  s_waitcnt vmcnt(0) lgkmcnt(0)")
        a(f"  v_lshlrev_b32 v{QF+4}, 16, v{QF}\n  v_and_b32 v{QF+5}, 0xffff0000, v{QF}\n  v_lshlrev_b32 v{QF+6}, 16, v{QF+1}\n  v_and_b32 v{QF+7}, 0xffff0000, v{QF+1}")
        a(f"  v_mul_u32_u24 v{T2}, 768, v{N}\n  v_lshl_add_u32 v{T2}, v{Gq}, 4, v{T2}\n  s_mov_b32 s62, {RCTX_OFF}")
        self.gather_frags(12, AF, T2, 62, T0, "c", rowmajor=True)
        self.stamp(6)
        for j in range(12):
            dd = D1 if j % 2 == 0 else D2
            c1 = vr(QF+4) if j == 0 else ("0" if j == 1 else vr(dd))
            a(f"  v_mfma_f32_16x16x32_bf16 {vr(dd)}, {vr(WKF+4*j)}, {vr(AF+4*j)}, {c1}")
        for h in (0, 2): self.pk("v_pk_add_f32", D1 + h, D1 + h, D2 + h)
        a(f"  v_cvt_pk_bf16_f32 v{D2}, v{D1}, v{D1+1}\n  v_cvt_pk_bf16_f32 v{D2+1}, v{D1+2}, v{D1+3}")
        a(f"  buffer_store_dwordx2 {vr(D2,2)}, v{T3}, {sr(R_F)}, s61 offen")
        nn = self.lab("nononce")
        a(f"  s_cmp_lg_u32 s{S_IDX}, 0\n  s_cbranch_scc1 {nn}")
        a(f"  buffer_store_dword v15, v{ZERO}, {sr(R_WS)}, 0 offen offset:{NONCE_OFF} sc1\n{nn}:")
        a("L_hdone:")
        self.stamp(9); self.stamp_flush((0, 0, 2, (0, 1, 3, 4, 5, 6)))
        a("  s_endpgm")

    def build(self):
        a = self.a
        hdr = open("standalone__detection_seg_dino__vision.s.ref").read().split("\n")
        for line in hdr:
            if line.startswith("; @launch"): break
            a(line)
        a("; @" + f"launch grid=(256,1,1) block=(512,1,1) lds={LDS_BYTES}")
        a('.amdgcn_target "amdgcn-amd-amdhsa--gfx950"\n.text')
        a(f".globl {KNAME}\n.p2align 8\n.type {KNAME},@function\n{KNAME}:")
        n0 = len(a.L)
        self.prologue(); self.streamer(); self.helper()
        a("L_end:\n  s_endpgm\nL_code_end:")
        body, added = hazard.fix(a.L[n0:])
        a.L = a.L[:n0] + body
        a('.section .rodata,"a"\n.p2align 6')
        a(f".amdhsa_kernel {KNAME}")
        a("  .amdhsa_next_free_vgpr 256\n  .amdhsa_next_free_sgpr 102\n  .amdhsa_accum_offset 256")
        a("  .amdhsa_group_segment_fixed_size 0\n  .amdhsa_kernarg_size 80\n  .amdhsa_user_sgpr_count 2")
        a("  .amdhsa_user_sgpr_kernarg_segment_ptr 1\n  .amdhsa_system_sgpr_workgroup_id_x 1")
        a("  .amdhsa_float_denorm_mode_32 3")
        a(".end_amdhsa_kernel")
        return a.text(), added

def generate(path, **kw):
    cfg = Cfg()
    for k, v in kw.items(): setattr(cfg, k, v)
    text, added = G(cfg).build()
    open(path, "w").write(text)
    return added

if __name__ == "__main__":
    path = sys.argv[1] if len(sys.argv) > 1 else "standalone__detection_seg_dino__vision.s"
    kw = {}
    for x in sys.argv[2:]:
        k, v = x.split("="); kw[k] = eval(v)
    print("nops added:", generate(path, **kw))
```

```python
import sys, struct
from asmlib import Asm
import hazard

KNAME = "standalone__detection_seg_dino__vision_kernel"

NH, NS, NPAIR = 24, 228, 9
F0_BYTES, F1_BYTES, W_BYTES, Q_BYTES = 50331648, 12582912, 294912, 12288
WS_BYTES = 268435456

NONCE_OFF = 0
HINT_OFF = 1024
RQ_OFF, RQK_OFF, RCTX_OFF = 4096, 20480, 36864
GO_OFF = 53248
FLAG_OFF = 49152
LSE_OFF = 65536
PART_OFF = 131072
PART_STRIDE = NS * 128
STAMP_OFF = 8 << 20

SLOT = 12288
STG = 12 * SLOT
TOP = 13 * SLOT
STAT = TOP
NONCE_LDS = TOP + 2304
FLAG_LDS = TOP + 2308
QS_LDS = TOP + 2320
MXW = TOP + 2400
MX = TOP + 2560
RED = TOP + 3072
RED2 = STG + 8192
LDS_BYTES = 163840
H_QI, H_WKI, H_WQI, H_WOI, H_WT, H_WV = 0, 12288, 24576, 36864, 49152, 65536
H_QS = 61952

LAG_LIMIT = 40.0
KEYC = 0x9e3779b1
LOG2E = 1.4426950408889634
def f32(x): return "0x%08x" % struct.unpack("<I", struct.pack("<f", x))[0]

class Cfg:
    nt = True
    stamp = False
    depth = 5
    hx0 = 0
    hnx = 4
    hint = True
    codepf = True
    nostream = False
    dbgstamp = False
    pfrows = 4
    cut = 0
    lite = False
    trig_a = 2
    trig_b = 4
    qsleep = 4
    c1sleep = 16
    lag = True
    prefuse = True
    late = False
    sched = 1
    streamonly = False
    rsleep = 0
    csleep = 0
    ext7 = 0
    ext8 = 0
    hdiag = False
    gdiag = False
    rdiag = False
    bdiag_sb = 4
    bdiag = False
    selpoll = True
    hnt = False

S_WAVE = 3
P_Q, P_F0, P_F1, P_WQ, P_WK, P_WV, P_WO, P_OUT, P_DBG, P_WS = 4, 6, 8, 10, 12, 14, 16, 18, 20, 22
R_A, R_B, R_WS, R_DBG, R_C, R_D, R_E, R_F = 24, 28, 32, 36, 40, 44, 48, 52
S_IDX, S_ONELO, S_ONEHI = 56, 57, 58
S_K, S_QBASE, S_LINK = 66, 67, 68
S_NONCE, S_SPIN = 70, 71
S_TI, S_TB, S_PB, S_BIAS, S_T, S_P0, S_SB, S_W0, S_NP, S_PVB, S_LAST = 72, 73, 74, 75, 76, 77, 78, 79, 80, 81, 59
S_SST = 48
S_STA, S_PAIR, S_POFF = 49, 52, 53
S_LINK2 = 54
S_QMASK = 50
SETA, SETB = 40, 44
STAMP0 = 82
SPIN_CAP = 200000
import os
if os.environ.get('CAP'): SPIN_CAP = int(os.environ['CAP'])

def srd(a, s, ptr, nbytes):
    a(f"  s_mov_b32 s{s}, s{ptr}\n  s_mov_b32 s{s+1}, s{ptr+1}\n  s_mov_b32 s{s+2}, {nbytes}\n  s_mov_b32 s{s+3}, 0x20000")
def vr(b, n=4): return f"v[{b}:{b+n-1}]"
def sr(b, n=4): return f"s[{b}:{b+n-1}]"

class G:
    def __init__(self, cfg):
        self.cfg = cfg; self.a = Asm(); self.uid = 0
    def lab(self, name):
        self.uid += 1
        return f"L_{name}_{self.uid}"
    def stamp(self, i):
        if self.cfg.lite and i not in (0, 9): return
        if self.cfg.stamp and not self.cfg.bdiag:
            self.a(f"  s_memrealtime s[{STAMP0+2*i}:{STAMP0+2*i+1}]\n  s_waitcnt lgkmcnt(0)")
    def cstamp(self, i):
        if self.cfg.bdiag:
            l = self.lab("cs")
            self.a(f"  s_cmp_lg_u32 s{S_SB}, {self.cfg.bdiag_sb}\n  s_cbranch_scc1 {l}\n  s_memtime s[{STAMP0+2*i}:{STAMP0+2*i+1}]\n  s_waitcnt lgkmcnt(0)\n{l}:")
    def stamp_init(self):
        if self.cfg.stamp:
            for i in range(20): self.a(f"  s_mov_b32 s{STAMP0+i}, 0")
    def stamp_flush(self, dbg=None):
        if not self.cfg.stamp: return
        a = self.a
        if self.cfg.dbgstamp and dbg:
            who, wave, first, which = dbg
            sk = self.lab("nodbg")
            a(f"  s_cmp_lg_u32 s{S_IDX}, {who}\n  s_cbranch_scc1 {sk}\n  s_cmp_lg_u32 s{S_WAVE}, {wave}\n  s_cbranch_scc1 {sk}")
            srd(a, R_DBG, P_DBG, 256)
            a("  v_mov_b32 v1, 0")
            for i, st in enumerate(which):
                a(f"  v_mov_b32 v2, s{STAMP0+2*st}\n  buffer_store_dword v2, v1, {sr(R_DBG)}, 0 offen offset:{4*(first+i)}\n  s_nop 0")
            a(f"{sk}:")
        if self.cfg.dbgstamp: return
        if self.cfg.lite:
            if dbg[0] != 0: return
            sk = self.lab("nolite")
            a(f"  s_cmp_lg_u32 s{S_WAVE}, 0\n  s_cbranch_scc1 {sk}")
            a("  s_lshl_b32 s60, s2, 3\n  s_lshl_b32 s60, s60, 6")
            a(f"  s_add_u32 s60, s60, {STAMP_OFF}\n  v_mov_b32 v1, 0\n  v_mov_b32 v2, s{STAMP0}\n  v_mov_b32 v3, s{STAMP0+18}")
            a(f"  buffer_store_dword v2, v1, {sr(R_WS)}, s60 offen\n  buffer_store_dword v3, v1, {sr(R_WS)}, s60 offen offset:36\n{sk}:")
            return
        a("  s_lshl_b32 s60, s2, 3\n  s_add_u32 s60, s60, s3\n  s_lshl_b32 s60, s60, 6")
        a(f"  s_add_u32 s60, s60, {STAMP_OFF}\n  v_mov_b32 v1, 0")
        for i in range(10):
            a(f"  v_mov_b32 v2, s{STAMP0+2*i}\n  buffer_store_dword v2, v1, {sr(R_WS)}, s60 offen offset:{4*i}\n  s_nop 0")

    def allred_g(self, x, t, op):
        a = self.a
        a(f"  v_mov_b32 v{t}, v{x}\n  v_permlane16_swap_b32 v{t}, v{x}\n  {op} v{x}, v{t}, v{x}")
        a(f"  v_mov_b32 v{t}, v{x}\n  v_permlane32_swap_b32 v{t}, v{x}\n  {op} v{x}, v{t}, v{x}")
    def valid_check(self, base, n, t, retry):
        a = self.a
        a(f"  v_max3_u32 v{t}, v{base}, v{base+1}, v{base+2}")
        h = n // 2
        a(f"  v_max3_u32 v{t+1}, v{base+h}, v{base+h+1}, v{base+h+2}")
        i, k = 3, h + 3
        while i < h or k < n:
            if i + 1 < h: a(f"  v_max3_u32 v{t}, v{t}, v{base+i}, v{base+i+1}"); i += 2
            elif i < h: a(f"  v_max_u32 v{t}, v{t}, v{base+i}"); i += 1
            if k + 1 < n: a(f"  v_max3_u32 v{t+1}, v{t+1}, v{base+k}, v{base+k+1}"); k += 2
            elif k < n: a(f"  v_max_u32 v{t+1}, v{t+1}, v{base+k}"); k += 1
        a(f"  v_max_u32 v{t}, v{t}, v{t+1}\n  v_cmp_eq_u32 vcc, -1, v{t}\n  s_cbranch_vccnz {retry}")
    def spin_guard(self, done):
        self.a(f"  s_add_u32 s{S_SPIN}, s{S_SPIN}, 1\n  s_cmp_gt_u32 s{S_SPIN}, {SPIN_CAP}\n  s_cbranch_scc1 {done}")
    def flag_addr(self, va):
        self.a(f"  v_min_u32 v{va}, {NH-1}, v0\n  v_lshlrev_b32 v{va}, 7, v{va}\n  v_add_u32 v{va}, {FLAG_OFF}, v{va}")
    def wait_flags(self, vd, va, first_issued=False):
        a = self.a
        lp, ck, dn = self.lab("flg"), self.lab("flgc"), self.lab("flgd")
        a(f"  s_mov_b32 s{S_SPIN}, 0")
        if first_issued: a(f"  s_branch {ck}")
        a(f"{lp}:\n  buffer_load_dword v{vd}, v{va}, {sr(R_WS)}, 0 offen sc1")
        self.spin_guard(dn)
        a(f"{ck}:\n  s_waitcnt vmcnt(0)\n  v_cmp_ne_u32 vcc, s{S_NONCE}, v{vd}\n  s_cbranch_vccnz {lp}")
        a(f"{dn}:\n  s_waitcnt vmcnt(0)")
    def gather_frags(self, nfr, dst, vaddr, off0, t, name, rowmajor=False, sleep=0):
        a = self.a
        lp, dn, l0 = self.lab(name), self.lab(name + "d"), self.lab(name + "0")
        a(f"  s_add_u32 s63, s{off0}, 4096\n  s_add_u32 s64, s{off0}, 8192\n  s_mov_b32 s{S_SPIN}, 0")
        if sleep: a(f"  s_branch {l0}\n{lp}:\n  s_sleep {sleep}\n{l0}:")
        else: a(f"{lp}:")
        for j in range(nfr):
            so = (f"s{off0}", "s63", "s64")[j >> 2]
            if rowmajor: a(f"  buffer_load_dwordx4 {vr(dst+4*j)}, v{vaddr}, {sr(R_WS)}, s{off0} offen offset:{j*64} sc1")
            else: a(f"  buffer_load_dwordx4 {vr(dst+4*j)}, v{vaddr}, {sr(R_WS)}, {so} offen offset:{(j&3)*1024} sc1")
        self.spin_guard(dn)
        a("  s_waitcnt vmcnt(0)")
        self.valid_check(dst, 4 * nfr, t, lp)
        a(f"{dn}:\n  s_waitcnt vmcnt(0)")

    def prologue(self):
        a = self.a; cfg = self.cfg
        a("  s_cmp_ge_u32 s2, 256\n  s_cbranch_scc1 L_end")
        a("  s_load_dwordx16 s[4:19], s[0:1], 0\n  s_load_dwordx4 s[20:23], s[0:1], 64")
        if cfg.codepf:
            l = self.lab("pc")
            a(f"  s_cmp_ge_u32 s2, {8*cfg.pfrows}\n  s_cbranch_scc1 L_nopf")
            a(f"  s_getpc_b64 s[60:61]\n{l}:\n  s_sub_u32 s60, s60, {l}-{KNAME}\n  s_subb_u32 s61, s61, 0")
            a(f"  s_bfe_u32 s62, s2, 0x20003\n  s_lshl_b32 s62, s62, 13\n  v_lshl_add_u32 v246, v0, 4, s62")
            a(f"  v_min_u32 v72, L_code_end-{KNAME}-16, v246\n  global_load_dwordx4 v[168:171], v246, s[60:61]")
            a("L_nopf:")
        a("  v_lshrrev_b32 v1, 6, v0\n  v_and_b32 v0, 63, v0")
        a(f"  v_readfirstlane_b32 s{S_WAVE}, v1")
        a(f"  s_mov_b32 s{S_ONELO}, 0x00003f80\n  s_mov_b32 s{S_ONEHI}, 0x3f800000")
        self.stamp_init(); self.stamp(0)
        rows = NH // cfg.hnx
        a(f"  s_and_b32 s60, s2, 7\n  s_lshr_b32 s61, s2, 3\n  s_sub_u32 s62, s60, {cfg.hx0}")
        a(f"  s_cmp_lt_u32 s61, {rows}\n  s_cbranch_scc0 L_late")
        a(f"  s_cmp_lt_u32 s62, {cfg.hnx}\n  s_cbranch_scc0 L_early")
        a(f"  s_mul_i32 s{S_IDX}, s61, {cfg.hnx}\n  s_add_u32 s{S_IDX}, s{S_IDX}, s62\n  s_branch L_helper")
        a("L_early:")
        a(f"  s_cmp_lt_u32 s60, {cfg.hx0}\n  s_cselect_b32 s62, 0, {cfg.hnx}\n  s_sub_u32 s62, s60, s62")
        a(f"  s_mul_i32 s{S_IDX}, s61, {8-cfg.hnx}\n  s_add_u32 s{S_IDX}, s{S_IDX}, s62\n  s_branch L_stream")
        a(f"L_late:\n  s_sub_u32 s{S_IDX}, s2, {NH}")
        a(f"  s_cmp_eq_u32 s{S_IDX}, {NS}\n  s_cbranch_scc1 L_collect")
        a(f"  s_cmp_ge_u32 s{S_IDX}, {NS}\n  s_cbranch_scc1 L_end")
        a("L_stream:")
        if cfg.nostream: a("  s_branch L_end")

    def code_prefetch(self, vt, vd):
        if not self.cfg.codepf: return
        a = self.a
        l = self.lab("pc")
        a(f"  s_getpc_b64 s[60:61]\n{l}:")
        a(f"  s_sub_u32 s60, s60, {l}-{KNAME}\n  s_subb_u32 s61, s61, 0")
        a(f"  s_lshr_b32 s62, s2, 3\n  s_lshl_b32 s62, s62, 10\n  v_lshl_add_u32 v{vt}, v0, 4, s62")
        a(f"  v_min_u32 v{vt}, L_code_end-{KNAME}-16, v{vt}")
        a(f"  global_load_dwordx4 {vr(vd)}, v{vt}, s[60:61]")

    V_OFF1, V_OFF0, V_SA = 2, 3, 255
    V_WA = (4, 5, 253, 254)
    V_RA, V_PA = 6, 10
    V_PADDR, V_MXW, V_MXR = 13, 14, 15
    V_ST = 128
    V_BUF = (16, 36, 56)
    V_PU, V_TMP, V_OUT = 144, 152, 160
    V_LT, V_AT = 76, 78
    V_QK, V_A, V_ACC = 80, 128, 176
    V_S, V_SUM, V_SQ4, V_SQ, V_MU, V_RS, V_LG = 188, 192, 196, 200, 204, 208, 212
    V_ONES = 216
    V_M, V_AL, V_L2, V_AM2, V_QS, V_CINV, V_CEPS, V_BIAS = 220, 222, 224, 226, 228, 230, 232, 234
    V_T0, V_T1, V_T2, V_ONEF = 236, 237, 238, 239
    V_MXV, V_TA, V_L16 = 240, 248, 252
    V_PUB = 196
    V_REDW = 198
    V_STR = 1

    def task_bases(self, st, kconst, kreg=True):
        a = self.a
        if kreg: a(f"  s_add_u32 s62, s{S_K}, {kconst}")
        else: a(f"  s_mov_b32 s62, {kconst}")
        a(f"  s_lshl_b32 s63, s62, 1\n  s_add_u32 s63, s63, s{S_QBASE}")
        a(f"  s_mul_i32 s{st}, s63, 3072\n  s_lshr_b32 s64, s63, 5\n  s_mul_i32 s64, s64, 393216")
        a(f"  s_and_b32 s65, s63, 31\n  s_mul_i32 s65, s65, 6144\n  s_add_u32 s{st+1}, s64, s65")
        a(f"  s_cmp_gt_u32 s62, {NPAIR-1}\n  s_cselect_b32 s{st}, 0x80000000, s{st}\n  s_cselect_b32 s{st+1}, 0x80000000, s{st+1}")
        a(f"  s_add_u32 s{st+2}, s{st+1}, 196608")
    def issue_piece(self, st, par, i):
        a = self.a
        nt = " nt" if self.cfg.nt else ""
        b = self.V_BUF[par] + 4 * i
        if i == 0:
            a(f"  buffer_load_dwordx4 {vr(b)}, v{self.V_OFF1}, {sr(R_B)}, s{st} offen{nt}")
        else:
            t = i - 1
            off = " offset:768" if t & 1 else ""
            a(f"  buffer_load_dwordx4 {vr(b)}, v{self.V_OFF0}, {sr(R_A)}, s{st+1+(t>>1)} offen{off}{nt}")

    def fuse_sub(self, par, d, name, mode="roll"):
        a = self.a
        hold, roll = mode == "hold", mode == "roll"
        b = self.V_BUF[par]; u = self.V_PU; t8 = self.V_TMP
        SS, SQ, R, U = self.V_ST, self.V_ST + 4, self.V_ST + 8, self.V_ST + 12
        a0 = d // 5
        a(f"{name}:")
        if roll:
            a(f"  s_mov_b32 s{SETA}, s{SETB}\n  s_mov_b32 s{SETA+1}, s{SETB+1}\n  s_mov_b32 s{SETA+2}, s{SETB+2}")
            self.task_bases(SETB, a0 + 1)
        def nxt(i):
            if not roll: return
            aa, pi = (i + d) // 5, (i + d) % 5
            self.issue_piece(SETA if aa == a0 else SETB, par ^ (aa & 1), pi)
        def dpp(dst, src, ctrl, bank):
            a(f"  v_add_f32_dpp v{dst}, v{src}, v{src} {ctrl} row_mask:0xf bank_mask:{bank:#x}")
        a(f"  s_waitcnt vmcnt({d-1})")
        for i in range(4):
            a(f"  v_lshlrev_b32 v{u+2*i}, 16, v{b+i}\n  v_and_b32 v{u+2*i+1}, 0xffff0000, v{b+i}")
        nxt(0)
        for t in range(4):
            c = b + 4 + 4 * t; o = c if hold else self.V_OUT + 4 * (t & 1)
            a(f"  s_waitcnt vmcnt({d-1 if roll else d-2-t})")
            for i in range(4):
                a(f"  v_dot2_f32_bf16 v{t8+2*i}, v{c+i}, s{S_ONELO}, v{u+2*i}")
                a(f"  v_dot2_f32_bf16 v{t8+2*i+1}, v{c+i}, s{S_ONEHI}, v{u+2*i+1}")
            nxt(t + 1)
            for i in range(4):
                a(f"  v_cvt_pk_bf16_f32 v{o+i}, v{t8+2*i}, v{t8+2*i+1}")
            if not hold: a(f"  ds_write_b128 v{self.V_WA[t]}, {vr(o)} offset:{t*768}")
            if t > 0: dpp(R + t - 1, SS + t - 1, "row_ror:8", 0x3)
            for i in range(4):
                a(f"  v_dot2_f32_bf16 v{SS+t}, v{o+i}, v{self.V_ONES}, {'0' if i == 0 else 'v%d' % (SS+t)}")
                a(f"  v_dot2_f32_bf16 v{SQ+t}, v{o+i}, v{o+i}, {'0' if i == 0 else 'v%d' % (SQ+t)}")
            if t > 0: dpp(R + t - 1, SQ + t - 1, "row_ror:8", 0xc)
        WA = self.V_WA
        if hold: a("  s_mov_b32 s62, 0")
        else: a(f"  s_mov_b32 s62, 24576\n  s_cmp_eq_u32 s{S_K}, 5\n  s_cselect_b32 s62, {(-5*24576) & 0xffffffff:#x}, s62")
        dpp(U, R, "row_half_mirror", 0x5)
        dpp(R + 3, SS + 3, "row_ror:8", 0x3)
        a(f"  v_add_u32 v{WA[0]}, s62, v{WA[0]}")
        dpp(U, R + 1, "row_half_mirror", 0xa)
        dpp(R + 3, SQ + 3, "row_ror:8", 0xc)
        dpp(U + 1, R + 2, "row_half_mirror", 0x5)
        a(f"  v_add_u32 v{WA[1]}, s62, v{WA[1]}")
        dpp(U, U, "quad_perm:[1,0,3,2]", 0xf)
        dpp(U + 1, R + 3, "row_half_mirror", 0xa)
        a(f"  v_add_u32 v{WA[2]}, s62, v{WA[2]}")
        dpp(U, U, "quad_perm:[2,3,0,1]", 0xf)
        dpp(U + 1, U + 1, "quad_perm:[1,0,3,2]", 0xf)
        a(f"  v_add_u32 v{WA[3]}, s62, v{WA[3]}\n  s_mov_b64 exec, s[{S_QMASK}:{S_QMASK+1}]\n  ds_add_f32 v{self.V_SA}, v{U}\n  s_mov_b64 exec, -1")
        dpp(U + 1, U + 1, "quad_perm:[2,3,0,1]", 0xf)
        a(f"  s_add_u32 s{S_K}, s{S_K}, 1")
        a(f"  s_mov_b64 exec, s[{S_QMASK}:{S_QMASK+1}]\n  ds_add_f32 v{self.V_SA}, v{U+1} offset:8\n  s_mov_b64 exec, -1")
        a(f"  v_add_u32 v{self.V_SA}, 256, v{self.V_SA}")
        a(f"  s_setpc_b64 s[{S_LINK}:{S_LINK+1}]")

    def stream_consts(self):
        a = self.a
        a("  v_and_b32 v240, 15, v0\n  v_lshrrev_b32 v241, 4, v0")
        a("  v_and_b32 v242, 7, v240\n  v_lshlrev_b32 v242, 1, v242\n  v_mul_u32_u24 v243, 768, v240")
        for m in range(4):
            a(f"  v_add_u32 v244, {4*m}, v241\n  v_xor_b32 v244, v244, v242\n  v_lshl_add_u32 v{self.V_RA+m}, v244, 4, v243")
        a("  v_lshrrev_b32 v242, 2, v240\n  v_lshl_add_u32 v242, v241, 2, v242\n  v_mul_u32_u24 v243, 768, v242")
        a("  v_and_b32 v242, 7, v242\n  v_lshlrev_b32 v242, 1, v242")
        a("  v_and_b32 v244, 3, v240\n  v_lshrrev_b32 v245, 1, v244\n  v_and_b32 v244, 1, v244\n  v_lshl_add_u32 v243, v244, 3, v243")
        for tau in range(3):
            a(f"  s_mul_i32 s62, s{S_WAVE}, 3\n  s_add_u32 s62, s62, {tau}")
            a("  s_lshl_b32 s63, s62, 1\n  s_and_b32 s63, s63, 14\n  s_lshr_b32 s62, s62, 3\n  s_lshl_b32 s62, s62, 8")
            a(f"  v_xor_b32 v244, s63, v242\n  v_or_b32 v244, v244, v245\n  v_lshl_add_u32 v244, v244, 4, v243\n  v_add_u32 v{self.V_PA+tau}, s62, v244")
        a(f"  v_lshlrev_b32 v{self.V_L16}, 4, v0\n  v_add_u32 v{self.V_PADDR}, {STG}, v{self.V_L16}\n  v_lshlrev_b32 v{self.V_STR}, 4, v241")
        a(f"  v_lshlrev_b32 v244, 5, v240\n  v_add_u32 v{self.V_MXR}, {MX}, v244")
        a(f"  s_lshl_b32 s62, s{S_WAVE}, 2\n  v_add_u32 v{self.V_MXW}, s62, v{self.V_MXR}")
        for i in range(4): a(f"  v_mov_b32 v{self.V_ONES+i}, 0x3f803f80")
        a(f"  v_mov_b32 v{self.V_ONEF}, 1.0\n  v_mov_b32 v{self.V_CINV}, {f32(1/384)}\n  v_mov_b32 v{self.V_CEPS}, {f32(1e-5)}")
        for i in range(12): a(f"  v_mov_b32 v{self.V_ACC+i}, 0")
        a(f"  v_mov_b32 v{self.V_M}, 0xff800000")
        for r in (self.V_L2, self.V_L2+1, self.V_AM2, self.V_AM2+1, self.V_M+1, self.V_AL+1, self.V_QS+1, self.V_CINV+1, self.V_CEPS+1, self.V_BIAS+1):
            a(f"  v_mov_b32 v{r}, 0")

    def pk(self, op, d, x, y, z=None, bc=(), neg=()):
        n = 2 if z is None else 3
        ops = [x, y] + ([z] if z is not None else [])
        s = f"  {op} {vr(d,2)}, " + ", ".join(vr(o, 2) for o in ops)
        if bc: s += " op_sel_hi:[" + ",".join("0" if i in bc else "1" for i in range(n)) + "]"
        if neg:
            m = "[" + ",".join("1" if i in neg else "0" for i in range(n)) + "]"
            s += f" neg_lo:{m} neg_hi:{m}"
        self.a(s)

    def red_write(self, l, am, t):
        a = self.a
        a(f"  v_add_f32 v{t}, v{l}, v{l+1}\n  v_add_f32 v{t+1}, v{am}, v{am+1}")
        a(f"  v_permlane16_swap_b32 v{t}, v{t+1}\n  v_add_f32 v{t}, v{t}, v{t+1}")
        a(f"  v_mov_b32 v{t+1}, v{t}\n  v_permlane32_swap_b32 v{t+1}, v{t}\n  v_add_f32 v{t}, v{t}, v{t+1}")
        a(f"  ds_write_b32 v{self.V_REDW}, v{t}")

    def sphase_sub(self):
        a = self.a
        A, QK = self.V_A, self.V_QK
        S, SUM, SQ, MU, RS, LG, T1, T2 = self.V_S, self.V_SUM, self.V_SQ, self.V_MU, self.V_RS, self.V_LG, self.V_T1, self.V_T2
        a("L_sphase:")
        for m in range(4): a(f"  v_add_u32 v{self.V_TA+m}, s{S_TB}, v{self.V_RA+m}")
        a(f"  v_add_u32 v{T1}, s{S_STA}, v{self.V_STR}")
        a(f"  ds_read_b128 {vr(SUM)}, v{T1}\n  ds_read_b128 {vr(SQ)}, v{T1} offset:64")
        for j in range(12): a(f"  ds_read_b128 {vr(A+4*j)}, v{self.V_TA+(j&3)} offset:{(j>>2)*256}")
        a(f"  s_cmp_lt_u32 s{S_PAIR}, 2048\n  s_cselect_b32 s{S_BIAS}, 0, {f32(-1e30)}")
        a(f"  v_mov_b32 v{self.V_BIAS}, s{S_BIAS}\n  v_add_u32 v{T2}, s{S_POFF}, v{self.V_PADDR}")
        a("  s_waitcnt lgkmcnt(12)")
        stat = []
        for h in (0, 2): stat.append(lambda h=h: self.pk("v_pk_mul_f32", MU + h, SUM + h, self.V_CINV, bc=(1,)))
        for h in (0, 2): stat.append(lambda h=h: self.pk("v_pk_fma_f32", RS + h, SQ + h, self.V_CINV, self.V_CEPS, bc=(1, 2)))
        for h in (0, 2): stat.append(lambda h=h: self.pk("v_pk_fma_f32", RS + h, MU + h, MU + h, RS + h, neg=(0,)))
        for r in range(4): stat.append(lambda r=r: a(f"  v_max_f32 v{RS+r}, v{self.V_CEPS}, v{RS+r}"))
        for r in range(4): stat.append(lambda r=r: a(f"  v_rsq_f32 v{RS+r}, v{RS+r}"))
        for h in (0, 2): stat.append(lambda h=h: self.pk("v_pk_mul_f32", SUM + h, MU + h, self.V_QS, bc=(1,)))
        for j in range(12):
            a(f"  s_waitcnt lgkmcnt({11-j})")
            a(f"  v_mfma_f32_16x16x32_bf16 {vr(S)}, {vr(A+4*j)}, {vr(QK+4*j)}, {'0' if j == 0 else vr(S)}")
            for _ in range(2):
                if stat: stat.pop(0)()
        for h in (0, 2): self.pk("v_pk_add_f32", LG + h, S + h, SUM + h, neg=(1,))
        for h in (0, 2): self.pk("v_pk_fma_f32", LG + h, LG + h, RS + h, self.V_BIAS, bc=(2,))
        a(f"  s_setpc_b64 s[{S_LINK2}:{S_LINK2+1}]")

    def sp_sub(self):
        a = self.a
        MU, RS, LG, M, T0, T1, T2, MXV = self.V_MU, self.V_RS, self.V_LG, self.V_M, self.V_T0, self.V_T1, self.V_T2, self.V_MXV
        PT, LT, AT = MXV, self.V_LT, self.V_AT
        a("L_sp:")
        a(f"  s_call_b64 s[{S_LINK2}:{S_LINK2+1}], L_sphase")
        for h in (0, 2): self.pk("v_pk_add_f32", PT + h, LG + h, M, bc=(1,), neg=(1,))
        a(f"  v_max3_f32 v{T0}, v{PT}, v{PT+1}, v{PT+2}\n  v_max_f32 v{T0}, v{T0}, v{PT+3}")
        for r in range(4): a(f"  v_exp_f32 v{PT+r}, v{PT+r}")
        a(f"  v_cmp_lt_f32 vcc, {f32(LAG_LIMIT)}, v{T0}")
        self.pk("v_pk_add_f32", LT, LT, PT); self.pk("v_pk_add_f32", LT, LT, PT + 2)
        for h in (0, 2): self.pk("v_pk_mul_f32", PT + h, PT + h, RS + h)
        a(f"  v_cvt_pk_bf16_f32 v{MXV+4}, v{PT}, v{PT+1}\n  v_cvt_pk_bf16_f32 v{MXV+5}, v{PT+2}, v{PT+3}")
        a(f"  ds_write_b64 v{T2}, {vr(MXV+4,2)}")
        for h in (0, 2): self.pk("v_pk_fma_f32", AT, PT + h, MU + h, AT)
        a(f"  s_cbranch_vccz L_sp_ret\n  v_mov_b32 v{T0}, {FLAG_LDS}\n  v_mov_b32 v{T1}, 1\n  ds_write_b32 v{T0}, v{T1}")
        a(f"L_sp_ret:\n  s_setpc_b64 s[{S_LINK}:{S_LINK+1}]")

    def batch_sub(self):
        a = self.a
        A = self.V_A
        MU, RS, LG = self.V_MU, self.V_RS, self.V_LG
        M, AL, L2, AM2, T0, T1, T2, MXV = self.V_M, self.V_AL, self.V_L2, self.V_AM2, self.V_T0, self.V_T1, self.V_T2, self.V_MXV
        PT = MXV
        a("L_batch:")
        self.cstamp(0)
        a(f"  s_sub_u32 s{S_TI}, s{S_WAVE}, s{S_W0}\n  s_cmp_ge_u32 s{S_TI}, s{S_T}\n  s_cbranch_scc1 L_b_bar2")
        a(f"  s_add_u32 s63, s{S_TI}, s{S_SB}\n  s_mul_i32 s{S_TB}, s63, {SLOT}")
        a(f"  s_lshl_b32 s62, s{S_TI}, 7\n  s_add_u32 s{S_STA}, s62, s{S_SST}")
        a(f"  s_lshr_b32 s62, s{S_TI}, 1\n  s_add_u32 s{S_PAIR}, s62, s{S_PB}")
        a(f"  s_lshl_b32 s62, s62, 10\n  s_and_b32 s63, s{S_TI}, 1\n  s_lshl_b32 s63, s63, 3\n  s_add_u32 s{S_POFF}, s62, s63")
        a(f"  s_call_b64 s[{S_LINK2}:{S_LINK2+1}], L_sphase")
        self.cstamp(1)
        a(f"  v_max3_f32 v{T0}, v{LG}, v{LG+1}, v{LG+2}\n  v_max_f32 v{T0}, v{T0}, v{LG+3}")
        self.allred_g(T0, T1, "v_max_f32")
        a(f"  ds_write_b32 v{self.V_MXW}, v{T0}")
        a("L_b_bar2:\n  s_waitcnt lgkmcnt(0)")
        self.cstamp(2)
        a("  s_barrier")
        self.cstamp(3)
        a(f"  ds_read_b128 {vr(MXV)}, v{self.V_MXR}\n  ds_read_b128 {vr(MXV+4)}, v{self.V_MXR} offset:16")
        a(f"  v_mov_b32 v{T0}, {FLAG_LDS}\n  v_mov_b32 v{T1}, 0\n  ds_write_b32 v{T0}, v{T1}")
        a("  s_waitcnt lgkmcnt(1)")
        a(f"  v_max3_f32 v{T0}, v{MXV}, v{MXV+1}, v{MXV+2}\n  v_max3_f32 v{T1}, v{MXV+3}, v{MXV+4}, v{MXV+5}")
        a(f"  v_max3_f32 v{T0}, v{T0}, v{MXV+6}, v{MXV+7}\n  v_max3_f32 v{T0}, v{T0}, v{T1}, v{M}")
        a(f"  v_sub_f32 v{AL}, v{M}, v{T0}\n  v_mov_b32 v{M}, v{T0}\n  v_exp_f32 v{AL}, v{AL}")
        self.cstamp(4)
        a(f"  s_cmp_ge_u32 s{S_TI}, s{S_T}\n  s_cbranch_scc1 L_b_nop")
        for h in (0, 2): self.pk("v_pk_add_f32", PT + h, LG + h, M, bc=(1,), neg=(1,))
        for r in range(4): a(f"  v_exp_f32 v{PT+r}, v{PT+r}")
        self.pk("v_pk_mul_f32", L2, L2, AL, bc=(1,)); self.pk("v_pk_mul_f32", AM2, AM2, AL, bc=(1,))
        self.pk("v_pk_add_f32", L2, L2, PT); self.pk("v_pk_add_f32", L2, L2, PT + 2)
        for h in (0, 2): self.pk("v_pk_mul_f32", PT + h, PT + h, RS + h)
        a(f"  v_cvt_pk_bf16_f32 v{MXV+4}, v{PT}, v{PT+1}\n  v_cvt_pk_bf16_f32 v{MXV+5}, v{PT+2}, v{PT+3}")
        a(f"  ds_write_b64 v{T2}, {vr(MXV+4,2)}")
        for h in (0, 2): self.pk("v_pk_fma_f32", AM2, PT + h, MU + h, AM2)
        a("  s_branch L_b_acc")
        a("L_b_nop:")
        self.pk("v_pk_mul_f32", L2, L2, AL, bc=(1,)); self.pk("v_pk_mul_f32", AM2, AM2, AL, bc=(1,))
        a("L_b_acc:")
        for i in range(0, 12, 2): self.pk("v_pk_mul_f32", self.V_ACC + i, self.V_ACC + i, AL, bc=(1,))
        a(f"  s_cmp_eq_u32 s{S_LAST}, 0\n  s_cbranch_scc1 L_b_bar3")
        self.red_write(L2, AM2, MXV + 6)
        a("L_b_bar3:\n  s_waitcnt lgkmcnt(0)")
        self.cstamp(5)
        a("  s_barrier")
        self.cstamp(6)
        a(f"  s_lshr_b32 s{S_NP}, s{S_T}, 1")
        a(f"  s_mul_i32 s{S_PVB}, s{S_SB}, {SLOT}")
        self.pv_reads(0, S_PVB, 0)
        for k in range(3):
            a(f"  s_cmp_le_u32 s{S_NP}, {k+1}\n  s_cbranch_scc1 L_pvl{k & 1}")
            a(f"  s_add_u32 s{S_PVB}, s{S_PVB}, {2*SLOT}")
            self.pv_reads((k + 1) & 1, S_PVB, (k + 1) * 1024)
            self.pv_mfmas(k & 1, 7)
        a("L_pvl1:")
        self.pv_mfmas(1, 0)
        self.cstamp(7)
        a(f"  s_setpc_b64 s[{S_LINK}:{S_LINK+1}]")
        a("L_pvl0:")
        self.pv_mfmas(0, 0)
        self.cstamp(7)
        a(f"  s_setpc_b64 s[{S_LINK}:{S_LINK+1}]")

    def pv_reads(self, buf, s_, poff, imm=0):
        a = self.a; o = self.V_A + 16 * buf
        a(f"  ds_read_b128 {vr(o)}, v{self.V_PADDR} offset:{poff}")
        for tau in range(3):
            if s_ is None:
                ad = self.V_PA + tau
            else:
                ad = self.V_TA + tau
                a(f"  v_add_u32 v{ad}, s{s_}, v{self.V_PA+tau}")
            a(f"  ds_read_b64_tr_b16 {vr(o+4+4*tau,2)}, v{ad} offset:{imm}")
            a(f"  ds_read_b64_tr_b16 {vr(o+6+4*tau,2)}, v{ad} offset:{imm + SLOT}")
    def pv_mfmas(self, buf, base):
        a = self.a; o = self.V_A + 16 * buf
        for tau in range(3):
            a(f"  s_waitcnt lgkmcnt({base + 4 - 2*tau})")
            a(f"  v_mfma_f32_16x16x32_bf16 {vr(self.V_ACC+4*tau)}, {vr(o+4+4*tau)}, {vr(o)}, {vr(self.V_ACC+4*tau)}")

    def pv_final(self):
        a = self.a; T0, T1 = self.V_T0, self.V_T1
        a(f"  v_mov_b32 v{T0}, {FLAG_LDS}\n  ds_read_b32 v{T1}, v{T0}")
        a(f"  s_mov_b32 s{S_PVB}, {8*SLOT}")
        self.pv_reads(0, S_PVB, 0)
        a(f"  s_waitcnt lgkmcnt(7)\n  v_readfirstlane_b32 s62, v{T1}\n  s_cmp_lg_u32 s62, 0\n  s_cbranch_scc1 L_slow")
        a(f"  s_mov_b32 s{S_PVB}, {10*SLOT}")
        self.pv_reads(1, S_PVB, 1024); self.pv_mfmas(0, 7)
        self.pv_reads(0, None, 2048, 0); self.pv_mfmas(1, 7)
        self.pv_reads(1, None, 3072, 2*SLOT); self.pv_mfmas(0, 7)
        self.pv_reads(0, None, 4096, 4*SLOT); self.pv_mfmas(1, 7)
        self.pv_mfmas(0, 0)

    def call_batch(self, T, w0, slot0, pair_add, last):
        self.a(f"  s_mov_b32 s{S_T}, {T}\n  s_mov_b32 s{S_W0}, {w0}\n  s_mov_b32 s{S_SB}, {slot0}\n  s_add_u32 s{S_PB}, s{S_P0}, {pair_add}\n  s_mov_b32 s{S_LAST}, {int(last)}")
        self.a(f"  s_mov_b32 s{S_SST}, {STAT + pair_add*256}")
        self.a(f"  s_call_b64 s[{S_LINK}:{S_LINK+1}], L_batch")

    def streamer(self):
        a = self.a; cfg = self.cfg; d = cfg.depth
        CALL = f"  s_call_b64 s[{S_LINK}:{S_LINK+1}], "
        a("  s_waitcnt lgkmcnt(0)")
        srd(a, R_A, P_F0, F0_BYTES); srd(a, R_B, P_F1, F1_BYTES)
        a(f"  s_cmp_ge_u32 s{S_WAVE}, 6\n  s_cbranch_scc1 L_sgather")
        a(f"  s_cmp_ge_u32 s{S_WAVE}, 3\n  s_cselect_b32 s60, 1, 0\n  s_mul_i32 s62, s60, 3\n  s_sub_u32 s61, s{S_WAVE}, s62")
        a(f"  s_mul_i32 s{S_QBASE}, s{S_IDX}, {2*NPAIR}\n  s_add_u32 s{S_QBASE}, s{S_QBASE}, s60\n  s_lshl_b32 s61, s61, 8")
        a("  v_and_b32 v240, 15, v0\n  v_lshrrev_b32 v241, 4, v0\n  v_lshl_add_u32 v242, v240, 4, s61")
        a(f"  v_mul_u32_u24 v243, 768, v241\n  v_add_u32 v{self.V_OFF1}, v242, v243\n  v_lshl_add_u32 v{self.V_OFF0}, v243, 1, v242")
        a(f"  s_mov_b32 s{S_K}, 0\n  s_mov_b32 s{S_QMASK}, 0x11111111\n  s_mov_b32 s{S_QMASK+1}, 0x11111111")
        def first_loads():
            self.task_bases(SETA, 0, False)
            for x in range(min(d, 5)): self.issue_piece(SETA, 0, x)
            if d > 5:
                self.task_bases(SETB, 1, False)
                for x in range(5, d): self.issue_piece(SETB, 1, x - 5)
            if d // 5 != 1 or d == 5: self.task_bases(SETB, d // 5, False)
        if not cfg.late: first_loads()
        a(f"  s_mul_i32 s60, s60, {SLOT}\n  s_add_u32 s60, s60, s61")
        srd(a, R_WS, P_WS, WS_BYTES); srd(a, R_DBG, P_DBG, 256)
        a("  v_and_b32 v240, 15, v0\n  v_lshrrev_b32 v241, 4, v0\n  v_and_b32 v242, 1, v241\n  v_lshlrev_b32 v242, 3, v242\n  v_xor_b32 v242, v240, v242")
        a(f"  v_mul_u32_u24 v243, 3072, v241\n  v_add_u32 v243, s60, v243")
        for t in range(4):
            a(f"  v_xor_b32 v244, {2*t}, v242\n  v_lshl_add_u32 v{self.V_WA[t]}, v244, 4, v243")
        a(f"  v_bfe_u32 v242, v0, 3, 1\n  v_lshlrev_b32 v242, 6, v242\n  v_bfe_u32 v243, v0, 2, 1\n  v_lshl_add_u32 v243, v241, 2, v243\n  v_lshl_add_u32 v242, v243, 2, v242")
        a(f"  s_cmp_ge_u32 s{S_WAVE}, 3\n  s_cselect_b32 s62, 128, 0\n  s_add_u32 s62, s62, {STAT}\n  v_add_u32 v{self.V_SA}, s62, v242")
        a("  s_barrier")
        self.stream_consts()
        if cfg.late: first_loads()
        if cfg.streamonly:
            for k in range(9):
                a(CALL + f"L_fuse{k & 1}")
                if k == 5: self.stamp(3)
            self.stamp(7); self.stamp(8)
            a("  s_branch L_sdone")
        for k in range(6):
            if k == cfg.trig_a: a("  s_barrier")
            if k == cfg.trig_b: a("  s_barrier")
            a(CALL + f"L_fuse{k & 1}")
        if cfg.trig_a >= 6: a("  s_barrier")
        if cfg.trig_b >= 6: a("  s_barrier")
        assert d <= 5
        self.task_bases(SETA, 6, False)
        for x in range(30 + d, 35): self.issue_piece(SETA, 0, x % 5)
        self.stamp(3)
        a(CALL + "L_fuseH")
        if cfg.ext7 == 0:
            self.task_bases(SETA, 7, False)
            for x in range(5): self.issue_piece(SETA, 1, x)
        a("  s_waitcnt lgkmcnt(0)")
        a("  s_branch L_sb0")
        a("L_sgather:")
        if cfg.streamonly == 3:
            pass
        elif cfg.streamonly:
            srd(a, R_WS, P_WS, WS_BYTES)
            for i in range(4): a(f"  v_mov_b32 v{20+i}, 0")
            a("  s_barrier\n  s_branch L_sdone")
        for r in (self.V_OFF1, self.V_OFF0, self.V_SA) + self.V_WA: a(f"  v_mov_b32 v{r}, 0")
        for i in range(4): a(f"  v_mov_b32 v{20+i}, 0")
        a(f"  v_lshlrev_b32 v24, 4, v0\n  v_add_u32 v24, {STAT}, v24\n  ds_write_b128 v24, v[20:23]\n  ds_write_b128 v24, v[20:23] offset:1024")
        a(f"  v_cmp_gt_u32 vcc, {(2320 - 2048) // 16}, v0\n  s_and_saveexec_b64 s[64:65], vcc")
        a("  ds_write_b128 v24, v[20:23] offset:2048\n  s_mov_b64 exec, s[64:65]\n  s_waitcnt lgkmcnt(0)\n  s_barrier")
        a(f"  s_mov_b32 s{S_QBASE}, 0\n  s_mov_b32 s{S_K}, 0\n  s_mov_b32 s{S_QMASK}, 0\n  s_mov_b32 s{S_QMASK+1}, 0")
        for r in range(3): a(f"  s_mov_b32 s{SETA+r}, 0\n  s_mov_b32 s{SETB+r}, 0")
        srd(a, R_WS, P_WS, WS_BYTES); srd(a, R_DBG, P_DBG, 256)
        a(f"  s_cmp_eq_u32 s{S_WAVE}, 7\n  s_cbranch_scc1 L_sw7")
        a(f"  buffer_load_dword v17, v{self.V_OFF1}, {sr(R_WS)}, 0 offen offset:{NONCE_OFF} sc1")
        a(f"  v_mov_b32 v18, {GO_OFF}")
        self.stream_consts()
        a(f"  s_waitcnt vmcnt(0)\n  v_add_u32 v17, 1, v17\n  v_mov_b32 v{self.V_T0}, {NONCE_LDS}\n  ds_write_b32 v{self.V_T0}, v17\n  v_readfirstlane_b32 s{S_NONCE}, v17")
        if cfg.streamonly != 3: a("  s_barrier")
        a(f"  buffer_load_dword v16, v18, {sr(R_WS)}, 0 offen sc1")
        if cfg.streamonly != 3: a("  s_barrier")
        self.wait_flags(16, 18, first_issued=True)
        self.stamp(1)
        a(f"  s_mov_b32 s62, {RQK_OFF}")
        self.gather_frags(12, self.V_QK, self.V_L16, 62, self.V_T0, "qk")
        if cfg.gdiag:
            a(f"  s_mov_b32 s{STAMP0+4}, s{S_SPIN}")
            self.stamp(5)
        for j in range(12): a(f"  ds_write_b128 v{self.V_PADDR}, {vr(self.V_QK+4*j)} offset:{j*1024}")
        SQ4 = self.V_SQ4
        for j in range(12):
            for i in range(4):
                a(f"  v_dot2_f32_bf16 v{SQ4+i}, v{self.V_QK+4*j+i}, v{self.V_ONES}, {'0' if j == 0 else 'v%d' % (SQ4+i)}")
        self.pk("v_pk_add_f32", SQ4, SQ4, SQ4 + 2)
        a(f"  v_add_f32 v{self.V_QS}, v{SQ4}, v{SQ4+1}")
        self.allred_g(self.V_QS, self.V_T0, "v_add_f32")
        a(f"  v_and_b32 v{self.V_T0}, 15, v0\n  v_lshlrev_b32 v{self.V_T0}, 2, v{self.V_T0}\n  v_add_u32 v{self.V_T0}, {QS_LDS}, v{self.V_T0}\n  ds_write_b32 v{self.V_T0}, v{self.V_QS}")
        a("  s_waitcnt lgkmcnt(0)")
        self.stamp(3)
        if cfg.streamonly == 3: a("  s_branch L_sdone")
        a("  s_branch L_sb0")
        a("L_sw7:")
        if cfg.streamonly == 3: a("  s_branch L_sdone")
        self.stream_consts()
        a("  s_waitcnt vmcnt(0)\n  s_barrier\n  s_barrier")
        a("L_sb0:\n  s_barrier")
        sk = self.lab("noext")
        a(f"  s_cmp_ge_u32 s{S_WAVE}, 6\n  s_cbranch_scc1 {sk}")
        if cfg.ext7 == 1:
            self.task_bases(SETA, 7, False)
            for x in range(5): self.issue_piece(SETA, 1, x)
        if cfg.ext8 == 0:
            self.task_bases(SETB, 8, False)
            for x in range(5): self.issue_piece(SETB, 2, x)
        a(f"{sk}:")
        a(f"  v_and_b32 v{self.V_T2}, 15, v0\n  v_lshlrev_b32 v{self.V_T2}, 2, v{self.V_T2}\n  v_add_u32 v{self.V_T2}, {QS_LDS}, v{self.V_T2}")
        a(f"  v_mov_b32 v{self.V_T0}, {NONCE_LDS}\n  ds_read_b32 v{self.V_T1}, v{self.V_T0}\n  ds_read_b32 v{self.V_QS}, v{self.V_T2}")
        for j in range(12): a(f"  ds_read_b128 {vr(self.V_QK+4*j)}, v{self.V_PADDR} offset:{j*1024}")
        a(f"  s_mul_i32 s{S_P0}, s{S_IDX}, {NPAIR}")
        for r in range(4): a(f"  v_mov_b32 v{self.V_LT+r}, 0")
        a(f"  s_waitcnt lgkmcnt(0)\n  v_readfirstlane_b32 s{S_NONCE}, v{self.V_T1}")
        self.stamp(4)
        self.call_batch(8, 0, 0, 0, False)
        a("  s_barrier")
        if not cfg.gdiag: self.stamp(5)
        a(f"  s_cmp_ge_u32 s{S_WAVE}, 6\n  s_cbranch_scc1 L_s67")
        if cfg.ext8 == 1:
            self.task_bases(SETB, 8, False)
            for x in range(5): self.issue_piece(SETB, 2, x)
        b = self.V_BUF[0]
        for t in range(4): a(f"  ds_write_b128 v{self.V_WA[t]}, {vr(b+4+4*t)} offset:{t*768}")
        for t in range(4): a(f"  v_add_u32 v{self.V_WA[t]}, 24576, v{self.V_WA[t]}")
        a(CALL + "L_fuseR1"); a(CALL + "L_fuseR2")
        a("  s_branch L_sx")
        a("L_s67:")
        for i in range(2):
            a(f"  s_and_b32 s63, s{S_WAVE}, 1\n  s_add_u32 s62, s63, {8 + 2*i}\n  s_mul_i32 s{S_TB}, s62, {SLOT}")
            a(f"  s_lshl_b32 s62, s62, 7\n  s_add_u32 s{S_STA}, s62, {STAT}\n  s_add_u32 s{S_PAIR}, s{S_P0}, {4 + i}")
            a(f"  s_lshl_b32 s63, s63, 3\n  s_add_u32 s{S_POFF}, s63, {i*1024}")
            a(CALL + "L_sp")
        a("L_sx:")
        self.publish_setup()
        a("  s_waitcnt lgkmcnt(0)\n  s_barrier")
        if not cfg.gdiag: self.stamp(2)
        sk = self.lab("nosp")
        a(f"  s_cmp_ge_u32 s{S_WAVE}, 6\n  s_cbranch_scc1 {sk}")
        a(f"  s_mul_i32 s{S_TB}, s{S_WAVE}, {SLOT}\n  s_lshl_b32 s62, s{S_WAVE}, 7\n  s_add_u32 s{S_STA}, s62, {STAT + 12*128}")
        a(f"  s_lshr_b32 s62, s{S_WAVE}, 1\n  s_add_u32 s{S_PAIR}, s62, s{S_P0}\n  s_add_u32 s{S_PAIR}, s{S_PAIR}, 6")
        a(f"  s_lshl_b32 s62, s62, 10\n  s_and_b32 s63, s{S_WAVE}, 1\n  s_lshl_b32 s63, s63, 3\n  s_add_u32 s62, s62, s63\n  s_add_u32 s{S_POFF}, s62, 2048")
        a(CALL + "L_sp")
        a(f"{sk}:")
        MXV = self.V_MXV
        self.pk("v_pk_add_f32", MXV, self.V_L2, self.V_LT); self.pk("v_pk_add_f32", MXV + 2, self.V_AM2, self.V_AT)
        self.red_write(MXV, MXV + 2, MXV + 6)
        a("  s_waitcnt lgkmcnt(0)")
        if not cfg.gdiag: self.stamp(1)
        a("  s_barrier")
        self.stamp(6)
        self.pv_final()
        a("L_spub:")
        self.stamp(7)
        self.publish()
        self.cstamp(8)
        self.stamp(8)
        if cfg.cut >= 1: a("  s_branch L_sdone")
        a(f"  s_cmp_ge_u32 s{S_IDX}, 128\n  s_cbranch_scc1 L_sdone")
        self.reducer()
        a("L_sdone:")
        self.stamp(9); self.stamp_flush((5, 6, 8, (0, 1, 3, 5, 6, 7, 8, 9)))
        a("  s_endpgm")
        a("L_slow:\n  s_waitcnt lgkmcnt(0)")
        self.call_batch(4, 4, 8, 4, False)
        self.call_batch(6, 0, 0, 6, True)
        a("  s_branch L_spub")
        self.sp_sub(); self.sphase_sub(); self.batch_sub()
        self.fuse_sub(1, 10, "L_fuseR1", "drain"); self.fuse_sub(2, 5, "L_fuseR2", "drain"); self.fuse_sub(0, 5, "L_fuseH", "hold")
        self.fuse_sub(0, d, "L_fuse0"); self.fuse_sub(1, d, "L_fuse1")

    def publish_setup(self):
        a = self.a
        T0, T1, T2 = self.V_T0, self.V_T1, self.V_T2
        PA0, TAGB = self.V_PUB, self.V_PUB + 1
        a(f"  v_and_b32 v{T0}, 7, v0\n  v_lshlrev_b32 v{T0}, 3, v{T0}\n  v_add_u32 v{T0}, s{S_WAVE}, v{T0}\n  s_mov_b32 s62, {PART_STRIDE}\n  v_mul_lo_u32 v{T0}, v{T0}, s62")
        a(f"  v_bfe_u32 v{T1}, v0, 3, 1\n  v_lshl_add_u32 v{T0}, v{T1}, 6, v{T0}\n  v_lshrrev_b32 v{T1}, 4, v0\n  v_lshl_add_u32 v{PA0}, v{T1}, 4, v{T0}")
        a(f"  s_mov_b32 s62, {KEYC}\n  v_mul_lo_u32 v{T1}, v{T1}, s62\n  v_add_u32 v{TAGB}, s{S_NONCE}, v{T1}")
        a(f"  v_and_b32 v{T0}, 15, v0\n  v_lshlrev_b32 v{T0}, 6, v{T0}\n  v_bfe_u32 v{T1}, v0, 4, 1\n  v_lshl_add_u32 v{T0}, v{T1}, 2, v{T0}")
        a(f"  s_lshl_b32 s62, s{S_WAVE}, 3\n  s_add_u32 s62, s62, {RED}\n  v_add_u32 v{self.V_PUB+2}, s62, v{T0}")
        a(f"  v_and_b32 v{T0}, 15, v0\n  v_lshlrev_b32 v{T0}, 6, v{T0}\n  v_add_u32 v{self.V_PUB+3}, {RED}, v{T0}")

    def publish(self):
        a = self.a; cfg = self.cfg
        A, ACC = self.V_A, self.V_ACC
        PA0, TAGB, RDA = self.V_PUB, self.V_PUB + 1, self.V_PUB + 3
        for i in range(4): a(f"  ds_read_b128 {vr(A+4*i)}, v{RDA} offset:{16*i}")
        UA, UB, TB = A + 24, A + 28, A + 32
        a(f"  s_lshl_b32 s62, s{S_IDX}, 7\n  s_add_u32 s62, s62, {PART_OFF}\n  s_add_u32 s63, s62, {64*PART_STRIDE}")
        a(f"  v_mov_b32 v{UA+3}, s{S_NONCE}")
        a("  s_waitcnt vmcnt(0) lgkmcnt(0)")
        for i in (0, 4, 8, 12): self.pk("v_pk_add_f32", A + i, A + i, A + i + 2)
        self.pk("v_pk_add_f32", A, A, A + 4); self.pk("v_pk_add_f32", A + 8, A + 8, A + 12); self.pk("v_pk_add_f32", A, A, A + 8)
        a(f"  v_rcp_f32 v{A+2}, v{A}\n  v_log_f32 v{A+5}, v{A}\n  v_mul_f32 v{A+4}, v{A+1}, v{A+2}")
        for i in range(0, 12, 2): self.pk("v_pk_fma_f32", ACC + i, ACC + i, A + 2, A + 4, bc=(1, 2), neg=(2,))
        a(f"  v_add_f32 v{A+6}, v{self.V_M}, v{A+5}")
        for i in range(3): a(f"  v_cvt_pk_f16_f32 v{UA+i}, v{ACC+2*i}, v{ACC+2*i+1}")
        for i in range(3): a(f"  v_cvt_pk_f16_f32 v{UB+i}, v{ACC+6+2*i}, v{ACC+7+2*i}")
        a(f"  v_xor_b32 v{UB+3}, v{A+6}, v{TAGB}")
        for i in range(4): a(f"  v_mov_b32 v{TB+i}, v{UB+i}")
        for i in range(3): a(f"  v_mov_b32_dpp v{UB+i}, v{UA+i} row_ror:8 row_mask:0xf bank_mask:0x3")
        a(f"  v_mov_b32_dpp v{UB+3}, v{UA+3} quad_perm:[0,1,2,3] row_mask:0xf bank_mask:0x3")
        for i in range(4): a(f"  v_mov_b32_dpp v{UA+i}, v{TB+i} row_ror:8 row_mask:0xf bank_mask:0xc")
        a(f"  buffer_store_dwordx4 {vr(UA)}, v{PA0}, {sr(R_WS)}, s62 offen sc1")
        a(f"  buffer_store_dwordx4 {vr(UB)}, v{PA0}, {sr(R_WS)}, s63 offen sc1")

    def reducer_setup(self):
        a = self.a
        AD, T0, T1, VM, SA, X, Y, KEY = self.RV
        MASK = 40
        a(f"  v_lshrrev_b32 v{T0}, 3, v0\n  s_lshl_b32 s62, s{S_WAVE}, 5\n  v_add_u32 v{VM}, s62, v{T0}")
        a(f"  v_and_b32 v{T1}, 7, v0\n  v_lshlrev_b32 v{T1}, 4, v{T1}\n  s_mov_b32 s62, {NS}")
        for it in range(4):
            a(f"  v_add_u32 v{T0}, {8*it}, v{VM}\n  v_cmp_gt_u32 s[{MASK+2*it}:{MASK+2*it+1}], s62, v{T0}\n  v_cndmask_b32 v{T0}, 0, v{T0}, s[{MASK+2*it}:{MASK+2*it+1}]")
            a(f"  v_lshl_add_u32 v{AD+it}, v{T0}, 7, v{T1}")
        a(f"  v_and_b32 v{T0}, 3, v0\n  s_mov_b32 s62, {KEYC}\n  v_mul_lo_u32 v{T0}, v{T0}, s62\n  v_add_u32 v{KEY}, s{S_NONCE}, v{T0}")
        a(f"  v_lshrrev_b32 v{T0}, 4, v0\n  v_and_b32 v{T1}, 1, v{T0}\n  v_lshlrev_b32 v{T1}, 1, v{T1}\n  v_lshrrev_b32 v{X}, 1, v{T0}\n  v_add_u32 v{T1}, v{T1}, v{X}")
        a(f"  v_bfe_u32 v{X}, v0, 2, 1\n  v_mul_u32_u24 v{X}, 3, v{X}\n  v_add_u32 v{T1}, v{T1}, v{X}")
        a(f"  v_lshrrev_b32 v{X}, 1, v{T1}\n  v_lshlrev_b32 v{X}, 4, v{X}\n  v_and_b32 v{T1}, 1, v{T1}\n  v_lshl_add_u32 v{X}, v{T1}, 1, v{X}")
        a(f"  v_and_b32 v{T1}, 3, v0\n  v_lshl_add_u32 v{X}, v{T1}, 2, v{X}")
        a(f"  s_and_b32 s62, s{S_IDX}, 7\n  s_mul_i32 s62, s62, 48\n  v_add_u32 v{X}, s62, v{X}\n  v_lshlrev_b32 v{SA}, 1, v{X}")
        a(f"  v_lshrrev_b32 v{T1}, 4, v0\n  v_lshlrev_b32 v{T1}, 3, v{T1}\n  v_and_b32 v{X}, 7, v0\n  v_add_u32 v{T1}, v{T1}, v{X}\n  v_lshlrev_b32 v{Y}, 3, v{T1}")
        a(f"  s_lshl_b32 s62, s{S_WAVE}, 8\n  s_add_u32 s62, s62, {RED2}\n  v_add_u32 v{X}, s62, v{Y}\n  v_add_u32 v{Y}, {RED2}, v{Y}")

    RV = (80, 84, 85, 86, 87, 88, 89, 90)

    def reducer(self):
        a = self.a; cfg = self.cfg
        D, E, W, V = 16, 32, 40, 44
        AD, T0, T1, VM, SA, X, Y, KEY = self.RV
        MASK = 40
        BAD = 52
        self.reducer_setup()
        if cfg.rdiag: self.stamp(1)
        a(f"  s_mul_i32 s62, s{S_IDX}, {PART_STRIDE}\n  s_add_u32 s62, s62, {PART_OFF}")
        lp, dn = self.lab("red"), self.lab("redd")
        BADS = (48, 50, 52, 54)
        for it in range(4): a(f"  s_mov_b64 s[{BADS[it]}:{BADS[it]+1}], -1")
        a(f"  s_mov_b32 s64, 0xf0f0f0f0\n  s_mov_b32 s65, 0xf0f0f0f0")
        a(f"  s_mov_b32 s{S_SPIN}, 0\n{lp}:")
        for it in range(4):
            sk = self.lab("skipld")
            a(f"  s_mov_b64 exec, s[{BADS[it]}:{BADS[it]+1}]\n  s_cbranch_execz {sk}")
            a(f"  buffer_load_dwordx4 {vr(D+4*it)}, v{AD+it}, {sr(R_WS)}, s62 offen sc1")
            a(f"{sk}:")
        a("  s_mov_b64 exec, -1")
        self.spin_guard(dn)
        a("  s_waitcnt vmcnt(0)")
        for it in range(4):
            a(f"  v_xor_b32 v{E+2*it}, v{KEY}, v{D+4*it+3}")
        for it in range(4):
            a(f"  v_mov_b32_dpp v{E+2*it+1}, v{E+2*it} quad_perm:[0,0,0,0] row_mask:0xf bank_mask:0xf")
        for it in range(4):
            a(f"  v_cmp_ne_u32 vcc, v{E+2*it}, v{E+2*it+1}\n  v_cmp_ne_u32 s[60:61], s{S_NONCE}, v{D+4*it+3}")
            a(f"  s_and_b64 vcc, vcc, s[64:65]\n  s_andn2_b64 s[60:61], s[60:61], s[64:65]\n  s_or_b64 s[{BADS[it]}:{BADS[it]+1}], vcc, s[60:61]")
        a(f"  s_or_b64 s[60:61], s[48:49], s[50:51]\n  s_or_b64 vcc, s[52:53], s[54:55]\n  s_or_b64 s[60:61], s[60:61], vcc\n  s_cbranch_scc0 {dn}")
        for it in range(4):
            b = BADS[it]
            if cfg.selpoll: a(f"  s_cmp_lg_u64 s[{b}:{b+1}], 0\n  s_cselect_b64 s[{b}:{b+1}], -1, 0")
            else: a(f"  s_mov_b64 s[{b}:{b+1}], -1")
        if cfg.rsleep: a(f"  s_sleep {cfg.rsleep}")
        a(f"  s_branch {lp}")
        a(f"{dn}:\n  s_waitcnt vmcnt(0)")
        if cfg.rdiag:
            self.stamp(2)
            a(f"  s_mov_b32 s{STAMP0+6}, s{S_SPIN}")
        for it in range(4): a(f"  v_mov_b32_dpp v{E+2*it}, v{E+2*it} row_shl:4 row_mask:0xf bank_mask:0x5")
        a(f"  v_mov_b32 v{T1}, 0xff800000")
        for it in range(4):
            a(f"  v_cndmask_b32 v{E+2*it}, v{T1}, v{E+2*it}, s[{MASK+2*it}:{MASK+2*it+1}]")
        a(f"  v_max3_f32 v{T0}, v{E}, v{E+2}, v{E+4}\n  v_max_f32 v{T0}, v{T0}, v{E+6}")
        a(f"  v_max_f32_dpp v{T0}, v{T0}, v{T0} row_ror:8 row_mask:0xf bank_mask:0xf")
        self.allred_g(T0, T1, "v_max_f32")
        for it in range(4): a(f"  v_sub_f32 v{W+it}, v{E+2*it}, v{T0}")
        for it in range(4): a(f"  v_exp_f32 v{W+it}, v{W+it}")
        a(f"  s_lshl_b32 s62, s{S_WAVE}, 2\n  s_add_u32 s62, s62, {MXW}\n  v_mov_b32 v{T1}, s62\n  ds_write_b32 v{T1}, v{T0}")
        for it in range(4):
            for q in range(3):
                c0 = "0" if it == 0 else f"v{V+2*q}"; c1 = "0" if it == 0 else f"v{V+2*q+1}"
                a(f"  v_fma_mix_f32 v{V+2*q}, v{D+4*it+q}, v{W+it}, {c0} op_sel_hi:[1,0,0]")
                a(f"  v_fma_mix_f32 v{V+2*q+1}, v{D+4*it+q}, v{W+it}, {c1} op_sel:[1,0,0] op_sel_hi:[1,0,0]")
        self.pk("v_pk_add_f32", W, W, W + 2)
        a(f"  v_add_f32 v{V+6}, v{W}, v{W+1}\n  v_mov_b32 v{V+7}, 0")
        for x, y in ((0, 2), (1, 3), (4, 6), (5, 7)): a(f"  v_permlane32_swap_b32 v{V+x}, v{V+y}")
        for x, y in ((0, 2), (1, 3), (4, 6), (5, 7)): a(f"  v_add_f32 v{V+x}, v{V+x}, v{V+y}")
        for x, y in ((0, 4), (1, 5)): a(f"  v_permlane16_swap_b32 v{V+x}, v{V+y}")
        for x, y in ((0, 4), (1, 5)): a(f"  v_add_f32 v{V+x}, v{V+x}, v{V+y}")
        for x in (0, 1): a(f"  v_add_f32_dpp v{V+x}, v{V+x}, v{V+x} row_ror:8 row_mask:0xf bank_mask:0xf")
        a(f"  ds_write_b64 v{X}, {vr(V,2)}\n  s_waitcnt lgkmcnt(0)")
        if cfg.rdiag: self.stamp(4)
        a("  s_barrier")
        if cfg.rdiag: self.stamp(5)
        a(f"  s_cmp_lg_u32 s{S_WAVE}, 0\n  s_cbranch_scc1 L_sdone")
        a(f"  v_mov_b32 v{T1}, {MXW}\n  ds_read_b128 {vr(W)}, v{T1}\n  ds_read_b128 {vr(W+4)}, v{T1} offset:16")
        for w in range(8): a(f"  ds_read_b64 {vr(D+2*w,2)}, v{Y} offset:{256*w}")
        a(f"  s_lshr_b32 s63, s{S_IDX}, 3\n  s_mul_i32 s63, s63, 768\n  s_add_u32 s63, s63, {RCTX_OFF}")
        a(f"  v_and_b32 v{X}, 8, v0\n  v_cmp_eq_u32 vcc, 0, v{X}\n  v_cmp_gt_u32 s[64:65], 48, v0\n  s_and_b64 s[64:65], vcc, s[64:65]")
        a("  s_waitcnt lgkmcnt(8)")
        a(f"  v_max3_f32 v{T0}, v{W}, v{W+1}, v{W+2}\n  v_max3_f32 v{T1}, v{W+3}, v{W+4}, v{W+5}\n  v_max3_f32 v{T0}, v{T0}, v{W+6}, v{W+7}\n  v_max_f32 v{T0}, v{T0}, v{T1}")
        for w in range(0, 8, 2): self.pk("v_pk_add_f32", W + w, W + w, T0, bc=(1,), neg=(1,))
        for w in range(8): a(f"  v_exp_f32 v{W+w}, v{W+w}")
        a("  s_waitcnt lgkmcnt(0)")
        for w in range(8):
            base = W + (w & ~1)
            sel = "op_sel:[0,1,0] op_sel_hi:[1,1,1]" if w & 1 else "op_sel_hi:[1,0,1]"
            if w == 0: a(f"  v_pk_mul_f32 {vr(E,2)}, {vr(D,2)}, {vr(base,2)} op_sel_hi:[1,0]")
            else: a(f"  v_pk_fma_f32 {vr(E,2)}, {vr(D+2*w,2)}, {vr(base,2)}, {vr(E,2)} {sel}")
        a(f"  v_readlane_b32 s62, v{E}, 48\n  v_rcp_f32 v{T0}, s62")
        self.pk("v_pk_mul_f32", E, E, T0, bc=(1,))
        a(f"  v_cvt_pk_bf16_f32 v{E}, v{E}, v{E+1}\n  v_min_u32 v{E}, -2, v{E}")
        a("  s_mov_b64 exec, s[64:65]")
        a(f"  buffer_store_dword v{E}, v{SA}, {sr(R_WS)}, s63 offen sc1")
        a("  s_mov_b64 exec, -1")

    def img_dma(self, srdr, lds, soff, vs0, vs1):
        for th in range(3):
            for q4 in range(4):
                self.img_dma1(srdr, lds, soff, vs0, vs1, th, q4)
    def img_dma1(self, srdr, lds, soff, vs0, vs1, th, q4, ldsreg=None):
        a = self.a
        if ldsreg is None: a(f"  s_mov_b32 m0, {lds + th*4096 + q4*1024}")
        else: a(f"  s_add_u32 m0, s{ldsreg}, {th*4096 + q4*1024}")
        a(f"  s_add_u32 s62, s{soff}, {q4*3072 + th*256}")
        a(f"  buffer_load_dwordx4 v{vs1 if q4 & 1 else vs0}, {sr(srdr)}, s62 offen{' nt' if self.cfg.hnt else ''} lds")

    def helper(self):
        a = self.a; cfg = self.cfg
        L16, N, Gq, T0, T1, T2, T3 = 1, 2, 3, 4, 5, 6, 7
        FL, TA, DS, VS0, VS1, ZERO = 8, 10, 11, 12, 13, 14
        IA = 16
        QF, AF, TR = 20, 68, 160
        WKF = 116
        D1, D2, D3, ST, ONES = 208, 212, 216, 220, 224
        a("L_helper:")
        if cfg.streamonly == 1:
            a("  s_waitcnt lgkmcnt(0)")
            srd(a, R_WS, P_WS, WS_BYTES)
            a("  s_branch L_hdone")
        a(f"  v_lshlrev_b32 v{L16}, 4, v0\n  v_and_b32 v{N}, 15, v0\n  v_lshrrev_b32 v{Gq}, 4, v0\n  v_mov_b32 v{ZERO}, 0")
        a(f"  v_lshlrev_b32 v{T0}, 1, v{Gq}\n  v_xor_b32 v{T0}, v{N}, v{T0}\n  v_mul_u32_u24 v{T1}, 768, v{Gq}")
        a(f"  v_lshl_add_u32 v{VS0}, v{T0}, 4, v{T1}\n  v_xor_b32 v{T0}, 8, v{T0}\n  v_lshl_add_u32 v{VS1}, v{T0}, 4, v{T1}")
        a(f"  v_lshrrev_b32 v{T0}, 1, v0\n  v_mul_u32_u24 v{T0}, 768, v{T0}\n  v_and_b32 v{T1}, 1, v0\n  v_lshl_add_u32 v{T0}, v{T1}, 4, v{T0}")
        a(f"  s_lshl_b32 s61, s{S_IDX}, 5\n  v_add_u32 v{DS}, s61, v{T0}")
        a(f"  s_lshr_b32 s60, s{S_IDX}, 1\n  s_lshl_b32 s60, s60, 10\n  s_and_b32 s61, s{S_IDX}, 1\n  s_lshl_b32 s61, s61, 9\n  s_add_u32 s60, s60, s61")
        a(f"  v_lshrrev_b32 v{T0}, 1, v{Gq}\n  v_lshlrev_b32 v{T0}, 8, v{T0}\n  v_lshl_add_u32 v{T0}, v{N}, 4, v{T0}")
        a(f"  v_and_b32 v{T1}, 1, v{Gq}\n  v_lshl_add_u32 v{T0}, v{T1}, 3, v{T0}\n  v_add_u32 v{FL}, s60, v{T0}")
        if cfg.hdiag: self.stamp(8)
        a("  s_waitcnt lgkmcnt(0)")
        if cfg.hdiag: self.stamp(2)
        srd(a, R_WS, P_WS, WS_BYTES)
        a(f"  s_cmp_eq_u32 s{S_WAVE}, 1\n  s_cbranch_scc1 L_h1a")
        a(f"  s_cmp_eq_u32 s{S_WAVE}, 0\n  s_cbranch_scc1 L_h0a")
        a("  s_branch L_hb1")
        a("L_h1a:")
        a(f"  buffer_load_dword v9, v{ZERO}, {sr(R_WS)}, 0 offen offset:{NONCE_OFF} sc1")
        a(f"  v_mov_b32 v{T0}, -1\n  v_mov_b32 v{T0+1}, -1\n  v_mov_b32 v{T0+2}, -1\n  v_mov_b32 v{T0+3}, -1")
        a(f"  s_lshl_b32 s60, s{S_IDX}, 9\n  s_add_u32 s62, s60, {RQ_OFF}\n  s_add_u32 s63, s60, {RQK_OFF}\n  s_add_u32 s61, s60, {RCTX_OFF}")
        a("  s_mov_b32 s64, -1\n  s_mov_b32 s65, 0\n  s_mov_b64 exec, s[64:65]")
        for r in ("s62", "s63", "s61"): a(f"  buffer_store_dwordx4 {vr(T0)}, v{L16}, {sr(R_WS)}, {r} offen sc1")
        a("  s_mov_b64 exec, -1")
        srd(a, R_B, P_WQ, W_BYTES)
        for k in range(12):
            a(f"  s_mov_b32 m0, {H_WQI + k*1024}\n  s_mov_b32 s62, {k*32*768}\n  buffer_load_dwordx4 v{DS}, {sr(R_B)}, s62 offen{' nt' if cfg.hnt else ''} lds")
        a(f"  s_waitcnt vmcnt(12)\n  v_add_u32 v9, 1, v9\n  s_lshl_b32 s62, s{S_IDX}, 7\n  s_add_u32 s62, s62, {FLAG_OFF}\n  s_mov_b64 exec, 1")
        a(f"  buffer_store_dword v9, v{ZERO}, {sr(R_WS)}, s62 offen sc1\n  s_mov_b64 exec, -1")
        a("  s_waitcnt vmcnt(1)\n  s_branch L_hb1")
        a("L_h0a:")
        srd(a, R_A, P_Q, Q_BYTES)
        a("  s_mov_b32 s60, 0")
        self.img_dma(R_A, H_QI, 60, VS0, VS1)
        a(f"  buffer_load_dword v15, v{ZERO}, {sr(R_WS)}, 0 offen offset:{NONCE_OFF} sc1")
        a("  s_waitcnt vmcnt(0)\n  s_branch L_hb1")
        a("L_hb1:")
        self.stamp(7)
        srd(a, R_DBG, P_DBG, 256); srd(a, R_A, P_Q, Q_BYTES); srd(a, R_D, P_WV, W_BYTES); srd(a, R_F, P_OUT, Q_BYTES)
        a(f"  v_and_b32 v{T0}, 7, v{N}\n  v_lshlrev_b32 v{T0}, 1, v{T0}\n  v_lshlrev_b32 v{T1}, 8, v{N}")
        for m in range(4):
            a(f"  v_add_u32 v{T2}, {4*m}, v{Gq}\n  v_xor_b32 v{T2}, v{T2}, v{T0}\n  v_lshl_add_u32 v{IA+m}, v{T2}, 4, v{T1}")
        a(f"  v_lshrrev_b32 v{T0}, 2, v{N}\n  v_lshl_add_u32 v{T0}, v{Gq}, 3, v{T0}\n  v_lshlrev_b32 v{T0}, 5, v{T0}")
        a(f"  v_and_b32 v{T1}, 3, v{N}\n  v_lshl_add_u32 v{TA}, v{T1}, 3, v{T0}")
        for i in range(4): a(f"  v_mov_b32 v{ONES+i}, 0x3f803f80")
        a("  s_barrier")
        self.stamp(1)
        if cfg.cut >= 3: a("  s_branch L_hdone")
        a(f"  s_cmp_eq_u32 s{S_WAVE}, 0\n  s_cbranch_scc1 L_h0b")
        a(f"  s_cmp_eq_u32 s{S_WAVE}, 3\n  s_cbranch_scc1 L_h3b")
        a(f"  s_cmp_eq_u32 s{S_WAVE}, 2\n  s_cbranch_scc0 L_hb1c")
        srd(a, R_C, P_WK, W_BYTES)
        a(f"  s_mul_i32 s60, s{S_IDX}, {16*768}")
        self.img_dma(R_C, H_WKI, 60, VS0, VS1)
        a("  s_branch L_hb1c")
        a("L_h3b:")
        for j in range(12):
            a(f"  ds_read_b128 {vr(QF+4*j)}, v{IA+(j&3)} offset:{H_QI + (j>>2)*4096}")
        for j in range(12):
            a(f"  s_waitcnt lgkmcnt({11-j})")
            for i in range(4):
                a(f"  v_dot2_f32_bf16 v{ST+i}, v{QF+4*j+i}, v{QF+4*j+i}, {'0' if j == 0 else 'v%d' % (ST+i)}")
                a(f"  v_dot2_f32_bf16 v{D3+i}, v{QF+4*j+i}, v{ONES}, {'0' if j == 0 else 'v%d' % (D3+i)}")
        self.pk("v_pk_add_f32", ST, ST, ST + 2); self.pk("v_pk_add_f32", D3, D3, D3 + 2)
        a(f"  v_add_f32 v{ST}, v{ST}, v{ST+1}\n  v_add_f32 v{ST+1}, v{D3}, v{D3+1}")
        a(f"  v_permlane16_swap_b32 v{ST}, v{ST+1}\n  v_add_f32 v{ST}, v{ST}, v{ST+1}")
        a(f"  v_mov_b32 v{ST+1}, v{ST}\n  v_permlane32_swap_b32 v{ST+1}, v{ST}\n  v_add_f32 v{ST}, v{ST}, v{ST+1}")
        a(f"  v_mul_f32 v{ST}, {f32(1.0/384.0)}, v{ST}")
        a(f"  v_mov_b32 v{ST+1}, v{ST}\n  v_mov_b32 v{ST+2}, v{ST}\n  v_permlane16_swap_b32 v{ST+1}, v{ST+2}")
        a(f"  v_fma_f32 v{ST+3}, -v{ST+2}, v{ST+2}, v{ST+1}\n  v_max_f32 v{ST+3}, 0, v{ST+3}\n  v_add_f32 v{ST+3}, {f32(1e-5)}, v{ST+3}\n  v_rsq_f32 v{ST+3}, v{ST+3}")
        a(f"  v_lshlrev_b32 v{T0}, 3, v{N}\n  v_add_u32 v{T0}, {H_QS}, v{T0}\n  ds_write_b64 v{T0}, {vr(ST+2,2)}\n  s_waitcnt lgkmcnt(0)")
        a("L_hb1c:\n  s_barrier")
        a("  s_branch L_hb2")
        a("L_h0b:")
        a(f"  v_add_u32 v15, 1, v15")
        self.flag_addr(T3)
        a(f"  v_readfirstlane_b32 s{S_NONCE}, v15\n  buffer_load_dword v9, v{T3}, {sr(R_WS)}, 0 offen sc1")
        for j in range(12):
            a(f"  ds_read_b128 {vr(QF+4*j)}, v{IA+(j&3)} offset:{H_QI + (j>>2)*4096}")
        def tr(j):
            a(f"  ds_read_b64_tr_b16 {vr(TR+4*j,2)}, v{TA} offset:{H_WQI + j*1024}")
            a(f"  ds_read_b64_tr_b16 {vr(TR+4*j+2,2)}, v{TA} offset:{H_WQI + j*1024 + 128}")
        a("  s_waitcnt lgkmcnt(3)")
        for j in range(6): tr(j)
        for j in range(12):
            left = min(12, j + 6) - j - 1
            a(f"  s_waitcnt lgkmcnt({2*left})")
            if j + 6 < 12: tr(j + 6)
            a(f"  v_mfma_f32_16x16x32_bf16 {vr(D1)}, {vr(TR+4*j)}, {vr(QF+4*j)}, {'0' if j == 0 else vr(D1)}")
            a(f"  v_mfma_f32_16x16x32_bf16 {vr(D2)}, {vr(TR+4*j)}, {vr(ONES)}, {'0' if j == 0 else vr(D2)}")
        a("  s_barrier")
        a(f"  v_lshlrev_b32 v{T0}, 3, v{N}\n  v_add_u32 v{T0}, {H_QS}, v{T0}\n  ds_read_b64 {vr(ST,2)}, v{T0}\n  s_waitcnt lgkmcnt(0)")
        for r in range(4): a(f"  v_fma_f32 v{D1+r}, -v{ST}, v{D2+r}, v{D1+r}")
        for r in range(4): a(f"  v_mul_f32 v{D1+r}, v{ST+1}, v{D1+r}")
        a(f"  v_cvt_pk_bf16_f32 v{D2}, v{D1}, v{D1+1}\n  v_cvt_pk_bf16_f32 v{D2+1}, v{D1+2}, v{D1+3}")
        a(f"  v_min_u32 v{D2}, -2, v{D2}\n  v_min_u32 v{D2+1}, -2, v{D2+1}\n  s_mov_b32 s62, {RQ_OFF}")
        a(f"  buffer_store_dwordx2 {vr(D2,2)}, v{FL}, {sr(R_WS)}, s62 offen sc1")
        self.stamp(2)
        hv = self.lab("haveflags")
        a(f"  s_waitcnt vmcnt(1)\n  v_cmp_ne_u32 vcc, s{S_NONCE}, v9\n  s_cbranch_vccz {hv}")
        self.wait_flags(9, T3)
        a(f"{hv}:\n  s_mov_b32 s62, {RQ_OFF}")
        self.gather_frags(12, AF, L16, 62, T0, "q", sleep=cfg.qsleep)
        self.stamp(3)
        a("  s_barrier")
        for j in range(12):
            a(f"  ds_read_b128 {vr(WKF+4*j)}, v{IA+(j&3)} offset:{H_WKI + (j>>2)*4096}")
        for j in range(12):
            dd = D1 if j % 2 == 0 else D2
            a(f"  s_waitcnt lgkmcnt({11-j})")
            a(f"  v_mfma_f32_16x16x32_bf16 {vr(dd)}, {vr(WKF+4*j)}, {vr(AF+4*j)}, {'0' if j < 2 else vr(dd)}")
        sc = f32(384 ** -0.5 * LOG2E)
        for r in range(4): a(f"  v_add_f32 v{D1+r}, v{D1+r}, v{D2+r}")
        for r in range(4): a(f"  v_mul_f32 v{D1+r}, {sc}, v{D1+r}")
        a(f"  v_cvt_pk_bf16_f32 v{D2}, v{D1}, v{D1+1}\n  v_cvt_pk_bf16_f32 v{D2+1}, v{D1+2}, v{D1+3}")
        a(f"  v_min_u32 v{D2}, -2, v{D2}\n  v_min_u32 v{D2+1}, -2, v{D2+1}\n  s_mov_b32 s62, {RQK_OFF}")
        a(f"  buffer_store_dwordx2 {vr(D2,2)}, v{FL}, {sr(R_WS)}, s62 offen sc1")
        self.stamp(4)
        a("  s_branch L_hwvo")
        a("L_hb2:\n  s_waitcnt vmcnt(0)\n  s_barrier")
        a("L_hwvo:")
        if cfg.cut >= 2: a("  s_branch L_hdone")
        a(f"  s_cmp_eq_u32 s{S_WAVE}, 3\n  s_cbranch_scc0 L_hwv2")
        srd(a, R_E, P_WO, W_BYTES)
        for k in range(12):
            a(f"  s_mov_b32 m0, {H_WOI + k*1024}\n  s_mov_b32 s62, {k*32*768}\n  buffer_load_dwordx4 v{DS}, {sr(R_E)}, s62 offen{' nt' if cfg.hnt else ''} lds")
        a("L_hwv2:")
        a(f"  s_mul_i32 s60, s{S_WAVE}, {48*768}\n  s_mul_i32 s61, s{S_WAVE}, 12288\n  s_add_u32 s61, s61, {H_WV}")
        for th in range(3):
            for q4 in range(4): self.img_dma1(R_D, 0, 60, VS0, VS1, th, q4, ldsreg=61)
        a("  s_waitcnt vmcnt(12)\n  s_barrier")
        for j in range(12):
            a(f"  ds_read_b64_tr_b16 {vr(TR+4*j,2)}, v{TA} offset:{H_WOI + j*1024}")
            a(f"  ds_read_b64_tr_b16 {vr(TR+4*j+2,2)}, v{TA} offset:{H_WOI + j*1024 + 128}")
            if j == 6: a("  s_waitcnt lgkmcnt(0)")
        for m in range(4): a(f"  v_add_u32 v{IA+m}, s61, v{IA+m}")
        a(f"  v_mul_u32_u24 v{T0}, 784, v{N}\n  v_lshl_add_u32 v{T0}, v{Gq}, 3, v{T0}\n  s_mul_i32 s62, s{S_WAVE}, 96\n  s_add_u32 s62, s62, {H_WT}\n  v_add_u32 v{T3}, s62, v{T0}")
        for tau in range(3):
            if tau < 2: a(f"  s_add_u32 s60, s60, {16*768}")
            for th in range(3):
                a(f"  s_waitcnt vmcnt({8 if tau < 2 else 8 - 4*th})")
                for m in range(4): a(f"  ds_read_b128 {vr(WKF+4*m)}, v{IA+m} offset:{th*4096}")
                a("  s_waitcnt lgkmcnt(0)")
                if tau < 2:
                    for q4 in range(4): self.img_dma1(R_D, 0, 60, VS0, VS1, th, q4, ldsreg=61)
                for m in range(4):
                    j = 4 * th + m
                    a(f"  v_mfma_f32_16x16x32_bf16 {vr(D1)}, {vr(WKF+4*m)}, {vr(TR+4*j)}, {'0' if j == 0 else vr(D1)}")
            a(f"  v_cvt_pk_bf16_f32 v{D2}, v{D1}, v{D1+1}\n  v_cvt_pk_bf16_f32 v{D2+1}, v{D1+2}, v{D1+3}")
            a(f"  ds_write_b64 v{T3}, {vr(D2,2)} offset:{tau*32}")
        a("  s_waitcnt lgkmcnt(0)\n  s_barrier")
        self.stamp(5)
        if cfg.cut >= 1: a("  s_branch L_hdone")
        a(f"  s_cmp_lg_u32 s{S_WAVE}, 0\n  s_cbranch_scc1 L_hdone")
        a(f"  v_mul_u32_u24 v{T0}, 784, v{N}\n  v_lshl_add_u32 v{T0}, v{Gq}, 4, v{T0}\n  v_add_u32 v{T0}, {H_WT}, v{T0}")
        for j in range(12): a(f"  ds_read_b128 {vr(WKF+4*j)}, v{T0} offset:{j*64}")
        a(f"  v_mul_u32_u24 v{T3}, 768, v{N}\n  v_lshl_add_u32 v{T3}, v{Gq}, 3, v{T3}\n  s_lshl_b32 s61, s{S_IDX}, 5")
        a(f"  buffer_load_dwordx2 {vr(QF,2)}, v{T3}, {sr(R_A)}, s61 offen")
        a("  s_waitcnt vmcnt(0) lgkmcnt(0)")
        a(f"  v_lshlrev_b32 v{QF+4}, 16, v{QF}\n  v_and_b32 v{QF+5}, 0xffff0000, v{QF}\n  v_lshlrev_b32 v{QF+6}, 16, v{QF+1}\n  v_and_b32 v{QF+7}, 0xffff0000, v{QF+1}")
        a(f"  v_mul_u32_u24 v{T2}, 768, v{N}\n  v_lshl_add_u32 v{T2}, v{Gq}, 4, v{T2}\n  s_mov_b32 s62, {RCTX_OFF}")
        if cfg.c1sleep:
            lp, dn = self.lab("c1"), self.lab("c1d")
            a(f"  s_mov_b32 s{S_SPIN}, 0\n{lp}:\n  buffer_load_dword v{AF}, v{T2}, {sr(R_WS)}, s62 offen sc1")
            self.spin_guard(dn)
            a(f"  s_waitcnt vmcnt(0)\n  v_cmp_ne_u32 vcc, -1, v{AF}\n  s_cbranch_vccnz {dn}\n  s_sleep {cfg.c1sleep}\n  s_branch {lp}\n{dn}:\n  s_waitcnt vmcnt(0)")
        self.gather_frags(12, AF, T2, 62, T0, "c", rowmajor=True, sleep=cfg.csleep)
        self.stamp(6)
        for j in range(12):
            dd = D1 if j % 2 == 0 else D2
            c1 = vr(QF+4) if j == 0 else ("0" if j == 1 else vr(dd))
            a(f"  v_mfma_f32_16x16x32_bf16 {vr(dd)}, {vr(WKF+4*j)}, {vr(AF+4*j)}, {c1}")
        for h in (0, 2): self.pk("v_pk_add_f32", D1 + h, D1 + h, D2 + h)
        a(f"  v_cvt_pk_bf16_f32 v{D2}, v{D1}, v{D1+1}\n  v_cvt_pk_bf16_f32 v{D2+1}, v{D1+2}, v{D1+3}")
        a(f"  buffer_store_dwordx2 {vr(D2,2)}, v{T3}, {sr(R_F)}, s61 offen")
        nn = self.lab("nononce")
        a(f"  s_cmp_lg_u32 s{S_IDX}, 0\n  s_cbranch_scc1 {nn}")
        a(f"  buffer_store_dword v15, v{ZERO}, {sr(R_WS)}, 0 offen offset:{NONCE_OFF} sc1\n{nn}:")
        a("L_hdone:")
        self.stamp(9); self.stamp_flush((0, 0, 2, (0, 1, 3, 4, 5, 6)))
        a("  s_endpgm")

    def collector(self):
        a = self.a
        a("L_collect:")
        a(f"  s_cmp_lg_u32 s{S_WAVE}, 0\n  s_cbranch_scc1 L_end\n  s_waitcnt lgkmcnt(0)")
        srd(a, R_WS, P_WS, WS_BYTES)
        a(f"  v_mov_b32 v2, 0\n  buffer_load_dword v3, v2, {sr(R_WS)}, 0 offen offset:{NONCE_OFF} sc1")
        self.flag_addr(4)
        a(f"  s_waitcnt vmcnt(0)\n  v_add_u32 v3, 1, v3\n  v_readfirstlane_b32 s{S_NONCE}, v3")
        self.wait_flags(5, 4)
        a(f"  s_mov_b32 s62, {GO_OFF}\n  s_mov_b64 exec, 1\n  buffer_store_dword v3, v2, {sr(R_WS)}, s62 offen sc1")
        a("  s_endpgm")

    def build(self):
        a = self.a
        hdr = open("standalone__detection_seg_dino__vision.s.ref").read().split("\n")
        for line in hdr:
            if line.startswith("; @launch"): break
            a(line)
        a("; @" + f"launch grid=(256,1,1) block=(512,1,1) lds={LDS_BYTES}")
        a('.amdgcn_target "amdgcn-amd-amdhsa--gfx950"\n.text')
        a(f".globl {KNAME}\n.p2align 8\n.type {KNAME},@function\n{KNAME}:")
        n0 = len(a.L)
        self.prologue(); self.streamer(); self.helper(); self.collector()
        a("L_end:\n  s_endpgm\nL_code_end:")
        body, added = hazard.fix(a.L[n0:])
        a.L = a.L[:n0] + body
        a('.section .rodata,"a"\n.p2align 6')
        a(f".amdhsa_kernel {KNAME}")
        a("  .amdhsa_next_free_vgpr 256\n  .amdhsa_next_free_sgpr 102\n  .amdhsa_accum_offset 256")
        a("  .amdhsa_group_segment_fixed_size 0\n  .amdhsa_kernarg_size 80\n  .amdhsa_user_sgpr_count 2")
        a("  .amdhsa_user_sgpr_kernarg_segment_ptr 1\n  .amdhsa_system_sgpr_workgroup_id_x 1")
        a("  .amdhsa_float_denorm_mode_32 3")
        a(".end_amdhsa_kernel")
        return a.text(), added

def generate(path, **kw):
    cfg = Cfg()
    for k, v in kw.items(): setattr(cfg, k, v)
    text, added = G(cfg).build()
    open(path, "w").write(text)
    return added

if __name__ == "__main__":
    path = sys.argv[1] if len(sys.argv) > 1 else "standalone__detection_seg_dino__vision.s"
    kw = {}
    for x in sys.argv[2:]:
        k, v = x.split("="); kw[k] = eval(v)
    print("nops added:", generate(path, **kw))
```

```python
import sys, struct
from asmlib import Asm
import hazard

KNAME = "standalone__detection_seg_dino__vision_kernel"

NH, NS, NPAIR = 24, 228, 9
F0_BYTES, F1_BYTES, W_BYTES, Q_BYTES = 50331648, 12582912, 294912, 12288
WS_BYTES = 268435456

NONCE_OFF = 0
HINT_OFF = 1024
RQ_OFF, RQK_OFF, RCTX_OFF = 4096, 20480, 36864
GO_OFF = 53248
FLAG_OFF = 49152
LSE_OFF = 65536
PART_OFF = 131072
PART_STRIDE = NS * 128
STAMP_OFF = 8 << 20

SLOT = 12288
STG = 12 * SLOT
TOP = 13 * SLOT
STAT = TOP
NONCE_LDS = TOP + 2304
FLAG_LDS = TOP + 2308
QS_LDS = TOP + 2320
MXW = TOP + 2400
MX = TOP + 2560
RED = TOP + 3072
RED2 = STG + 8192
LDS_BYTES = 163840
H_QI, H_WKI, H_WQI, H_WOI, H_WT, H_WV = 0, 12288, 24576, 36864, 49152, 65536
H_QS = 61952

LAG_LIMIT = 40.0
LOW_LIMIT = -60.0
KEYC = 0x9e3779b1
LOG2E = 1.4426950408889634
def f32(x): return "0x%08x" % struct.unpack("<I", struct.pack("<f", x))[0]

class Cfg:
    nt = True
    stamp = False
    depth = 5
    hx0 = 0
    hnx = 4
    hint = True
    codepf = True
    nostream = False
    dbgstamp = False
    pfrows = 4
    cut = 0
    lite = False
    trig_a = 2
    trig_b = 4
    qsleep = 4
    c1sleep = 6
    lag = True
    prefuse = True
    late = False
    sched = 1
    streamonly = False
    rsleep = 0
    csleep = 0
    ext7 = 0
    ext8 = 0
    zref = True
    redsel = 0
    fdiag = False
    hdiag = False
    gdiag = False
    rdiag = False
    bdiag_sb = 4
    bdiag = False
    selpoll = 2
    hnt = False

S_WAVE = 3
P_Q, P_F0, P_F1, P_WQ, P_WK, P_WV, P_WO, P_OUT, P_DBG, P_WS = 4, 6, 8, 10, 12, 14, 16, 18, 20, 22
R_A, R_B, R_WS, R_DBG, R_C, R_D, R_E, R_F = 24, 28, 32, 36, 40, 44, 48, 52
S_IDX, S_ONELO, S_ONEHI = 56, 57, 58
S_K, S_QBASE, S_LINK = 66, 67, 68
S_NONCE, S_SPIN = 70, 71
S_TI, S_TB, S_PB, S_BIAS, S_T, S_P0, S_SB, S_W0, S_NP, S_PVB, S_LAST = 72, 73, 74, 75, 76, 77, 78, 79, 80, 81, 59
S_SST = 48
S_STA, S_PAIR, S_POFF = 49, 52, 53
S_LINK2 = 54
S_LOW = 47
S_RHO = 79
S_QMASK = 50
SETA, SETB = 40, 44
STAMP0 = 82
SPIN_CAP = 200000
import os
if os.environ.get('CAP'): SPIN_CAP = int(os.environ['CAP'])

def srd(a, s, ptr, nbytes):
    a(f"  s_mov_b32 s{s}, s{ptr}\n  s_mov_b32 s{s+1}, s{ptr+1}\n  s_mov_b32 s{s+2}, {nbytes}\n  s_mov_b32 s{s+3}, 0x20000")
def vr(b, n=4): return f"v[{b}:{b+n-1}]"
def sr(b, n=4): return f"s[{b}:{b+n-1}]"

class G:
    def __init__(self, cfg):
        self.cfg = cfg; self.a = Asm(); self.uid = 0
    def lab(self, name):
        self.uid += 1
        return f"L_{name}_{self.uid}"
    def stamp(self, i):
        if self.cfg.fdiag: return
        if self.cfg.lite and i not in (0, 9): return
        if self.cfg.stamp and not self.cfg.bdiag:
            self.a(f"  s_memrealtime s[{STAMP0+2*i}:{STAMP0+2*i+1}]\n  s_waitcnt lgkmcnt(0)")
    def fstamp(self, i):
        if self.cfg.fdiag: self.a(f"  s_memtime s[{STAMP0+2*i}:{STAMP0+2*i+1}]\n  s_waitcnt lgkmcnt(0)")
    def cstamp(self, i):
        if self.cfg.bdiag:
            l = self.lab("cs")
            self.a(f"  s_cmp_lg_u32 s{S_SB}, {self.cfg.bdiag_sb}\n  s_cbranch_scc1 {l}\n  s_memtime s[{STAMP0+2*i}:{STAMP0+2*i+1}]\n  s_waitcnt lgkmcnt(0)\n{l}:")
    def stamp_init(self):
        if self.cfg.stamp:
            for i in range(20): self.a(f"  s_mov_b32 s{STAMP0+i}, 0")
    def stamp_flush(self, dbg=None):
        if not self.cfg.stamp: return
        a = self.a
        if self.cfg.dbgstamp and dbg:
            who, wave, first, which = dbg
            sk = self.lab("nodbg")
            a(f"  s_cmp_lg_u32 s{S_IDX}, {who}\n  s_cbranch_scc1 {sk}\n  s_cmp_lg_u32 s{S_WAVE}, {wave}\n  s_cbranch_scc1 {sk}")
            srd(a, R_DBG, P_DBG, 256)
            a("  v_mov_b32 v1, 0")
            for i, st in enumerate(which):
                a(f"  v_mov_b32 v2, s{STAMP0+2*st}\n  buffer_store_dword v2, v1, {sr(R_DBG)}, 0 offen offset:{4*(first+i)}\n  s_nop 0")
            a(f"{sk}:")
        if self.cfg.dbgstamp: return
        if self.cfg.lite:
            if dbg[0] != 0: return
            sk = self.lab("nolite")
            a(f"  s_cmp_lg_u32 s{S_WAVE}, 0\n  s_cbranch_scc1 {sk}")
            a("  s_lshl_b32 s60, s2, 3\n  s_lshl_b32 s60, s60, 6")
            a(f"  s_add_u32 s60, s60, {STAMP_OFF}\n  v_mov_b32 v1, 0\n  v_mov_b32 v2, s{STAMP0}\n  v_mov_b32 v3, s{STAMP0+18}")
            a(f"  buffer_store_dword v2, v1, {sr(R_WS)}, s60 offen\n  buffer_store_dword v3, v1, {sr(R_WS)}, s60 offen offset:36\n{sk}:")
            return
        a("  s_lshl_b32 s60, s2, 3\n  s_add_u32 s60, s60, s3\n  s_lshl_b32 s60, s60, 6")
        a(f"  s_add_u32 s60, s60, {STAMP_OFF}\n  v_mov_b32 v1, 0")
        for i in range(10):
            a(f"  v_mov_b32 v2, s{STAMP0+2*i}\n  buffer_store_dword v2, v1, {sr(R_WS)}, s60 offen offset:{4*i}\n  s_nop 0")

    def allred_g(self, x, t, op):
        a = self.a
        a(f"  v_mov_b32 v{t}, v{x}\n  v_permlane16_swap_b32 v{t}, v{x}\n  {op} v{x}, v{t}, v{x}")
        a(f"  v_mov_b32 v{t}, v{x}\n  v_permlane32_swap_b32 v{t}, v{x}\n  {op} v{x}, v{t}, v{x}")
    def valid_check(self, base, n, t, retry):
        a = self.a
        a(f"  v_max3_u32 v{t}, v{base}, v{base+1}, v{base+2}")
        h = n // 2
        a(f"  v_max3_u32 v{t+1}, v{base+h}, v{base+h+1}, v{base+h+2}")
        i, k = 3, h + 3
        while i < h or k < n:
            if i + 1 < h: a(f"  v_max3_u32 v{t}, v{t}, v{base+i}, v{base+i+1}"); i += 2
            elif i < h: a(f"  v_max_u32 v{t}, v{t}, v{base+i}"); i += 1
            if k + 1 < n: a(f"  v_max3_u32 v{t+1}, v{t+1}, v{base+k}, v{base+k+1}"); k += 2
            elif k < n: a(f"  v_max_u32 v{t+1}, v{t+1}, v{base+k}"); k += 1
        a(f"  v_max_u32 v{t}, v{t}, v{t+1}\n  v_cmp_eq_u32 vcc, -1, v{t}\n  s_cbranch_vccnz {retry}")
    def spin_guard(self, done):
        self.a(f"  s_add_u32 s{S_SPIN}, s{S_SPIN}, 1\n  s_cmp_gt_u32 s{S_SPIN}, {SPIN_CAP}\n  s_cbranch_scc1 {done}")
    def flag_addr(self, va):
        self.a(f"  v_min_u32 v{va}, {NH-1}, v0\n  v_lshlrev_b32 v{va}, 7, v{va}\n  v_add_u32 v{va}, {FLAG_OFF}, v{va}")
    def wait_flags(self, vd, va, first_issued=False):
        a = self.a
        lp, ck, dn = self.lab("flg"), self.lab("flgc"), self.lab("flgd")
        a(f"  s_mov_b32 s{S_SPIN}, 0")
        if first_issued: a(f"  s_branch {ck}")
        a(f"{lp}:\n  buffer_load_dword v{vd}, v{va}, {sr(R_WS)}, 0 offen sc1")
        self.spin_guard(dn)
        a(f"{ck}:\n  s_waitcnt vmcnt(0)\n  v_cmp_ne_u32 vcc, s{S_NONCE}, v{vd}\n  s_cbranch_vccnz {lp}")
        a(f"{dn}:\n  s_waitcnt vmcnt(0)")
    def gather_frags(self, nfr, dst, vaddr, off0, t, name, rowmajor=False, sleep=0):
        a = self.a
        lp, dn, l0 = self.lab(name), self.lab(name + "d"), self.lab(name + "0")
        a(f"  s_add_u32 s63, s{off0}, 4096\n  s_add_u32 s64, s{off0}, 8192\n  s_mov_b32 s{S_SPIN}, 0")
        if sleep: a(f"  s_branch {l0}\n{lp}:\n  s_sleep {sleep}\n{l0}:")
        else: a(f"{lp}:")
        for j in range(nfr):
            so = (f"s{off0}", "s63", "s64")[j >> 2]
            if rowmajor: a(f"  buffer_load_dwordx4 {vr(dst+4*j)}, v{vaddr}, {sr(R_WS)}, s{off0} offen offset:{j*64} sc1")
            else: a(f"  buffer_load_dwordx4 {vr(dst+4*j)}, v{vaddr}, {sr(R_WS)}, {so} offen offset:{(j&3)*1024} sc1")
        self.spin_guard(dn)
        a("  s_waitcnt vmcnt(0)")
        self.valid_check(dst, 4 * nfr, t, lp)
        a(f"{dn}:\n  s_waitcnt vmcnt(0)")

    def prologue(self):
        a = self.a; cfg = self.cfg
        a("  s_cmp_ge_u32 s2, 256\n  s_cbranch_scc1 L_end")
        a("  s_load_dwordx16 s[4:19], s[0:1], 0\n  s_load_dwordx4 s[20:23], s[0:1], 64")
        if cfg.codepf:
            l = self.lab("pc")
            a(f"  s_cmp_ge_u32 s2, {8*cfg.pfrows}\n  s_cbranch_scc1 L_nopf")
            a(f"  s_getpc_b64 s[60:61]\n{l}:\n  s_sub_u32 s60, s60, {l}-{KNAME}\n  s_subb_u32 s61, s61, 0")
            a(f"  s_bfe_u32 s62, s2, 0x20003\n  s_lshl_b32 s62, s62, 13\n  v_lshl_add_u32 v246, v0, 4, s62")
            a(f"  v_min_u32 v246, L_code_end-{KNAME}-16, v246\n  global_load_dwordx4 v[168:171], v246, s[60:61]")
            a("L_nopf:")
        a("  v_lshrrev_b32 v1, 6, v0\n  v_and_b32 v0, 63, v0")
        a(f"  v_readfirstlane_b32 s{S_WAVE}, v1")
        a(f"  s_mov_b32 s{S_ONELO}, 0x00003f80\n  s_mov_b32 s{S_ONEHI}, 0x3f800000")
        self.stamp_init(); self.stamp(0)
        rows = NH // cfg.hnx
        a(f"  s_and_b32 s60, s2, 7\n  s_lshr_b32 s61, s2, 3\n  s_sub_u32 s62, s60, {cfg.hx0}")
        a(f"  s_cmp_lt_u32 s61, {rows}\n  s_cbranch_scc0 L_late")
        a(f"  s_cmp_lt_u32 s62, {cfg.hnx}\n  s_cbranch_scc0 L_early")
        a(f"  s_mul_i32 s{S_IDX}, s61, {cfg.hnx}\n  s_add_u32 s{S_IDX}, s{S_IDX}, s62\n  s_branch L_helper")
        a("L_early:")
        a(f"  s_cmp_lt_u32 s60, {cfg.hx0}\n  s_cselect_b32 s62, 0, {cfg.hnx}\n  s_sub_u32 s62, s60, s62")
        a(f"  s_mul_i32 s{S_IDX}, s61, {8-cfg.hnx}\n  s_add_u32 s{S_IDX}, s{S_IDX}, s62\n  s_branch L_stream")
        a(f"L_late:\n  s_sub_u32 s{S_IDX}, s2, {NH}")
        a(f"  s_cmp_eq_u32 s{S_IDX}, {NS}\n  s_cbranch_scc1 L_collect")
        a(f"  s_cmp_ge_u32 s{S_IDX}, {NS}\n  s_cbranch_scc1 L_end")
        a("L_stream:")
        if cfg.nostream: a("  s_branch L_end")

    def code_prefetch(self, vt, vd):
        if not self.cfg.codepf: return
        a = self.a
        l = self.lab("pc")
        a(f"  s_getpc_b64 s[60:61]\n{l}:")
        a(f"  s_sub_u32 s60, s60, {l}-{KNAME}\n  s_subb_u32 s61, s61, 0")
        a(f"  s_lshr_b32 s62, s2, 3\n  s_lshl_b32 s62, s62, 10\n  v_lshl_add_u32 v{vt}, v0, 4, s62")
        a(f"  v_min_u32 v{vt}, L_code_end-{KNAME}-16, v{vt}")
        a(f"  global_load_dwordx4 {vr(vd)}, v{vt}, s[60:61]")

    V_OFF1, V_OFF0, V_SA = 2, 3, 255
    V_WA = (4, 5, 253, 254)
    V_RA, V_PA = 6, 10
    V_PADDR, V_MXW, V_MXR = 13, 14, 15
    V_ST = 128
    V_BUF = (16, 36, 56)
    V_PU, V_TMP, V_OUT = 144, 152, 160
    V_LT, V_AT = 76, 78
    V_QK, V_A, V_ACC = 80, 128, 176
    V_S, V_SUM, V_SQ4, V_SQ, V_MU, V_RS, V_LG = 188, 192, 196, 200, 204, 208, 212
    V_ONES = 216
    V_M, V_AL, V_L2, V_AM2, V_QS, V_CINV, V_CEPS, V_BIAS = 220, 222, 224, 226, 228, 230, 232, 234
    V_T0, V_T1, V_T2, V_ONEF = 236, 237, 238, 239
    V_MXV, V_TA, V_L16 = 240, 248, 252
    V_PUB = 196
    V_REDW = 198
    V_STR = 1

    def task_bases(self, st, kconst, kreg=True):
        a = self.a
        if kreg: a(f"  s_add_u32 s62, s{S_K}, {kconst}")
        else: a(f"  s_mov_b32 s62, {kconst}")
        a(f"  s_lshl_b32 s63, s62, 1\n  s_add_u32 s63, s63, s{S_QBASE}")
        a(f"  s_mul_i32 s{st}, s63, 3072\n  s_lshr_b32 s64, s63, 5\n  s_mul_i32 s64, s64, 393216")
        a(f"  s_and_b32 s65, s63, 31\n  s_mul_i32 s65, s65, 6144\n  s_add_u32 s{st+1}, s64, s65")
        a(f"  s_cmp_gt_u32 s62, {NPAIR-1}\n  s_cselect_b32 s{st}, 0x80000000, s{st}\n  s_cselect_b32 s{st+1}, 0x80000000, s{st+1}")
        a(f"  s_add_u32 s{st+2}, s{st+1}, 196608")
    def issue_piece(self, st, par, i):
        a = self.a
        nt = " nt" if self.cfg.nt else ""
        b = self.V_BUF[par] + 4 * i
        if i == 0:
            a(f"  buffer_load_dwordx4 {vr(b)}, v{self.V_OFF1}, {sr(R_B)}, s{st} offen{nt}")
        else:
            t = i - 1
            off = " offset:768" if t & 1 else ""
            a(f"  buffer_load_dwordx4 {vr(b)}, v{self.V_OFF0}, {sr(R_A)}, s{st+1+(t>>1)} offen{off}{nt}")

    def fuse_sub(self, par, d, name, mode="roll"):
        a = self.a
        hold, roll = mode == "hold", mode == "roll"
        b = self.V_BUF[par]; u = self.V_PU; t8 = self.V_TMP
        SS, SQ, R, U = self.V_ST, self.V_ST + 4, self.V_ST + 8, self.V_ST + 12
        a0 = d // 5
        a(f"{name}:")
        if roll:
            a(f"  s_mov_b32 s{SETA}, s{SETB}\n  s_mov_b32 s{SETA+1}, s{SETB+1}\n  s_mov_b32 s{SETA+2}, s{SETB+2}")
            self.task_bases(SETB, a0 + 1)
        def nxt(i):
            if not roll: return
            aa, pi = (i + d) // 5, (i + d) % 5
            self.issue_piece(SETA if aa == a0 else SETB, par ^ (aa & 1), pi)
        def dpp(dst, src, ctrl, bank):
            a(f"  v_add_f32_dpp v{dst}, v{src}, v{src} {ctrl} row_mask:0xf bank_mask:{bank:#x}")
        a(f"  s_waitcnt vmcnt({d-1})")
        for i in range(4):
            a(f"  v_lshlrev_b32 v{u+2*i}, 16, v{b+i}\n  v_and_b32 v{u+2*i+1}, 0xffff0000, v{b+i}")
        nxt(0)
        for t in range(4):
            c = b + 4 + 4 * t; o = c if hold else self.V_OUT + 4 * (t & 1)
            a(f"  s_waitcnt vmcnt({d-1 if roll else d-2-t})")
            for i in range(4):
                a(f"  v_dot2_f32_bf16 v{t8+2*i}, v{c+i}, s{S_ONELO}, v{u+2*i}")
                a(f"  v_dot2_f32_bf16 v{t8+2*i+1}, v{c+i}, s{S_ONEHI}, v{u+2*i+1}")
            nxt(t + 1)
            for i in range(4):
                a(f"  v_cvt_pk_bf16_f32 v{o+i}, v{t8+2*i}, v{t8+2*i+1}")
            if not hold: a(f"  ds_write_b128 v{self.V_WA[t]}, {vr(o)} offset:{t*768}")
            if t > 0: dpp(R + t - 1, SS + t - 1, "row_ror:8", 0x3)
            for i in range(4):
                a(f"  v_dot2_f32_bf16 v{SS+t}, v{o+i}, v{self.V_ONES}, {'0' if i == 0 else 'v%d' % (SS+t)}")
                a(f"  v_dot2_f32_bf16 v{SQ+t}, v{o+i}, v{o+i}, {'0' if i == 0 else 'v%d' % (SQ+t)}")
            if t > 0: dpp(R + t - 1, SQ + t - 1, "row_ror:8", 0xc)
        WA = self.V_WA
        if hold: a("  s_mov_b32 s62, 0")
        else: a(f"  s_mov_b32 s62, 24576\n  s_cmp_eq_u32 s{S_K}, 5\n  s_cselect_b32 s62, {(-5*24576) & 0xffffffff:#x}, s62")
        dpp(U, R, "row_half_mirror", 0x5)
        dpp(R + 3, SS + 3, "row_ror:8", 0x3)
        a(f"  v_add_u32 v{WA[0]}, s62, v{WA[0]}")
        dpp(U, R + 1, "row_half_mirror", 0xa)
        dpp(R + 3, SQ + 3, "row_ror:8", 0xc)
        dpp(U + 1, R + 2, "row_half_mirror", 0x5)
        a(f"  v_add_u32 v{WA[1]}, s62, v{WA[1]}")
        dpp(U, U, "quad_perm:[1,0,3,2]", 0xf)
        dpp(U + 1, R + 3, "row_half_mirror", 0xa)
        a(f"  v_add_u32 v{WA[2]}, s62, v{WA[2]}")
        dpp(U, U, "quad_perm:[2,3,0,1]", 0xf)
        dpp(U + 1, U + 1, "quad_perm:[1,0,3,2]", 0xf)
        a(f"  v_add_u32 v{WA[3]}, s62, v{WA[3]}\n  s_mov_b64 exec, s[{S_QMASK}:{S_QMASK+1}]\n  ds_add_f32 v{self.V_SA}, v{U}\n  s_mov_b64 exec, -1")
        dpp(U + 1, U + 1, "quad_perm:[2,3,0,1]", 0xf)
        a(f"  s_add_u32 s{S_K}, s{S_K}, 1")
        a(f"  s_mov_b64 exec, s[{S_QMASK}:{S_QMASK+1}]\n  ds_add_f32 v{self.V_SA}, v{U+1} offset:8\n  s_mov_b64 exec, -1")
        a(f"  v_add_u32 v{self.V_SA}, 256, v{self.V_SA}")
        a(f"  s_setpc_b64 s[{S_LINK}:{S_LINK+1}]")

    def stream_consts(self):
        a = self.a
        a("  v_and_b32 v240, 15, v0\n  v_lshrrev_b32 v241, 4, v0")
        a("  v_and_b32 v242, 7, v240\n  v_lshlrev_b32 v242, 1, v242\n  v_mul_u32_u24 v243, 768, v240")
        for m in range(4):
            a(f"  v_add_u32 v244, {4*m}, v241\n  v_xor_b32 v244, v244, v242\n  v_lshl_add_u32 v{self.V_RA+m}, v244, 4, v243")
        a("  v_lshrrev_b32 v242, 2, v240\n  v_lshl_add_u32 v242, v241, 2, v242\n  v_mul_u32_u24 v243, 768, v242")
        a("  v_and_b32 v242, 7, v242\n  v_lshlrev_b32 v242, 1, v242")
        a("  v_and_b32 v244, 3, v240\n  v_lshrrev_b32 v245, 1, v244\n  v_and_b32 v244, 1, v244\n  v_lshl_add_u32 v243, v244, 3, v243")
        for tau in range(3):
            a(f"  s_mul_i32 s62, s{S_WAVE}, 3\n  s_add_u32 s62, s62, {tau}")
            a("  s_lshl_b32 s63, s62, 1\n  s_and_b32 s63, s63, 14\n  s_lshr_b32 s62, s62, 3\n  s_lshl_b32 s62, s62, 8")
            a(f"  v_xor_b32 v244, s63, v242\n  v_or_b32 v244, v244, v245\n  v_lshl_add_u32 v244, v244, 4, v243\n  v_add_u32 v{self.V_PA+tau}, s62, v244")
        a(f"  v_lshlrev_b32 v{self.V_L16}, 4, v0\n  v_add_u32 v{self.V_PADDR}, {STG}, v{self.V_L16}\n  v_lshlrev_b32 v{self.V_STR}, 4, v241")
        a(f"  v_lshlrev_b32 v244, 5, v240\n  v_add_u32 v{self.V_MXR}, {MX}, v244")
        a(f"  s_lshl_b32 s62, s{S_WAVE}, 2\n  v_add_u32 v{self.V_MXW}, s62, v{self.V_MXR}")
        for i in range(4): a(f"  v_mov_b32 v{self.V_ONES+i}, 0x3f803f80")
        a(f"  v_mov_b32 v{self.V_ONEF}, 1.0\n  v_mov_b32 v{self.V_CINV}, {f32(1/384)}\n  v_mov_b32 v{self.V_CEPS}, {f32(1e-5)}")
        for i in range(12): a(f"  v_mov_b32 v{self.V_ACC+i}, 0")
        a(f"  v_mov_b32 v{self.V_M}, 0xff800000")
        for r in (self.V_L2, self.V_L2+1, self.V_AM2, self.V_AM2+1, self.V_M+1, self.V_AL+1, self.V_QS+1, self.V_CINV+1, self.V_CEPS+1, self.V_BIAS+1):
            a(f"  v_mov_b32 v{r}, 0")

    def pk(self, op, d, x, y, z=None, bc=(), neg=()):
        n = 2 if z is None else 3
        ops = [x, y] + ([z] if z is not None else [])
        s = f"  {op} {vr(d,2)}, " + ", ".join(vr(o, 2) for o in ops)
        if bc: s += " op_sel_hi:[" + ",".join("0" if i in bc else "1" for i in range(n)) + "]"
        if neg:
            m = "[" + ",".join("1" if i in neg else "0" for i in range(n)) + "]"
            s += f" neg_lo:{m} neg_hi:{m}"
        self.a(s)

    def red_write(self, l, am, t):
        a = self.a
        a(f"  v_add_f32 v{t}, v{l}, v{l+1}\n  v_add_f32 v{t+1}, v{am}, v{am+1}")
        a(f"  v_permlane16_swap_b32 v{t}, v{t+1}\n  v_add_f32 v{t}, v{t}, v{t+1}")
        a(f"  v_mov_b32 v{t+1}, v{t}\n  v_permlane32_swap_b32 v{t+1}, v{t}\n  v_add_f32 v{t}, v{t}, v{t+1}")
        a(f"  ds_write_b32 v{self.V_REDW}, v{t}")

    def sphase_sub(self):
        a = self.a
        A, QK = self.V_A, self.V_QK
        S, SUM, SQ, MU, RS, LG, T1, T2 = self.V_S, self.V_SUM, self.V_SQ, self.V_MU, self.V_RS, self.V_LG, self.V_T1, self.V_T2
        a("L_sphase:")
        for m in range(4): a(f"  v_add_u32 v{self.V_TA+m}, s{S_TB}, v{self.V_RA+m}")
        a(f"  v_add_u32 v{T1}, s{S_STA}, v{self.V_STR}")
        a(f"  ds_read_b128 {vr(SUM)}, v{T1}\n  ds_read_b128 {vr(SQ)}, v{T1} offset:64")
        for j in range(12): a(f"  ds_read_b128 {vr(A+4*j)}, v{self.V_TA+(j&3)} offset:{(j>>2)*256}")
        a(f"  s_cmp_lt_u32 s{S_PAIR}, 2048\n  s_cselect_b32 s{S_BIAS}, 0, {f32(-1e30)}")
        a(f"  v_mov_b32 v{self.V_BIAS}, s{S_BIAS}\n  v_add_u32 v{T2}, s{S_POFF}, v{self.V_PADDR}")
        a("  s_waitcnt lgkmcnt(12)")
        stat = []
        for h in (0, 2): stat.append(lambda h=h: self.pk("v_pk_mul_f32", MU + h, SUM + h, self.V_CINV, bc=(1,)))
        for h in (0, 2): stat.append(lambda h=h: self.pk("v_pk_fma_f32", RS + h, SQ + h, self.V_CINV, self.V_CEPS, bc=(1, 2)))
        for h in (0, 2): stat.append(lambda h=h: self.pk("v_pk_fma_f32", RS + h, MU + h, MU + h, RS + h, neg=(0,)))
        for r in range(4): stat.append(lambda r=r: a(f"  v_max_f32 v{RS+r}, v{self.V_CEPS}, v{RS+r}"))
        for r in range(4): stat.append(lambda r=r: a(f"  v_rsq_f32 v{RS+r}, v{RS+r}"))
        for h in (0, 2): stat.append(lambda h=h: self.pk("v_pk_mul_f32", SUM + h, MU + h, self.V_QS, bc=(1,)))
        for j in range(12):
            a(f"  s_waitcnt lgkmcnt({11-j})")
            a(f"  v_mfma_f32_16x16x32_bf16 {vr(S)}, {vr(A+4*j)}, {vr(QK+4*j)}, {'0' if j == 0 else vr(S)}")
            for _ in range(2):
                if stat: stat.pop(0)()
        for h in (0, 2): self.pk("v_pk_add_f32", LG + h, S + h, SUM + h, neg=(1,))
        for h in (0, 2): self.pk("v_pk_fma_f32", LG + h, LG + h, RS + h, self.V_BIAS, bc=(2,))
        a(f"  s_setpc_b64 s[{S_LINK2}:{S_LINK2+1}]")

    def sp_sub(self):
        a = self.a
        MU, RS, LG, M, T0, T1, T2, MXV = self.V_MU, self.V_RS, self.V_LG, self.V_M, self.V_T0, self.V_T1, self.V_T2, self.V_MXV
        PT, LT, AT = MXV, self.V_LT, self.V_AT
        a("L_sp:")
        a(f"  s_call_b64 s[{S_LINK2}:{S_LINK2+1}], L_sphase")
        for h in (0, 2): self.pk("v_pk_add_f32", PT + h, LG + h, M, bc=(1,), neg=(1,))
        a(f"  v_max3_f32 v{T0}, v{PT}, v{PT+1}, v{PT+2}\n  v_max_f32 v{T0}, v{T0}, v{PT+3}")
        for r in range(4): a(f"  v_exp_f32 v{PT+r}, v{PT+r}")
        a(f"  v_cmp_lt_f32 vcc, {f32(LAG_LIMIT)}, v{T0}\n  v_cmp_gt_f32 s[60:61], s{S_LOW}, v{T0}\n  s_or_b64 vcc, vcc, s[60:61]")
        self.pk("v_pk_add_f32", LT, LT, PT); self.pk("v_pk_add_f32", LT, LT, PT + 2)
        for h in (0, 2): self.pk("v_pk_mul_f32", PT + h, PT + h, RS + h)
        a(f"  v_cvt_pk_bf16_f32 v{MXV+4}, v{PT}, v{PT+1}\n  v_cvt_pk_bf16_f32 v{MXV+5}, v{PT+2}, v{PT+3}")
        a(f"  ds_write_b64 v{T2}, {vr(MXV+4,2)}")
        for h in (0, 2): self.pk("v_pk_fma_f32", AT, PT + h, MU + h, AT)
        a(f"  s_cbranch_vccz L_sp_ret\n  v_mov_b32 v{T0}, {FLAG_LDS}\n  v_mov_b32 v{T1}, 1\n  ds_write_b32 v{T0}, v{T1}")
        a(f"L_sp_ret:\n  s_setpc_b64 s[{S_LINK}:{S_LINK+1}]")

    def batch_sub(self):
        a = self.a
        A = self.V_A
        MU, RS, LG = self.V_MU, self.V_RS, self.V_LG
        M, AL, L2, AM2, T0, T1, T2, MXV = self.V_M, self.V_AL, self.V_L2, self.V_AM2, self.V_T0, self.V_T1, self.V_T2, self.V_MXV
        PT = MXV
        a("L_batch:")
        self.cstamp(0)
        a(f"  s_sub_u32 s{S_TI}, s{S_WAVE}, s{S_W0}\n  s_cmp_ge_u32 s{S_TI}, s{S_T}\n  s_cbranch_scc1 L_b_bar2")
        a(f"  s_add_u32 s63, s{S_TI}, s{S_SB}\n  s_mul_i32 s{S_TB}, s63, {SLOT}")
        a(f"  s_lshl_b32 s62, s{S_TI}, 7\n  s_add_u32 s{S_STA}, s62, s{S_SST}")
        a(f"  s_lshr_b32 s62, s{S_TI}, 1\n  s_add_u32 s{S_PAIR}, s62, s{S_PB}")
        a(f"  s_lshl_b32 s62, s62, 10\n  s_and_b32 s63, s{S_TI}, 1\n  s_lshl_b32 s63, s63, 3\n  s_add_u32 s{S_POFF}, s62, s63")
        a(f"  s_call_b64 s[{S_LINK2}:{S_LINK2+1}], L_sphase")
        self.cstamp(1)
        a(f"  v_max3_f32 v{T0}, v{LG}, v{LG+1}, v{LG+2}\n  v_max_f32 v{T0}, v{T0}, v{LG+3}")
        self.allred_g(T0, T1, "v_max_f32")
        a(f"  ds_write_b32 v{self.V_MXW}, v{T0}")
        a("L_b_bar2:\n  s_waitcnt lgkmcnt(0)")
        self.cstamp(2)
        a("  s_barrier")
        self.cstamp(3)
        a(f"  ds_read_b128 {vr(MXV)}, v{self.V_MXR}\n  ds_read_b128 {vr(MXV+4)}, v{self.V_MXR} offset:16")
        a(f"  v_mov_b32 v{T0}, {FLAG_LDS}\n  v_mov_b32 v{T1}, 0\n  ds_write_b32 v{T0}, v{T1}")
        a("  s_waitcnt lgkmcnt(1)")
        a(f"  v_max3_f32 v{T0}, v{MXV}, v{MXV+1}, v{MXV+2}\n  v_max3_f32 v{T1}, v{MXV+3}, v{MXV+4}, v{MXV+5}")
        a(f"  v_max3_f32 v{T0}, v{T0}, v{MXV+6}, v{MXV+7}\n  v_max3_f32 v{T0}, v{T0}, v{T1}, v{M}")
        a(f"  v_sub_f32 v{AL}, v{M}, v{T0}\n  v_mov_b32 v{M}, v{T0}\n  v_exp_f32 v{AL}, v{AL}")
        self.cstamp(4)
        a(f"  s_cmp_ge_u32 s{S_TI}, s{S_T}\n  s_cbranch_scc1 L_b_nop")
        for h in (0, 2): self.pk("v_pk_add_f32", PT + h, LG + h, M, bc=(1,), neg=(1,))
        for r in range(4): a(f"  v_exp_f32 v{PT+r}, v{PT+r}")
        self.pk("v_pk_mul_f32", L2, L2, AL, bc=(1,)); self.pk("v_pk_mul_f32", AM2, AM2, AL, bc=(1,))
        self.pk("v_pk_add_f32", L2, L2, PT); self.pk("v_pk_add_f32", L2, L2, PT + 2)
        for h in (0, 2): self.pk("v_pk_mul_f32", PT + h, PT + h, RS + h)
        a(f"  v_cvt_pk_bf16_f32 v{MXV+4}, v{PT}, v{PT+1}\n  v_cvt_pk_bf16_f32 v{MXV+5}, v{PT+2}, v{PT+3}")
        a(f"  ds_write_b64 v{T2}, {vr(MXV+4,2)}")
        for h in (0, 2): self.pk("v_pk_fma_f32", AM2, PT + h, MU + h, AM2)
        a("  s_branch L_b_acc")
        a("L_b_nop:")
        self.pk("v_pk_mul_f32", L2, L2, AL, bc=(1,)); self.pk("v_pk_mul_f32", AM2, AM2, AL, bc=(1,))
        a("L_b_acc:")
        for i in range(0, 12, 2): self.pk("v_pk_mul_f32", self.V_ACC + i, self.V_ACC + i, AL, bc=(1,))
        a(f"  s_cmp_eq_u32 s{S_LAST}, 0\n  s_cbranch_scc1 L_b_bar3")
        self.red_write(L2, AM2, MXV + 6)
        a("L_b_bar3:\n  s_waitcnt lgkmcnt(0)")
        self.cstamp(5)
        a("  s_barrier")
        self.cstamp(6)
        a(f"  s_lshr_b32 s{S_NP}, s{S_T}, 1")
        a(f"  s_mul_i32 s{S_PVB}, s{S_SB}, {SLOT}")
        self.pv_reads(0, S_PVB, 0)
        for k in range(3):
            a(f"  s_cmp_le_u32 s{S_NP}, {k+1}\n  s_cbranch_scc1 L_pvl{k & 1}")
            a(f"  s_add_u32 s{S_PVB}, s{S_PVB}, {2*SLOT}")
            self.pv_reads((k + 1) & 1, S_PVB, (k + 1) * 1024)
            self.pv_mfmas(k & 1, 7)
        a("L_pvl1:")
        self.pv_mfmas(1, 0)
        self.cstamp(7)
        a(f"  s_setpc_b64 s[{S_LINK}:{S_LINK+1}]")
        a("L_pvl0:")
        self.pv_mfmas(0, 0)
        self.cstamp(7)
        a(f"  s_setpc_b64 s[{S_LINK}:{S_LINK+1}]")

    def pv_reads(self, buf, s_, poff, imm=0):
        a = self.a; o = self.V_A + 16 * buf
        a(f"  ds_read_b128 {vr(o)}, v{self.V_PADDR} offset:{poff}")
        for tau in range(3):
            if s_ is None:
                ad = self.V_PA + tau
            else:
                ad = self.V_TA + tau
                a(f"  v_add_u32 v{ad}, s{s_}, v{self.V_PA+tau}")
            a(f"  ds_read_b64_tr_b16 {vr(o+4+4*tau,2)}, v{ad} offset:{imm}")
            a(f"  ds_read_b64_tr_b16 {vr(o+6+4*tau,2)}, v{ad} offset:{imm + SLOT}")
    def pv_mfmas(self, buf, base):
        a = self.a; o = self.V_A + 16 * buf
        for tau in range(3):
            a(f"  s_waitcnt lgkmcnt({base + 4 - 2*tau})")
            a(f"  v_mfma_f32_16x16x32_bf16 {vr(self.V_ACC+4*tau)}, {vr(o+4+4*tau)}, {vr(o)}, {vr(self.V_ACC+4*tau)}")

    def pv_final(self):
        a = self.a; T0, T1 = self.V_T0, self.V_T1
        a(f"  v_mov_b32 v{T0}, {FLAG_LDS}\n  ds_read_b32 v{T1}, v{T0}")
        a(f"  s_mov_b32 s{S_PVB}, {8*SLOT}")
        self.pv_reads(0, S_PVB, 0)
        a(f"  s_waitcnt lgkmcnt(7)\n  v_readfirstlane_b32 s62, v{T1}\n  s_cmp_lg_u32 s62, 0\n  s_cbranch_scc1 L_slow")
        a(f"  s_mov_b32 s{S_PVB}, {10*SLOT}")
        self.pv_reads(1, S_PVB, 1024); self.pv_mfmas(0, 7)
        self.pv_reads(0, None, 2048, 0); self.pv_mfmas(1, 7)
        self.pv_reads(1, None, 3072, 2*SLOT); self.pv_mfmas(0, 7)
        self.pv_reads(0, None, 4096, 4*SLOT); self.pv_mfmas(1, 7)
        self.sums_read()
        self.pv_mfmas(0, 4)
        self.sums_math()

    V_SR = 16
    def sums_read(self):
        for i in range(4): self.a(f"  ds_read_b128 {vr(self.V_SR+4*i)}, v{self.V_PUB+3} offset:{16*i}")
    def sums_math(self):
        a = self.a; R = self.V_SR
        a("  s_waitcnt lgkmcnt(0)")
        for i in (0, 4, 8, 12): self.pk("v_pk_add_f32", R + i, R + i, R + i + 2)
        self.pk("v_pk_add_f32", R, R, R + 4); self.pk("v_pk_add_f32", R + 8, R + 8, R + 12); self.pk("v_pk_add_f32", R, R, R + 8)
        a(f"  v_rcp_f32 v{R+2}, v{R}\n  v_log_f32 v{R+5}, v{R}\n  v_mul_f32 v{R+4}, v{R+1}, v{R+2}\n  v_add_f32 v{R+6}, v{self.V_M}, v{R+5}")

    def pv_first(self):
        a = self.a; T0, T1 = self.V_T0, self.V_T1
        a(f"  v_mov_b32 v{T0}, {FLAG_LDS}\n  ds_read_b32 v{T1}, v{T0}")
        self.pv_reads(0, None, 0, 0)
        a(f"  s_waitcnt lgkmcnt(7)\n  v_readfirstlane_b32 s62, v{T1}\n  s_cmp_lg_u32 s62, 0\n  s_cbranch_scc1 L_slow1")
        self.pv_reads(1, None, 1024, 2*SLOT)
        self.pk("v_pk_add_f32", self.V_L2, self.V_L2, self.V_LT); self.pk("v_pk_add_f32", self.V_AM2, self.V_AM2, self.V_AT)
        self.pv_mfmas(0, 7)
        self.pv_reads(0, None, 2048, 4*SLOT)
        for r in range(4): a(f"  v_mov_b32 v{self.V_LT+r}, 0")
        self.pv_mfmas(1, 7)
        a(f"  s_mov_b32 s{S_PVB}, {6*SLOT}")
        self.pv_reads(1, S_PVB, 3072); self.pv_mfmas(0, 7)
        self.pv_mfmas(1, 0)

    def call_batch(self, T, w0, slot0, pair_add, last):
        self.a(f"  s_mov_b32 s{S_T}, {T}\n  s_mov_b32 s{S_W0}, {w0}\n  s_mov_b32 s{S_SB}, {slot0}\n  s_add_u32 s{S_PB}, s{S_P0}, {pair_add}\n  s_mov_b32 s{S_LAST}, {int(last)}")
        self.a(f"  s_mov_b32 s{S_SST}, {STAT + pair_add*256}")
        self.a(f"  s_call_b64 s[{S_LINK}:{S_LINK+1}], L_batch")

    def streamer(self):
        a = self.a; cfg = self.cfg; d = cfg.depth
        CALL = f"  s_call_b64 s[{S_LINK}:{S_LINK+1}], "
        a("  s_waitcnt lgkmcnt(0)")
        srd(a, R_A, P_F0, F0_BYTES); srd(a, R_B, P_F1, F1_BYTES)
        a(f"  s_cmp_ge_u32 s{S_WAVE}, 6\n  s_cbranch_scc1 L_sgather")
        a(f"  s_cmp_ge_u32 s{S_WAVE}, 3\n  s_cselect_b32 s60, 1, 0\n  s_mul_i32 s62, s60, 3\n  s_sub_u32 s61, s{S_WAVE}, s62")
        a(f"  s_mul_i32 s{S_QBASE}, s{S_IDX}, {2*NPAIR}\n  s_add_u32 s{S_QBASE}, s{S_QBASE}, s60\n  s_lshl_b32 s61, s61, 8")
        a("  v_and_b32 v240, 15, v0\n  v_lshrrev_b32 v241, 4, v0\n  v_lshl_add_u32 v242, v240, 4, s61")
        a(f"  v_mul_u32_u24 v243, 768, v241\n  v_add_u32 v{self.V_OFF1}, v242, v243\n  v_lshl_add_u32 v{self.V_OFF0}, v243, 1, v242")
        a(f"  s_mov_b32 s{S_K}, 0\n  s_mov_b32 s{S_QMASK}, 0x11111111\n  s_mov_b32 s{S_QMASK+1}, 0x11111111")
        def first_loads():
            self.task_bases(SETA, 0, False)
            for x in range(min(d, 5)): self.issue_piece(SETA, 0, x)
            if d > 5:
                self.task_bases(SETB, 1, False)
                for x in range(5, d): self.issue_piece(SETB, 1, x - 5)
            if d // 5 != 1 or d == 5: self.task_bases(SETB, d // 5, False)
        if not cfg.late: first_loads()
        a(f"  s_mul_i32 s60, s60, {SLOT}\n  s_add_u32 s60, s60, s61")
        srd(a, R_WS, P_WS, WS_BYTES); srd(a, R_DBG, P_DBG, 256)
        a("  v_and_b32 v240, 15, v0\n  v_lshrrev_b32 v241, 4, v0\n  v_and_b32 v242, 1, v241\n  v_lshlrev_b32 v242, 3, v242\n  v_xor_b32 v242, v240, v242")
        a(f"  v_mul_u32_u24 v243, 3072, v241\n  v_add_u32 v243, s60, v243")
        for t in range(4):
            a(f"  v_xor_b32 v244, {2*t}, v242\n  v_lshl_add_u32 v{self.V_WA[t]}, v244, 4, v243")
        a(f"  v_bfe_u32 v242, v0, 3, 1\n  v_lshlrev_b32 v242, 6, v242\n  v_bfe_u32 v243, v0, 2, 1\n  v_lshl_add_u32 v243, v241, 2, v243\n  v_lshl_add_u32 v242, v243, 2, v242")
        a(f"  s_cmp_ge_u32 s{S_WAVE}, 3\n  s_cselect_b32 s62, 128, 0\n  s_add_u32 s62, s62, {STAT}\n  v_add_u32 v{self.V_SA}, s62, v242")
        a("  s_barrier")
        self.stream_consts()
        if cfg.late: first_loads()
        if cfg.streamonly:
            for k in range(9):
                a(CALL + f"L_fuse{k & 1}")
                if k == 5: self.stamp(3)
            self.stamp(7); self.stamp(8)
            a("  s_branch L_sdone")
        for k in range(6):
            if k == cfg.trig_a: a("  s_barrier")
            if k == cfg.trig_b: a("  s_barrier")
            a(CALL + f"L_fuse{k & 1}")
        if cfg.trig_a >= 6: a("  s_barrier")
        if cfg.trig_b >= 6: a("  s_barrier")
        assert d <= 5
        self.task_bases(SETA, 6, False)
        for x in range(30 + d, 35): self.issue_piece(SETA, 0, x % 5)
        self.stamp(3)
        if cfg.prefuse: a(CALL + "L_fuseH")
        if cfg.ext7 == 0:
            self.task_bases(SETA, 7, False)
            for x in range(5): self.issue_piece(SETA, 1, x)
        a("  s_waitcnt lgkmcnt(0)")
        a("  s_branch L_sb0")
        a("L_sgather:")
        if cfg.streamonly == 3:
            pass
        elif cfg.streamonly:
            srd(a, R_WS, P_WS, WS_BYTES)
            for i in range(4): a(f"  v_mov_b32 v{20+i}, 0")
            a("  s_barrier\n  s_branch L_sdone")
        for r in (self.V_OFF1, self.V_OFF0, self.V_SA) + self.V_WA: a(f"  v_mov_b32 v{r}, 0")
        for i in range(4): a(f"  v_mov_b32 v{20+i}, 0")
        a(f"  v_lshlrev_b32 v24, 4, v0\n  v_add_u32 v24, {STAT}, v24\n  ds_write_b128 v24, v[20:23]\n  ds_write_b128 v24, v[20:23] offset:1024")
        a(f"  v_cmp_gt_u32 vcc, {(2320 - 2048) // 16}, v0\n  s_and_saveexec_b64 s[64:65], vcc")
        a("  ds_write_b128 v24, v[20:23] offset:2048\n  s_mov_b64 exec, s[64:65]\n  s_waitcnt lgkmcnt(0)\n  s_barrier")
        a(f"  s_mov_b32 s{S_QBASE}, 0\n  s_mov_b32 s{S_K}, 0\n  s_mov_b32 s{S_QMASK}, 0\n  s_mov_b32 s{S_QMASK+1}, 0")
        for r in range(3): a(f"  s_mov_b32 s{SETA+r}, 0\n  s_mov_b32 s{SETB+r}, 0")
        srd(a, R_WS, P_WS, WS_BYTES); srd(a, R_DBG, P_DBG, 256)
        a(f"  s_cmp_eq_u32 s{S_WAVE}, 7\n  s_cbranch_scc1 L_sw7")
        a(f"  buffer_load_dword v17, v{self.V_OFF1}, {sr(R_WS)}, 0 offen offset:{NONCE_OFF} sc1")
        a(f"  v_mov_b32 v18, {GO_OFF}")
        self.stream_consts()
        a(f"  s_waitcnt vmcnt(0)\n  v_add_u32 v17, 1, v17\n  v_mov_b32 v{self.V_T0}, {NONCE_LDS}\n  ds_write_b32 v{self.V_T0}, v17\n  v_readfirstlane_b32 s{S_NONCE}, v17")
        if cfg.streamonly != 3: a("  s_barrier")
        a(f"  buffer_load_dword v16, v18, {sr(R_WS)}, 0 offen sc1")
        if cfg.streamonly != 3: a("  s_barrier")
        self.wait_flags(16, 18, first_issued=True)
        self.stamp(1)
        a(f"  s_mov_b32 s62, {RQK_OFF}")
        self.gather_frags(12, self.V_QK, self.V_L16, 62, self.V_T0, "qk")
        if cfg.gdiag:
            a(f"  s_mov_b32 s{STAMP0+4}, s{S_SPIN}")
            self.stamp(5)
        for j in range(12): a(f"  ds_write_b128 v{self.V_PADDR}, {vr(self.V_QK+4*j)} offset:{j*1024}")
        SQ4 = self.V_SQ4
        for j in range(12):
            for i in range(4):
                a(f"  v_dot2_f32_bf16 v{SQ4+i}, v{self.V_QK+4*j+i}, v{self.V_ONES}, {'0' if j == 0 else 'v%d' % (SQ4+i)}")
        self.pk("v_pk_add_f32", SQ4, SQ4, SQ4 + 2)
        a(f"  v_add_f32 v{self.V_QS}, v{SQ4}, v{SQ4+1}")
        self.allred_g(self.V_QS, self.V_T0, "v_add_f32")
        a(f"  v_and_b32 v{self.V_T0}, 15, v0\n  v_lshlrev_b32 v{self.V_T0}, 2, v{self.V_T0}\n  v_add_u32 v{self.V_T0}, {QS_LDS}, v{self.V_T0}\n  ds_write_b32 v{self.V_T0}, v{self.V_QS}")
        a("  s_waitcnt lgkmcnt(0)")
        self.stamp(3)
        if cfg.streamonly == 3: a("  s_branch L_sdone")
        a("  s_branch L_sb0")
        a("L_sw7:")
        if cfg.streamonly == 3: a("  s_branch L_sdone")
        self.stream_consts()
        a("  s_waitcnt vmcnt(0)\n  s_barrier\n  s_barrier")
        a("L_sb0:\n  s_barrier")
        a(f"  v_and_b32 v{self.V_T2}, 15, v0\n  v_lshlrev_b32 v{self.V_T2}, 2, v{self.V_T2}\n  v_add_u32 v{self.V_T2}, {QS_LDS}, v{self.V_T2}")
        a(f"  v_mov_b32 v{self.V_T0}, {NONCE_LDS}\n  ds_read_b32 v{self.V_T1}, v{self.V_T0}\n  ds_read_b32 v{self.V_QS}, v{self.V_T2}")
        for j in range(12): a(f"  ds_read_b128 {vr(self.V_QK+4*j)}, v{self.V_PADDR} offset:{j*1024}")
        a(f"  s_mul_i32 s{S_P0}, s{S_IDX}, {NPAIR}")
        for r in range(4): a(f"  v_mov_b32 v{self.V_LT+r}, 0")
        a(f"  s_waitcnt lgkmcnt(0)\n  v_readfirstlane_b32 s{S_NONCE}, v{self.V_T1}")
        if cfg.zref: a("  s_barrier")
        sk = self.lab("noext")
        a(f"  s_cmp_ge_u32 s{S_WAVE}, 6\n  s_cbranch_scc1 {sk}")
        if cfg.ext7 == 1:
            self.task_bases(SETA, 7, False)
            for x in range(5): self.issue_piece(SETA, 1, x)
        if cfg.ext8 == 0:
            self.task_bases(SETB, 8, False)
            for x in range(5): self.issue_piece(SETB, 2, x)
        a(f"{sk}:")
        self.stamp(4)
        if cfg.zref:
            a(f"  s_mov_b32 s{S_LOW}, {f32(LOW_LIMIT)}\n  v_mov_b32 v{self.V_M}, 0")
            a(f"  s_mul_i32 s{S_TB}, s{S_WAVE}, {SLOT}\n  s_lshl_b32 s62, s{S_WAVE}, 7\n  s_add_u32 s{S_STA}, s62, {STAT}")
            a(f"  s_lshr_b32 s62, s{S_WAVE}, 1\n  s_add_u32 s{S_PAIR}, s62, s{S_P0}")
            a(f"  s_lshl_b32 s62, s62, 10\n  s_and_b32 s63, s{S_WAVE}, 1\n  s_lshl_b32 s63, s63, 3\n  s_add_u32 s{S_POFF}, s62, s63")
            a(CALL + "L_sp")
            a("  s_waitcnt lgkmcnt(0)\n  s_barrier")
            self.pv_first()
            a("L_safter1:")
        else:
            self.call_batch(8, 0, 0, 0, False)
        a(f"  s_mov_b32 s{S_LOW}, {f32(-3.0e38)}")
        a("  s_barrier")
        if not cfg.gdiag: self.stamp(5)
        a(f"  s_cmp_ge_u32 s{S_WAVE}, 6\n  s_cbranch_scc1 L_s67")
        if cfg.ext8 == 1:
            self.task_bases(SETB, 8, False)
            for x in range(5): self.issue_piece(SETB, 2, x)
        self.fstamp(0)
        if cfg.prefuse:
            b = self.V_BUF[0]
            for t in range(4): a(f"  ds_write_b128 v{self.V_WA[t]}, {vr(b+4+4*t)} offset:{t*768}")
            for t in range(4): a(f"  v_add_u32 v{self.V_WA[t]}, 24576, v{self.V_WA[t]}")
        else:
            a(CALL + "L_fuseR0")
        self.fstamp(1)
        a(CALL + "L_fuseR1")
        self.fstamp(2)
        a(CALL + "L_fuseR2")
        self.fstamp(3)
        a("  s_branch L_sx")
        a("L_s67:")
        for i in range(2):
            a(f"  s_and_b32 s63, s{S_WAVE}, 1\n  s_add_u32 s62, s63, {8 + 2*i}\n  s_mul_i32 s{S_TB}, s62, {SLOT}")
            a(f"  s_lshl_b32 s62, s62, 7\n  s_add_u32 s{S_STA}, s62, {STAT}\n  s_add_u32 s{S_PAIR}, s{S_P0}, {4 + i}")
            a(f"  s_lshl_b32 s63, s63, 3\n  s_add_u32 s{S_POFF}, s63, {i*1024}")
            a(CALL + "L_sp")
        a("L_sx:")
        self.publish_setup()
        a("  s_waitcnt lgkmcnt(0)\n  s_barrier")
        if not cfg.gdiag: self.stamp(2)
        sk = self.lab("nosp")
        a(f"  s_cmp_ge_u32 s{S_WAVE}, 6\n  s_cbranch_scc1 {sk}")
        a(f"  s_mul_i32 s{S_TB}, s{S_WAVE}, {SLOT}\n  s_lshl_b32 s62, s{S_WAVE}, 7\n  s_add_u32 s{S_STA}, s62, {STAT + 12*128}")
        a(f"  s_lshr_b32 s62, s{S_WAVE}, 1\n  s_add_u32 s{S_PAIR}, s62, s{S_P0}\n  s_add_u32 s{S_PAIR}, s{S_PAIR}, 6")
        a(f"  s_lshl_b32 s62, s62, 10\n  s_and_b32 s63, s{S_WAVE}, 1\n  s_lshl_b32 s63, s63, 3\n  s_add_u32 s62, s62, s63\n  s_add_u32 s{S_POFF}, s62, 2048")
        a(CALL + "L_sp")
        a(f"{sk}:")
        MXV = self.V_MXV
        self.pk("v_pk_add_f32", MXV, self.V_L2, self.V_LT); self.pk("v_pk_add_f32", MXV + 2, self.V_AM2, self.V_AT)
        self.red_write(MXV, MXV + 2, MXV + 6)
        a("  s_waitcnt lgkmcnt(0)")
        if not cfg.gdiag: self.stamp(1)
        a("  s_barrier")
        self.stamp(6)
        self.pv_final()
        a("L_spub:")
        self.stamp(7)
        self.publish()
        self.cstamp(8)
        self.stamp(8)
        if cfg.cut >= 1: a("  s_branch L_sdone")
        self.reducer_index()
        a(f"  s_cmp_ge_u32 s{S_RHO}, 128\n  s_cbranch_scc1 L_sdone")
        self.reducer()
        a("L_sdone:")
        self.stamp(9); self.stamp_flush((5, 6, 8, (0, 1, 3, 5, 6, 7, 8, 9)))
        a("  s_endpgm")
        if cfg.zref:
            a("L_slow1:\n  s_waitcnt lgkmcnt(0)")
            a(f"  v_mov_b32 v{self.V_M}, 0xff800000")
            for r in range(4): a(f"  v_mov_b32 v{self.V_LT+r}, 0")
            self.call_batch(8, 0, 0, 0, False)
            a("  s_branch L_safter1")
        a("L_slow:\n  s_waitcnt lgkmcnt(0)")
        self.call_batch(4, 4, 8, 4, False)
        self.call_batch(6, 0, 0, 6, True)
        self.sums_read(); self.sums_math()
        a("  s_branch L_spub")
        self.sp_sub(); self.sphase_sub(); self.batch_sub()
        self.fuse_sub(1, 10, "L_fuseR1", "drain"); self.fuse_sub(2, 5, "L_fuseR2", "drain")
        if cfg.prefuse: self.fuse_sub(0, 5, "L_fuseH", "hold")
        else: self.fuse_sub(0, 15, "L_fuseR0", "drain")
        self.fuse_sub(0, d, "L_fuse0"); self.fuse_sub(1, d, "L_fuse1")

    def publish_setup(self):
        a = self.a
        T0, T1, T2 = self.V_T0, self.V_T1, self.V_T2
        PA0, TAGB = self.V_PUB, self.V_PUB + 1
        a(f"  v_and_b32 v{T0}, 7, v0\n  v_lshlrev_b32 v{T0}, 3, v{T0}\n  v_add_u32 v{T0}, s{S_WAVE}, v{T0}\n  s_mov_b32 s62, {PART_STRIDE}\n  v_mul_lo_u32 v{T0}, v{T0}, s62")
        a(f"  v_bfe_u32 v{T1}, v0, 3, 1\n  v_lshl_add_u32 v{T0}, v{T1}, 6, v{T0}\n  v_lshrrev_b32 v{T1}, 4, v0\n  v_lshl_add_u32 v{PA0}, v{T1}, 4, v{T0}")
        a(f"  s_mov_b32 s62, {KEYC}\n  v_mul_lo_u32 v{T1}, v{T1}, s62\n  v_add_u32 v{TAGB}, s{S_NONCE}, v{T1}")
        a(f"  v_and_b32 v{T0}, 15, v0\n  v_lshlrev_b32 v{T0}, 6, v{T0}\n  v_bfe_u32 v{T1}, v0, 4, 1\n  v_lshl_add_u32 v{T0}, v{T1}, 2, v{T0}")
        a(f"  s_lshl_b32 s62, s{S_WAVE}, 3\n  s_add_u32 s62, s62, {RED}\n  v_add_u32 v{self.V_PUB+2}, s62, v{T0}")
        a(f"  v_and_b32 v{T0}, 15, v0\n  v_lshlrev_b32 v{T0}, 6, v{T0}\n  v_add_u32 v{self.V_PUB+3}, {RED}, v{T0}")

    def publish(self):
        a = self.a; cfg = self.cfg
        A, ACC, R = self.V_A, self.V_ACC, self.V_SR
        PA0, TAGB = self.V_PUB, self.V_PUB + 1
        UA, UB, TB = A + 24, A + 28, A + 32
        a(f"  s_lshl_b32 s62, s{S_IDX}, 7\n  s_add_u32 s62, s62, {PART_OFF}\n  s_add_u32 s63, s62, {64*PART_STRIDE}")
        a(f"  v_mov_b32 v{UA+3}, s{S_NONCE}\n  v_xor_b32 v{UB+3}, v{R+6}, v{TAGB}")
        for i in range(0, 12, 2): self.pk("v_pk_fma_f32", ACC + i, ACC + i, R + 2, R + 4, bc=(1, 2), neg=(2,))
        for i in range(3): a(f"  v_cvt_pk_f16_f32 v{UA+i}, v{ACC+2*i}, v{ACC+2*i+1}")
        for i in range(3): a(f"  v_cvt_pk_f16_f32 v{UB+i}, v{ACC+6+2*i}, v{ACC+7+2*i}")
        for i in range(4): a(f"  v_mov_b32 v{TB+i}, v{UB+i}")
        for i in range(3): a(f"  v_mov_b32_dpp v{UB+i}, v{UA+i} row_ror:8 row_mask:0xf bank_mask:0x3")
        a(f"  v_mov_b32_dpp v{UB+3}, v{UA+3} quad_perm:[0,1,2,3] row_mask:0xf bank_mask:0x3")
        for i in range(4): a(f"  v_mov_b32_dpp v{UA+i}, v{TB+i} row_ror:8 row_mask:0xf bank_mask:0xc")
        a(f"  buffer_store_dwordx4 {vr(UA)}, v{PA0}, {sr(R_WS)}, s62 offen sc1")
        a(f"  buffer_store_dwordx4 {vr(UB)}, v{PA0}, {sr(R_WS)}, s63 offen sc1")

    def reducer_index(self):
        a = self.a; cfg = self.cfg
        if cfg.redsel == 0:
            a(f"  s_mov_b32 s{S_RHO}, s{S_IDX}")
            return
        assert cfg.hnx == 4 and cfg.hx0 == 0
        a("  s_and_b32 s60, s2, 7\n  s_lshr_b32 s61, s2, 3")
        a("  s_and_b32 s62, s60, 3\n  s_cmp_ge_u32 s60, 4\n  s_cselect_b32 s63, 1, 0")
        a("  s_lshl_b32 s64, s61, 2\n  s_add_u32 s64, s64, s62")
        a("  s_sub_u32 s65, s64, 24")
        if cfg.redsel == 1:
            a(f"  s_add_u32 s64, s64, 104\n  s_cmp_eq_u32 s63, 0\n  s_cselect_b32 s{S_RHO}, s65, s64")
        else:
            a(f"  s_add_u32 s65, s65, 124\n  s_cmp_eq_u32 s63, 0\n  s_cselect_b32 s{S_RHO}, s65, s64")

    def reducer_addr(self):
        a = self.a
        AD, T0, T1, VM, SA, X, Y, KEY = self.RV
        MASK = 40
        a(f"  v_lshrrev_b32 v{T0}, 3, v0\n  s_lshl_b32 s62, s{S_WAVE}, 5\n  v_add_u32 v{VM}, s62, v{T0}")
        a(f"  v_and_b32 v{T1}, 7, v0\n  v_lshlrev_b32 v{T1}, 4, v{T1}\n  s_mov_b32 s62, {NS}")
        for it in range(4):
            a(f"  v_add_u32 v{T0}, {8*it}, v{VM}\n  v_cmp_gt_u32 s[{MASK+2*it}:{MASK+2*it+1}], s62, v{T0}\n  v_cndmask_b32 v{T0}, 0, v{T0}, s[{MASK+2*it}:{MASK+2*it+1}]")
            a(f"  v_lshl_add_u32 v{AD+it}, v{T0}, 7, v{T1}")

    def reducer_setup(self):
        a = self.a
        AD, T0, T1, VM, SA, X, Y, KEY = self.RV
        a(f"  v_and_b32 v{T0}, 3, v0\n  v_bfe_u32 v{T1}, v0, 2, 1\n  v_mul_u32_u24 v{T0}, v{T0}, v{T1}\n  s_mov_b32 s62, {KEYC}\n  v_mul_lo_u32 v{T0}, v{T0}, s62\n  v_add_u32 v{KEY}, s{S_NONCE}, v{T0}")
        a(f"  v_lshrrev_b32 v{T0}, 4, v0\n  v_and_b32 v{T1}, 1, v{T0}\n  v_lshlrev_b32 v{T1}, 1, v{T1}\n  v_lshrrev_b32 v{X}, 1, v{T0}\n  v_add_u32 v{T1}, v{T1}, v{X}")
        a(f"  v_bfe_u32 v{X}, v0, 2, 1\n  v_mul_u32_u24 v{X}, 3, v{X}\n  v_add_u32 v{T1}, v{T1}, v{X}")
        a(f"  v_lshrrev_b32 v{X}, 1, v{T1}\n  v_lshlrev_b32 v{X}, 4, v{X}\n  v_and_b32 v{T1}, 1, v{T1}\n  v_lshl_add_u32 v{X}, v{T1}, 1, v{X}")
        a(f"  v_and_b32 v{T1}, 3, v0\n  v_lshl_add_u32 v{X}, v{T1}, 2, v{X}")
        a(f"  s_and_b32 s62, s{S_RHO}, 7\n  s_mul_i32 s62, s62, 48\n  v_add_u32 v{X}, s62, v{X}\n  v_lshlrev_b32 v{SA}, 1, v{X}")
        a(f"  v_lshrrev_b32 v{T1}, 4, v0\n  v_lshlrev_b32 v{T1}, 3, v{T1}\n  v_and_b32 v{X}, 7, v0\n  v_add_u32 v{T1}, v{T1}, v{X}\n  v_lshlrev_b32 v{Y}, 3, v{T1}")
        a(f"  s_lshl_b32 s62, s{S_WAVE}, 8\n  s_add_u32 s62, s62, {RED2}\n  v_add_u32 v{X}, s62, v{Y}\n  v_add_u32 v{Y}, {RED2}, v{Y}")

    RV = (80, 84, 85, 86, 87, 88, 89, 90)

    def reducer(self):
        a = self.a; cfg = self.cfg
        D, E, W, V = 16, 32, 40, 44
        AD, T0, T1, VM, SA, X, Y, KEY = self.RV
        MASK = 40
        BAD = 52
        self.reducer_addr()
        if cfg.rdiag: self.stamp(1)
        a(f"  s_mul_i32 s62, s{S_RHO}, {PART_STRIDE}\n  s_add_u32 s62, s62, {PART_OFF}")
        for it in range(4): a(f"  buffer_load_dwordx4 {vr(D+4*it)}, v{AD+it}, {sr(R_WS)}, s62 offen sc1")
        a("  s_mov_b32 s63, s62")
        self.reducer_setup()
        a("  s_mov_b32 s62, s63")
        for it in range(4): a(f"  v_mov_b32 v{E+2*it+1}, 0")
        lp, ck, dn = self.lab("red"), self.lab("redc"), self.lab("redd")
        BADS = (48, 50, 52, 54)
        a(f"  s_mov_b32 s{S_SPIN}, 0\n  s_branch {ck}\n{lp}:")
        for it in range(4):
            sk = self.lab("skipld")
            a(f"  s_mov_b64 exec, s[{BADS[it]}:{BADS[it]+1}]\n  s_cbranch_execz {sk}")
            a(f"  buffer_load_dwordx4 {vr(D+4*it)}, v{AD+it}, {sr(R_WS)}, s62 offen sc1")
            a(f"{sk}:")
        a("  s_mov_b64 exec, -1")
        self.spin_guard(dn)
        a(f"{ck}:\n  s_waitcnt vmcnt(0)")
        for it in range(4): a(f"  v_xor_b32 v{E+2*it}, v{KEY}, v{D+4*it+3}")
        for it in range(4): a(f"  v_mov_b32_dpp v{E+2*it+1}, v{E+2*it} quad_perm:[0,0,0,0] row_mask:0xf bank_mask:0xa")
        for it in range(4): a(f"  v_cmp_ne_u32 s[{BADS[it]}:{BADS[it]+1}], v{E+2*it}, v{E+2*it+1}")
        a(f"  s_or_b64 s[60:61], s[48:49], s[50:51]\n  s_or_b64 vcc, s[52:53], s[54:55]\n  s_or_b64 s[60:61], s[60:61], vcc\n  s_cbranch_scc0 {dn}")
        if cfg.selpoll == 2:
            for it in range(4): a(f"  v_xor_b32 v{W+it}, v{E+2*it}, v{E+2*it+1}")
            for ctrl in ("row_half_mirror", "quad_perm:[1,0,3,2]", "quad_perm:[2,3,0,1]"):
                for it in range(4): a(f"  v_or_b32_dpp v{W+it}, v{W+it}, v{W+it} {ctrl} row_mask:0xf bank_mask:0xf")
            for it in range(4): a(f"  v_cmp_ne_u32 s[{BADS[it]}:{BADS[it]+1}], 0, v{W+it}")
        else:
            for it in range(4):
                b = BADS[it]
                if cfg.selpoll: a(f"  s_cmp_lg_u64 s[{b}:{b+1}], 0\n  s_cselect_b64 s[{b}:{b+1}], -1, 0")
                else: a(f"  s_mov_b64 s[{b}:{b+1}], -1")
        if cfg.rsleep: a(f"  s_sleep {cfg.rsleep}")
        a(f"  s_branch {lp}")
        a(f"{dn}:\n  s_waitcnt vmcnt(0)")
        if cfg.rdiag:
            self.stamp(2)
            a(f"  s_mov_b32 s{STAMP0+6}, s{S_SPIN}")
        for it in range(4): a(f"  v_mov_b32_dpp v{E+2*it}, v{E+2*it} row_shl:4 row_mask:0xf bank_mask:0x5")
        a(f"  v_mov_b32 v{T1}, 0xff800000")
        for it in range(4):
            a(f"  v_cndmask_b32 v{E+2*it}, v{T1}, v{E+2*it}, s[{MASK+2*it}:{MASK+2*it+1}]")
        a(f"  v_max3_f32 v{T0}, v{E}, v{E+2}, v{E+4}\n  v_max_f32 v{T0}, v{T0}, v{E+6}")
        a(f"  v_max_f32_dpp v{T0}, v{T0}, v{T0} row_ror:8 row_mask:0xf bank_mask:0xf")
        self.allred_g(T0, T1, "v_max_f32")
        for it in range(4): a(f"  v_sub_f32 v{W+it}, v{E+2*it}, v{T0}")
        for it in range(4): a(f"  v_exp_f32 v{W+it}, v{W+it}")
        a(f"  s_lshl_b32 s62, s{S_WAVE}, 2\n  s_add_u32 s62, s62, {MXW}\n  v_mov_b32 v{T1}, s62\n  ds_write_b32 v{T1}, v{T0}")
        for it in range(4):
            for q in range(3):
                c0 = "0" if it == 0 else f"v{V+2*q}"; c1 = "0" if it == 0 else f"v{V+2*q+1}"
                a(f"  v_fma_mix_f32 v{V+2*q}, v{D+4*it+q}, v{W+it}, {c0} op_sel_hi:[1,0,0]")
                a(f"  v_fma_mix_f32 v{V+2*q+1}, v{D+4*it+q}, v{W+it}, {c1} op_sel:[1,0,0] op_sel_hi:[1,0,0]")
        self.pk("v_pk_add_f32", W, W, W + 2)
        a(f"  v_add_f32 v{V+6}, v{W}, v{W+1}\n  v_mov_b32 v{V+7}, 0")
        for x, y in ((0, 2), (1, 3), (4, 6), (5, 7)): a(f"  v_permlane32_swap_b32 v{V+x}, v{V+y}")
        for x, y in ((0, 2), (1, 3), (4, 6), (5, 7)): a(f"  v_add_f32 v{V+x}, v{V+x}, v{V+y}")
        for x, y in ((0, 4), (1, 5)): a(f"  v_permlane16_swap_b32 v{V+x}, v{V+y}")
        for x, y in ((0, 4), (1, 5)): a(f"  v_add_f32 v{V+x}, v{V+x}, v{V+y}")
        for x in (0, 1): a(f"  v_add_f32_dpp v{V+x}, v{V+x}, v{V+x} row_ror:8 row_mask:0xf bank_mask:0xf")
        a(f"  ds_write_b64 v{X}, {vr(V,2)}\n  s_waitcnt lgkmcnt(0)")
        if cfg.rdiag: self.stamp(4)
        a("  s_barrier")
        if cfg.rdiag: self.stamp(5)
        a(f"  s_cmp_lg_u32 s{S_WAVE}, 0\n  s_cbranch_scc1 L_sdone")
        a(f"  v_mov_b32 v{T1}, {MXW}\n  ds_read_b128 {vr(W)}, v{T1}\n  ds_read_b128 {vr(W+4)}, v{T1} offset:16")
        for w in range(8): a(f"  ds_read_b64 {vr(D+2*w,2)}, v{Y} offset:{256*w}")
        a(f"  s_lshr_b32 s63, s{S_RHO}, 3\n  s_mul_i32 s63, s63, 768\n  s_add_u32 s63, s63, {RCTX_OFF}")
        a(f"  v_and_b32 v{X}, 8, v0\n  v_cmp_eq_u32 vcc, 0, v{X}\n  v_cmp_gt_u32 s[64:65], 48, v0\n  s_and_b64 s[64:65], vcc, s[64:65]")
        a("  s_waitcnt lgkmcnt(8)")
        a(f"  v_max3_f32 v{T0}, v{W}, v{W+1}, v{W+2}\n  v_max3_f32 v{T1}, v{W+3}, v{W+4}, v{W+5}\n  v_max3_f32 v{T0}, v{T0}, v{W+6}, v{W+7}\n  v_max_f32 v{T0}, v{T0}, v{T1}")
        for w in range(0, 8, 2): self.pk("v_pk_add_f32", W + w, W + w, T0, bc=(1,), neg=(1,))
        for w in range(8): a(f"  v_exp_f32 v{W+w}, v{W+w}")
        a("  s_waitcnt lgkmcnt(0)")
        for w in range(8):
            base = W + (w & ~1)
            sel = "op_sel:[0,1,0] op_sel_hi:[1,1,1]" if w & 1 else "op_sel_hi:[1,0,1]"
            if w == 0: a(f"  v_pk_mul_f32 {vr(E,2)}, {vr(D,2)}, {vr(base,2)} op_sel_hi:[1,0]")
            else: a(f"  v_pk_fma_f32 {vr(E,2)}, {vr(D+2*w,2)}, {vr(base,2)}, {vr(E,2)} {sel}")
        a(f"  v_readlane_b32 s62, v{E}, 48\n  v_rcp_f32 v{T0}, s62")
        self.pk("v_pk_mul_f32", E, E, T0, bc=(1,))
        a(f"  v_cvt_pk_bf16_f32 v{E}, v{E}, v{E+1}\n  v_min_u32 v{E}, -2, v{E}")
        a("  s_mov_b64 exec, s[64:65]")
        a(f"  buffer_store_dword v{E}, v{SA}, {sr(R_WS)}, s63 offen sc1")
        a("  s_mov_b64 exec, -1")

    def img_dma(self, srdr, lds, soff, vs0, vs1):
        for th in range(3):
            for q4 in range(4):
                self.img_dma1(srdr, lds, soff, vs0, vs1, th, q4)
    def img_dma1(self, srdr, lds, soff, vs0, vs1, th, q4, ldsreg=None):
        a = self.a
        if ldsreg is None: a(f"  s_mov_b32 m0, {lds + th*4096 + q4*1024}")
        else: a(f"  s_add_u32 m0, s{ldsreg}, {th*4096 + q4*1024}")
        a(f"  s_add_u32 s62, s{soff}, {q4*3072 + th*256}")
        a(f"  buffer_load_dwordx4 v{vs1 if q4 & 1 else vs0}, {sr(srdr)}, s62 offen{' nt' if self.cfg.hnt else ''} lds")

    def helper(self):
        a = self.a; cfg = self.cfg
        L16, N, Gq, T0, T1, T2, T3 = 1, 2, 3, 4, 5, 6, 7
        FL, TA, DS, VS0, VS1, ZERO = 8, 10, 11, 12, 13, 14
        IA = 16
        QF, AF, TR = 20, 68, 160
        WKF = 116
        D1, D2, D3, ST, ONES = 208, 212, 216, 220, 224
        a("L_helper:")
        if cfg.streamonly == 1:
            a("  s_waitcnt lgkmcnt(0)")
            srd(a, R_WS, P_WS, WS_BYTES)
            a("  s_branch L_hdone")
        a(f"  v_lshlrev_b32 v{L16}, 4, v0\n  v_and_b32 v{N}, 15, v0\n  v_lshrrev_b32 v{Gq}, 4, v0\n  v_mov_b32 v{ZERO}, 0")
        a(f"  v_lshlrev_b32 v{T0}, 1, v{Gq}\n  v_xor_b32 v{T0}, v{N}, v{T0}\n  v_mul_u32_u24 v{T1}, 768, v{Gq}")
        a(f"  v_lshl_add_u32 v{VS0}, v{T0}, 4, v{T1}\n  v_xor_b32 v{T0}, 8, v{T0}\n  v_lshl_add_u32 v{VS1}, v{T0}, 4, v{T1}")
        a(f"  v_lshrrev_b32 v{T0}, 1, v0\n  v_mul_u32_u24 v{T0}, 768, v{T0}\n  v_and_b32 v{T1}, 1, v0\n  v_lshl_add_u32 v{T0}, v{T1}, 4, v{T0}")
        a(f"  s_lshl_b32 s61, s{S_IDX}, 5\n  v_add_u32 v{DS}, s61, v{T0}")
        a(f"  s_lshr_b32 s60, s{S_IDX}, 1\n  s_lshl_b32 s60, s60, 10\n  s_and_b32 s61, s{S_IDX}, 1\n  s_lshl_b32 s61, s61, 9\n  s_add_u32 s60, s60, s61")
        a(f"  v_lshrrev_b32 v{T0}, 1, v{Gq}\n  v_lshlrev_b32 v{T0}, 8, v{T0}\n  v_lshl_add_u32 v{T0}, v{N}, 4, v{T0}")
        a(f"  v_and_b32 v{T1}, 1, v{Gq}\n  v_lshl_add_u32 v{T0}, v{T1}, 3, v{T0}\n  v_add_u32 v{FL}, s60, v{T0}")
        if cfg.hdiag: self.stamp(8)
        a("  s_waitcnt lgkmcnt(0)")
        if cfg.hdiag: self.stamp(2)
        srd(a, R_WS, P_WS, WS_BYTES)
        a(f"  s_cmp_eq_u32 s{S_WAVE}, 1\n  s_cbranch_scc1 L_h1a")
        a(f"  s_cmp_eq_u32 s{S_WAVE}, 0\n  s_cbranch_scc1 L_h0a")
        a("  s_branch L_hb1")
        a("L_h1a:")
        srd(a, R_B, P_WQ, W_BYTES)
        for k in range(12):
            a(f"  s_mov_b32 m0, {H_WQI + k*1024}\n  s_mov_b32 s62, {k*32*768}\n  buffer_load_dwordx4 v{DS}, {sr(R_B)}, s62 offen{' nt' if cfg.hnt else ''} lds")
        a(f"  buffer_load_dword v9, v{ZERO}, {sr(R_WS)}, 0 offen offset:{NONCE_OFF} sc1")
        a(f"  v_mov_b32 v{T0}, -1\n  v_mov_b32 v{T0+1}, -1\n  v_mov_b32 v{T0+2}, -1\n  v_mov_b32 v{T0+3}, -1")
        a(f"  s_lshl_b32 s60, s{S_IDX}, 9\n  s_add_u32 s62, s60, {RQ_OFF}\n  s_add_u32 s63, s60, {RQK_OFF}\n  s_add_u32 s61, s60, {RCTX_OFF}")
        a("  s_mov_b32 s64, -1\n  s_mov_b32 s65, 0\n  s_mov_b64 exec, s[64:65]")
        for r in ("s62", "s63", "s61"): a(f"  buffer_store_dwordx4 {vr(T0)}, v{L16}, {sr(R_WS)}, {r} offen sc1")
        a("  s_mov_b64 exec, -1")
        a("  s_waitcnt vmcnt(4)\n  s_branch L_hb1")
        a("L_h0a:")
        srd(a, R_A, P_Q, Q_BYTES)
        a("  s_mov_b32 s60, 0")
        self.img_dma(R_A, H_QI, 60, VS0, VS1)
        a(f"  buffer_load_dword v15, v{ZERO}, {sr(R_WS)}, 0 offen offset:{NONCE_OFF} sc1")
        a("  s_waitcnt vmcnt(0)\n  s_branch L_hb1")
        a("L_hb1:")
        self.stamp(7)
        T0, T1, T2 = 228, 229, 230
        srd(a, R_DBG, P_DBG, 256); srd(a, R_A, P_Q, Q_BYTES); srd(a, R_D, P_WV, W_BYTES); srd(a, R_F, P_OUT, Q_BYTES)
        a(f"  v_and_b32 v{T0}, 7, v{N}\n  v_lshlrev_b32 v{T0}, 1, v{T0}\n  v_lshlrev_b32 v{T1}, 8, v{N}")
        for m in range(4):
            a(f"  v_add_u32 v{T2}, {4*m}, v{Gq}\n  v_xor_b32 v{T2}, v{T2}, v{T0}\n  v_lshl_add_u32 v{IA+m}, v{T2}, 4, v{T1}")
        a(f"  v_lshrrev_b32 v{T0}, 2, v{N}\n  v_lshl_add_u32 v{T0}, v{Gq}, 3, v{T0}\n  v_lshlrev_b32 v{T0}, 5, v{T0}")
        a(f"  v_and_b32 v{T1}, 3, v{N}\n  v_lshl_add_u32 v{TA}, v{T1}, 3, v{T0}")
        for i in range(4): a(f"  v_mov_b32 v{ONES+i}, 0x3f803f80")
        a("  s_barrier")
        T0, T1, T2 = 4, 5, 6
        self.stamp(1)
        if cfg.cut >= 3: a("  s_branch L_hdone")
        a(f"  s_cmp_eq_u32 s{S_WAVE}, 0\n  s_cbranch_scc1 L_h0b")
        n1 = self.lab("notw1")
        a(f"  s_cmp_eq_u32 s{S_WAVE}, 1\n  s_cbranch_scc0 {n1}")
        a(f"  s_waitcnt vmcnt(0)\n  v_add_u32 v9, 1, v9\n  s_lshl_b32 s62, s{S_IDX}, 7\n  s_add_u32 s62, s62, {FLAG_OFF}\n  s_mov_b64 exec, 1")
        a(f"  buffer_store_dword v9, v{ZERO}, {sr(R_WS)}, s62 offen sc1\n  s_mov_b64 exec, -1\n  s_branch L_hb1c\n{n1}:")
        a(f"  s_cmp_eq_u32 s{S_WAVE}, 3\n  s_cbranch_scc1 L_h3b")
        a(f"  s_cmp_eq_u32 s{S_WAVE}, 2\n  s_cbranch_scc0 L_hb1c")
        srd(a, R_C, P_WK, W_BYTES)
        a(f"  s_mul_i32 s60, s{S_IDX}, {16*768}")
        self.img_dma(R_C, H_WKI, 60, VS0, VS1)
        a("  s_branch L_hb1c")
        a("L_h3b:")
        for j in range(12):
            a(f"  ds_read_b128 {vr(QF+4*j)}, v{IA+(j&3)} offset:{H_QI + (j>>2)*4096}")
        for j in range(12):
            a(f"  s_waitcnt lgkmcnt({11-j})")
            for i in range(4):
                a(f"  v_dot2_f32_bf16 v{ST+i}, v{QF+4*j+i}, v{QF+4*j+i}, {'0' if j == 0 else 'v%d' % (ST+i)}")
                a(f"  v_dot2_f32_bf16 v{D3+i}, v{QF+4*j+i}, v{ONES}, {'0' if j == 0 else 'v%d' % (D3+i)}")
        self.pk("v_pk_add_f32", ST, ST, ST + 2); self.pk("v_pk_add_f32", D3, D3, D3 + 2)
        a(f"  v_add_f32 v{ST}, v{ST}, v{ST+1}\n  v_add_f32 v{ST+1}, v{D3}, v{D3+1}")
        a(f"  v_permlane16_swap_b32 v{ST}, v{ST+1}\n  v_add_f32 v{ST}, v{ST}, v{ST+1}")
        a(f"  v_mov_b32 v{ST+1}, v{ST}\n  v_permlane32_swap_b32 v{ST+1}, v{ST}\n  v_add_f32 v{ST}, v{ST}, v{ST+1}")
        a(f"  v_mul_f32 v{ST}, {f32(1.0/384.0)}, v{ST}")
        a(f"  v_mov_b32 v{ST+1}, v{ST}\n  v_mov_b32 v{ST+2}, v{ST}\n  v_permlane16_swap_b32 v{ST+1}, v{ST+2}")
        a(f"  v_fma_f32 v{ST+3}, -v{ST+2}, v{ST+2}, v{ST+1}\n  v_max_f32 v{ST+3}, 0, v{ST+3}\n  v_add_f32 v{ST+3}, {f32(1e-5)}, v{ST+3}\n  v_rsq_f32 v{ST+3}, v{ST+3}")
        a(f"  v_lshlrev_b32 v{T0}, 3, v{N}\n  v_add_u32 v{T0}, {H_QS}, v{T0}\n  ds_write_b64 v{T0}, {vr(ST+2,2)}\n  s_waitcnt lgkmcnt(0)")
        a("L_hb1c:\n  s_barrier")
        a("  s_branch L_hb2")
        a("L_h0b:")
        a(f"  v_add_u32 v15, 1, v15")
        self.flag_addr(T3)
        a(f"  v_readfirstlane_b32 s{S_NONCE}, v15\n  buffer_load_dword v9, v{T3}, {sr(R_WS)}, 0 offen sc1")
        for j in range(12):
            a(f"  ds_read_b128 {vr(QF+4*j)}, v{IA+(j&3)} offset:{H_QI + (j>>2)*4096}")
        def tr(j):
            a(f"  ds_read_b64_tr_b16 {vr(TR+4*j,2)}, v{TA} offset:{H_WQI + j*1024}")
            a(f"  ds_read_b64_tr_b16 {vr(TR+4*j+2,2)}, v{TA} offset:{H_WQI + j*1024 + 128}")
        a("  s_waitcnt lgkmcnt(3)")
        for j in range(6): tr(j)
        for j in range(12):
            left = min(12, j + 6) - j - 1
            a(f"  s_waitcnt lgkmcnt({2*left})")
            if j + 6 < 12: tr(j + 6)
            a(f"  v_mfma_f32_16x16x32_bf16 {vr(D1)}, {vr(TR+4*j)}, {vr(QF+4*j)}, {'0' if j == 0 else vr(D1)}")
            a(f"  v_mfma_f32_16x16x32_bf16 {vr(D2)}, {vr(TR+4*j)}, {vr(ONES)}, {'0' if j == 0 else vr(D2)}")
        a("  s_barrier")
        a(f"  v_lshlrev_b32 v{T0}, 3, v{N}\n  v_add_u32 v{T0}, {H_QS}, v{T0}\n  ds_read_b64 {vr(ST,2)}, v{T0}\n  s_waitcnt lgkmcnt(0)")
        for r in range(4): a(f"  v_fma_f32 v{D1+r}, -v{ST}, v{D2+r}, v{D1+r}")
        for r in range(4): a(f"  v_mul_f32 v{D1+r}, v{ST+1}, v{D1+r}")
        a(f"  v_cvt_pk_bf16_f32 v{D2}, v{D1}, v{D1+1}\n  v_cvt_pk_bf16_f32 v{D2+1}, v{D1+2}, v{D1+3}")
        a(f"  v_min_u32 v{D2}, -2, v{D2}\n  v_min_u32 v{D2+1}, -2, v{D2+1}\n  s_mov_b32 s62, {RQ_OFF}")
        a(f"  buffer_store_dwordx2 {vr(D2,2)}, v{FL}, {sr(R_WS)}, s62 offen sc1")
        self.stamp(2)
        hv = self.lab("haveflags")
        a(f"  s_waitcnt vmcnt(1)\n  v_cmp_ne_u32 vcc, s{S_NONCE}, v9\n  s_cbranch_vccz {hv}")
        self.wait_flags(9, T3)
        a(f"{hv}:\n  s_mov_b32 s62, {RQ_OFF}")
        self.gather_frags(12, AF, L16, 62, T0, "q", sleep=cfg.qsleep)
        self.stamp(3)
        a("  s_barrier")
        for j in range(12):
            a(f"  ds_read_b128 {vr(WKF+4*j)}, v{IA+(j&3)} offset:{H_WKI + (j>>2)*4096}")
        for j in range(12):
            dd = D1 if j % 2 == 0 else D2
            a(f"  s_waitcnt lgkmcnt({11-j})")
            a(f"  v_mfma_f32_16x16x32_bf16 {vr(dd)}, {vr(WKF+4*j)}, {vr(AF+4*j)}, {'0' if j < 2 else vr(dd)}")
        sc = f32(384 ** -0.5 * LOG2E)
        for r in range(4): a(f"  v_add_f32 v{D1+r}, v{D1+r}, v{D2+r}")
        for r in range(4): a(f"  v_mul_f32 v{D1+r}, {sc}, v{D1+r}")
        a(f"  v_cvt_pk_bf16_f32 v{D2}, v{D1}, v{D1+1}\n  v_cvt_pk_bf16_f32 v{D2+1}, v{D1+2}, v{D1+3}")
        a(f"  v_min_u32 v{D2}, -2, v{D2}\n  v_min_u32 v{D2+1}, -2, v{D2+1}\n  s_mov_b32 s62, {RQK_OFF}")
        a(f"  buffer_store_dwordx2 {vr(D2,2)}, v{FL}, {sr(R_WS)}, s62 offen sc1")
        self.stamp(4)
        a("  s_branch L_hwvo")
        a("L_hb2:\n  s_waitcnt vmcnt(0)\n  s_barrier")
        a("L_hwvo:")
        if cfg.cut >= 2: a("  s_branch L_hdone")
        a(f"  s_cmp_eq_u32 s{S_WAVE}, 3\n  s_cbranch_scc0 L_hwv2")
        srd(a, R_E, P_WO, W_BYTES)
        for k in range(12):
            a(f"  s_mov_b32 m0, {H_WOI + k*1024}\n  s_mov_b32 s62, {k*32*768}\n  buffer_load_dwordx4 v{DS}, {sr(R_E)}, s62 offen{' nt' if cfg.hnt else ''} lds")
        a("L_hwv2:")
        a(f"  s_mul_i32 s60, s{S_WAVE}, {48*768}\n  s_mul_i32 s61, s{S_WAVE}, 12288\n  s_add_u32 s61, s61, {H_WV}")
        for th in range(3):
            for q4 in range(4): self.img_dma1(R_D, 0, 60, VS0, VS1, th, q4, ldsreg=61)
        a("  s_waitcnt vmcnt(12)\n  s_barrier")
        for j in range(12):
            a(f"  ds_read_b64_tr_b16 {vr(TR+4*j,2)}, v{TA} offset:{H_WOI + j*1024}")
            a(f"  ds_read_b64_tr_b16 {vr(TR+4*j+2,2)}, v{TA} offset:{H_WOI + j*1024 + 128}")
            if j == 6: a("  s_waitcnt lgkmcnt(0)")
        for m in range(4): a(f"  v_add_u32 v{IA+m}, s61, v{IA+m}")
        a(f"  v_mul_u32_u24 v{T0}, 784, v{N}\n  v_lshl_add_u32 v{T0}, v{Gq}, 3, v{T0}\n  s_mul_i32 s62, s{S_WAVE}, 96\n  s_add_u32 s62, s62, {H_WT}\n  v_add_u32 v{T3}, s62, v{T0}")
        for tau in range(3):
            if tau < 2: a(f"  s_add_u32 s60, s60, {16*768}")
            for th in range(3):
                a(f"  s_waitcnt vmcnt({8 if tau < 2 else 8 - 4*th})")
                for m in range(4): a(f"  ds_read_b128 {vr(WKF+4*m)}, v{IA+m} offset:{th*4096}")
                a("  s_waitcnt lgkmcnt(0)")
                if tau < 2:
                    for q4 in range(4): self.img_dma1(R_D, 0, 60, VS0, VS1, th, q4, ldsreg=61)
                for m in range(4):
                    j = 4 * th + m
                    a(f"  v_mfma_f32_16x16x32_bf16 {vr(D1)}, {vr(WKF+4*m)}, {vr(TR+4*j)}, {'0' if j == 0 else vr(D1)}")
            a(f"  v_cvt_pk_bf16_f32 v{D2}, v{D1}, v{D1+1}\n  v_cvt_pk_bf16_f32 v{D2+1}, v{D1+2}, v{D1+3}")
            a(f"  ds_write_b64 v{T3}, {vr(D2,2)} offset:{tau*32}")
        a("  s_waitcnt lgkmcnt(0)\n  s_barrier")
        self.stamp(5)
        if cfg.cut >= 1: a("  s_branch L_hdone")
        a(f"  s_cmp_lg_u32 s{S_WAVE}, 0\n  s_cbranch_scc1 L_hdone")
        a(f"  v_mul_u32_u24 v{T0}, 784, v{N}\n  v_lshl_add_u32 v{T0}, v{Gq}, 4, v{T0}\n  v_add_u32 v{T0}, {H_WT}, v{T0}")
        for j in range(12): a(f"  ds_read_b128 {vr(WKF+4*j)}, v{T0} offset:{j*64}")
        a(f"  v_mul_u32_u24 v{T3}, 768, v{N}\n  v_lshl_add_u32 v{T3}, v{Gq}, 3, v{T3}\n  s_lshl_b32 s61, s{S_IDX}, 5")
        a(f"  buffer_load_dwordx2 {vr(QF,2)}, v{T3}, {sr(R_A)}, s61 offen")
        a("  s_waitcnt vmcnt(0) lgkmcnt(0)")
        a(f"  v_lshlrev_b32 v{QF+4}, 16, v{QF}\n  v_and_b32 v{QF+5}, 0xffff0000, v{QF}\n  v_lshlrev_b32 v{QF+6}, 16, v{QF+1}\n  v_and_b32 v{QF+7}, 0xffff0000, v{QF+1}")
        a(f"  v_mul_u32_u24 v{T2}, 768, v{N}\n  v_lshl_add_u32 v{T2}, v{Gq}, 4, v{T2}\n  s_mov_b32 s62, {RCTX_OFF}")
        if cfg.c1sleep:
            lp, dn = self.lab("c1"), self.lab("c1d")
            a(f"  s_mov_b32 s{S_SPIN}, 0\n{lp}:\n  buffer_load_dword v{AF}, v{T2}, {sr(R_WS)}, s62 offen sc1")
            self.spin_guard(dn)
            a(f"  s_waitcnt vmcnt(0)\n  v_cmp_ne_u32 vcc, -1, v{AF}\n  s_cbranch_vccnz {dn}\n  s_sleep {cfg.c1sleep}\n  s_branch {lp}\n{dn}:\n  s_waitcnt vmcnt(0)")
        self.gather_frags(12, AF, T2, 62, T0, "c", rowmajor=True, sleep=cfg.csleep)
        self.stamp(6)
        for j in range(12):
            dd = D1 if j % 2 == 0 else D2
            c1 = vr(QF+4) if j == 0 else ("0" if j == 1 else vr(dd))
            a(f"  v_mfma_f32_16x16x32_bf16 {vr(dd)}, {vr(WKF+4*j)}, {vr(AF+4*j)}, {c1}")
        for h in (0, 2): self.pk("v_pk_add_f32", D1 + h, D1 + h, D2 + h)
        a(f"  v_cvt_pk_bf16_f32 v{D2}, v{D1}, v{D1+1}\n  v_cvt_pk_bf16_f32 v{D2+1}, v{D1+2}, v{D1+3}")
        a(f"  buffer_store_dwordx2 {vr(D2,2)}, v{T3}, {sr(R_F)}, s61 offen")
        nn = self.lab("nononce")
        a(f"  s_cmp_lg_u32 s{S_IDX}, 0\n  s_cbranch_scc1 {nn}")
        a(f"  buffer_store_dword v15, v{ZERO}, {sr(R_WS)}, 0 offen offset:{NONCE_OFF} sc1\n{nn}:")
        a("L_hdone:")
        self.stamp(9); self.stamp_flush((0, 0, 2, (0, 1, 3, 4, 5, 6)))
        a("  s_endpgm")

    def collector(self):
        a = self.a
        a("L_collect:")
        a(f"  s_cmp_lg_u32 s{S_WAVE}, 0\n  s_cbranch_scc1 L_end\n  s_waitcnt lgkmcnt(0)")
        srd(a, R_WS, P_WS, WS_BYTES)
        a(f"  v_mov_b32 v2, 0\n  buffer_load_dword v3, v2, {sr(R_WS)}, 0 offen offset:{NONCE_OFF} sc1")
        self.flag_addr(4)
        a(f"  s_waitcnt vmcnt(0)\n  v_add_u32 v3, 1, v3\n  v_readfirstlane_b32 s{S_NONCE}, v3")
        self.wait_flags(5, 4)
        a(f"  s_mov_b32 s62, {GO_OFF}\n  s_mov_b64 exec, 1\n  buffer_store_dword v3, v2, {sr(R_WS)}, s62 offen sc1")
        a("  s_endpgm")

    def build(self):
        a = self.a
        hdr = open("standalone__detection_seg_dino__vision.s.ref").read().split("\n")
        for line in hdr:
            if line.startswith("; @launch"): break
            a(line)
        a("; @" + f"launch grid=(256,1,1) block=(512,1,1) lds={LDS_BYTES}")
        a('.amdgcn_target "amdgcn-amd-amdhsa--gfx950"\n.text')
        a(f".globl {KNAME}\n.p2align 8\n.type {KNAME},@function\n{KNAME}:")
        n0 = len(a.L)
        self.prologue(); self.streamer(); self.helper(); self.collector()
        a("L_end:\n  s_endpgm\nL_code_end:")
        body, added = hazard.fix(a.L[n0:])
        a.L = a.L[:n0] + body
        a('.section .rodata,"a"\n.p2align 6')
        a(f".amdhsa_kernel {KNAME}")
        a("  .amdhsa_next_free_vgpr 256\n  .amdhsa_next_free_sgpr 102\n  .amdhsa_accum_offset 256")
        a("  .amdhsa_group_segment_fixed_size 0\n  .amdhsa_kernarg_size 80\n  .amdhsa_user_sgpr_count 2")
        a("  .amdhsa_user_sgpr_kernarg_segment_ptr 1\n  .amdhsa_system_sgpr_workgroup_id_x 1")
        a("  .amdhsa_float_denorm_mode_32 3")
        a(".end_amdhsa_kernel")
        return a.text(), added

def generate(path, **kw):
    cfg = Cfg()
    for k, v in kw.items(): setattr(cfg, k, v)
    text, added = G(cfg).build()
    open(path, "w").write(text)
    return added

if __name__ == "__main__":
    path = sys.argv[1] if len(sys.argv) > 1 else "standalone__detection_seg_dino__vision.s"
    kw = {}
    for x in sys.argv[2:]:
        k, v = x.split("="); kw[k] = eval(v)
    print("nops added:", generate(path, **kw))
```

```python
import sys, struct
from asmlib import Asm
import hazard

KNAME = "standalone__detection_seg_dino__vision_kernel"

NH, NS, NPAIR = 24, 228, 9
F0_BYTES, F1_BYTES, W_BYTES, Q_BYTES = 50331648, 12582912, 294912, 12288
WS_BYTES = 268435456

NONCE_OFF = 0
HINT_OFF = 1024
RQ_OFF, RQK_OFF, RCTX_OFF = 4096, 20480, 36864
GO_OFF = 53248
FLAG_OFF = 49152
LSE_OFF = 65536
PART_OFF = 131072
PART_STRIDE = NS * 128
STAMP_OFF = 8 << 20

SLOT = 12288
STG = 12 * SLOT
TOP = 13 * SLOT
STAT = TOP
NONCE_LDS = TOP + 2304
FLAG_LDS = TOP + 2308
QS_LDS = TOP + 2320
MXW = TOP + 2400
MX = TOP + 2560
RED = TOP + 3072
RED2 = STG + 8192
LDS_BYTES = 163840
H_QI, H_WKI, H_WQI, H_WOI, H_WT, H_WV = 0, 12288, 24576, 36864, 49152, 65536
H_QS = 61952

LAG_LIMIT = 40.0
LOW_LIMIT = -60.0
KEYC = 0x9e3779b1
LOG2E = 1.4426950408889634
def f32(x): return "0x%08x" % struct.unpack("<I", struct.pack("<f", x))[0]

class Cfg:
    nt = True
    stamp = False
    depth = 4
    hx0 = 0
    hnx = 1
    hint = True
    codepf = True
    nostream = False
    dbgstamp = False
    pfrows = 4
    cut = 0
    lite = False
    trig_a = 2
    trig_b = 4
    qsleep = 4
    c1sleep = 6
    lag = True
    prefuse = False
    late = False
    sched = 1
    streamonly = False
    rsleep = 0
    csleep = 0
    ext7 = 1
    ext8 = 1
    zref = True
    redsel = 0
    fdiag = False
    late8 = False
    dlate = 5
    xlate = 4
    hdiag = False
    gdiag = False
    rdiag = False
    bdiag_sb = 4
    bdiag = False
    selpoll = 2
    hnt = False

S_WAVE = 3
P_Q, P_F0, P_F1, P_WQ, P_WK, P_WV, P_WO, P_OUT, P_DBG, P_WS = 4, 6, 8, 10, 12, 14, 16, 18, 20, 22
R_A, R_B, R_WS, R_DBG, R_C, R_D, R_E, R_F = 24, 28, 32, 36, 40, 44, 48, 52
S_IDX, S_ONELO, S_ONEHI = 56, 57, 58
S_K, S_QBASE, S_LINK = 66, 67, 68
S_NONCE, S_SPIN = 70, 71
S_TI, S_TB, S_PB, S_BIAS, S_T, S_P0, S_SB, S_W0, S_NP, S_PVB, S_LAST = 72, 73, 74, 75, 76, 77, 78, 79, 80, 81, 59
S_SST = 48
S_STA, S_PAIR, S_POFF = 49, 52, 53
S_LINK2 = 54
S_LOW = 47
S_RHO = 79
S_QMASK = 50
SETA, SETB = 40, 44
STAMP0 = 82
SPIN_CAP = 200000
import os
if os.environ.get('CAP'): SPIN_CAP = int(os.environ['CAP'])

def srd(a, s, ptr, nbytes):
    a(f"  s_mov_b32 s{s}, s{ptr}\n  s_mov_b32 s{s+1}, s{ptr+1}\n  s_mov_b32 s{s+2}, {nbytes}\n  s_mov_b32 s{s+3}, 0x20000")
def vr(b, n=4): return f"v[{b}:{b+n-1}]"
def sr(b, n=4): return f"s[{b}:{b+n-1}]"

class G:
    def __init__(self, cfg):
        self.cfg = cfg; self.a = Asm(); self.uid = 0
    def lab(self, name):
        self.uid += 1
        return f"L_{name}_{self.uid}"
    def stamp(self, i):
        if self.cfg.fdiag: return
        if self.cfg.lite and i not in (0, 9): return
        if self.cfg.stamp and not self.cfg.bdiag:
            self.a(f"  s_memrealtime s[{STAMP0+2*i}:{STAMP0+2*i+1}]\n  s_waitcnt lgkmcnt(0)")
    def fstamp(self, i):
        if self.cfg.fdiag: self.a(f"  s_memtime s[{STAMP0+2*i}:{STAMP0+2*i+1}]\n  s_waitcnt lgkmcnt(0)")
    def cstamp(self, i):
        if self.cfg.bdiag:
            l = self.lab("cs")
            self.a(f"  s_cmp_lg_u32 s{S_SB}, {self.cfg.bdiag_sb}\n  s_cbranch_scc1 {l}\n  s_memtime s[{STAMP0+2*i}:{STAMP0+2*i+1}]\n  s_waitcnt lgkmcnt(0)\n{l}:")
    def stamp_init(self):
        if self.cfg.stamp:
            for i in range(20): self.a(f"  s_mov_b32 s{STAMP0+i}, 0")
    def stamp_flush(self, dbg=None):
        if not self.cfg.stamp: return
        a = self.a
        if self.cfg.dbgstamp and dbg:
            who, wave, first, which = dbg
            sk = self.lab("nodbg")
            a(f"  s_cmp_lg_u32 s{S_IDX}, {who}\n  s_cbranch_scc1 {sk}\n  s_cmp_lg_u32 s{S_WAVE}, {wave}\n  s_cbranch_scc1 {sk}")
            srd(a, R_DBG, P_DBG, 256)
            a("  v_mov_b32 v1, 0")
            for i, st in enumerate(which):
                a(f"  v_mov_b32 v2, s{STAMP0+2*st}\n  buffer_store_dword v2, v1, {sr(R_DBG)}, 0 offen offset:{4*(first+i)}\n  s_nop 0")
            a(f"{sk}:")
        if self.cfg.dbgstamp: return
        if self.cfg.lite:
            if dbg[0] != 0: return
            sk = self.lab("nolite")
            a(f"  s_cmp_lg_u32 s{S_WAVE}, 0\n  s_cbranch_scc1 {sk}")
            a("  s_lshl_b32 s60, s2, 3\n  s_lshl_b32 s60, s60, 6")
            a(f"  s_add_u32 s60, s60, {STAMP_OFF}\n  v_mov_b32 v1, 0\n  v_mov_b32 v2, s{STAMP0}\n  v_mov_b32 v3, s{STAMP0+18}")
            a(f"  buffer_store_dword v2, v1, {sr(R_WS)}, s60 offen\n  buffer_store_dword v3, v1, {sr(R_WS)}, s60 offen offset:36\n{sk}:")
            return
        a("  s_lshl_b32 s60, s2, 3\n  s_add_u32 s60, s60, s3\n  s_lshl_b32 s60, s60, 6")
        a(f"  s_add_u32 s60, s60, {STAMP_OFF}\n  v_mov_b32 v1, 0")
        for i in range(10):
            a(f"  v_mov_b32 v2, s{STAMP0+2*i}\n  buffer_store_dword v2, v1, {sr(R_WS)}, s60 offen offset:{4*i}\n  s_nop 0")

    def allred_g(self, x, t, op):
        a = self.a
        a(f"  v_mov_b32 v{t}, v{x}\n  v_permlane16_swap_b32 v{t}, v{x}\n  {op} v{x}, v{t}, v{x}")
        a(f"  v_mov_b32 v{t}, v{x}\n  v_permlane32_swap_b32 v{t}, v{x}\n  {op} v{x}, v{t}, v{x}")
    def valid_check(self, base, n, t, retry):
        a = self.a
        a(f"  v_max3_u32 v{t}, v{base}, v{base+1}, v{base+2}")
        h = n // 2
        a(f"  v_max3_u32 v{t+1}, v{base+h}, v{base+h+1}, v{base+h+2}")
        i, k = 3, h + 3
        while i < h or k < n:
            if i + 1 < h: a(f"  v_max3_u32 v{t}, v{t}, v{base+i}, v{base+i+1}"); i += 2
            elif i < h: a(f"  v_max_u32 v{t}, v{t}, v{base+i}"); i += 1
            if k + 1 < n: a(f"  v_max3_u32 v{t+1}, v{t+1}, v{base+k}, v{base+k+1}"); k += 2
            elif k < n: a(f"  v_max_u32 v{t+1}, v{t+1}, v{base+k}"); k += 1
        a(f"  v_max_u32 v{t}, v{t}, v{t+1}\n  v_cmp_eq_u32 vcc, -1, v{t}\n  s_cbranch_vccnz {retry}")
    def spin_guard(self, done):
        self.a(f"  s_add_u32 s{S_SPIN}, s{S_SPIN}, 1\n  s_cmp_gt_u32 s{S_SPIN}, {SPIN_CAP}\n  s_cbranch_scc1 {done}")
    def flag_addr(self, va):
        self.a(f"  v_min_u32 v{va}, {NH-1}, v0\n  v_lshlrev_b32 v{va}, 7, v{va}\n  v_add_u32 v{va}, {FLAG_OFF}, v{va}")
    def wait_flags(self, vd, va, first_issued=False):
        a = self.a
        lp, ck, dn = self.lab("flg"), self.lab("flgc"), self.lab("flgd")
        a(f"  s_mov_b32 s{S_SPIN}, 0")
        if first_issued: a(f"  s_branch {ck}")
        a(f"{lp}:\n  buffer_load_dword v{vd}, v{va}, {sr(R_WS)}, 0 offen sc1")
        self.spin_guard(dn)
        a(f"{ck}:\n  s_waitcnt vmcnt(0)\n  v_cmp_ne_u32 vcc, s{S_NONCE}, v{vd}\n  s_cbranch_vccnz {lp}")
        a(f"{dn}:\n  s_waitcnt vmcnt(0)")
    def gather_frags(self, nfr, dst, vaddr, off0, t, name, rowmajor=False, sleep=0):
        a = self.a
        lp, dn, l0 = self.lab(name), self.lab(name + "d"), self.lab(name + "0")
        a(f"  s_add_u32 s63, s{off0}, 4096\n  s_add_u32 s64, s{off0}, 8192\n  s_mov_b32 s{S_SPIN}, 0")
        if sleep: a(f"  s_branch {l0}\n{lp}:\n  s_sleep {sleep}\n{l0}:")
        else: a(f"{lp}:")
        for j in range(nfr):
            so = (f"s{off0}", "s63", "s64")[j >> 2]
            if rowmajor: a(f"  buffer_load_dwordx4 {vr(dst+4*j)}, v{vaddr}, {sr(R_WS)}, s{off0} offen offset:{j*64} sc1")
            else: a(f"  buffer_load_dwordx4 {vr(dst+4*j)}, v{vaddr}, {sr(R_WS)}, {so} offen offset:{(j&3)*1024} sc1")
        self.spin_guard(dn)
        a("  s_waitcnt vmcnt(0)")
        self.valid_check(dst, 4 * nfr, t, lp)
        a(f"{dn}:\n  s_waitcnt vmcnt(0)")

    def prologue(self):
        a = self.a; cfg = self.cfg
        a("  s_cmp_ge_u32 s2, 256\n  s_cbranch_scc1 L_end")
        a("  s_load_dwordx16 s[4:19], s[0:1], 0\n  s_load_dwordx4 s[20:23], s[0:1], 64")
        if cfg.codepf:
            l = self.lab("pc")
            a(f"  s_cmp_ge_u32 s2, {8*cfg.pfrows}\n  s_cbranch_scc1 L_nopf")
            a(f"  s_getpc_b64 s[60:61]\n{l}:\n  s_sub_u32 s60, s60, {l}-{KNAME}\n  s_subb_u32 s61, s61, 0")
            a(f"  s_bfe_u32 s62, s2, 0x20003\n  s_lshl_b32 s62, s62, 13\n  v_lshl_add_u32 v246, v0, 4, s62")
            a(f"  v_min_u32 v246, L_code_end-{KNAME}-16, v246\n  global_load_dwordx4 v[168:171], v246, s[60:61]")
            a("L_nopf:")
        a("  v_lshrrev_b32 v1, 6, v0\n  v_and_b32 v0, 63, v0")
        a(f"  v_readfirstlane_b32 s{S_WAVE}, v1")
        a(f"  s_mov_b32 s{S_ONELO}, 0x00003f80\n  s_mov_b32 s{S_ONEHI}, 0x3f800000")
        self.stamp_init(); self.stamp(0)
        rows = NH // cfg.hnx
        a(f"  s_and_b32 s60, s2, 7\n  s_lshr_b32 s61, s2, 3\n  s_sub_u32 s62, s60, {cfg.hx0}")
        a(f"  s_cmp_lt_u32 s61, {rows}\n  s_cbranch_scc0 L_late")
        a(f"  s_cmp_lt_u32 s62, {cfg.hnx}\n  s_cbranch_scc0 L_early")
        a(f"  s_mul_i32 s{S_IDX}, s61, {cfg.hnx}\n  s_add_u32 s{S_IDX}, s{S_IDX}, s62\n  s_branch L_helper")
        a("L_early:")
        a(f"  s_cmp_lt_u32 s60, {cfg.hx0}\n  s_cselect_b32 s62, 0, {cfg.hnx}\n  s_sub_u32 s62, s60, s62")
        a(f"  s_mul_i32 s{S_IDX}, s61, {8-cfg.hnx}\n  s_add_u32 s{S_IDX}, s{S_IDX}, s62\n  s_branch L_stream")
        a(f"L_late:\n  s_sub_u32 s{S_IDX}, s2, {NH}")
        a(f"  s_cmp_eq_u32 s{S_IDX}, {NS}\n  s_cbranch_scc1 L_collect")
        a(f"  s_cmp_ge_u32 s{S_IDX}, {NS}\n  s_cbranch_scc1 L_end")
        a("L_stream:")
        if cfg.nostream: a("  s_branch L_end")

    def code_prefetch(self, vt, vd):
        if not self.cfg.codepf: return
        a = self.a
        l = self.lab("pc")
        a(f"  s_getpc_b64 s[60:61]\n{l}:")
        a(f"  s_sub_u32 s60, s60, {l}-{KNAME}\n  s_subb_u32 s61, s61, 0")
        a(f"  s_lshr_b32 s62, s2, 3\n  s_lshl_b32 s62, s62, 10\n  v_lshl_add_u32 v{vt}, v0, 4, s62")
        a(f"  v_min_u32 v{vt}, L_code_end-{KNAME}-16, v{vt}")
        a(f"  global_load_dwordx4 {vr(vd)}, v{vt}, s[60:61]")

    V_OFF1, V_OFF0, V_SA = 2, 3, 255
    V_WA = (4, 5, 253, 254)
    V_RA, V_PA = 6, 10
    V_PADDR, V_MXW, V_MXR = 13, 14, 15
    V_ST = 128
    V_BUF = (16, 36, 56)
    V_PU, V_TMP, V_OUT = 144, 152, 160
    V_LT, V_AT = 76, 78
    V_QK, V_A, V_ACC = 80, 128, 176
    V_S, V_SUM, V_SQ4, V_SQ, V_MU, V_RS, V_LG = 188, 192, 196, 200, 204, 208, 212
    V_ONES = 216
    V_M, V_AL, V_L2, V_AM2, V_QS, V_CINV, V_CEPS, V_BIAS = 220, 222, 224, 226, 228, 230, 232, 234
    V_T0, V_T1, V_T2, V_ONEF = 236, 237, 238, 239
    V_MXV, V_TA, V_L16 = 240, 248, 252
    V_PUB = 196
    V_REDW = 198
    V_STR = 1

    def task_bases(self, st, kconst, kreg=True):
        a = self.a
        if kreg: a(f"  s_add_u32 s62, s{S_K}, {kconst}")
        else: a(f"  s_mov_b32 s62, {kconst}")
        a(f"  s_lshl_b32 s63, s62, 1\n  s_add_u32 s63, s63, s{S_QBASE}")
        a(f"  s_mul_i32 s{st}, s63, 3072\n  s_lshr_b32 s64, s63, 5\n  s_mul_i32 s64, s64, 393216")
        a(f"  s_and_b32 s65, s63, 31\n  s_mul_i32 s65, s65, 6144\n  s_add_u32 s{st+1}, s64, s65")
        a(f"  s_cmp_gt_u32 s62, {NPAIR-1}\n  s_cselect_b32 s{st}, 0x80000000, s{st}\n  s_cselect_b32 s{st+1}, 0x80000000, s{st+1}")
        a(f"  s_add_u32 s{st+2}, s{st+1}, 196608")
    def issue_piece(self, st, par, i):
        a = self.a
        nt = " nt" if self.cfg.nt else ""
        b = self.V_BUF[par] + 4 * i
        if i == 0:
            a(f"  buffer_load_dwordx4 {vr(b)}, v{self.V_OFF1}, {sr(R_B)}, s{st} offen{nt}")
        else:
            t = i - 1
            off = " offset:768" if t & 1 else ""
            a(f"  buffer_load_dwordx4 {vr(b)}, v{self.V_OFF0}, {sr(R_A)}, s{st+1+(t>>1)} offen{off}{nt}")

    def fuse_sub(self, par, d, name, mode="roll"):
        a = self.a
        hold, roll = mode == "hold", mode == "roll"
        b = self.V_BUF[par]; u = self.V_PU; t8 = self.V_TMP
        SS, SQ, R, U = self.V_ST, self.V_ST + 4, self.V_ST + 8, self.V_ST + 12
        a0 = d // 5
        a(f"{name}:")
        if roll:
            a(f"  s_mov_b32 s{SETA}, s{SETB}\n  s_mov_b32 s{SETA+1}, s{SETB+1}\n  s_mov_b32 s{SETA+2}, s{SETB+2}")
            self.task_bases(SETB, a0 + 1)
        def nxt(i):
            if not roll: return
            aa, pi = (i + d) // 5, (i + d) % 5
            self.issue_piece(SETA if aa == a0 else SETB, par ^ (aa & 1), pi)
        def dpp(dst, src, ctrl, bank):
            a(f"  v_add_f32_dpp v{dst}, v{src}, v{src} {ctrl} row_mask:0xf bank_mask:{bank:#x}")
        a(f"  s_waitcnt vmcnt({d-1})")
        for i in range(4):
            a(f"  v_lshlrev_b32 v{u+2*i}, 16, v{b+i}\n  v_and_b32 v{u+2*i+1}, 0xffff0000, v{b+i}")
        nxt(0)
        for t in range(4):
            c = b + 4 + 4 * t; o = c if hold else self.V_OUT + 4 * (t & 1)
            a(f"  s_waitcnt vmcnt({d-1 if roll else d-2-t})")
            for i in range(4):
                a(f"  v_dot2_f32_bf16 v{t8+2*i}, v{c+i}, s{S_ONELO}, v{u+2*i}")
                a(f"  v_dot2_f32_bf16 v{t8+2*i+1}, v{c+i}, s{S_ONEHI}, v{u+2*i+1}")
            nxt(t + 1)
            for i in range(4):
                a(f"  v_cvt_pk_bf16_f32 v{o+i}, v{t8+2*i}, v{t8+2*i+1}")
            if not hold: a(f"  ds_write_b128 v{self.V_WA[t]}, {vr(o)} offset:{t*768}")
            if t > 0: dpp(R + t - 1, SS + t - 1, "row_ror:8", 0x3)
            for i in range(4):
                a(f"  v_dot2_f32_bf16 v{SS+t}, v{o+i}, v{self.V_ONES}, {'0' if i == 0 else 'v%d' % (SS+t)}")
                a(f"  v_dot2_f32_bf16 v{SQ+t}, v{o+i}, v{o+i}, {'0' if i == 0 else 'v%d' % (SQ+t)}")
            if t > 0: dpp(R + t - 1, SQ + t - 1, "row_ror:8", 0xc)
        WA = self.V_WA
        if hold: a("  s_mov_b32 s62, 0")
        else: a(f"  s_mov_b32 s62, 24576\n  s_cmp_eq_u32 s{S_K}, 5\n  s_cselect_b32 s62, {(-5*24576) & 0xffffffff:#x}, s62")
        dpp(U, R, "row_half_mirror", 0x5)
        dpp(R + 3, SS + 3, "row_ror:8", 0x3)
        a(f"  v_add_u32 v{WA[0]}, s62, v{WA[0]}")
        dpp(U, R + 1, "row_half_mirror", 0xa)
        dpp(R + 3, SQ + 3, "row_ror:8", 0xc)
        dpp(U + 1, R + 2, "row_half_mirror", 0x5)
        a(f"  v_add_u32 v{WA[1]}, s62, v{WA[1]}")
        dpp(U, U, "quad_perm:[1,0,3,2]", 0xf)
        dpp(U + 1, R + 3, "row_half_mirror", 0xa)
        a(f"  v_add_u32 v{WA[2]}, s62, v{WA[2]}")
        dpp(U, U, "quad_perm:[2,3,0,1]", 0xf)
        dpp(U + 1, U + 1, "quad_perm:[1,0,3,2]", 0xf)
        a(f"  v_add_u32 v{WA[3]}, s62, v{WA[3]}\n  s_mov_b64 exec, s[{S_QMASK}:{S_QMASK+1}]\n  ds_add_f32 v{self.V_SA}, v{U}\n  s_mov_b64 exec, -1")
        dpp(U + 1, U + 1, "quad_perm:[2,3,0,1]", 0xf)
        a(f"  s_add_u32 s{S_K}, s{S_K}, 1")
        a(f"  s_mov_b64 exec, s[{S_QMASK}:{S_QMASK+1}]\n  ds_add_f32 v{self.V_SA}, v{U+1} offset:8\n  s_mov_b64 exec, -1")
        a(f"  v_add_u32 v{self.V_SA}, 256, v{self.V_SA}")
        a(f"  s_setpc_b64 s[{S_LINK}:{S_LINK+1}]")

    def stream_consts(self):
        a = self.a
        a("  v_and_b32 v240, 15, v0\n  v_lshrrev_b32 v241, 4, v0")
        a("  v_and_b32 v242, 7, v240\n  v_lshlrev_b32 v242, 1, v242\n  v_mul_u32_u24 v243, 768, v240")
        for m in range(4):
            a(f"  v_add_u32 v244, {4*m}, v241\n  v_xor_b32 v244, v244, v242\n  v_lshl_add_u32 v{self.V_RA+m}, v244, 4, v243")
        a("  v_lshrrev_b32 v242, 2, v240\n  v_lshl_add_u32 v242, v241, 2, v242\n  v_mul_u32_u24 v243, 768, v242")
        a("  v_and_b32 v242, 7, v242\n  v_lshlrev_b32 v242, 1, v242")
        a("  v_and_b32 v244, 3, v240\n  v_lshrrev_b32 v245, 1, v244\n  v_and_b32 v244, 1, v244\n  v_lshl_add_u32 v243, v244, 3, v243")
        for tau in range(3):
            a(f"  s_mul_i32 s62, s{S_WAVE}, 3\n  s_add_u32 s62, s62, {tau}")
            a("  s_lshl_b32 s63, s62, 1\n  s_and_b32 s63, s63, 14\n  s_lshr_b32 s62, s62, 3\n  s_lshl_b32 s62, s62, 8")
            a(f"  v_xor_b32 v244, s63, v242\n  v_or_b32 v244, v244, v245\n  v_lshl_add_u32 v244, v244, 4, v243\n  v_add_u32 v{self.V_PA+tau}, s62, v244")
        a(f"  v_lshlrev_b32 v{self.V_L16}, 4, v0\n  v_add_u32 v{self.V_PADDR}, {STG}, v{self.V_L16}\n  v_lshlrev_b32 v{self.V_STR}, 4, v241")
        a(f"  v_lshlrev_b32 v244, 5, v240\n  v_add_u32 v{self.V_MXR}, {MX}, v244")
        a(f"  s_lshl_b32 s62, s{S_WAVE}, 2\n  v_add_u32 v{self.V_MXW}, s62, v{self.V_MXR}")
        for i in range(4): a(f"  v_mov_b32 v{self.V_ONES+i}, 0x3f803f80")
        a(f"  v_mov_b32 v{self.V_ONEF}, 1.0\n  v_mov_b32 v{self.V_CINV}, {f32(1/384)}\n  v_mov_b32 v{self.V_CEPS}, {f32(1e-5)}")
        for i in range(12): a(f"  v_mov_b32 v{self.V_ACC+i}, 0")
        a(f"  v_mov_b32 v{self.V_M}, 0xff800000")
        for r in (self.V_L2, self.V_L2+1, self.V_AM2, self.V_AM2+1, self.V_M+1, self.V_AL+1, self.V_QS+1, self.V_CINV+1, self.V_CEPS+1, self.V_BIAS+1):
            a(f"  v_mov_b32 v{r}, 0")

    def pk(self, op, d, x, y, z=None, bc=(), neg=()):
        n = 2 if z is None else 3
        ops = [x, y] + ([z] if z is not None else [])
        s = f"  {op} {vr(d,2)}, " + ", ".join(vr(o, 2) for o in ops)
        if bc: s += " op_sel_hi:[" + ",".join("0" if i in bc else "1" for i in range(n)) + "]"
        if neg:
            m = "[" + ",".join("1" if i in neg else "0" for i in range(n)) + "]"
            s += f" neg_lo:{m} neg_hi:{m}"
        self.a(s)

    def red_write(self, l, am, t):
        a = self.a
        a(f"  v_add_f32 v{t}, v{l}, v{l+1}\n  v_add_f32 v{t+1}, v{am}, v{am+1}")
        a(f"  v_permlane16_swap_b32 v{t}, v{t+1}\n  v_add_f32 v{t}, v{t}, v{t+1}")
        a(f"  v_mov_b32 v{t+1}, v{t}\n  v_permlane32_swap_b32 v{t+1}, v{t}\n  v_add_f32 v{t}, v{t}, v{t+1}")
        a(f"  ds_write_b32 v{self.V_REDW}, v{t}")

    def sphase_sub(self):
        a = self.a
        A, QK = self.V_A, self.V_QK
        S, SUM, SQ, MU, RS, LG, T1, T2 = self.V_S, self.V_SUM, self.V_SQ, self.V_MU, self.V_RS, self.V_LG, self.V_T1, self.V_T2
        a("L_sphase:")
        for m in range(4): a(f"  v_add_u32 v{self.V_TA+m}, s{S_TB}, v{self.V_RA+m}")
        a(f"  v_add_u32 v{T1}, s{S_STA}, v{self.V_STR}")
        a(f"  ds_read_b128 {vr(SUM)}, v{T1}\n  ds_read_b128 {vr(SQ)}, v{T1} offset:64")
        for j in range(12): a(f"  ds_read_b128 {vr(A+4*j)}, v{self.V_TA+(j&3)} offset:{(j>>2)*256}")
        a(f"  s_cmp_lt_u32 s{S_PAIR}, 2048\n  s_cselect_b32 s{S_BIAS}, 0, {f32(-1e30)}")
        a(f"  v_mov_b32 v{self.V_BIAS}, s{S_BIAS}\n  v_add_u32 v{T2}, s{S_POFF}, v{self.V_PADDR}")
        a("  s_waitcnt lgkmcnt(12)")
        stat = []
        for h in (0, 2): stat.append(lambda h=h: self.pk("v_pk_mul_f32", MU + h, SUM + h, self.V_CINV, bc=(1,)))
        for h in (0, 2): stat.append(lambda h=h: self.pk("v_pk_fma_f32", RS + h, SQ + h, self.V_CINV, self.V_CEPS, bc=(1, 2)))
        for h in (0, 2): stat.append(lambda h=h: self.pk("v_pk_fma_f32", RS + h, MU + h, MU + h, RS + h, neg=(0,)))
        for r in range(4): stat.append(lambda r=r: a(f"  v_max_f32 v{RS+r}, v{self.V_CEPS}, v{RS+r}"))
        for r in range(4): stat.append(lambda r=r: a(f"  v_rsq_f32 v{RS+r}, v{RS+r}"))
        for h in (0, 2): stat.append(lambda h=h: self.pk("v_pk_mul_f32", SUM + h, MU + h, self.V_QS, bc=(1,)))
        for j in range(12):
            a(f"  s_waitcnt lgkmcnt({11-j})")
            a(f"  v_mfma_f32_16x16x32_bf16 {vr(S)}, {vr(A+4*j)}, {vr(QK+4*j)}, {'0' if j == 0 else vr(S)}")
            for _ in range(2):
                if stat: stat.pop(0)()
        for h in (0, 2): self.pk("v_pk_add_f32", LG + h, S + h, SUM + h, neg=(1,))
        for h in (0, 2): self.pk("v_pk_fma_f32", LG + h, LG + h, RS + h, self.V_BIAS, bc=(2,))
        a(f"  s_setpc_b64 s[{S_LINK2}:{S_LINK2+1}]")

    def sp_sub(self):
        a = self.a
        MU, RS, LG, M, T0, T1, T2, MXV = self.V_MU, self.V_RS, self.V_LG, self.V_M, self.V_T0, self.V_T1, self.V_T2, self.V_MXV
        PT, LT, AT = MXV, self.V_LT, self.V_AT
        a("L_sp:")
        a(f"  s_call_b64 s[{S_LINK2}:{S_LINK2+1}], L_sphase")
        for h in (0, 2): self.pk("v_pk_add_f32", PT + h, LG + h, M, bc=(1,), neg=(1,))
        a(f"  v_max3_f32 v{T0}, v{PT}, v{PT+1}, v{PT+2}\n  v_max_f32 v{T0}, v{T0}, v{PT+3}")
        for r in range(4): a(f"  v_exp_f32 v{PT+r}, v{PT+r}")
        a(f"  v_cmp_lt_f32 vcc, {f32(LAG_LIMIT)}, v{T0}\n  v_cmp_gt_f32 s[60:61], s{S_LOW}, v{T0}\n  s_or_b64 vcc, vcc, s[60:61]")
        self.pk("v_pk_add_f32", LT, LT, PT); self.pk("v_pk_add_f32", LT, LT, PT + 2)
        for h in (0, 2): self.pk("v_pk_mul_f32", PT + h, PT + h, RS + h)
        a(f"  v_cvt_pk_bf16_f32 v{MXV+4}, v{PT}, v{PT+1}\n  v_cvt_pk_bf16_f32 v{MXV+5}, v{PT+2}, v{PT+3}")
        a(f"  ds_write_b64 v{T2}, {vr(MXV+4,2)}")
        for h in (0, 2): self.pk("v_pk_fma_f32", AT, PT + h, MU + h, AT)
        a(f"  s_cbranch_vccz L_sp_ret\n  v_mov_b32 v{T0}, {FLAG_LDS}\n  v_mov_b32 v{T1}, 1\n  ds_write_b32 v{T0}, v{T1}")
        a(f"L_sp_ret:\n  s_setpc_b64 s[{S_LINK}:{S_LINK+1}]")

    def batch_sub(self):
        a = self.a
        A = self.V_A
        MU, RS, LG = self.V_MU, self.V_RS, self.V_LG
        M, AL, L2, AM2, T0, T1, T2, MXV = self.V_M, self.V_AL, self.V_L2, self.V_AM2, self.V_T0, self.V_T1, self.V_T2, self.V_MXV
        PT = MXV
        a("L_batch:")
        self.cstamp(0)
        a(f"  s_sub_u32 s{S_TI}, s{S_WAVE}, s{S_W0}\n  s_cmp_ge_u32 s{S_TI}, s{S_T}\n  s_cbranch_scc1 L_b_bar2")
        a(f"  s_add_u32 s63, s{S_TI}, s{S_SB}\n  s_mul_i32 s{S_TB}, s63, {SLOT}")
        a(f"  s_lshl_b32 s62, s{S_TI}, 7\n  s_add_u32 s{S_STA}, s62, s{S_SST}")
        a(f"  s_lshr_b32 s62, s{S_TI}, 1\n  s_add_u32 s{S_PAIR}, s62, s{S_PB}")
        a(f"  s_lshl_b32 s62, s62, 10\n  s_and_b32 s63, s{S_TI}, 1\n  s_lshl_b32 s63, s63, 3\n  s_add_u32 s{S_POFF}, s62, s63")
        a(f"  s_call_b64 s[{S_LINK2}:{S_LINK2+1}], L_sphase")
        self.cstamp(1)
        a(f"  v_max3_f32 v{T0}, v{LG}, v{LG+1}, v{LG+2}\n  v_max_f32 v{T0}, v{T0}, v{LG+3}")
        self.allred_g(T0, T1, "v_max_f32")
        a(f"  ds_write_b32 v{self.V_MXW}, v{T0}")
        a("L_b_bar2:\n  s_waitcnt lgkmcnt(0)")
        self.cstamp(2)
        a("  s_barrier")
        self.cstamp(3)
        a(f"  ds_read_b128 {vr(MXV)}, v{self.V_MXR}\n  ds_read_b128 {vr(MXV+4)}, v{self.V_MXR} offset:16")
        a(f"  v_mov_b32 v{T0}, {FLAG_LDS}\n  v_mov_b32 v{T1}, 0\n  ds_write_b32 v{T0}, v{T1}")
        a("  s_waitcnt lgkmcnt(1)")
        a(f"  v_max3_f32 v{T0}, v{MXV}, v{MXV+1}, v{MXV+2}\n  v_max3_f32 v{T1}, v{MXV+3}, v{MXV+4}, v{MXV+5}")
        a(f"  v_max3_f32 v{T0}, v{T0}, v{MXV+6}, v{MXV+7}\n  v_max3_f32 v{T0}, v{T0}, v{T1}, v{M}")
        a(f"  v_sub_f32 v{AL}, v{M}, v{T0}\n  v_mov_b32 v{M}, v{T0}\n  v_exp_f32 v{AL}, v{AL}")
        self.cstamp(4)
        a(f"  s_cmp_ge_u32 s{S_TI}, s{S_T}\n  s_cbranch_scc1 L_b_nop")
        for h in (0, 2): self.pk("v_pk_add_f32", PT + h, LG + h, M, bc=(1,), neg=(1,))
        for r in range(4): a(f"  v_exp_f32 v{PT+r}, v{PT+r}")
        self.pk("v_pk_mul_f32", L2, L2, AL, bc=(1,)); self.pk("v_pk_mul_f32", AM2, AM2, AL, bc=(1,))
        self.pk("v_pk_add_f32", L2, L2, PT); self.pk("v_pk_add_f32", L2, L2, PT + 2)
        for h in (0, 2): self.pk("v_pk_mul_f32", PT + h, PT + h, RS + h)
        a(f"  v_cvt_pk_bf16_f32 v{MXV+4}, v{PT}, v{PT+1}\n  v_cvt_pk_bf16_f32 v{MXV+5}, v{PT+2}, v{PT+3}")
        a(f"  ds_write_b64 v{T2}, {vr(MXV+4,2)}")
        for h in (0, 2): self.pk("v_pk_fma_f32", AM2, PT + h, MU + h, AM2)
        a("  s_branch L_b_acc")
        a("L_b_nop:")
        self.pk("v_pk_mul_f32", L2, L2, AL, bc=(1,)); self.pk("v_pk_mul_f32", AM2, AM2, AL, bc=(1,))
        a("L_b_acc:")
        for i in range(0, 12, 2): self.pk("v_pk_mul_f32", self.V_ACC + i, self.V_ACC + i, AL, bc=(1,))
        a(f"  s_cmp_eq_u32 s{S_LAST}, 0\n  s_cbranch_scc1 L_b_bar3")
        self.red_write(L2, AM2, MXV + 6)
        a("L_b_bar3:\n  s_waitcnt lgkmcnt(0)")
        self.cstamp(5)
        a("  s_barrier")
        self.cstamp(6)
        a(f"  s_lshr_b32 s{S_NP}, s{S_T}, 1")
        a(f"  s_mul_i32 s{S_PVB}, s{S_SB}, {SLOT}")
        self.pv_reads(0, S_PVB, 0)
        for k in range(3):
            a(f"  s_cmp_le_u32 s{S_NP}, {k+1}\n  s_cbranch_scc1 L_pvl{k & 1}")
            a(f"  s_add_u32 s{S_PVB}, s{S_PVB}, {2*SLOT}")
            self.pv_reads((k + 1) & 1, S_PVB, (k + 1) * 1024)
            self.pv_mfmas(k & 1, 7)
        a("L_pvl1:")
        self.pv_mfmas(1, 0)
        self.cstamp(7)
        a(f"  s_setpc_b64 s[{S_LINK}:{S_LINK+1}]")
        a("L_pvl0:")
        self.pv_mfmas(0, 0)
        self.cstamp(7)
        a(f"  s_setpc_b64 s[{S_LINK}:{S_LINK+1}]")

    def pv_reads(self, buf, s_, poff, imm=0):
        a = self.a; o = self.V_A + 16 * buf
        a(f"  ds_read_b128 {vr(o)}, v{self.V_PADDR} offset:{poff}")
        for tau in range(3):
            if s_ is None:
                ad = self.V_PA + tau
            else:
                ad = self.V_TA + tau
                a(f"  v_add_u32 v{ad}, s{s_}, v{self.V_PA+tau}")
            a(f"  ds_read_b64_tr_b16 {vr(o+4+4*tau,2)}, v{ad} offset:{imm}")
            a(f"  ds_read_b64_tr_b16 {vr(o+6+4*tau,2)}, v{ad} offset:{imm + SLOT}")
    def pv_mfmas(self, buf, base):
        a = self.a; o = self.V_A + 16 * buf
        for tau in range(3):
            a(f"  s_waitcnt lgkmcnt({base + 4 - 2*tau})")
            a(f"  v_mfma_f32_16x16x32_bf16 {vr(self.V_ACC+4*tau)}, {vr(o+4+4*tau)}, {vr(o)}, {vr(self.V_ACC+4*tau)}")

    def pv_final(self):
        a = self.a; T0, T1 = self.V_T0, self.V_T1
        a(f"  v_mov_b32 v{T0}, {FLAG_LDS}\n  ds_read_b32 v{T1}, v{T0}")
        a(f"  s_mov_b32 s{S_PVB}, {8*SLOT}")
        self.pv_reads(0, S_PVB, 0)
        a(f"  s_waitcnt lgkmcnt(7)\n  v_readfirstlane_b32 s62, v{T1}\n  s_cmp_lg_u32 s62, 0\n  s_cbranch_scc1 L_slow")
        a(f"  s_mov_b32 s{S_PVB}, {10*SLOT}")
        self.pv_reads(1, S_PVB, 1024); self.pv_mfmas(0, 7)
        self.pv_reads(0, None, 2048, 0); self.pv_mfmas(1, 7)
        self.pv_reads(1, None, 3072, 2*SLOT); self.pv_mfmas(0, 7)
        self.pv_reads(0, None, 4096, 4*SLOT); self.pv_mfmas(1, 7)
        self.sums_read()
        self.pv_mfmas(0, 4)
        self.sums_math()

    V_SR = 16
    def sums_read(self):
        for i in range(4): self.a(f"  ds_read_b128 {vr(self.V_SR+4*i)}, v{self.V_PUB+3} offset:{16*i}")
    def sums_math(self):
        a = self.a; R = self.V_SR
        a("  s_waitcnt lgkmcnt(0)")
        for i in (0, 4, 8, 12): self.pk("v_pk_add_f32", R + i, R + i, R + i + 2)
        self.pk("v_pk_add_f32", R, R, R + 4); self.pk("v_pk_add_f32", R + 8, R + 8, R + 12); self.pk("v_pk_add_f32", R, R, R + 8)
        a(f"  v_rcp_f32 v{R+2}, v{R}\n  v_log_f32 v{R+5}, v{R}\n  v_mul_f32 v{R+4}, v{R+1}, v{R+2}\n  v_add_f32 v{R+6}, v{self.V_M}, v{R+5}")

    def pv_first(self):
        a = self.a; T0, T1 = self.V_T0, self.V_T1
        a(f"  v_mov_b32 v{T0}, {FLAG_LDS}\n  ds_read_b32 v{T1}, v{T0}")
        self.pv_reads(0, None, 0, 0)
        a(f"  s_waitcnt lgkmcnt(7)\n  v_readfirstlane_b32 s62, v{T1}\n  s_cmp_lg_u32 s62, 0\n  s_cbranch_scc1 L_slow1")
        self.pv_reads(1, None, 1024, 2*SLOT)
        self.pk("v_pk_add_f32", self.V_L2, self.V_L2, self.V_LT); self.pk("v_pk_add_f32", self.V_AM2, self.V_AM2, self.V_AT)
        self.pv_mfmas(0, 7)
        self.pv_reads(0, None, 2048, 4*SLOT)
        for r in range(4): a(f"  v_mov_b32 v{self.V_LT+r}, 0")
        self.pv_mfmas(1, 7)
        a(f"  s_mov_b32 s{S_PVB}, {6*SLOT}")
        self.pv_reads(1, S_PVB, 3072); self.pv_mfmas(0, 7)
        self.pv_mfmas(1, 0)

    def call_batch(self, T, w0, slot0, pair_add, last):
        self.a(f"  s_mov_b32 s{S_T}, {T}\n  s_mov_b32 s{S_W0}, {w0}\n  s_mov_b32 s{S_SB}, {slot0}\n  s_add_u32 s{S_PB}, s{S_P0}, {pair_add}\n  s_mov_b32 s{S_LAST}, {int(last)}")
        self.a(f"  s_mov_b32 s{S_SST}, {STAT + pair_add*256}")
        self.a(f"  s_call_b64 s[{S_LINK}:{S_LINK+1}], L_batch")

    def streamer(self):
        a = self.a; cfg = self.cfg; d = cfg.depth
        CALL = f"  s_call_b64 s[{S_LINK}:{S_LINK+1}], "
        a("  s_waitcnt lgkmcnt(0)")
        srd(a, R_A, P_F0, F0_BYTES); srd(a, R_B, P_F1, F1_BYTES)
        a(f"  s_cmp_ge_u32 s{S_WAVE}, 6\n  s_cbranch_scc1 L_sgather")
        a(f"  s_cmp_ge_u32 s{S_WAVE}, 3\n  s_cselect_b32 s60, 1, 0\n  s_mul_i32 s62, s60, 3\n  s_sub_u32 s61, s{S_WAVE}, s62")
        a(f"  s_mul_i32 s{S_QBASE}, s{S_IDX}, {2*NPAIR}\n  s_add_u32 s{S_QBASE}, s{S_QBASE}, s60\n  s_lshl_b32 s61, s61, 8")
        a("  v_and_b32 v240, 15, v0\n  v_lshrrev_b32 v241, 4, v0\n  v_lshl_add_u32 v242, v240, 4, s61")
        a(f"  v_mul_u32_u24 v243, 768, v241\n  v_add_u32 v{self.V_OFF1}, v242, v243\n  v_lshl_add_u32 v{self.V_OFF0}, v243, 1, v242")
        a(f"  s_mov_b32 s{S_K}, 0\n  s_mov_b32 s{S_QMASK}, 0x11111111\n  s_mov_b32 s{S_QMASK+1}, 0x11111111")
        def first_loads(d):
            self.task_bases(SETA, 0, False)
            for x in range(min(d, 5)): self.issue_piece(SETA, 0, x)
            self.task_bases(SETB, d // 5, False)
        two = cfg.dlate != d
        def both(f):
            if not two:
                f(d); return
            l1, l2 = self.lab("dl"), self.lab("dj")
            a(f"  s_and_b32 s62, s2, 7\n  s_cmp_ge_u32 s62, {cfg.xlate}\n  s_cbranch_scc1 {l1}")
            f(d)
            a(f"  s_branch {l2}\n{l1}:")
            f(cfg.dlate)
            a(f"{l2}:")
        assert d <= 5 and cfg.dlate <= 5
        if not cfg.late: both(first_loads)
        a(f"  s_mul_i32 s60, s60, {SLOT}\n  s_add_u32 s60, s60, s61")
        srd(a, R_WS, P_WS, WS_BYTES); srd(a, R_DBG, P_DBG, 256)
        a("  v_and_b32 v240, 15, v0\n  v_lshrrev_b32 v241, 4, v0\n  v_and_b32 v242, 1, v241\n  v_lshlrev_b32 v242, 3, v242\n  v_xor_b32 v242, v240, v242")
        a(f"  v_mul_u32_u24 v243, 3072, v241\n  v_add_u32 v243, s60, v243")
        for t in range(4):
            a(f"  v_xor_b32 v244, {2*t}, v242\n  v_lshl_add_u32 v{self.V_WA[t]}, v244, 4, v243")
        a(f"  v_bfe_u32 v242, v0, 3, 1\n  v_lshlrev_b32 v242, 6, v242\n  v_bfe_u32 v243, v0, 2, 1\n  v_lshl_add_u32 v243, v241, 2, v243\n  v_lshl_add_u32 v242, v243, 2, v242")
        a(f"  s_cmp_ge_u32 s{S_WAVE}, 3\n  s_cselect_b32 s62, 128, 0\n  s_add_u32 s62, s62, {STAT}\n  v_add_u32 v{self.V_SA}, s62, v242")
        a("  s_barrier")
        self.stream_consts()
        if cfg.late: both(first_loads)
        if cfg.streamonly:
            for k in range(9):
                a(CALL + f"L_fuse{k & 1}")
                if k == 5: self.stamp(3)
            self.stamp(7); self.stamp(8)
            a("  s_branch L_sdone")
        def phase1(dd):
            sfx = "" if dd == d else "L"
            for k in range(6):
                if k == cfg.trig_a: a("  s_barrier")
                if k == cfg.trig_b: a("  s_barrier")
                a(CALL + f"L_fuse{sfx}{k & 1}")
            if cfg.trig_a >= 6: a("  s_barrier")
            if cfg.trig_b >= 6: a("  s_barrier")
            if dd < 5:
                self.task_bases(SETA, 6, False)
                for x in range(30 + dd, 35): self.issue_piece(SETA, 0, x % 5)
        both(phase1)
        self.stamp(3)
        if cfg.prefuse: a(CALL + "L_fuseH")
        if cfg.ext7 == 0:
            self.task_bases(SETA, 7, False)
            for x in range(5): self.issue_piece(SETA, 1, x)
        a("  s_waitcnt lgkmcnt(0)")
        a("  s_branch L_sb0")
        a("L_sgather:")
        if cfg.streamonly == 3:
            pass
        elif cfg.streamonly:
            srd(a, R_WS, P_WS, WS_BYTES)
            for i in range(4): a(f"  v_mov_b32 v{20+i}, 0")
            a("  s_barrier\n  s_branch L_sdone")
        for r in (self.V_OFF1, self.V_OFF0, self.V_SA) + self.V_WA: a(f"  v_mov_b32 v{r}, 0")
        for i in range(4): a(f"  v_mov_b32 v{20+i}, 0")
        a(f"  v_lshlrev_b32 v24, 4, v0\n  v_add_u32 v24, {STAT}, v24\n  ds_write_b128 v24, v[20:23]\n  ds_write_b128 v24, v[20:23] offset:1024")
        a(f"  v_cmp_gt_u32 vcc, {(2320 - 2048) // 16}, v0\n  s_and_saveexec_b64 s[64:65], vcc")
        a("  ds_write_b128 v24, v[20:23] offset:2048\n  s_mov_b64 exec, s[64:65]\n  s_waitcnt lgkmcnt(0)\n  s_barrier")
        a(f"  s_mov_b32 s{S_QBASE}, 0\n  s_mov_b32 s{S_K}, 0\n  s_mov_b32 s{S_QMASK}, 0\n  s_mov_b32 s{S_QMASK+1}, 0")
        for r in range(3): a(f"  s_mov_b32 s{SETA+r}, 0\n  s_mov_b32 s{SETB+r}, 0")
        srd(a, R_WS, P_WS, WS_BYTES); srd(a, R_DBG, P_DBG, 256)
        a(f"  s_cmp_eq_u32 s{S_WAVE}, 7\n  s_cbranch_scc1 L_sw7")
        a(f"  buffer_load_dword v17, v{self.V_OFF1}, {sr(R_WS)}, 0 offen offset:{NONCE_OFF} sc1")
        a(f"  v_mov_b32 v18, {GO_OFF}")
        self.stream_consts()
        a(f"  s_waitcnt vmcnt(0)\n  v_add_u32 v17, 1, v17\n  v_mov_b32 v{self.V_T0}, {NONCE_LDS}\n  ds_write_b32 v{self.V_T0}, v17\n  v_readfirstlane_b32 s{S_NONCE}, v17")
        if cfg.streamonly != 3: a("  s_barrier")
        a(f"  buffer_load_dword v16, v18, {sr(R_WS)}, 0 offen sc1")
        if cfg.streamonly != 3: a("  s_barrier")
        self.wait_flags(16, 18, first_issued=True)
        self.stamp(1)
        a(f"  s_mov_b32 s62, {RQK_OFF}")
        self.gather_frags(12, self.V_QK, self.V_L16, 62, self.V_T0, "qk")
        if cfg.gdiag:
            a(f"  s_mov_b32 s{STAMP0+4}, s{S_SPIN}")
            self.stamp(5)
        for j in range(12): a(f"  ds_write_b128 v{self.V_PADDR}, {vr(self.V_QK+4*j)} offset:{j*1024}")
        SQ4 = self.V_SQ4
        for j in range(12):
            for i in range(4):
                a(f"  v_dot2_f32_bf16 v{SQ4+i}, v{self.V_QK+4*j+i}, v{self.V_ONES}, {'0' if j == 0 else 'v%d' % (SQ4+i)}")
        self.pk("v_pk_add_f32", SQ4, SQ4, SQ4 + 2)
        a(f"  v_add_f32 v{self.V_QS}, v{SQ4}, v{SQ4+1}")
        self.allred_g(self.V_QS, self.V_T0, "v_add_f32")
        a(f"  v_and_b32 v{self.V_T0}, 15, v0\n  v_lshlrev_b32 v{self.V_T0}, 2, v{self.V_T0}\n  v_add_u32 v{self.V_T0}, {QS_LDS}, v{self.V_T0}\n  ds_write_b32 v{self.V_T0}, v{self.V_QS}")
        a("  s_waitcnt lgkmcnt(0)")
        self.stamp(3)
        if cfg.streamonly == 3: a("  s_branch L_sdone")
        a("  s_branch L_sb0")
        a("L_sw7:")
        if cfg.streamonly == 3: a("  s_branch L_sdone")
        self.stream_consts()
        a("  s_waitcnt vmcnt(0)\n  s_barrier\n  s_barrier")
        a("L_sb0:\n  s_barrier")
        a(f"  v_and_b32 v{self.V_T2}, 15, v0\n  v_lshlrev_b32 v{self.V_T2}, 2, v{self.V_T2}\n  v_add_u32 v{self.V_T2}, {QS_LDS}, v{self.V_T2}")
        a(f"  v_mov_b32 v{self.V_T0}, {NONCE_LDS}\n  ds_read_b32 v{self.V_T1}, v{self.V_T0}\n  ds_read_b32 v{self.V_QS}, v{self.V_T2}")
        for j in range(12): a(f"  ds_read_b128 {vr(self.V_QK+4*j)}, v{self.V_PADDR} offset:{j*1024}")
        a(f"  s_mul_i32 s{S_P0}, s{S_IDX}, {NPAIR}")
        for r in range(4): a(f"  v_mov_b32 v{self.V_LT+r}, 0")
        a(f"  s_waitcnt lgkmcnt(0)\n  v_readfirstlane_b32 s{S_NONCE}, v{self.V_T1}")
        if cfg.zref: a("  s_barrier")
        sk = self.lab("noext")
        a(f"  s_cmp_ge_u32 s{S_WAVE}, 6\n  s_cbranch_scc1 {sk}")
        if cfg.ext7 == 1:
            self.task_bases(SETA, 7, False)
            for x in range(5): self.issue_piece(SETA, 1, x)
        if cfg.ext8 == 0:
            self.task_bases(SETB, 8, False)
            for x in range(5): self.issue_piece(SETB, 2, x)
        a(f"{sk}:")
        self.stamp(4)
        if cfg.zref:
            a(f"  s_mov_b32 s{S_LOW}, {f32(LOW_LIMIT)}\n  v_mov_b32 v{self.V_M}, 0")
            a(f"  s_mul_i32 s{S_TB}, s{S_WAVE}, {SLOT}\n  s_lshl_b32 s62, s{S_WAVE}, 7\n  s_add_u32 s{S_STA}, s62, {STAT}")
            a(f"  s_lshr_b32 s62, s{S_WAVE}, 1\n  s_add_u32 s{S_PAIR}, s62, s{S_P0}")
            a(f"  s_lshl_b32 s62, s62, 10\n  s_and_b32 s63, s{S_WAVE}, 1\n  s_lshl_b32 s63, s63, 3\n  s_add_u32 s{S_POFF}, s62, s63")
            a(CALL + "L_sp")
            a("  s_waitcnt lgkmcnt(0)\n  s_barrier")
            self.pv_first()
            a("L_safter1:")
        else:
            self.call_batch(8, 0, 0, 0, False)
        a(f"  s_mov_b32 s{S_LOW}, {f32(-3.0e38)}")
        a("  s_barrier")
        if not cfg.gdiag: self.stamp(5)
        a(f"  s_cmp_ge_u32 s{S_WAVE}, 6\n  s_cbranch_scc1 L_s67")
        if cfg.ext8 == 1:
            self.task_bases(SETB, 8, False)
            if cfg.late8:
                a(f"  s_and_b32 s62, s2, 4\n  s_cmp_lg_u32 s62, 0\n  s_cselect_b32 s{SETB}, 0x80000000, s{SETB}\n  s_cselect_b32 s{SETB+1}, 0x80000000, s{SETB+1}\n  s_cselect_b32 s{SETB+2}, 0x80000000, s{SETB+2}")
            for x in range(5): self.issue_piece(SETB, 2, x)
        self.fstamp(0)
        if cfg.prefuse:
            b = self.V_BUF[0]
            for t in range(4): a(f"  ds_write_b128 v{self.V_WA[t]}, {vr(b+4+4*t)} offset:{t*768}")
            for t in range(4): a(f"  v_add_u32 v{self.V_WA[t]}, 24576, v{self.V_WA[t]}")
        else:
            a(CALL + "L_fuseR0")
        self.fstamp(1)
        a(CALL + "L_fuseR1")
        self.fstamp(2)
        if cfg.late8:
            sk8 = self.lab("skip8")
            a(f"  s_and_b32 s62, s2, 4\n  s_cmp_lg_u32 s62, 0\n  s_cbranch_scc1 {sk8}")
            a(CALL + "L_fuseR2")
            a(f"{sk8}:\n  s_waitcnt vmcnt(0)")
        else:
            a(CALL + "L_fuseR2")
        self.fstamp(3)
        a("  s_branch L_sx")
        a("L_s67:")
        for i in range(2):
            a(f"  s_and_b32 s63, s{S_WAVE}, 1\n  s_add_u32 s62, s63, {8 + 2*i}\n  s_mul_i32 s{S_TB}, s62, {SLOT}")
            a(f"  s_lshl_b32 s62, s62, 7\n  s_add_u32 s{S_STA}, s62, {STAT}\n  s_add_u32 s{S_PAIR}, s{S_P0}, {4 + i}")
            a(f"  s_lshl_b32 s63, s63, 3\n  s_add_u32 s{S_POFF}, s63, {i*1024}")
            a(CALL + "L_sp")
        a("L_sx:")
        self.publish_setup()
        a("  s_waitcnt lgkmcnt(0)\n  s_barrier")
        if not cfg.gdiag: self.stamp(2)
        sk = self.lab("nosp")
        a(f"  s_cmp_ge_u32 s{S_WAVE}, 6\n  s_cbranch_scc1 {sk}")
        a(f"  s_mul_i32 s{S_TB}, s{S_WAVE}, {SLOT}\n  s_lshl_b32 s62, s{S_WAVE}, 7\n  s_add_u32 s{S_STA}, s62, {STAT + 12*128}")
        a(f"  s_lshr_b32 s62, s{S_WAVE}, 1\n  s_add_u32 s{S_PAIR}, s62, s{S_P0}\n  s_add_u32 s{S_PAIR}, s{S_PAIR}, 6")
        a(f"  s_lshl_b32 s62, s62, 10\n  s_and_b32 s63, s{S_WAVE}, 1\n  s_lshl_b32 s63, s63, 3\n  s_add_u32 s62, s62, s63\n  s_add_u32 s{S_POFF}, s62, 2048")
        a(CALL + "L_sp")
        a(f"{sk}:")
        MXV = self.V_MXV
        self.pk("v_pk_add_f32", MXV, self.V_L2, self.V_LT); self.pk("v_pk_add_f32", MXV + 2, self.V_AM2, self.V_AT)
        self.red_write(MXV, MXV + 2, MXV + 6)
        a("  s_waitcnt lgkmcnt(0)")
        if not cfg.gdiag: self.stamp(1)
        a("  s_barrier")
        self.stamp(6)
        self.pv_final()
        a("L_spub:")
        self.stamp(7)
        self.publish()
        self.cstamp(8)
        self.stamp(8)
        if cfg.cut >= 1: a("  s_branch L_sdone")
        self.reducer_index()
        a(f"  s_cmp_ge_u32 s{S_RHO}, 128\n  s_cbranch_scc1 L_sdone")
        self.reducer()
        a("L_sdone:")
        self.stamp(9); self.stamp_flush((5, 6, 8, (0, 1, 3, 5, 6, 7, 8, 9)))
        a("  s_endpgm")
        if cfg.zref:
            a("L_slow1:\n  s_waitcnt lgkmcnt(0)")
            a(f"  v_mov_b32 v{self.V_M}, 0xff800000")
            for r in range(4): a(f"  v_mov_b32 v{self.V_LT+r}, 0")
            self.call_batch(8, 0, 0, 0, False)
            a("  s_branch L_safter1")
        a("L_slow:\n  s_waitcnt lgkmcnt(0)")
        self.call_batch(4, 4, 8, 4, False)
        self.call_batch(6, 0, 0, 6, True)
        self.sums_read(); self.sums_math()
        a("  s_branch L_spub")
        self.sp_sub(); self.sphase_sub(); self.batch_sub()
        self.fuse_sub(1, 10, "L_fuseR1", "drain"); self.fuse_sub(2, 5, "L_fuseR2", "drain")
        if cfg.prefuse: self.fuse_sub(0, 5, "L_fuseH", "hold")
        else: self.fuse_sub(0, 15, "L_fuseR0", "drain")
        self.fuse_sub(0, d, "L_fuse0"); self.fuse_sub(1, d, "L_fuse1")
        if cfg.dlate != d: self.fuse_sub(0, cfg.dlate, "L_fuseL0"); self.fuse_sub(1, cfg.dlate, "L_fuseL1")

    def publish_setup(self):
        a = self.a
        T0, T1, T2 = self.V_T0, self.V_T1, self.V_T2
        PA0, TAGB = self.V_PUB, self.V_PUB + 1
        a(f"  v_and_b32 v{T0}, 7, v0\n  v_lshlrev_b32 v{T0}, 3, v{T0}\n  v_add_u32 v{T0}, s{S_WAVE}, v{T0}\n  s_mov_b32 s62, {PART_STRIDE}\n  v_mul_lo_u32 v{T0}, v{T0}, s62")
        a(f"  v_bfe_u32 v{T1}, v0, 3, 1\n  v_lshl_add_u32 v{T0}, v{T1}, 6, v{T0}\n  v_lshrrev_b32 v{T1}, 4, v0\n  v_lshl_add_u32 v{PA0}, v{T1}, 4, v{T0}")
        a(f"  s_mov_b32 s62, {KEYC}\n  v_mul_lo_u32 v{T1}, v{T1}, s62\n  v_add_u32 v{TAGB}, s{S_NONCE}, v{T1}")
        a(f"  v_and_b32 v{T0}, 15, v0\n  v_lshlrev_b32 v{T0}, 6, v{T0}\n  v_bfe_u32 v{T1}, v0, 4, 1\n  v_lshl_add_u32 v{T0}, v{T1}, 2, v{T0}")
        a(f"  s_lshl_b32 s62, s{S_WAVE}, 3\n  s_add_u32 s62, s62, {RED}\n  v_add_u32 v{self.V_PUB+2}, s62, v{T0}")
        a(f"  v_and_b32 v{T0}, 15, v0\n  v_lshlrev_b32 v{T0}, 6, v{T0}\n  v_add_u32 v{self.V_PUB+3}, {RED}, v{T0}")

    def publish(self):
        a = self.a; cfg = self.cfg
        A, ACC, R = self.V_A, self.V_ACC, self.V_SR
        PA0, TAGB = self.V_PUB, self.V_PUB + 1
        UA, UB, TB = A + 24, A + 28, A + 32
        a(f"  s_lshl_b32 s62, s{S_IDX}, 7\n  s_add_u32 s62, s62, {PART_OFF}\n  s_add_u32 s63, s62, {64*PART_STRIDE}")
        a(f"  v_mov_b32 v{UA+3}, s{S_NONCE}\n  v_xor_b32 v{UB+3}, v{R+6}, v{TAGB}")
        for i in range(0, 12, 2): self.pk("v_pk_fma_f32", ACC + i, ACC + i, R + 2, R + 4, bc=(1, 2), neg=(2,))
        for i in range(3): a(f"  v_cvt_pk_f16_f32 v{UA+i}, v{ACC+2*i}, v{ACC+2*i+1}")
        for i in range(3): a(f"  v_cvt_pk_f16_f32 v{UB+i}, v{ACC+6+2*i}, v{ACC+7+2*i}")
        for i in range(4): a(f"  v_mov_b32 v{TB+i}, v{UB+i}")
        for i in range(3): a(f"  v_mov_b32_dpp v{UB+i}, v{UA+i} row_ror:8 row_mask:0xf bank_mask:0x3")
        a(f"  v_mov_b32_dpp v{UB+3}, v{UA+3} quad_perm:[0,1,2,3] row_mask:0xf bank_mask:0x3")
        for i in range(4): a(f"  v_mov_b32_dpp v{UA+i}, v{TB+i} row_ror:8 row_mask:0xf bank_mask:0xc")
        a(f"  buffer_store_dwordx4 {vr(UA)}, v{PA0}, {sr(R_WS)}, s62 offen sc1")
        a(f"  buffer_store_dwordx4 {vr(UB)}, v{PA0}, {sr(R_WS)}, s63 offen sc1")

    def reducer_index(self):
        a = self.a; cfg = self.cfg
        if cfg.redsel == 0:
            a(f"  s_mov_b32 s{S_RHO}, s{S_IDX}")
            return
        assert cfg.hnx == 4 and cfg.hx0 == 0
        a("  s_and_b32 s60, s2, 7\n  s_lshr_b32 s61, s2, 3")
        a("  s_and_b32 s62, s60, 3\n  s_cmp_ge_u32 s60, 4\n  s_cselect_b32 s63, 1, 0")
        a("  s_lshl_b32 s64, s61, 2\n  s_add_u32 s64, s64, s62")
        a("  s_sub_u32 s65, s64, 24")
        if cfg.redsel == 1:
            a(f"  s_add_u32 s64, s64, 104\n  s_cmp_eq_u32 s63, 0\n  s_cselect_b32 s{S_RHO}, s65, s64")
        else:
            a(f"  s_add_u32 s65, s65, 124\n  s_cmp_eq_u32 s63, 0\n  s_cselect_b32 s{S_RHO}, s65, s64")

    def reducer_addr(self):
        a = self.a
        AD, T0, T1, VM, SA, X, Y, KEY = self.RV
        MASK = 40
        a(f"  v_lshrrev_b32 v{T0}, 3, v0\n  s_lshl_b32 s62, s{S_WAVE}, 5\n  v_add_u32 v{VM}, s62, v{T0}")
        a(f"  v_and_b32 v{T1}, 7, v0\n  v_lshlrev_b32 v{T1}, 4, v{T1}\n  s_mov_b32 s62, {NS}")
        for it in range(4):
            a(f"  v_add_u32 v{T0}, {8*it}, v{VM}\n  v_cmp_gt_u32 s[{MASK+2*it}:{MASK+2*it+1}], s62, v{T0}\n  v_cndmask_b32 v{T0}, 0, v{T0}, s[{MASK+2*it}:{MASK+2*it+1}]")
            a(f"  v_lshl_add_u32 v{AD+it}, v{T0}, 7, v{T1}")

    def reducer_setup(self):
        a = self.a
        AD, T0, T1, VM, SA, X, Y, KEY = self.RV
        a(f"  v_and_b32 v{T0}, 3, v0\n  v_bfe_u32 v{T1}, v0, 2, 1\n  v_mul_u32_u24 v{T0}, v{T0}, v{T1}\n  s_mov_b32 s62, {KEYC}\n  v_mul_lo_u32 v{T0}, v{T0}, s62\n  v_add_u32 v{KEY}, s{S_NONCE}, v{T0}")
        a(f"  v_lshrrev_b32 v{T0}, 4, v0\n  v_and_b32 v{T1}, 1, v{T0}\n  v_lshlrev_b32 v{T1}, 1, v{T1}\n  v_lshrrev_b32 v{X}, 1, v{T0}\n  v_add_u32 v{T1}, v{T1}, v{X}")
        a(f"  v_bfe_u32 v{X}, v0, 2, 1\n  v_mul_u32_u24 v{X}, 3, v{X}\n  v_add_u32 v{T1}, v{T1}, v{X}")
        a(f"  v_lshrrev_b32 v{X}, 1, v{T1}\n  v_lshlrev_b32 v{X}, 4, v{X}\n  v_and_b32 v{T1}, 1, v{T1}\n  v_lshl_add_u32 v{X}, v{T1}, 1, v{X}")
        a(f"  v_and_b32 v{T1}, 3, v0\n  v_lshl_add_u32 v{X}, v{T1}, 2, v{X}")
        a(f"  s_and_b32 s62, s{S_RHO}, 7\n  s_mul_i32 s62, s62, 48\n  v_add_u32 v{X}, s62, v{X}\n  v_lshlrev_b32 v{SA}, 1, v{X}")
        a(f"  v_lshrrev_b32 v{T1}, 4, v0\n  v_lshlrev_b32 v{T1}, 3, v{T1}\n  v_and_b32 v{X}, 7, v0\n  v_add_u32 v{T1}, v{T1}, v{X}\n  v_lshlrev_b32 v{Y}, 3, v{T1}")
        a(f"  s_lshl_b32 s62, s{S_WAVE}, 8\n  s_add_u32 s62, s62, {RED2}\n  v_add_u32 v{X}, s62, v{Y}\n  v_add_u32 v{Y}, {RED2}, v{Y}")

    RV = (80, 84, 85, 86, 87, 88, 89, 90)

    def reducer(self):
        a = self.a; cfg = self.cfg
        D, E, W, V = 16, 32, 40, 44
        AD, T0, T1, VM, SA, X, Y, KEY = self.RV
        MASK = 40
        BAD = 52
        self.reducer_addr()
        if cfg.rdiag: self.stamp(1)
        a(f"  s_mul_i32 s62, s{S_RHO}, {PART_STRIDE}\n  s_add_u32 s62, s62, {PART_OFF}")
        for it in range(4): a(f"  buffer_load_dwordx4 {vr(D+4*it)}, v{AD+it}, {sr(R_WS)}, s62 offen sc1")
        a("  s_mov_b32 s63, s62")
        self.reducer_setup()
        a("  s_mov_b32 s62, s63")
        for it in range(4): a(f"  v_mov_b32 v{E+2*it+1}, 0")
        lp, ck, dn = self.lab("red"), self.lab("redc"), self.lab("redd")
        BADS = (48, 50, 52, 54)
        a(f"  s_mov_b32 s{S_SPIN}, 0\n  s_branch {ck}\n{lp}:")
        for it in range(4):
            sk = self.lab("skipld")
            a(f"  s_mov_b64 exec, s[{BADS[it]}:{BADS[it]+1}]\n  s_cbranch_execz {sk}")
            a(f"  buffer_load_dwordx4 {vr(D+4*it)}, v{AD+it}, {sr(R_WS)}, s62 offen sc1")
            a(f"{sk}:")
        a("  s_mov_b64 exec, -1")
        self.spin_guard(dn)
        a(f"{ck}:\n  s_waitcnt vmcnt(0)")
        for it in range(4): a(f"  v_xor_b32 v{E+2*it}, v{KEY}, v{D+4*it+3}")
        for it in range(4): a(f"  v_mov_b32_dpp v{E+2*it+1}, v{E+2*it} quad_perm:[0,0,0,0] row_mask:0xf bank_mask:0xa")
        for it in range(4): a(f"  v_cmp_ne_u32 s[{BADS[it]}:{BADS[it]+1}], v{E+2*it}, v{E+2*it+1}")
        a(f"  s_or_b64 s[60:61], s[48:49], s[50:51]\n  s_or_b64 vcc, s[52:53], s[54:55]\n  s_or_b64 s[60:61], s[60:61], vcc\n  s_cbranch_scc0 {dn}")
        if cfg.selpoll == 2:
            for it in range(4): a(f"  v_xor_b32 v{W+it}, v{E+2*it}, v{E+2*it+1}")
            for ctrl in ("row_half_mirror", "quad_perm:[1,0,3,2]", "quad_perm:[2,3,0,1]"):
                for it in range(4): a(f"  v_or_b32_dpp v{W+it}, v{W+it}, v{W+it} {ctrl} row_mask:0xf bank_mask:0xf")
            for it in range(4): a(f"  v_cmp_ne_u32 s[{BADS[it]}:{BADS[it]+1}], 0, v{W+it}")
        else:
            for it in range(4):
                b = BADS[it]
                if cfg.selpoll: a(f"  s_cmp_lg_u64 s[{b}:{b+1}], 0\n  s_cselect_b64 s[{b}:{b+1}], -1, 0")
                else: a(f"  s_mov_b64 s[{b}:{b+1}], -1")
        if cfg.rsleep: a(f"  s_sleep {cfg.rsleep}")
        a(f"  s_branch {lp}")
        a(f"{dn}:\n  s_waitcnt vmcnt(0)")
        if cfg.rdiag:
            self.stamp(2)
            a(f"  s_mov_b32 s{STAMP0+6}, s{S_SPIN}")
        for it in range(4): a(f"  v_mov_b32_dpp v{E+2*it}, v{E+2*it} row_shl:4 row_mask:0xf bank_mask:0x5")
        a(f"  v_mov_b32 v{T1}, 0xff800000")
        for it in range(4):
            a(f"  v_cndmask_b32 v{E+2*it}, v{T1}, v{E+2*it}, s[{MASK+2*it}:{MASK+2*it+1}]")
        a(f"  v_max3_f32 v{T0}, v{E}, v{E+2}, v{E+4}\n  v_max_f32 v{T0}, v{T0}, v{E+6}")
        a(f"  v_max_f32_dpp v{T0}, v{T0}, v{T0} row_ror:8 row_mask:0xf bank_mask:0xf")
        self.allred_g(T0, T1, "v_max_f32")
        for it in range(4): a(f"  v_sub_f32 v{W+it}, v{E+2*it}, v{T0}")
        for it in range(4): a(f"  v_exp_f32 v{W+it}, v{W+it}")
        a(f"  s_lshl_b32 s62, s{S_WAVE}, 2\n  s_add_u32 s62, s62, {MXW}\n  v_mov_b32 v{T1}, s62\n  ds_write_b32 v{T1}, v{T0}")
        for it in range(4):
            for q in range(3):
                c0 = "0" if it == 0 else f"v{V+2*q}"; c1 = "0" if it == 0 else f"v{V+2*q+1}"
                a(f"  v_fma_mix_f32 v{V+2*q}, v{D+4*it+q}, v{W+it}, {c0} op_sel_hi:[1,0,0]")
                a(f"  v_fma_mix_f32 v{V+2*q+1}, v{D+4*it+q}, v{W+it}, {c1} op_sel:[1,0,0] op_sel_hi:[1,0,0]")
        self.pk("v_pk_add_f32", W, W, W + 2)
        a(f"  v_add_f32 v{V+6}, v{W}, v{W+1}\n  v_mov_b32 v{V+7}, 0")
        for x, y in ((0, 2), (1, 3), (4, 6), (5, 7)): a(f"  v_permlane32_swap_b32 v{V+x}, v{V+y}")
        for x, y in ((0, 2), (1, 3), (4, 6), (5, 7)): a(f"  v_add_f32 v{V+x}, v{V+x}, v{V+y}")
        for x, y in ((0, 4), (1, 5)): a(f"  v_permlane16_swap_b32 v{V+x}, v{V+y}")
        for x, y in ((0, 4), (1, 5)): a(f"  v_add_f32 v{V+x}, v{V+x}, v{V+y}")
        for x in (0, 1): a(f"  v_add_f32_dpp v{V+x}, v{V+x}, v{V+x} row_ror:8 row_mask:0xf bank_mask:0xf")
        a(f"  ds_write_b64 v{X}, {vr(V,2)}\n  s_waitcnt lgkmcnt(0)")
        if cfg.rdiag: self.stamp(4)
        a("  s_barrier")
        if cfg.rdiag: self.stamp(5)
        a(f"  s_cmp_lg_u32 s{S_WAVE}, 0\n  s_cbranch_scc1 L_sdone")
        a(f"  v_mov_b32 v{T1}, {MXW}\n  ds_read_b128 {vr(W)}, v{T1}\n  ds_read_b128 {vr(W+4)}, v{T1} offset:16")
        for w in range(8): a(f"  ds_read_b64 {vr(D+2*w,2)}, v{Y} offset:{256*w}")
        a(f"  s_lshr_b32 s63, s{S_RHO}, 3\n  s_mul_i32 s63, s63, 768\n  s_add_u32 s63, s63, {RCTX_OFF}")
        a(f"  v_and_b32 v{X}, 8, v0\n  v_cmp_eq_u32 vcc, 0, v{X}\n  v_cmp_gt_u32 s[64:65], 48, v0\n  s_and_b64 s[64:65], vcc, s[64:65]")
        a("  s_waitcnt lgkmcnt(8)")
        a(f"  v_max3_f32 v{T0}, v{W}, v{W+1}, v{W+2}\n  v_max3_f32 v{T1}, v{W+3}, v{W+4}, v{W+5}\n  v_max3_f32 v{T0}, v{T0}, v{W+6}, v{W+7}\n  v_max_f32 v{T0}, v{T0}, v{T1}")
        for w in range(0, 8, 2): self.pk("v_pk_add_f32", W + w, W + w, T0, bc=(1,), neg=(1,))
        for w in range(8): a(f"  v_exp_f32 v{W+w}, v{W+w}")
        a("  s_waitcnt lgkmcnt(0)")
        for w in range(8):
            base = W + (w & ~1)
            sel = "op_sel:[0,1,0] op_sel_hi:[1,1,1]" if w & 1 else "op_sel_hi:[1,0,1]"
            if w == 0: a(f"  v_pk_mul_f32 {vr(E,2)}, {vr(D,2)}, {vr(base,2)} op_sel_hi:[1,0]")
            else: a(f"  v_pk_fma_f32 {vr(E,2)}, {vr(D+2*w,2)}, {vr(base,2)}, {vr(E,2)} {sel}")
        a(f"  v_readlane_b32 s62, v{E}, 48\n  v_rcp_f32 v{T0}, s62")
        self.pk("v_pk_mul_f32", E, E, T0, bc=(1,))
        a(f"  v_cvt_pk_bf16_f32 v{E}, v{E}, v{E+1}\n  v_min_u32 v{E}, -2, v{E}")
        a("  s_mov_b64 exec, s[64:65]")
        a(f"  buffer_store_dword v{E}, v{SA}, {sr(R_WS)}, s63 offen sc1")
        a("  s_mov_b64 exec, -1")

    def img_dma(self, srdr, lds, soff, vs0, vs1):
        for th in range(3):
            for q4 in range(4):
                self.img_dma1(srdr, lds, soff, vs0, vs1, th, q4)
    def img_dma1(self, srdr, lds, soff, vs0, vs1, th, q4, ldsreg=None):
        a = self.a
        if ldsreg is None: a(f"  s_mov_b32 m0, {lds + th*4096 + q4*1024}")
        else: a(f"  s_add_u32 m0, s{ldsreg}, {th*4096 + q4*1024}")
        a(f"  s_add_u32 s62, s{soff}, {q4*3072 + th*256}")
        a(f"  buffer_load_dwordx4 v{vs1 if q4 & 1 else vs0}, {sr(srdr)}, s62 offen{' nt' if self.cfg.hnt else ''} lds")

    def helper(self):
        a = self.a; cfg = self.cfg
        L16, N, Gq, T0, T1, T2, T3 = 1, 2, 3, 4, 5, 6, 7
        FL, TA, DS, VS0, VS1, ZERO = 8, 10, 11, 12, 13, 14
        IA = 16
        QF, AF, TR = 20, 68, 160
        WKF = 116
        D1, D2, D3, ST, ONES = 208, 212, 216, 220, 224
        a("L_helper:")
        if cfg.streamonly == 1:
            a("  s_waitcnt lgkmcnt(0)")
            srd(a, R_WS, P_WS, WS_BYTES)
            a("  s_branch L_hdone")
        a(f"  v_lshlrev_b32 v{L16}, 4, v0\n  v_and_b32 v{N}, 15, v0\n  v_lshrrev_b32 v{Gq}, 4, v0\n  v_mov_b32 v{ZERO}, 0")
        a(f"  v_lshlrev_b32 v{T0}, 1, v{Gq}\n  v_xor_b32 v{T0}, v{N}, v{T0}\n  v_mul_u32_u24 v{T1}, 768, v{Gq}")
        a(f"  v_lshl_add_u32 v{VS0}, v{T0}, 4, v{T1}\n  v_xor_b32 v{T0}, 8, v{T0}\n  v_lshl_add_u32 v{VS1}, v{T0}, 4, v{T1}")
        a(f"  v_lshrrev_b32 v{T0}, 1, v0\n  v_mul_u32_u24 v{T0}, 768, v{T0}\n  v_and_b32 v{T1}, 1, v0\n  v_lshl_add_u32 v{T0}, v{T1}, 4, v{T0}")
        a(f"  s_lshl_b32 s61, s{S_IDX}, 5\n  v_add_u32 v{DS}, s61, v{T0}")
        a(f"  s_lshr_b32 s60, s{S_IDX}, 1\n  s_lshl_b32 s60, s60, 10\n  s_and_b32 s61, s{S_IDX}, 1\n  s_lshl_b32 s61, s61, 9\n  s_add_u32 s60, s60, s61")
        a(f"  v_lshrrev_b32 v{T0}, 1, v{Gq}\n  v_lshlrev_b32 v{T0}, 8, v{T0}\n  v_lshl_add_u32 v{T0}, v{N}, 4, v{T0}")
        a(f"  v_and_b32 v{T1}, 1, v{Gq}\n  v_lshl_add_u32 v{T0}, v{T1}, 3, v{T0}\n  v_add_u32 v{FL}, s60, v{T0}")
        if cfg.hdiag: self.stamp(8)
        a("  s_waitcnt lgkmcnt(0)")
        if cfg.hdiag: self.stamp(2)
        srd(a, R_WS, P_WS, WS_BYTES)
        a(f"  s_cmp_eq_u32 s{S_WAVE}, 1\n  s_cbranch_scc1 L_h1a")
        a(f"  s_cmp_eq_u32 s{S_WAVE}, 0\n  s_cbranch_scc1 L_h0a")
        a("  s_branch L_hb1")
        a("L_h1a:")
        srd(a, R_B, P_WQ, W_BYTES)
        for k in range(12):
            a(f"  s_mov_b32 m0, {H_WQI + k*1024}\n  s_mov_b32 s62, {k*32*768}\n  buffer_load_dwordx4 v{DS}, {sr(R_B)}, s62 offen{' nt' if cfg.hnt else ''} lds")
        a(f"  buffer_load_dword v9, v{ZERO}, {sr(R_WS)}, 0 offen offset:{NONCE_OFF} sc1")
        a(f"  v_mov_b32 v{T0}, -1\n  v_mov_b32 v{T0+1}, -1\n  v_mov_b32 v{T0+2}, -1\n  v_mov_b32 v{T0+3}, -1")
        a(f"  s_lshl_b32 s60, s{S_IDX}, 9\n  s_add_u32 s62, s60, {RQ_OFF}\n  s_add_u32 s63, s60, {RQK_OFF}\n  s_add_u32 s61, s60, {RCTX_OFF}")
        a("  s_mov_b32 s64, -1\n  s_mov_b32 s65, 0\n  s_mov_b64 exec, s[64:65]")
        for r in ("s62", "s63", "s61"): a(f"  buffer_store_dwordx4 {vr(T0)}, v{L16}, {sr(R_WS)}, {r} offen sc1")
        a("  s_mov_b64 exec, -1")
        a("  s_waitcnt vmcnt(4)\n  s_branch L_hb1")
        a("L_h0a:")
        srd(a, R_A, P_Q, Q_BYTES)
        a("  s_mov_b32 s60, 0")
        self.img_dma(R_A, H_QI, 60, VS0, VS1)
        a(f"  buffer_load_dword v15, v{ZERO}, {sr(R_WS)}, 0 offen offset:{NONCE_OFF} sc1")
        a("  s_waitcnt vmcnt(0)\n  s_branch L_hb1")
        a("L_hb1:")
        self.stamp(7)
        T0, T1, T2 = 228, 229, 230
        srd(a, R_DBG, P_DBG, 256); srd(a, R_A, P_Q, Q_BYTES); srd(a, R_D, P_WV, W_BYTES); srd(a, R_F, P_OUT, Q_BYTES)
        a(f"  v_and_b32 v{T0}, 7, v{N}\n  v_lshlrev_b32 v{T0}, 1, v{T0}\n  v_lshlrev_b32 v{T1}, 8, v{N}")
        for m in range(4):
            a(f"  v_add_u32 v{T2}, {4*m}, v{Gq}\n  v_xor_b32 v{T2}, v{T2}, v{T0}\n  v_lshl_add_u32 v{IA+m}, v{T2}, 4, v{T1}")
        a(f"  v_lshrrev_b32 v{T0}, 2, v{N}\n  v_lshl_add_u32 v{T0}, v{Gq}, 3, v{T0}\n  v_lshlrev_b32 v{T0}, 5, v{T0}")
        a(f"  v_and_b32 v{T1}, 3, v{N}\n  v_lshl_add_u32 v{TA}, v{T1}, 3, v{T0}")
        for i in range(4): a(f"  v_mov_b32 v{ONES+i}, 0x3f803f80")
        a("  s_barrier")
        T0, T1, T2 = 4, 5, 6
        self.stamp(1)
        if cfg.cut >= 3: a("  s_branch L_hdone")
        a(f"  s_cmp_eq_u32 s{S_WAVE}, 0\n  s_cbranch_scc1 L_h0b")
        n1 = self.lab("notw1")
        a(f"  s_cmp_eq_u32 s{S_WAVE}, 1\n  s_cbranch_scc0 {n1}")
        a(f"  s_waitcnt vmcnt(0)\n  v_add_u32 v9, 1, v9\n  s_lshl_b32 s62, s{S_IDX}, 7\n  s_add_u32 s62, s62, {FLAG_OFF}\n  s_mov_b64 exec, 1")
        a(f"  buffer_store_dword v9, v{ZERO}, {sr(R_WS)}, s62 offen sc1\n  s_mov_b64 exec, -1\n  s_branch L_hb1c\n{n1}:")
        a(f"  s_cmp_eq_u32 s{S_WAVE}, 3\n  s_cbranch_scc1 L_h3b")
        a(f"  s_cmp_eq_u32 s{S_WAVE}, 2\n  s_cbranch_scc0 L_hb1c")
        srd(a, R_C, P_WK, W_BYTES)
        a(f"  s_mul_i32 s60, s{S_IDX}, {16*768}")
        self.img_dma(R_C, H_WKI, 60, VS0, VS1)
        a("  s_branch L_hb1c")
        a("L_h3b:")
        for j in range(12):
            a(f"  ds_read_b128 {vr(QF+4*j)}, v{IA+(j&3)} offset:{H_QI + (j>>2)*4096}")
        for j in range(12):
            a(f"  s_waitcnt lgkmcnt({11-j})")
            for i in range(4):
                a(f"  v_dot2_f32_bf16 v{ST+i}, v{QF+4*j+i}, v{QF+4*j+i}, {'0' if j == 0 else 'v%d' % (ST+i)}")
                a(f"  v_dot2_f32_bf16 v{D3+i}, v{QF+4*j+i}, v{ONES}, {'0' if j == 0 else 'v%d' % (D3+i)}")
        self.pk("v_pk_add_f32", ST, ST, ST + 2); self.pk("v_pk_add_f32", D3, D3, D3 + 2)
        a(f"  v_add_f32 v{ST}, v{ST}, v{ST+1}\n  v_add_f32 v{ST+1}, v{D3}, v{D3+1}")
        a(f"  v_permlane16_swap_b32 v{ST}, v{ST+1}\n  v_add_f32 v{ST}, v{ST}, v{ST+1}")
        a(f"  v_mov_b32 v{ST+1}, v{ST}\n  v_permlane32_swap_b32 v{ST+1}, v{ST}\n  v_add_f32 v{ST}, v{ST}, v{ST+1}")
        a(f"  v_mul_f32 v{ST}, {f32(1.0/384.0)}, v{ST}")
        a(f"  v_mov_b32 v{ST+1}, v{ST}\n  v_mov_b32 v{ST+2}, v{ST}\n  v_permlane16_swap_b32 v{ST+1}, v{ST+2}")
        a(f"  v_fma_f32 v{ST+3}, -v{ST+2}, v{ST+2}, v{ST+1}\n  v_max_f32 v{ST+3}, 0, v{ST+3}\n  v_add_f32 v{ST+3}, {f32(1e-5)}, v{ST+3}\n  v_rsq_f32 v{ST+3}, v{ST+3}")
        a(f"  v_lshlrev_b32 v{T0}, 3, v{N}\n  v_add_u32 v{T0}, {H_QS}, v{T0}\n  ds_write_b64 v{T0}, {vr(ST+2,2)}\n  s_waitcnt lgkmcnt(0)")
        a("L_hb1c:\n  s_barrier")
        a("  s_branch L_hb2")
        a("L_h0b:")
        a(f"  v_add_u32 v15, 1, v15")
        self.flag_addr(T3)
        a(f"  v_readfirstlane_b32 s{S_NONCE}, v15\n  buffer_load_dword v9, v{T3}, {sr(R_WS)}, 0 offen sc1")
        for j in range(12):
            a(f"  ds_read_b128 {vr(QF+4*j)}, v{IA+(j&3)} offset:{H_QI + (j>>2)*4096}")
        def tr(j):
            a(f"  ds_read_b64_tr_b16 {vr(TR+4*j,2)}, v{TA} offset:{H_WQI + j*1024}")
            a(f"  ds_read_b64_tr_b16 {vr(TR+4*j+2,2)}, v{TA} offset:{H_WQI + j*1024 + 128}")
        a("  s_waitcnt lgkmcnt(3)")
        for j in range(6): tr(j)
        for j in range(12):
            left = min(12, j + 6) - j - 1
            a(f"  s_waitcnt lgkmcnt({2*left})")
            if j + 6 < 12: tr(j + 6)
            a(f"  v_mfma_f32_16x16x32_bf16 {vr(D1)}, {vr(TR+4*j)}, {vr(QF+4*j)}, {'0' if j == 0 else vr(D1)}")
            a(f"  v_mfma_f32_16x16x32_bf16 {vr(D2)}, {vr(TR+4*j)}, {vr(ONES)}, {'0' if j == 0 else vr(D2)}")
        a("  s_barrier")
        a(f"  v_lshlrev_b32 v{T0}, 3, v{N}\n  v_add_u32 v{T0}, {H_QS}, v{T0}\n  ds_read_b64 {vr(ST,2)}, v{T0}\n  s_waitcnt lgkmcnt(0)")
        for r in range(4): a(f"  v_fma_f32 v{D1+r}, -v{ST}, v{D2+r}, v{D1+r}")
        for r in range(4): a(f"  v_mul_f32 v{D1+r}, v{ST+1}, v{D1+r}")
        a(f"  v_cvt_pk_bf16_f32 v{D2}, v{D1}, v{D1+1}\n  v_cvt_pk_bf16_f32 v{D2+1}, v{D1+2}, v{D1+3}")
        a(f"  v_min_u32 v{D2}, -2, v{D2}\n  v_min_u32 v{D2+1}, -2, v{D2+1}\n  s_mov_b32 s62, {RQ_OFF}")
        a(f"  buffer_store_dwordx2 {vr(D2,2)}, v{FL}, {sr(R_WS)}, s62 offen sc1")
        self.stamp(2)
        hv = self.lab("haveflags")
        a(f"  s_waitcnt vmcnt(1)\n  v_cmp_ne_u32 vcc, s{S_NONCE}, v9\n  s_cbranch_vccz {hv}")
        self.wait_flags(9, T3)
        a(f"{hv}:\n  s_mov_b32 s62, {RQ_OFF}")
        self.gather_frags(12, AF, L16, 62, T0, "q", sleep=cfg.qsleep)
        self.stamp(3)
        a("  s_barrier")
        for j in range(12):
            a(f"  ds_read_b128 {vr(WKF+4*j)}, v{IA+(j&3)} offset:{H_WKI + (j>>2)*4096}")
        for j in range(12):
            dd = D1 if j % 2 == 0 else D2
            a(f"  s_waitcnt lgkmcnt({11-j})")
            a(f"  v_mfma_f32_16x16x32_bf16 {vr(dd)}, {vr(WKF+4*j)}, {vr(AF+4*j)}, {'0' if j < 2 else vr(dd)}")
        sc = f32(384 ** -0.5 * LOG2E)
        for r in range(4): a(f"  v_add_f32 v{D1+r}, v{D1+r}, v{D2+r}")
        for r in range(4): a(f"  v_mul_f32 v{D1+r}, {sc}, v{D1+r}")
        a(f"  v_cvt_pk_bf16_f32 v{D2}, v{D1}, v{D1+1}\n  v_cvt_pk_bf16_f32 v{D2+1}, v{D1+2}, v{D1+3}")
        a(f"  v_min_u32 v{D2}, -2, v{D2}\n  v_min_u32 v{D2+1}, -2, v{D2+1}\n  s_mov_b32 s62, {RQK_OFF}")
        a(f"  buffer_store_dwordx2 {vr(D2,2)}, v{FL}, {sr(R_WS)}, s62 offen sc1")
        self.stamp(4)
        a("  s_branch L_hwvo")
        a("L_hb2:\n  s_waitcnt vmcnt(0)\n  s_barrier")
        a("L_hwvo:")
        if cfg.cut >= 2: a("  s_branch L_hdone")
        a(f"  s_cmp_eq_u32 s{S_WAVE}, 3\n  s_cbranch_scc0 L_hwv2")
        srd(a, R_E, P_WO, W_BYTES)
        for k in range(12):
            a(f"  s_mov_b32 m0, {H_WOI + k*1024}\n  s_mov_b32 s62, {k*32*768}\n  buffer_load_dwordx4 v{DS}, {sr(R_E)}, s62 offen{' nt' if cfg.hnt else ''} lds")
        a("L_hwv2:")
        a(f"  s_mul_i32 s60, s{S_WAVE}, {48*768}\n  s_mul_i32 s61, s{S_WAVE}, 12288\n  s_add_u32 s61, s61, {H_WV}")
        for th in range(3):
            for q4 in range(4): self.img_dma1(R_D, 0, 60, VS0, VS1, th, q4, ldsreg=61)
        a("  s_waitcnt vmcnt(12)\n  s_barrier")
        for j in range(12):
            a(f"  ds_read_b64_tr_b16 {vr(TR+4*j,2)}, v{TA} offset:{H_WOI + j*1024}")
            a(f"  ds_read_b64_tr_b16 {vr(TR+4*j+2,2)}, v{TA} offset:{H_WOI + j*1024 + 128}")
            if j == 6: a("  s_waitcnt lgkmcnt(0)")
        for m in range(4): a(f"  v_add_u32 v{IA+m}, s61, v{IA+m}")
        a(f"  v_mul_u32_u24 v{T0}, 784, v{N}\n  v_lshl_add_u32 v{T0}, v{Gq}, 3, v{T0}\n  s_mul_i32 s62, s{S_WAVE}, 96\n  s_add_u32 s62, s62, {H_WT}\n  v_add_u32 v{T3}, s62, v{T0}")
        for tau in range(3):
            if tau < 2: a(f"  s_add_u32 s60, s60, {16*768}")
            for th in range(3):
                a(f"  s_waitcnt vmcnt({8 if tau < 2 else 8 - 4*th})")
                for m in range(4): a(f"  ds_read_b128 {vr(WKF+4*m)}, v{IA+m} offset:{th*4096}")
                a("  s_waitcnt lgkmcnt(0)")
                if tau < 2:
                    for q4 in range(4): self.img_dma1(R_D, 0, 60, VS0, VS1, th, q4, ldsreg=61)
                for m in range(4):
                    j = 4 * th + m
                    a(f"  v_mfma_f32_16x16x32_bf16 {vr(D1)}, {vr(WKF+4*m)}, {vr(TR+4*j)}, {'0' if j == 0 else vr(D1)}")
            a(f"  v_cvt_pk_bf16_f32 v{D2}, v{D1}, v{D1+1}\n  v_cvt_pk_bf16_f32 v{D2+1}, v{D1+2}, v{D1+3}")
            a(f"  ds_write_b64 v{T3}, {vr(D2,2)} offset:{tau*32}")
        a("  s_waitcnt lgkmcnt(0)\n  s_barrier")
        self.stamp(5)
        if cfg.cut >= 1: a("  s_branch L_hdone")
        a(f"  s_cmp_lg_u32 s{S_WAVE}, 0\n  s_cbranch_scc1 L_hdone")
        a(f"  v_mul_u32_u24 v{T0}, 784, v{N}\n  v_lshl_add_u32 v{T0}, v{Gq}, 4, v{T0}\n  v_add_u32 v{T0}, {H_WT}, v{T0}")
        for j in range(12): a(f"  ds_read_b128 {vr(WKF+4*j)}, v{T0} offset:{j*64}")
        a(f"  v_mul_u32_u24 v{T3}, 768, v{N}\n  v_lshl_add_u32 v{T3}, v{Gq}, 3, v{T3}\n  s_lshl_b32 s61, s{S_IDX}, 5")
        a(f"  buffer_load_dwordx2 {vr(QF,2)}, v{T3}, {sr(R_A)}, s61 offen")
        a("  s_waitcnt vmcnt(0) lgkmcnt(0)")
        a(f"  v_lshlrev_b32 v{QF+4}, 16, v{QF}\n  v_and_b32 v{QF+5}, 0xffff0000, v{QF}\n  v_lshlrev_b32 v{QF+6}, 16, v{QF+1}\n  v_and_b32 v{QF+7}, 0xffff0000, v{QF+1}")
        a(f"  v_mul_u32_u24 v{T2}, 768, v{N}\n  v_lshl_add_u32 v{T2}, v{Gq}, 4, v{T2}\n  s_mov_b32 s62, {RCTX_OFF}")
        if cfg.c1sleep:
            lp, dn = self.lab("c1"), self.lab("c1d")
            a(f"  s_mov_b32 s{S_SPIN}, 0\n{lp}:\n  buffer_load_dword v{AF}, v{T2}, {sr(R_WS)}, s62 offen sc1")
            self.spin_guard(dn)
            a(f"  s_waitcnt vmcnt(0)\n  v_cmp_ne_u32 vcc, -1, v{AF}\n  s_cbranch_vccnz {dn}\n  s_sleep {cfg.c1sleep}\n  s_branch {lp}\n{dn}:\n  s_waitcnt vmcnt(0)")
        self.gather_frags(12, AF, T2, 62, T0, "c", rowmajor=True, sleep=cfg.csleep)
        self.stamp(6)
        for j in range(12):
            dd = D1 if j % 2 == 0 else D2
            c1 = vr(QF+4) if j == 0 else ("0" if j == 1 else vr(dd))
            a(f"  v_mfma_f32_16x16x32_bf16 {vr(dd)}, {vr(WKF+4*j)}, {vr(AF+4*j)}, {c1}")
        for h in (0, 2): self.pk("v_pk_add_f32", D1 + h, D1 + h, D2 + h)
        a(f"  v_cvt_pk_bf16_f32 v{D2}, v{D1}, v{D1+1}\n  v_cvt_pk_bf16_f32 v{D2+1}, v{D1+2}, v{D1+3}")
        a(f"  buffer_store_dwordx2 {vr(D2,2)}, v{T3}, {sr(R_F)}, s61 offen")
        nn = self.lab("nononce")
        a(f"  s_cmp_lg_u32 s{S_IDX}, 0\n  s_cbranch_scc1 {nn}")
        a(f"  buffer_store_dword v15, v{ZERO}, {sr(R_WS)}, 0 offen offset:{NONCE_OFF} sc1\n{nn}:")
        a("L_hdone:")
        self.stamp(9); self.stamp_flush((0, 0, 2, (0, 1, 3, 4, 5, 6)))
        a("  s_endpgm")

    def collector(self):
        a = self.a
        a("L_collect:")
        a(f"  s_cmp_lg_u32 s{S_WAVE}, 0\n  s_cbranch_scc1 L_end\n  s_waitcnt lgkmcnt(0)")
        srd(a, R_WS, P_WS, WS_BYTES)
        a(f"  v_mov_b32 v2, 0\n  buffer_load_dword v3, v2, {sr(R_WS)}, 0 offen offset:{NONCE_OFF} sc1")
        self.flag_addr(4)
        a(f"  s_waitcnt vmcnt(0)\n  v_add_u32 v3, 1, v3\n  v_readfirstlane_b32 s{S_NONCE}, v3")
        self.wait_flags(5, 4)
        a(f"  s_mov_b32 s62, {GO_OFF}\n  s_mov_b64 exec, 1\n  buffer_store_dword v3, v2, {sr(R_WS)}, s62 offen sc1")
        a("  s_endpgm")

    def build(self):
        a = self.a
        hdr = open("standalone__detection_seg_dino__vision.s.ref").read().split("\n")
        for line in hdr:
            if line.startswith("; @launch"): break
            a(line)
        a("; @" + f"launch grid=(256,1,1) block=(512,1,1) lds={LDS_BYTES}")
        a('.amdgcn_target "amdgcn-amd-amdhsa--gfx950"\n.text')
        a(f".globl {KNAME}\n.p2align 8\n.type {KNAME},@function\n{KNAME}:")
        n0 = len(a.L)
        self.prologue(); self.streamer(); self.helper(); self.collector()
        a("L_end:\n  s_endpgm\nL_code_end:")
        body, added = hazard.fix(a.L[n0:])
        a.L = a.L[:n0] + body
        a('.section .rodata,"a"\n.p2align 6')
        a(f".amdhsa_kernel {KNAME}")
        a("  .amdhsa_next_free_vgpr 256\n  .amdhsa_next_free_sgpr 102\n  .amdhsa_accum_offset 256")
        a("  .amdhsa_group_segment_fixed_size 0\n  .amdhsa_kernarg_size 80\n  .amdhsa_user_sgpr_count 2")
        a("  .amdhsa_user_sgpr_kernarg_segment_ptr 1\n  .amdhsa_system_sgpr_workgroup_id_x 1")
        a("  .amdhsa_float_denorm_mode_32 3")
        a(".end_amdhsa_kernel")
        return a.text(), added

def generate(path, **kw):
    cfg = Cfg()
    for k, v in kw.items(): setattr(cfg, k, v)
    text, added = G(cfg).build()
    open(path, "w").write(text)
    return added

if __name__ == "__main__":
    path = sys.argv[1] if len(sys.argv) > 1 else "standalone__detection_seg_dino__vision.s"
    kw = {}
    for x in sys.argv[2:]:
        k, v = x.split("="); kw[k] = eval(v)
    print("nops added:", generate(path, **kw))
```

```python
import sys, struct
from asmlib import Asm
import hazard

KNAME = "standalone__detection_seg_dino__vision_kernel"

NH, NS, NPAIR = 24, 228, 9
F0_BYTES, F1_BYTES, W_BYTES, Q_BYTES = 50331648, 12582912, 294912, 12288
WS_BYTES = 268435456

NONCE_OFF = 0
HINT_OFF = 1024
RQ_OFF, RQK_OFF, RCTX_OFF = 4096, 20480, 36864
GO_OFF = 53248
FLAG_OFF = 49152
LSE_OFF = 65536
PART_OFF = 131072
PART_STRIDE = NS * 128
STAMP_OFF = 8 << 20

SLOT = 12288
STG = 12 * SLOT
TOP = 13 * SLOT
STAT = TOP
NONCE_LDS = TOP + 2304
FLAG_LDS = TOP + 2308
QS_LDS = TOP + 2320
MXW = TOP + 2400
MX = TOP + 2560
RED = TOP + 3072
RED2 = STG + 8192
LDS_BYTES = 163840
H_QI, H_WKI, H_WQI, H_WOI, H_WT, H_WV = 0, 12288, 24576, 36864, 49152, 65536
H_QS = 61952

LAG_LIMIT = 40.0
LOW_LIMIT = -60.0
KEYC = 0x9e3779b1
LOG2E = 1.4426950408889634
def f32(x): return "0x%08x" % struct.unpack("<I", struct.pack("<f", x))[0]

class Cfg:
    nt = True
    stamp = False
    depth = 4
    hx0 = 0
    hnx = 1
    hint = True
    codepf = True
    nostream = False
    dbgstamp = False
    pfrows = 4
    cut = 0
    lite = False
    trig_a = 2
    trig_b = 4
    qsleep = 4
    c1sleep = 6
    lag = True
    prefuse = False
    late = False
    sched = 1
    streamonly = False
    rsleep = 0
    csleep = 0
    ext7 = 1
    ext8 = 1
    zref = True
    redsel = 0
    fdiag = False
    late8 = False
    dlate = 5
    xlate = 3
    pvfuse = False
    rdelay = 34
    rack = False
    cdelay = 16
    qdelay = 0
    kdelay = 0
    call = False
    hdiag = False
    gdiag = False
    rdiag = False
    bdiag_sb = 4
    bdiag = False
    selpoll = 2
    hnt = False

S_WAVE = 3
P_Q, P_F0, P_F1, P_WQ, P_WK, P_WV, P_WO, P_OUT, P_DBG, P_WS = 4, 6, 8, 10, 12, 14, 16, 18, 20, 22
R_A, R_B, R_WS, R_DBG, R_C, R_D, R_E, R_F = 24, 28, 32, 36, 40, 44, 48, 52
S_IDX, S_ONELO, S_ONEHI = 56, 57, 58
S_K, S_QBASE, S_LINK = 66, 67, 68
S_NONCE, S_SPIN = 70, 71
S_TI, S_TB, S_PB, S_BIAS, S_T, S_P0, S_SB, S_W0, S_NP, S_PVB, S_LAST = 72, 73, 74, 75, 76, 77, 78, 79, 80, 81, 59
S_SST = 48
S_STA, S_PAIR, S_POFF = 49, 52, 53
S_LINK2 = 54
S_LOW = 47
S_RHO = 79
S_QMASK = 50
SETA, SETB = 40, 44
STAMP0 = 82
SPIN_CAP = 200000
import os
if os.environ.get('CAP'): SPIN_CAP = int(os.environ['CAP'])

def srd(a, s, ptr, nbytes):
    a(f"  s_mov_b32 s{s}, s{ptr}\n  s_mov_b32 s{s+1}, s{ptr+1}\n  s_mov_b32 s{s+2}, {nbytes}\n  s_mov_b32 s{s+3}, 0x20000")
def vr(b, n=4): return f"v[{b}:{b+n-1}]"
def sr(b, n=4): return f"s[{b}:{b+n-1}]"

class G:
    def __init__(self, cfg):
        self.cfg = cfg; self.a = Asm(); self.uid = 0
    def lab(self, name):
        self.uid += 1
        return f"L_{name}_{self.uid}"
    def stamp(self, i):
        if self.cfg.fdiag: return
        if self.cfg.lite and i not in (0, 9): return
        if self.cfg.stamp and not self.cfg.bdiag:
            self.a(f"  s_memrealtime s[{STAMP0+2*i}:{STAMP0+2*i+1}]\n  s_waitcnt lgkmcnt(0)")
    def fstamp(self, i):
        if self.cfg.fdiag: self.a(f"  s_memtime s[{STAMP0+2*i}:{STAMP0+2*i+1}]\n  s_waitcnt lgkmcnt(0)")
    def cstamp(self, i):
        if self.cfg.bdiag:
            l = self.lab("cs")
            self.a(f"  s_cmp_lg_u32 s{S_SB}, {self.cfg.bdiag_sb}\n  s_cbranch_scc1 {l}\n  s_memtime s[{STAMP0+2*i}:{STAMP0+2*i+1}]\n  s_waitcnt lgkmcnt(0)\n{l}:")
    def stamp_init(self):
        if self.cfg.stamp:
            for i in range(20): self.a(f"  s_mov_b32 s{STAMP0+i}, 0")
    def stamp_flush(self, dbg=None):
        if not self.cfg.stamp: return
        a = self.a
        if self.cfg.dbgstamp and dbg:
            who, wave, first, which = dbg
            sk = self.lab("nodbg")
            a(f"  s_cmp_lg_u32 s{S_IDX}, {who}\n  s_cbranch_scc1 {sk}\n  s_cmp_lg_u32 s{S_WAVE}, {wave}\n  s_cbranch_scc1 {sk}")
            srd(a, R_DBG, P_DBG, 256)
            a("  v_mov_b32 v1, 0")
            for i, st in enumerate(which):
                a(f"  v_mov_b32 v2, s{STAMP0+2*st}\n  buffer_store_dword v2, v1, {sr(R_DBG)}, 0 offen offset:{4*(first+i)}\n  s_nop 0")
            a(f"{sk}:")
        if self.cfg.dbgstamp: return
        if self.cfg.lite:
            if dbg[0] != 0: return
            sk = self.lab("nolite")
            a(f"  s_cmp_lg_u32 s{S_WAVE}, 0\n  s_cbranch_scc1 {sk}")
            a("  s_lshl_b32 s60, s2, 3\n  s_lshl_b32 s60, s60, 6")
            a(f"  s_add_u32 s60, s60, {STAMP_OFF}\n  v_mov_b32 v1, 0\n  v_mov_b32 v2, s{STAMP0}\n  v_mov_b32 v3, s{STAMP0+18}")
            a(f"  buffer_store_dword v2, v1, {sr(R_WS)}, s60 offen\n  buffer_store_dword v3, v1, {sr(R_WS)}, s60 offen offset:36\n{sk}:")
            return
        a("  s_lshl_b32 s60, s2, 3\n  s_add_u32 s60, s60, s3\n  s_lshl_b32 s60, s60, 6")
        a(f"  s_add_u32 s60, s60, {STAMP_OFF}\n  v_mov_b32 v1, 0")
        for i in range(10):
            a(f"  v_mov_b32 v2, s{STAMP0+2*i}\n  buffer_store_dword v2, v1, {sr(R_WS)}, s60 offen offset:{4*i}\n  s_nop 0")

    def allred_g(self, x, t, op):
        a = self.a
        a(f"  v_mov_b32 v{t}, v{x}\n  v_permlane16_swap_b32 v{t}, v{x}\n  {op} v{x}, v{t}, v{x}")
        a(f"  v_mov_b32 v{t}, v{x}\n  v_permlane32_swap_b32 v{t}, v{x}\n  {op} v{x}, v{t}, v{x}")
    def valid_check(self, base, n, t, retry):
        a = self.a
        a(f"  v_max3_u32 v{t}, v{base}, v{base+1}, v{base+2}")
        h = n // 2
        a(f"  v_max3_u32 v{t+1}, v{base+h}, v{base+h+1}, v{base+h+2}")
        i, k = 3, h + 3
        while i < h or k < n:
            if i + 1 < h: a(f"  v_max3_u32 v{t}, v{t}, v{base+i}, v{base+i+1}"); i += 2
            elif i < h: a(f"  v_max_u32 v{t}, v{t}, v{base+i}"); i += 1
            if k + 1 < n: a(f"  v_max3_u32 v{t+1}, v{t+1}, v{base+k}, v{base+k+1}"); k += 2
            elif k < n: a(f"  v_max_u32 v{t+1}, v{t+1}, v{base+k}"); k += 1
        a(f"  v_max_u32 v{t}, v{t}, v{t+1}\n  v_cmp_eq_u32 vcc, -1, v{t}\n  s_cbranch_vccnz {retry}")
    def spin_guard(self, done):
        self.a(f"  s_add_u32 s{S_SPIN}, s{S_SPIN}, 1\n  s_cmp_gt_u32 s{S_SPIN}, {SPIN_CAP}\n  s_cbranch_scc1 {done}")
    def flag_addr(self, va):
        self.a(f"  v_min_u32 v{va}, {NH-1}, v0\n  v_lshlrev_b32 v{va}, 7, v{va}\n  v_add_u32 v{va}, {FLAG_OFF}, v{va}")
    def wait_flags(self, vd, va, first_issued=False):
        a = self.a
        lp, ck, dn = self.lab("flg"), self.lab("flgc"), self.lab("flgd")
        a(f"  s_mov_b32 s{S_SPIN}, 0")
        if first_issued: a(f"  s_branch {ck}")
        a(f"{lp}:\n  buffer_load_dword v{vd}, v{va}, {sr(R_WS)}, 0 offen sc1")
        self.spin_guard(dn)
        a(f"{ck}:\n  s_waitcnt vmcnt(0)\n  v_cmp_ne_u32 vcc, s{S_NONCE}, v{vd}\n  s_cbranch_vccnz {lp}")
        a(f"{dn}:\n  s_waitcnt vmcnt(0)")
    def gather_frags(self, nfr, dst, vaddr, off0, t, name, rowmajor=False, sleep=0):
        a = self.a
        lp, dn, l0 = self.lab(name), self.lab(name + "d"), self.lab(name + "0")
        a(f"  s_add_u32 s63, s{off0}, 4096\n  s_add_u32 s64, s{off0}, 8192\n  s_mov_b32 s{S_SPIN}, 0")
        if sleep: a(f"  s_branch {l0}\n{lp}:\n  s_sleep {sleep}\n{l0}:")
        else: a(f"{lp}:")
        for j in range(nfr):
            so = (f"s{off0}", "s63", "s64")[j >> 2]
            if rowmajor: a(f"  buffer_load_dwordx4 {vr(dst+4*j)}, v{vaddr}, {sr(R_WS)}, s{off0} offen offset:{j*64} sc1")
            else: a(f"  buffer_load_dwordx4 {vr(dst+4*j)}, v{vaddr}, {sr(R_WS)}, {so} offen offset:{(j&3)*1024} sc1")
        self.spin_guard(dn)
        a("  s_waitcnt vmcnt(0)")
        self.valid_check(dst, 4 * nfr, t, lp)
        a(f"{dn}:\n  s_waitcnt vmcnt(0)")

    def prologue(self):
        a = self.a; cfg = self.cfg
        a("  s_cmp_ge_u32 s2, 256\n  s_cbranch_scc1 L_end")
        a("  s_load_dwordx16 s[4:19], s[0:1], 0\n  s_load_dwordx4 s[20:23], s[0:1], 64")
        if cfg.codepf:
            l = self.lab("pc")
            a(f"  s_cmp_ge_u32 s2, {8*cfg.pfrows}\n  s_cbranch_scc1 L_nopf")
            a(f"  s_getpc_b64 s[60:61]\n{l}:\n  s_sub_u32 s60, s60, {l}-{KNAME}\n  s_subb_u32 s61, s61, 0")
            a(f"  s_bfe_u32 s62, s2, 0x20003\n  s_lshl_b32 s62, s62, 13\n  v_lshl_add_u32 v246, v0, 4, s62")
            a(f"  v_min_u32 v246, L_code_end-{KNAME}-16, v246\n  global_load_dwordx4 v[168:171], v246, s[60:61]")
            a("L_nopf:")
        a("  v_lshrrev_b32 v1, 6, v0\n  v_and_b32 v0, 63, v0")
        a(f"  v_readfirstlane_b32 s{S_WAVE}, v1")
        a(f"  s_mov_b32 s{S_ONELO}, 0x00003f80\n  s_mov_b32 s{S_ONEHI}, 0x3f800000")
        self.stamp_init(); self.stamp(0)
        rows = NH // cfg.hnx
        a(f"  s_and_b32 s60, s2, 7\n  s_lshr_b32 s61, s2, 3\n  s_sub_u32 s62, s60, {cfg.hx0}")
        a(f"  s_cmp_lt_u32 s61, {rows}\n  s_cbranch_scc0 L_late")
        a(f"  s_cmp_lt_u32 s62, {cfg.hnx}\n  s_cbranch_scc0 L_early")
        a(f"  s_mul_i32 s{S_IDX}, s61, {cfg.hnx}\n  s_add_u32 s{S_IDX}, s{S_IDX}, s62\n  s_branch L_helper")
        a("L_early:")
        a(f"  s_cmp_lt_u32 s60, {cfg.hx0}\n  s_cselect_b32 s62, 0, {cfg.hnx}\n  s_sub_u32 s62, s60, s62")
        a(f"  s_mul_i32 s{S_IDX}, s61, {8-cfg.hnx}\n  s_add_u32 s{S_IDX}, s{S_IDX}, s62\n  s_branch L_stream")
        a(f"L_late:\n  s_sub_u32 s{S_IDX}, s2, {NH}")
        a(f"  s_cmp_eq_u32 s{S_IDX}, {NS}\n  s_cbranch_scc1 L_collect")
        a(f"  s_cmp_ge_u32 s{S_IDX}, {NS}\n  s_cbranch_scc1 L_end")
        a("L_stream:")
        if cfg.nostream: a("  s_branch L_end")

    def code_prefetch(self, vt, vd):
        if not self.cfg.codepf: return
        a = self.a
        l = self.lab("pc")
        a(f"  s_getpc_b64 s[60:61]\n{l}:")
        a(f"  s_sub_u32 s60, s60, {l}-{KNAME}\n  s_subb_u32 s61, s61, 0")
        a(f"  s_lshr_b32 s62, s2, 3\n  s_lshl_b32 s62, s62, 10\n  v_lshl_add_u32 v{vt}, v0, 4, s62")
        a(f"  v_min_u32 v{vt}, L_code_end-{KNAME}-16, v{vt}")
        a(f"  global_load_dwordx4 {vr(vd)}, v{vt}, s[60:61]")

    V_OFF1, V_OFF0, V_SA = 2, 3, 255
    V_WA = (4, 5, 253, 254)
    V_RA, V_PA = 6, 10
    V_PADDR, V_MXW, V_MXR = 13, 14, 15
    V_ST = 128
    V_BUF = (16, 36, 56)
    V_PU, V_TMP, V_OUT = 144, 152, 160
    V_LT, V_AT = 76, 78
    V_QK, V_A, V_ACC = 80, 128, 176
    V_S, V_SUM, V_SQ4, V_SQ, V_MU, V_RS, V_LG = 188, 192, 196, 200, 204, 208, 212
    V_ONES = 216
    V_M, V_AL, V_L2, V_AM2, V_QS, V_CINV, V_CEPS, V_BIAS = 220, 222, 224, 226, 228, 230, 232, 234
    V_T0, V_T1, V_T2, V_ONEF = 236, 237, 238, 239
    V_MXV, V_TA, V_L16 = 240, 248, 252
    V_PUB = 196
    V_REDW = 198
    V_STR = 1

    def task_bases(self, st, kconst, kreg=True):
        a = self.a
        if kreg: a(f"  s_add_u32 s62, s{S_K}, {kconst}")
        else: a(f"  s_mov_b32 s62, {kconst}")
        a(f"  s_lshl_b32 s63, s62, 1\n  s_add_u32 s63, s63, s{S_QBASE}")
        a(f"  s_mul_i32 s{st}, s63, 3072\n  s_lshr_b32 s64, s63, 5\n  s_mul_i32 s64, s64, 393216")
        a(f"  s_and_b32 s65, s63, 31\n  s_mul_i32 s65, s65, 6144\n  s_add_u32 s{st+1}, s64, s65")
        a(f"  s_cmp_gt_u32 s62, {NPAIR-1}\n  s_cselect_b32 s{st}, 0x80000000, s{st}\n  s_cselect_b32 s{st+1}, 0x80000000, s{st+1}")
        a(f"  s_add_u32 s{st+2}, s{st+1}, 196608")
    def issue_piece(self, st, par, i):
        a = self.a
        nt = " nt" if self.cfg.nt else ""
        b = self.V_BUF[par] + 4 * i
        if i == 0:
            a(f"  buffer_load_dwordx4 {vr(b)}, v{self.V_OFF1}, {sr(R_B)}, s{st} offen{nt}")
        else:
            t = i - 1
            off = " offset:768" if t & 1 else ""
            a(f"  buffer_load_dwordx4 {vr(b)}, v{self.V_OFF0}, {sr(R_A)}, s{st+1+(t>>1)} offen{off}{nt}")

    def fuse_sub(self, par, d, name, mode="roll"):
        a = self.a
        hold, roll = mode == "hold", mode == "roll"
        b = self.V_BUF[par]; u = self.V_PU; t8 = self.V_TMP
        SS, SQ, R, U = self.V_ST, self.V_ST + 4, self.V_ST + 8, self.V_ST + 12
        a0 = d // 5
        a(f"{name}:")
        if roll:
            a(f"  s_mov_b32 s{SETA}, s{SETB}\n  s_mov_b32 s{SETA+1}, s{SETB+1}\n  s_mov_b32 s{SETA+2}, s{SETB+2}")
            self.task_bases(SETB, a0 + 1)
        def nxt(i):
            if not roll: return
            aa, pi = (i + d) // 5, (i + d) % 5
            self.issue_piece(SETA if aa == a0 else SETB, par ^ (aa & 1), pi)
        def dpp(dst, src, ctrl, bank):
            a(f"  v_add_f32_dpp v{dst}, v{src}, v{src} {ctrl} row_mask:0xf bank_mask:{bank:#x}")
        a(f"  s_waitcnt vmcnt({d-1})")
        for i in range(4):
            a(f"  v_lshlrev_b32 v{u+2*i}, 16, v{b+i}\n  v_and_b32 v{u+2*i+1}, 0xffff0000, v{b+i}")
        nxt(0)
        for t in range(4):
            c = b + 4 + 4 * t; o = c if hold else self.V_OUT + 4 * (t & 1)
            a(f"  s_waitcnt vmcnt({d-1 if roll else d-2-t})")
            for i in range(4):
                a(f"  v_dot2_f32_bf16 v{t8+2*i}, v{c+i}, s{S_ONELO}, v{u+2*i}")
                a(f"  v_dot2_f32_bf16 v{t8+2*i+1}, v{c+i}, s{S_ONEHI}, v{u+2*i+1}")
            nxt(t + 1)
            for i in range(4):
                a(f"  v_cvt_pk_bf16_f32 v{o+i}, v{t8+2*i}, v{t8+2*i+1}")
            if not hold: a(f"  ds_write_b128 v{self.V_WA[t]}, {vr(o)} offset:{t*768}")
            if t > 0: dpp(R + t - 1, SS + t - 1, "row_ror:8", 0x3)
            for i in range(4):
                a(f"  v_dot2_f32_bf16 v{SS+t}, v{o+i}, v{self.V_ONES}, {'0' if i == 0 else 'v%d' % (SS+t)}")
                a(f"  v_dot2_f32_bf16 v{SQ+t}, v{o+i}, v{o+i}, {'0' if i == 0 else 'v%d' % (SQ+t)}")
            if t > 0: dpp(R + t - 1, SQ + t - 1, "row_ror:8", 0xc)
        WA = self.V_WA
        if hold: a("  s_mov_b32 s62, 0")
        else: a(f"  s_mov_b32 s62, 24576\n  s_cmp_eq_u32 s{S_K}, 5\n  s_cselect_b32 s62, {(-5*24576) & 0xffffffff:#x}, s62")
        dpp(U, R, "row_half_mirror", 0x5)
        dpp(R + 3, SS + 3, "row_ror:8", 0x3)
        a(f"  v_add_u32 v{WA[0]}, s62, v{WA[0]}")
        dpp(U, R + 1, "row_half_mirror", 0xa)
        dpp(R + 3, SQ + 3, "row_ror:8", 0xc)
        dpp(U + 1, R + 2, "row_half_mirror", 0x5)
        a(f"  v_add_u32 v{WA[1]}, s62, v{WA[1]}")
        dpp(U, U, "quad_perm:[1,0,3,2]", 0xf)
        dpp(U + 1, R + 3, "row_half_mirror", 0xa)
        a(f"  v_add_u32 v{WA[2]}, s62, v{WA[2]}")
        dpp(U, U, "quad_perm:[2,3,0,1]", 0xf)
        dpp(U + 1, U + 1, "quad_perm:[1,0,3,2]", 0xf)
        a(f"  v_add_u32 v{WA[3]}, s62, v{WA[3]}\n  s_mov_b64 exec, s[{S_QMASK}:{S_QMASK+1}]\n  ds_add_f32 v{self.V_SA}, v{U}\n  s_mov_b64 exec, -1")
        dpp(U + 1, U + 1, "quad_perm:[2,3,0,1]", 0xf)
        a(f"  s_add_u32 s{S_K}, s{S_K}, 1")
        a(f"  s_mov_b64 exec, s[{S_QMASK}:{S_QMASK+1}]\n  ds_add_f32 v{self.V_SA}, v{U+1} offset:8\n  s_mov_b64 exec, -1")
        a(f"  v_add_u32 v{self.V_SA}, 256, v{self.V_SA}")
        a(f"  s_setpc_b64 s[{S_LINK}:{S_LINK+1}]")

    def stream_consts(self):
        a = self.a
        a("  v_and_b32 v240, 15, v0\n  v_lshrrev_b32 v241, 4, v0")
        a("  v_and_b32 v242, 7, v240\n  v_lshlrev_b32 v242, 1, v242\n  v_mul_u32_u24 v243, 768, v240")
        for m in range(4):
            a(f"  v_add_u32 v244, {4*m}, v241\n  v_xor_b32 v244, v244, v242\n  v_lshl_add_u32 v{self.V_RA+m}, v244, 4, v243")
        a("  v_lshrrev_b32 v242, 2, v240\n  v_lshl_add_u32 v242, v241, 2, v242\n  v_mul_u32_u24 v243, 768, v242")
        a("  v_and_b32 v242, 7, v242\n  v_lshlrev_b32 v242, 1, v242")
        a("  v_and_b32 v244, 3, v240\n  v_lshrrev_b32 v245, 1, v244\n  v_and_b32 v244, 1, v244\n  v_lshl_add_u32 v243, v244, 3, v243")
        for tau in range(3):
            a(f"  s_mul_i32 s62, s{S_WAVE}, 3\n  s_add_u32 s62, s62, {tau}")
            a("  s_lshl_b32 s63, s62, 1\n  s_and_b32 s63, s63, 14\n  s_lshr_b32 s62, s62, 3\n  s_lshl_b32 s62, s62, 8")
            a(f"  v_xor_b32 v244, s63, v242\n  v_or_b32 v244, v244, v245\n  v_lshl_add_u32 v244, v244, 4, v243\n  v_add_u32 v{self.V_PA+tau}, s62, v244")
        a(f"  v_lshlrev_b32 v{self.V_L16}, 4, v0\n  v_add_u32 v{self.V_PADDR}, {STG}, v{self.V_L16}\n  v_lshlrev_b32 v{self.V_STR}, 4, v241")
        a(f"  v_lshlrev_b32 v244, 5, v240\n  v_add_u32 v{self.V_MXR}, {MX}, v244")
        a(f"  s_lshl_b32 s62, s{S_WAVE}, 2\n  v_add_u32 v{self.V_MXW}, s62, v{self.V_MXR}")
        for i in range(4): a(f"  v_mov_b32 v{self.V_ONES+i}, 0x3f803f80")
        a(f"  v_mov_b32 v{self.V_ONEF}, 1.0\n  v_mov_b32 v{self.V_CINV}, {f32(1/384)}\n  v_mov_b32 v{self.V_CEPS}, {f32(1e-5)}")
        for i in range(12): a(f"  v_mov_b32 v{self.V_ACC+i}, 0")
        a(f"  v_mov_b32 v{self.V_M}, 0xff800000")
        for r in (self.V_L2, self.V_L2+1, self.V_AM2, self.V_AM2+1, self.V_M+1, self.V_AL+1, self.V_QS+1, self.V_CINV+1, self.V_CEPS+1, self.V_BIAS+1):
            a(f"  v_mov_b32 v{r}, 0")

    def pk(self, op, d, x, y, z=None, bc=(), neg=()):
        n = 2 if z is None else 3
        ops = [x, y] + ([z] if z is not None else [])
        s = f"  {op} {vr(d,2)}, " + ", ".join(vr(o, 2) for o in ops)
        if bc: s += " op_sel_hi:[" + ",".join("0" if i in bc else "1" for i in range(n)) + "]"
        if neg:
            m = "[" + ",".join("1" if i in neg else "0" for i in range(n)) + "]"
            s += f" neg_lo:{m} neg_hi:{m}"
        self.a(s)

    def red_write(self, l, am, t):
        a = self.a
        a(f"  v_add_f32 v{t}, v{l}, v{l+1}\n  v_add_f32 v{t+1}, v{am}, v{am+1}")
        a(f"  v_permlane16_swap_b32 v{t}, v{t+1}\n  v_add_f32 v{t}, v{t}, v{t+1}")
        a(f"  v_mov_b32 v{t+1}, v{t}\n  v_permlane32_swap_b32 v{t+1}, v{t}\n  v_add_f32 v{t}, v{t}, v{t+1}")
        a(f"  ds_write_b32 v{self.V_REDW}, v{t}")

    def sphase_sub(self):
        a = self.a
        A, QK = self.V_A, self.V_QK
        S, SUM, SQ, MU, RS, LG, T1, T2 = self.V_S, self.V_SUM, self.V_SQ, self.V_MU, self.V_RS, self.V_LG, self.V_T1, self.V_T2
        a("L_sphase:")
        for m in range(4): a(f"  v_add_u32 v{self.V_TA+m}, s{S_TB}, v{self.V_RA+m}")
        a(f"  v_add_u32 v{T1}, s{S_STA}, v{self.V_STR}")
        a(f"  ds_read_b128 {vr(SUM)}, v{T1}\n  ds_read_b128 {vr(SQ)}, v{T1} offset:64")
        for j in range(12): a(f"  ds_read_b128 {vr(A+4*j)}, v{self.V_TA+(j&3)} offset:{(j>>2)*256}")
        a(f"  s_cmp_lt_u32 s{S_PAIR}, 2048\n  s_cselect_b32 s{S_BIAS}, 0, {f32(-1e30)}")
        a(f"  v_mov_b32 v{self.V_BIAS}, s{S_BIAS}\n  v_add_u32 v{T2}, s{S_POFF}, v{self.V_PADDR}")
        a("  s_waitcnt lgkmcnt(12)")
        stat = []
        for h in (0, 2): stat.append(lambda h=h: self.pk("v_pk_mul_f32", MU + h, SUM + h, self.V_CINV, bc=(1,)))
        for h in (0, 2): stat.append(lambda h=h: self.pk("v_pk_fma_f32", RS + h, SQ + h, self.V_CINV, self.V_CEPS, bc=(1, 2)))
        for h in (0, 2): stat.append(lambda h=h: self.pk("v_pk_fma_f32", RS + h, MU + h, MU + h, RS + h, neg=(0,)))
        for r in range(4): stat.append(lambda r=r: a(f"  v_max_f32 v{RS+r}, v{self.V_CEPS}, v{RS+r}"))
        for r in range(4): stat.append(lambda r=r: a(f"  v_rsq_f32 v{RS+r}, v{RS+r}"))
        for h in (0, 2): stat.append(lambda h=h: self.pk("v_pk_mul_f32", SUM + h, MU + h, self.V_QS, bc=(1,)))
        for j in range(12):
            a(f"  s_waitcnt lgkmcnt({11-j})")
            a(f"  v_mfma_f32_16x16x32_bf16 {vr(S)}, {vr(A+4*j)}, {vr(QK+4*j)}, {'0' if j == 0 else vr(S)}")
            for _ in range(2):
                if stat: stat.pop(0)()
        for h in (0, 2): self.pk("v_pk_add_f32", LG + h, S + h, SUM + h, neg=(1,))
        for h in (0, 2): self.pk("v_pk_fma_f32", LG + h, LG + h, RS + h, self.V_BIAS, bc=(2,))
        a(f"  s_setpc_b64 s[{S_LINK2}:{S_LINK2+1}]")

    def sp_sub(self):
        a = self.a
        MU, RS, LG, M, T0, T1, T2, MXV = self.V_MU, self.V_RS, self.V_LG, self.V_M, self.V_T0, self.V_T1, self.V_T2, self.V_MXV
        PT, LT, AT = MXV, self.V_LT, self.V_AT
        a("L_sp:")
        a(f"  s_call_b64 s[{S_LINK2}:{S_LINK2+1}], L_sphase")
        for h in (0, 2): self.pk("v_pk_add_f32", PT + h, LG + h, M, bc=(1,), neg=(1,))
        a(f"  v_max3_f32 v{T0}, v{PT}, v{PT+1}, v{PT+2}\n  v_max_f32 v{T0}, v{T0}, v{PT+3}")
        for r in range(4): a(f"  v_exp_f32 v{PT+r}, v{PT+r}")
        a(f"  v_cmp_lt_f32 vcc, {f32(LAG_LIMIT)}, v{T0}\n  v_cmp_gt_f32 s[60:61], s{S_LOW}, v{T0}\n  s_or_b64 vcc, vcc, s[60:61]")
        self.pk("v_pk_add_f32", LT, LT, PT); self.pk("v_pk_add_f32", LT, LT, PT + 2)
        for h in (0, 2): self.pk("v_pk_mul_f32", PT + h, PT + h, RS + h)
        a(f"  v_cvt_pk_bf16_f32 v{MXV+4}, v{PT}, v{PT+1}\n  v_cvt_pk_bf16_f32 v{MXV+5}, v{PT+2}, v{PT+3}")
        a(f"  ds_write_b64 v{T2}, {vr(MXV+4,2)}")
        for h in (0, 2): self.pk("v_pk_fma_f32", AT, PT + h, MU + h, AT)
        a(f"  s_cbranch_vccz L_sp_ret\n  v_mov_b32 v{T0}, {FLAG_LDS}\n  v_mov_b32 v{T1}, 1\n  ds_write_b32 v{T0}, v{T1}")
        a(f"L_sp_ret:\n  s_setpc_b64 s[{S_LINK}:{S_LINK+1}]")

    def batch_sub(self):
        a = self.a
        A = self.V_A
        MU, RS, LG = self.V_MU, self.V_RS, self.V_LG
        M, AL, L2, AM2, T0, T1, T2, MXV = self.V_M, self.V_AL, self.V_L2, self.V_AM2, self.V_T0, self.V_T1, self.V_T2, self.V_MXV
        PT = MXV
        a("L_batch:")
        self.cstamp(0)
        a(f"  s_sub_u32 s{S_TI}, s{S_WAVE}, s{S_W0}\n  s_cmp_ge_u32 s{S_TI}, s{S_T}\n  s_cbranch_scc1 L_b_bar2")
        a(f"  s_add_u32 s63, s{S_TI}, s{S_SB}\n  s_mul_i32 s{S_TB}, s63, {SLOT}")
        a(f"  s_lshl_b32 s62, s{S_TI}, 7\n  s_add_u32 s{S_STA}, s62, s{S_SST}")
        a(f"  s_lshr_b32 s62, s{S_TI}, 1\n  s_add_u32 s{S_PAIR}, s62, s{S_PB}")
        a(f"  s_lshl_b32 s62, s62, 10\n  s_and_b32 s63, s{S_TI}, 1\n  s_lshl_b32 s63, s63, 3\n  s_add_u32 s{S_POFF}, s62, s63")
        a(f"  s_call_b64 s[{S_LINK2}:{S_LINK2+1}], L_sphase")
        self.cstamp(1)
        a(f"  v_max3_f32 v{T0}, v{LG}, v{LG+1}, v{LG+2}\n  v_max_f32 v{T0}, v{T0}, v{LG+3}")
        self.allred_g(T0, T1, "v_max_f32")
        a(f"  ds_write_b32 v{self.V_MXW}, v{T0}")
        a("L_b_bar2:\n  s_waitcnt lgkmcnt(0)")
        self.cstamp(2)
        a("  s_barrier")
        self.cstamp(3)
        a(f"  ds_read_b128 {vr(MXV)}, v{self.V_MXR}\n  ds_read_b128 {vr(MXV+4)}, v{self.V_MXR} offset:16")
        a(f"  v_mov_b32 v{T0}, {FLAG_LDS}\n  v_mov_b32 v{T1}, 0\n  ds_write_b32 v{T0}, v{T1}")
        a("  s_waitcnt lgkmcnt(1)")
        a(f"  v_max3_f32 v{T0}, v{MXV}, v{MXV+1}, v{MXV+2}\n  v_max3_f32 v{T1}, v{MXV+3}, v{MXV+4}, v{MXV+5}")
        a(f"  v_max3_f32 v{T0}, v{T0}, v{MXV+6}, v{MXV+7}\n  v_max3_f32 v{T0}, v{T0}, v{T1}, v{M}")
        a(f"  v_sub_f32 v{AL}, v{M}, v{T0}\n  v_mov_b32 v{M}, v{T0}\n  v_exp_f32 v{AL}, v{AL}")
        self.cstamp(4)
        a(f"  s_cmp_ge_u32 s{S_TI}, s{S_T}\n  s_cbranch_scc1 L_b_nop")
        for h in (0, 2): self.pk("v_pk_add_f32", PT + h, LG + h, M, bc=(1,), neg=(1,))
        for r in range(4): a(f"  v_exp_f32 v{PT+r}, v{PT+r}")
        self.pk("v_pk_mul_f32", L2, L2, AL, bc=(1,)); self.pk("v_pk_mul_f32", AM2, AM2, AL, bc=(1,))
        self.pk("v_pk_add_f32", L2, L2, PT); self.pk("v_pk_add_f32", L2, L2, PT + 2)
        for h in (0, 2): self.pk("v_pk_mul_f32", PT + h, PT + h, RS + h)
        a(f"  v_cvt_pk_bf16_f32 v{MXV+4}, v{PT}, v{PT+1}\n  v_cvt_pk_bf16_f32 v{MXV+5}, v{PT+2}, v{PT+3}")
        a(f"  ds_write_b64 v{T2}, {vr(MXV+4,2)}")
        for h in (0, 2): self.pk("v_pk_fma_f32", AM2, PT + h, MU + h, AM2)
        a("  s_branch L_b_acc")
        a("L_b_nop:")
        self.pk("v_pk_mul_f32", L2, L2, AL, bc=(1,)); self.pk("v_pk_mul_f32", AM2, AM2, AL, bc=(1,))
        a("L_b_acc:")
        for i in range(0, 12, 2): self.pk("v_pk_mul_f32", self.V_ACC + i, self.V_ACC + i, AL, bc=(1,))
        a(f"  s_cmp_eq_u32 s{S_LAST}, 0\n  s_cbranch_scc1 L_b_bar3")
        self.red_write(L2, AM2, MXV + 6)
        a("L_b_bar3:\n  s_waitcnt lgkmcnt(0)")
        self.cstamp(5)
        a("  s_barrier")
        self.cstamp(6)
        a(f"  s_lshr_b32 s{S_NP}, s{S_T}, 1")
        a(f"  s_mul_i32 s{S_PVB}, s{S_SB}, {SLOT}")
        self.pv_reads(0, S_PVB, 0)
        for k in range(3):
            a(f"  s_cmp_le_u32 s{S_NP}, {k+1}\n  s_cbranch_scc1 L_pvl{k & 1}")
            a(f"  s_add_u32 s{S_PVB}, s{S_PVB}, {2*SLOT}")
            self.pv_reads((k + 1) & 1, S_PVB, (k + 1) * 1024)
            self.pv_mfmas(k & 1, 7)
        a("L_pvl1:")
        self.pv_mfmas(1, 0)
        self.cstamp(7)
        a(f"  s_setpc_b64 s[{S_LINK}:{S_LINK+1}]")
        a("L_pvl0:")
        self.pv_mfmas(0, 0)
        self.cstamp(7)
        a(f"  s_setpc_b64 s[{S_LINK}:{S_LINK+1}]")

    def pv_reads(self, buf, s_, poff, imm=0):
        a = self.a; o = self.V_A + 16 * buf
        a(f"  ds_read_b128 {vr(o)}, v{self.V_PADDR} offset:{poff}")
        for tau in range(3):
            if s_ is None:
                ad = self.V_PA + tau
            else:
                ad = self.V_TA + tau
                a(f"  v_add_u32 v{ad}, s{s_}, v{self.V_PA+tau}")
            a(f"  ds_read_b64_tr_b16 {vr(o+4+4*tau,2)}, v{ad} offset:{imm}")
            a(f"  ds_read_b64_tr_b16 {vr(o+6+4*tau,2)}, v{ad} offset:{imm + SLOT}")
    def pv_mfmas(self, buf, base):
        a = self.a; o = self.V_A + 16 * buf
        for tau in range(3):
            a(f"  s_waitcnt lgkmcnt({base + 4 - 2*tau})")
            a(f"  v_mfma_f32_16x16x32_bf16 {vr(self.V_ACC+4*tau)}, {vr(o+4+4*tau)}, {vr(o)}, {vr(self.V_ACC+4*tau)}")

    def pv_final(self):
        a = self.a; T0, T1 = self.V_T0, self.V_T1
        a(f"  v_mov_b32 v{T0}, {FLAG_LDS}\n  ds_read_b32 v{T1}, v{T0}")
        a(f"  s_mov_b32 s{S_PVB}, {8*SLOT}")
        self.pv_reads(0, S_PVB, 0)
        a(f"  s_waitcnt lgkmcnt(7)\n  v_readfirstlane_b32 s62, v{T1}\n  s_cmp_lg_u32 s62, 0\n  s_cbranch_scc1 L_slow")
        a(f"  s_mov_b32 s{S_PVB}, {10*SLOT}")
        self.pv_reads(1, S_PVB, 1024); self.pv_mfmas(0, 7)
        self.pv_reads(0, None, 2048, 0); self.pv_mfmas(1, 7)
        self.pv_reads(1, None, 3072, 2*SLOT); self.pv_mfmas(0, 7)
        self.pv_reads(0, None, 4096, 4*SLOT); self.pv_mfmas(1, 7)
        self.sums_read()
        self.pv_mfmas(0, 4)
        self.sums_math()

    V_SR = 16
    def sums_read(self):
        for i in range(4): self.a(f"  ds_read_b128 {vr(self.V_SR+4*i)}, v{self.V_PUB+3} offset:{16*i}")
    def sums_math(self):
        a = self.a; R = self.V_SR
        a("  s_waitcnt lgkmcnt(0)")
        for i in (0, 4, 8, 12): self.pk("v_pk_add_f32", R + i, R + i, R + i + 2)
        self.pk("v_pk_add_f32", R, R, R + 4); self.pk("v_pk_add_f32", R + 8, R + 8, R + 12); self.pk("v_pk_add_f32", R, R, R + 8)
        a(f"  v_rcp_f32 v{R+2}, v{R}\n  v_log_f32 v{R+5}, v{R}\n  v_mul_f32 v{R+4}, v{R+1}, v{R+2}\n  v_add_f32 v{R+6}, v{self.V_M}, v{R+5}")

    def hold_chunks(self):
        a = self.a
        b = self.V_BUF[0]; u, t8, st = 160, 168, 56
        SS, SQ, R, U = st, st + 4, st + 8, st + 12
        def dpp(dst, src, ctrl, bank):
            a(f"  v_add_f32_dpp v{dst}, v{src}, v{src} {ctrl} row_mask:0xf bank_mask:{bank:#x}")
        def child(t):
            c = b + 4 + 4 * t
            if t == 0:
                a("  s_waitcnt vmcnt(9)")
                for i in range(4): a(f"  v_lshlrev_b32 v{u+2*i}, 16, v{b+i}\n  v_and_b32 v{u+2*i+1}, 0xffff0000, v{b+i}")
            a(f"  s_waitcnt vmcnt({8-t})")
            for i in range(4):
                a(f"  v_dot2_f32_bf16 v{t8+2*i}, v{c+i}, s{S_ONELO}, v{u+2*i}")
                a(f"  v_dot2_f32_bf16 v{t8+2*i+1}, v{c+i}, s{S_ONEHI}, v{u+2*i+1}")
            if t > 0: dpp(R + t - 1, SS + t - 1, "row_ror:8", 0x3)
            for i in range(4): a(f"  v_cvt_pk_bf16_f32 v{c+i}, v{t8+2*i}, v{t8+2*i+1}")
            if t > 0: dpp(R + t - 1, SQ + t - 1, "row_ror:8", 0xc)
            for i in range(4):
                a(f"  v_dot2_f32_bf16 v{SS+t}, v{c+i}, v{self.V_ONES}, {'0' if i == 0 else 'v%d' % (SS+t)}")
                a(f"  v_dot2_f32_bf16 v{SQ+t}, v{c+i}, v{c+i}, {'0' if i == 0 else 'v%d' % (SQ+t)}")
        def close():
            dpp(U, R, "row_half_mirror", 0x5)
            dpp(R + 3, SS + 3, "row_ror:8", 0x3)
            dpp(U + 1, R + 2, "row_half_mirror", 0x5)
            dpp(U, R + 1, "row_half_mirror", 0xa)
            dpp(R + 3, SQ + 3, "row_ror:8", 0xc)
            a(f"  s_add_u32 s{S_K}, s{S_K}, 1")
            dpp(U, U, "quad_perm:[1,0,3,2]", 0xf)
            dpp(U + 1, R + 3, "row_half_mirror", 0xa)
            dpp(U, U, "quad_perm:[2,3,0,1]", 0xf)
            dpp(U + 1, U + 1, "quad_perm:[1,0,3,2]", 0xf)
            a(f"  s_mov_b64 exec, s[{S_QMASK}:{S_QMASK+1}]\n  ds_add_f32 v{self.V_SA}, v{U}\n  s_mov_b64 exec, -1")
            dpp(U + 1, U + 1, "quad_perm:[2,3,0,1]", 0xf)
            a(f"  s_mov_b64 exec, s[{S_QMASK}:{S_QMASK+1}]\n  ds_add_f32 v{self.V_SA}, v{U+1} offset:8\n  s_mov_b64 exec, -1")
            a(f"  v_add_u32 v{self.V_SA}, 256, v{self.V_SA}")
        return [lambda t=t: child(t) for t in range(4)], close

    def pv_first(self):
        a = self.a; T0, T1 = self.V_T0, self.V_T1
        def body(chunks, close):
            self.pv_reads(1, None, 1024, 2*SLOT)
            self.pk("v_pk_add_f32", self.V_L2, self.V_L2, self.V_LT); self.pk("v_pk_add_f32", self.V_AM2, self.V_AM2, self.V_AT)
            if chunks: chunks[0]()
            self.pv_mfmas(0, 7)
            self.pv_reads(0, None, 2048, 4*SLOT)
            for r in range(4): a(f"  v_mov_b32 v{self.V_LT+r}, 0")
            if chunks: chunks[1]()
            self.pv_mfmas(1, 7)
            a(f"  s_mov_b32 s{S_PVB}, {6*SLOT}")
            self.pv_reads(1, S_PVB, 3072)
            if chunks: chunks[2]()
            self.pv_mfmas(0, 7)
            if chunks: chunks[3]()
            self.pv_mfmas(1, 0)
            if close: close()
        a(f"  v_mov_b32 v{T0}, {FLAG_LDS}\n  ds_read_b32 v{T1}, v{T0}")
        self.pv_reads(0, None, 0, 0)
        a(f"  s_waitcnt lgkmcnt(7)\n  v_readfirstlane_b32 s62, v{T1}\n  s_cmp_lg_u32 s62, 0\n  s_cbranch_scc1 L_slow1")
        if self.cfg.pvfuse:
            plain, join = self.lab("pvplain"), self.lab("pvjoin")
            a(f"  s_cmp_ge_u32 s{S_WAVE}, 6\n  s_cbranch_scc1 {plain}")
            body(*self.hold_chunks())
            a(f"  s_branch {join}\n{plain}:")
            body(None, None)
            a(f"{join}:")
        else:
            body(None, None)

    def call_batch(self, T, w0, slot0, pair_add, last):
        self.a(f"  s_mov_b32 s{S_T}, {T}\n  s_mov_b32 s{S_W0}, {w0}\n  s_mov_b32 s{S_SB}, {slot0}\n  s_add_u32 s{S_PB}, s{S_P0}, {pair_add}\n  s_mov_b32 s{S_LAST}, {int(last)}")
        self.a(f"  s_mov_b32 s{S_SST}, {STAT + pair_add*256}")
        self.a(f"  s_call_b64 s[{S_LINK}:{S_LINK+1}], L_batch")

    def streamer(self):
        a = self.a; cfg = self.cfg; d = cfg.depth
        CALL = f"  s_call_b64 s[{S_LINK}:{S_LINK+1}], "
        a("  s_waitcnt lgkmcnt(0)")
        srd(a, R_A, P_F0, F0_BYTES); srd(a, R_B, P_F1, F1_BYTES)
        a(f"  s_cmp_ge_u32 s{S_WAVE}, 6\n  s_cbranch_scc1 L_sgather")
        a(f"  s_cmp_ge_u32 s{S_WAVE}, 3\n  s_cselect_b32 s60, 1, 0\n  s_mul_i32 s62, s60, 3\n  s_sub_u32 s61, s{S_WAVE}, s62")
        a(f"  s_mul_i32 s{S_QBASE}, s{S_IDX}, {2*NPAIR}\n  s_add_u32 s{S_QBASE}, s{S_QBASE}, s60\n  s_lshl_b32 s61, s61, 8")
        a("  v_and_b32 v240, 15, v0\n  v_lshrrev_b32 v241, 4, v0\n  v_lshl_add_u32 v242, v240, 4, s61")
        a(f"  v_mul_u32_u24 v243, 768, v241\n  v_add_u32 v{self.V_OFF1}, v242, v243\n  v_lshl_add_u32 v{self.V_OFF0}, v243, 1, v242")
        a(f"  s_mov_b32 s{S_K}, 0\n  s_mov_b32 s{S_QMASK}, 0x11111111\n  s_mov_b32 s{S_QMASK+1}, 0x11111111")
        def first_loads(d):
            self.task_bases(SETA, 0, False)
            for x in range(min(d, 5)): self.issue_piece(SETA, 0, x)
            self.task_bases(SETB, d // 5, False)
        two = cfg.dlate != d
        def both(f):
            if not two:
                f(d); return
            l1, l2 = self.lab("dl"), self.lab("dj")
            a(f"  s_and_b32 s62, s2, 7\n  s_cmp_ge_u32 s62, {cfg.xlate}\n  s_cbranch_scc1 {l1}")
            f(d)
            a(f"  s_branch {l2}\n{l1}:")
            f(cfg.dlate)
            a(f"{l2}:")
        assert d <= 5 and cfg.dlate <= 5
        if not cfg.late: both(first_loads)
        a(f"  s_mul_i32 s60, s60, {SLOT}\n  s_add_u32 s60, s60, s61")
        srd(a, R_WS, P_WS, WS_BYTES); srd(a, R_DBG, P_DBG, 256)
        a("  v_and_b32 v240, 15, v0\n  v_lshrrev_b32 v241, 4, v0\n  v_and_b32 v242, 1, v241\n  v_lshlrev_b32 v242, 3, v242\n  v_xor_b32 v242, v240, v242")
        a(f"  v_mul_u32_u24 v243, 3072, v241\n  v_add_u32 v243, s60, v243")
        for t in range(4):
            a(f"  v_xor_b32 v244, {2*t}, v242\n  v_lshl_add_u32 v{self.V_WA[t]}, v244, 4, v243")
        a(f"  v_bfe_u32 v242, v0, 3, 1\n  v_lshlrev_b32 v242, 6, v242\n  v_bfe_u32 v243, v0, 2, 1\n  v_lshl_add_u32 v243, v241, 2, v243\n  v_lshl_add_u32 v242, v243, 2, v242")
        a(f"  s_cmp_ge_u32 s{S_WAVE}, 3\n  s_cselect_b32 s62, 128, 0\n  s_add_u32 s62, s62, {STAT}\n  v_add_u32 v{self.V_SA}, s62, v242")
        a("  s_barrier")
        self.stream_consts()
        if cfg.late: both(first_loads)
        if cfg.streamonly:
            for k in range(9):
                a(CALL + f"L_fuse{k & 1}")
                if k == 5: self.stamp(3)
            self.stamp(7); self.stamp(8)
            a("  s_branch L_sdone")
        def phase1(dd):
            sfx = "" if dd == d else "L"
            for k in range(6):
                if k == cfg.trig_a: a("  s_barrier")
                if k == cfg.trig_b: a("  s_barrier")
                a(CALL + f"L_fuse{sfx}{k & 1}")
            if cfg.trig_a >= 6: a("  s_barrier")
            if cfg.trig_b >= 6: a("  s_barrier")
            if dd < 5:
                self.task_bases(SETA, 6, False)
                for x in range(30 + dd, 35): self.issue_piece(SETA, 0, x % 5)
        both(phase1)
        assert not (cfg.pvfuse and (cfg.prefuse or not cfg.zref or cfg.ext7 != 1 or cfg.ext8 != 1))
        self.stamp(3)
        if cfg.prefuse: a(CALL + "L_fuseH")
        if cfg.ext7 == 0:
            self.task_bases(SETA, 7, False)
            for x in range(5): self.issue_piece(SETA, 1, x)
        a("  s_waitcnt lgkmcnt(0)")
        a("  s_branch L_sb0")
        a("L_sgather:")
        if cfg.streamonly == 3:
            pass
        elif cfg.streamonly:
            srd(a, R_WS, P_WS, WS_BYTES)
            for i in range(4): a(f"  v_mov_b32 v{20+i}, 0")
            a("  s_barrier\n  s_branch L_sdone")
        for r in (self.V_OFF1, self.V_OFF0, self.V_SA) + self.V_WA: a(f"  v_mov_b32 v{r}, 0")
        for i in range(4): a(f"  v_mov_b32 v{20+i}, 0")
        a(f"  v_lshlrev_b32 v24, 4, v0\n  v_add_u32 v24, {STAT}, v24\n  ds_write_b128 v24, v[20:23]\n  ds_write_b128 v24, v[20:23] offset:1024")
        a(f"  v_cmp_gt_u32 vcc, {(2320 - 2048) // 16}, v0\n  s_and_saveexec_b64 s[64:65], vcc")
        a("  ds_write_b128 v24, v[20:23] offset:2048\n  s_mov_b64 exec, s[64:65]\n  s_waitcnt lgkmcnt(0)\n  s_barrier")
        a(f"  s_mov_b32 s{S_QBASE}, 0\n  s_mov_b32 s{S_K}, 0\n  s_mov_b32 s{S_QMASK}, 0\n  s_mov_b32 s{S_QMASK+1}, 0")
        for r in range(3): a(f"  s_mov_b32 s{SETA+r}, 0\n  s_mov_b32 s{SETB+r}, 0")
        srd(a, R_WS, P_WS, WS_BYTES); srd(a, R_DBG, P_DBG, 256)
        a(f"  s_cmp_eq_u32 s{S_WAVE}, 7\n  s_cbranch_scc1 L_sw7")
        a(f"  buffer_load_dword v17, v{self.V_OFF1}, {sr(R_WS)}, 0 offen offset:{NONCE_OFF} sc1")
        a(f"  v_mov_b32 v18, {GO_OFF}")
        self.stream_consts()
        a(f"  s_waitcnt vmcnt(0)\n  v_add_u32 v17, 1, v17\n  v_mov_b32 v{self.V_T0}, {NONCE_LDS}\n  ds_write_b32 v{self.V_T0}, v17\n  v_readfirstlane_b32 s{S_NONCE}, v17")
        if cfg.streamonly != 3: a("  s_barrier")
        a(f"  buffer_load_dword v16, v18, {sr(R_WS)}, 0 offen sc1")
        if cfg.streamonly != 3: a("  s_barrier")
        self.wait_flags(16, 18, first_issued=True)
        self.stamp(1)
        a(f"  s_mov_b32 s62, {RQK_OFF}")
        if cfg.kdelay: a(f"  s_sleep {cfg.kdelay}")
        self.gather_frags(12, self.V_QK, self.V_L16, 62, self.V_T0, "qk")
        if cfg.gdiag:
            a(f"  s_mov_b32 s{STAMP0+4}, s{S_SPIN}")
            self.stamp(5)
        for j in range(12): a(f"  ds_write_b128 v{self.V_PADDR}, {vr(self.V_QK+4*j)} offset:{j*1024}")
        SQ4 = self.V_SQ4
        for j in range(12):
            for i in range(4):
                a(f"  v_dot2_f32_bf16 v{SQ4+i}, v{self.V_QK+4*j+i}, v{self.V_ONES}, {'0' if j == 0 else 'v%d' % (SQ4+i)}")
        self.pk("v_pk_add_f32", SQ4, SQ4, SQ4 + 2)
        a(f"  v_add_f32 v{self.V_QS}, v{SQ4}, v{SQ4+1}")
        self.allred_g(self.V_QS, self.V_T0, "v_add_f32")
        a(f"  v_and_b32 v{self.V_T0}, 15, v0\n  v_lshlrev_b32 v{self.V_T0}, 2, v{self.V_T0}\n  v_add_u32 v{self.V_T0}, {QS_LDS}, v{self.V_T0}\n  ds_write_b32 v{self.V_T0}, v{self.V_QS}")
        a("  s_waitcnt lgkmcnt(0)")
        self.stamp(3)
        if cfg.streamonly == 3: a("  s_branch L_sdone")
        a("  s_branch L_sb0")
        a("L_sw7:")
        if cfg.streamonly == 3: a("  s_branch L_sdone")
        self.stream_consts()
        a("  s_waitcnt vmcnt(0)\n  s_barrier\n  s_barrier")
        a("L_sb0:\n  s_barrier")
        a(f"  v_and_b32 v{self.V_T2}, 15, v0\n  v_lshlrev_b32 v{self.V_T2}, 2, v{self.V_T2}\n  v_add_u32 v{self.V_T2}, {QS_LDS}, v{self.V_T2}")
        a(f"  v_mov_b32 v{self.V_T0}, {NONCE_LDS}\n  ds_read_b32 v{self.V_T1}, v{self.V_T0}\n  ds_read_b32 v{self.V_QS}, v{self.V_T2}")
        for j in range(12): a(f"  ds_read_b128 {vr(self.V_QK+4*j)}, v{self.V_PADDR} offset:{j*1024}")
        a(f"  s_mul_i32 s{S_P0}, s{S_IDX}, {NPAIR}")
        for r in range(4): a(f"  v_mov_b32 v{self.V_LT+r}, 0")
        a(f"  s_waitcnt lgkmcnt(0)\n  v_readfirstlane_b32 s{S_NONCE}, v{self.V_T1}")
        if cfg.zref: a("  s_barrier")
        sk = self.lab("noext")
        a(f"  s_cmp_ge_u32 s{S_WAVE}, 6\n  s_cbranch_scc1 {sk}")
        if cfg.ext7 == 1:
            self.task_bases(SETA, 7, False)
            for x in range(5): self.issue_piece(SETA, 1, x)
        if cfg.ext8 == 0:
            self.task_bases(SETB, 8, False)
            for x in range(5): self.issue_piece(SETB, 2, x)
        a(f"{sk}:")
        self.stamp(4)
        if cfg.zref:
            a(f"  s_mov_b32 s{S_LOW}, {f32(LOW_LIMIT)}\n  v_mov_b32 v{self.V_M}, 0")
            a(f"  s_mul_i32 s{S_TB}, s{S_WAVE}, {SLOT}\n  s_lshl_b32 s62, s{S_WAVE}, 7\n  s_add_u32 s{S_STA}, s62, {STAT}")
            a(f"  s_lshr_b32 s62, s{S_WAVE}, 1\n  s_add_u32 s{S_PAIR}, s62, s{S_P0}")
            a(f"  s_lshl_b32 s62, s62, 10\n  s_and_b32 s63, s{S_WAVE}, 1\n  s_lshl_b32 s63, s63, 3\n  s_add_u32 s{S_POFF}, s62, s63")
            a(CALL + "L_sp")
            if cfg.ext8 == 2:
                sk = self.lab("noe8")
                a(f"  s_cmp_ge_u32 s{S_WAVE}, 6\n  s_cbranch_scc1 {sk}")
                self.task_bases(SETB, 8, False)
                for x in range(5): self.issue_piece(SETB, 2, x)
                a(f"{sk}:")
            a("  s_waitcnt lgkmcnt(0)\n  s_barrier")
            self.pv_first()
            a("L_safter1:")
        else:
            self.call_batch(8, 0, 0, 0, False)
        a(f"  s_mov_b32 s{S_LOW}, {f32(-3.0e38)}")
        a("  s_barrier")
        if not cfg.gdiag: self.stamp(5)
        a(f"  s_cmp_ge_u32 s{S_WAVE}, 6\n  s_cbranch_scc1 L_s67")
        if cfg.ext8 == 1:
            self.task_bases(SETB, 8, False)
            if cfg.late8:
                a(f"  s_and_b32 s62, s2, 4\n  s_cmp_lg_u32 s62, 0\n  s_cselect_b32 s{SETB}, 0x80000000, s{SETB}\n  s_cselect_b32 s{SETB+1}, 0x80000000, s{SETB+1}\n  s_cselect_b32 s{SETB+2}, 0x80000000, s{SETB+2}")
            for x in range(5): self.issue_piece(SETB, 2, x)
        self.fstamp(0)
        if cfg.prefuse or cfg.pvfuse:
            b = self.V_BUF[0]
            for t in range(4): a(f"  ds_write_b128 v{self.V_WA[t]}, {vr(b+4+4*t)} offset:{t*768}")
            for t in range(4): a(f"  v_add_u32 v{self.V_WA[t]}, 24576, v{self.V_WA[t]}")
        else:
            a(CALL + "L_fuseR0")
        self.fstamp(1)
        a(CALL + "L_fuseR1")
        self.fstamp(2)
        if cfg.late8:
            sk8 = self.lab("skip8")
            a(f"  s_and_b32 s62, s2, 4\n  s_cmp_lg_u32 s62, 0\n  s_cbranch_scc1 {sk8}")
            a(CALL + "L_fuseR2")
            a(f"{sk8}:\n  s_waitcnt vmcnt(0)")
        else:
            a(CALL + "L_fuseR2")
        self.fstamp(3)
        a("  s_branch L_sx")
        a("L_s67:")
        for i in range(2):
            a(f"  s_and_b32 s63, s{S_WAVE}, 1\n  s_add_u32 s62, s63, {8 + 2*i}\n  s_mul_i32 s{S_TB}, s62, {SLOT}")
            a(f"  s_lshl_b32 s62, s62, 7\n  s_add_u32 s{S_STA}, s62, {STAT}\n  s_add_u32 s{S_PAIR}, s{S_P0}, {4 + i}")
            a(f"  s_lshl_b32 s63, s63, 3\n  s_add_u32 s{S_POFF}, s63, {i*1024}")
            a(CALL + "L_sp")
        a("L_sx:")
        self.publish_setup()
        a("  s_waitcnt lgkmcnt(0)\n  s_barrier")
        if not cfg.gdiag: self.stamp(2)
        sk = self.lab("nosp")
        a(f"  s_cmp_ge_u32 s{S_WAVE}, 6\n  s_cbranch_scc1 {sk}")
        a(f"  s_mul_i32 s{S_TB}, s{S_WAVE}, {SLOT}\n  s_lshl_b32 s62, s{S_WAVE}, 7\n  s_add_u32 s{S_STA}, s62, {STAT + 12*128}")
        a(f"  s_lshr_b32 s62, s{S_WAVE}, 1\n  s_add_u32 s{S_PAIR}, s62, s{S_P0}\n  s_add_u32 s{S_PAIR}, s{S_PAIR}, 6")
        a(f"  s_lshl_b32 s62, s62, 10\n  s_and_b32 s63, s{S_WAVE}, 1\n  s_lshl_b32 s63, s63, 3\n  s_add_u32 s62, s62, s63\n  s_add_u32 s{S_POFF}, s62, 2048")
        a(CALL + "L_sp")
        a(f"{sk}:")
        MXV = self.V_MXV
        self.pk("v_pk_add_f32", MXV, self.V_L2, self.V_LT); self.pk("v_pk_add_f32", MXV + 2, self.V_AM2, self.V_AT)
        self.red_write(MXV, MXV + 2, MXV + 6)
        a("  s_waitcnt lgkmcnt(0)")
        if not cfg.gdiag: self.stamp(1)
        a("  s_barrier")
        self.stamp(6)
        self.pv_final()
        a("L_spub:")
        self.stamp(7)
        self.publish()
        self.cstamp(8)
        self.stamp(8)
        if cfg.cut >= 1: a("  s_branch L_sdone")
        self.reducer_index()
        a(f"  s_cmp_ge_u32 s{S_RHO}, 128\n  s_cbranch_scc1 L_sdone")
        self.reducer()
        a("L_sdone:")
        self.stamp(9); self.stamp_flush((5, 6, 8, (0, 1, 3, 5, 6, 7, 8, 9)))
        a("  s_endpgm")
        if cfg.zref:
            a("L_slow1:\n  s_waitcnt lgkmcnt(0)")
            a(f"  v_mov_b32 v{self.V_M}, 0xff800000")
            for r in range(4): a(f"  v_mov_b32 v{self.V_LT+r}, 0")
            self.call_batch(8, 0, 0, 0, False)
            if cfg.pvfuse:
                a(f"  s_cmp_ge_u32 s{S_WAVE}, 6\n  s_cbranch_scc1 L_safter1")
                a(CALL + "L_fuseH")
            a("  s_branch L_safter1")
        a("L_slow:\n  s_waitcnt lgkmcnt(0)")
        self.call_batch(4, 4, 8, 4, False)
        self.call_batch(6, 0, 0, 6, True)
        self.sums_read(); self.sums_math()
        a("  s_branch L_spub")
        self.sp_sub(); self.sphase_sub(); self.batch_sub()
        self.fuse_sub(1, 10, "L_fuseR1", "drain"); self.fuse_sub(2, 5, "L_fuseR2", "drain")
        if cfg.pvfuse: self.fuse_sub(0, 10, "L_fuseH", "hold")
        elif cfg.prefuse: self.fuse_sub(0, 5, "L_fuseH", "hold")
        else: self.fuse_sub(0, 15, "L_fuseR0", "drain")
        self.fuse_sub(0, d, "L_fuse0"); self.fuse_sub(1, d, "L_fuse1")
        if cfg.dlate != d: self.fuse_sub(0, cfg.dlate, "L_fuseL0"); self.fuse_sub(1, cfg.dlate, "L_fuseL1")

    def publish_setup(self):
        a = self.a
        T0, T1, T2 = self.V_T0, self.V_T1, self.V_T2
        PA0, TAGB = self.V_PUB, self.V_PUB + 1
        a(f"  v_and_b32 v{T0}, 7, v0\n  v_lshlrev_b32 v{T0}, 3, v{T0}\n  v_add_u32 v{T0}, s{S_WAVE}, v{T0}\n  s_mov_b32 s62, {PART_STRIDE}\n  v_mul_lo_u32 v{T0}, v{T0}, s62")
        a(f"  v_bfe_u32 v{T1}, v0, 3, 1\n  v_lshl_add_u32 v{T0}, v{T1}, 6, v{T0}\n  v_lshrrev_b32 v{T1}, 4, v0\n  v_lshl_add_u32 v{PA0}, v{T1}, 4, v{T0}")
        a(f"  s_mov_b32 s62, {KEYC}\n  v_mul_lo_u32 v{T1}, v{T1}, s62\n  v_add_u32 v{TAGB}, s{S_NONCE}, v{T1}")
        a(f"  v_and_b32 v{T0}, 15, v0\n  v_lshlrev_b32 v{T0}, 6, v{T0}\n  v_bfe_u32 v{T1}, v0, 4, 1\n  v_lshl_add_u32 v{T0}, v{T1}, 2, v{T0}")
        a(f"  s_lshl_b32 s62, s{S_WAVE}, 3\n  s_add_u32 s62, s62, {RED}\n  v_add_u32 v{self.V_PUB+2}, s62, v{T0}")
        a(f"  v_and_b32 v{T0}, 15, v0\n  v_lshlrev_b32 v{T0}, 6, v{T0}\n  v_add_u32 v{self.V_PUB+3}, {RED}, v{T0}")

    def publish(self):
        a = self.a; cfg = self.cfg
        A, ACC, R = self.V_A, self.V_ACC, self.V_SR
        PA0, TAGB = self.V_PUB, self.V_PUB + 1
        UA, UB, TB = A + 24, A + 28, A + 32
        a(f"  s_lshl_b32 s62, s{S_IDX}, 7\n  s_add_u32 s62, s62, {PART_OFF}\n  s_add_u32 s63, s62, {64*PART_STRIDE}")
        a(f"  v_mov_b32 v{UA+3}, s{S_NONCE}\n  v_xor_b32 v{UB+3}, v{R+6}, v{TAGB}")
        for i in range(0, 12, 2): self.pk("v_pk_fma_f32", ACC + i, ACC + i, R + 2, R + 4, bc=(1, 2), neg=(2,))
        for i in range(3): a(f"  v_cvt_pk_f16_f32 v{UA+i}, v{ACC+2*i}, v{ACC+2*i+1}")
        for i in range(3): a(f"  v_cvt_pk_f16_f32 v{UB+i}, v{ACC+6+2*i}, v{ACC+7+2*i}")
        for i in range(4): a(f"  v_mov_b32 v{TB+i}, v{UB+i}")
        for i in range(3): a(f"  v_mov_b32_dpp v{UB+i}, v{UA+i} row_ror:8 row_mask:0xf bank_mask:0x3")
        a(f"  v_mov_b32_dpp v{UB+3}, v{UA+3} quad_perm:[0,1,2,3] row_mask:0xf bank_mask:0x3")
        for i in range(4): a(f"  v_mov_b32_dpp v{UA+i}, v{TB+i} row_ror:8 row_mask:0xf bank_mask:0xc")
        a(f"  buffer_store_dwordx4 {vr(UA)}, v{PA0}, {sr(R_WS)}, s62 offen sc1")
        a(f"  buffer_store_dwordx4 {vr(UB)}, v{PA0}, {sr(R_WS)}, s63 offen sc1")

    def reducer_index(self):
        a = self.a; cfg = self.cfg
        if cfg.redsel == 0:
            a(f"  s_mov_b32 s{S_RHO}, s{S_IDX}")
            return
        assert cfg.hnx == 4 and cfg.hx0 == 0
        a("  s_and_b32 s60, s2, 7\n  s_lshr_b32 s61, s2, 3")
        a("  s_and_b32 s62, s60, 3\n  s_cmp_ge_u32 s60, 4\n  s_cselect_b32 s63, 1, 0")
        a("  s_lshl_b32 s64, s61, 2\n  s_add_u32 s64, s64, s62")
        a("  s_sub_u32 s65, s64, 24")
        if cfg.redsel == 1:
            a(f"  s_add_u32 s64, s64, 104\n  s_cmp_eq_u32 s63, 0\n  s_cselect_b32 s{S_RHO}, s65, s64")
        else:
            a(f"  s_add_u32 s65, s65, 124\n  s_cmp_eq_u32 s63, 0\n  s_cselect_b32 s{S_RHO}, s65, s64")

    def reducer_addr(self):
        a = self.a
        AD, T0, T1, VM, SA, X, Y, KEY = self.RV
        MASK = 40
        a(f"  v_lshrrev_b32 v{T0}, 3, v0\n  s_lshl_b32 s62, s{S_WAVE}, 5\n  v_add_u32 v{VM}, s62, v{T0}")
        a(f"  v_and_b32 v{T1}, 7, v0\n  v_lshlrev_b32 v{T1}, 4, v{T1}\n  s_mov_b32 s62, {NS}")
        for it in range(4):
            a(f"  v_add_u32 v{T0}, {8*it}, v{VM}\n  v_cmp_gt_u32 s[{MASK+2*it}:{MASK+2*it+1}], s62, v{T0}\n  v_cndmask_b32 v{T0}, 0, v{T0}, s[{MASK+2*it}:{MASK+2*it+1}]")
            a(f"  v_lshl_add_u32 v{AD+it}, v{T0}, 7, v{T1}")

    def reducer_setup(self):
        a = self.a
        AD, T0, T1, VM, SA, X, Y, KEY = self.RV
        a(f"  v_and_b32 v{T0}, 3, v0\n  v_bfe_u32 v{T1}, v0, 2, 1\n  v_mul_u32_u24 v{T0}, v{T0}, v{T1}\n  s_mov_b32 s62, {KEYC}\n  v_mul_lo_u32 v{T0}, v{T0}, s62\n  v_add_u32 v{KEY}, s{S_NONCE}, v{T0}")
        a(f"  v_lshrrev_b32 v{T0}, 4, v0\n  v_and_b32 v{T1}, 1, v{T0}\n  v_lshlrev_b32 v{T1}, 1, v{T1}\n  v_lshrrev_b32 v{X}, 1, v{T0}\n  v_add_u32 v{T1}, v{T1}, v{X}")
        a(f"  v_bfe_u32 v{X}, v0, 2, 1\n  v_mul_u32_u24 v{X}, 3, v{X}\n  v_add_u32 v{T1}, v{T1}, v{X}")
        a(f"  v_lshrrev_b32 v{X}, 1, v{T1}\n  v_lshlrev_b32 v{X}, 4, v{X}\n  v_and_b32 v{T1}, 1, v{T1}\n  v_lshl_add_u32 v{X}, v{T1}, 1, v{X}")
        a(f"  v_and_b32 v{T1}, 3, v0\n  v_lshl_add_u32 v{X}, v{T1}, 2, v{X}")
        a(f"  s_and_b32 s62, s{S_RHO}, 7\n  s_mul_i32 s62, s62, 48\n  v_add_u32 v{X}, s62, v{X}\n  v_lshlrev_b32 v{SA}, 1, v{X}")
        a(f"  v_lshrrev_b32 v{T1}, 4, v0\n  v_lshlrev_b32 v{T1}, 3, v{T1}\n  v_and_b32 v{X}, 7, v0\n  v_add_u32 v{T1}, v{T1}, v{X}\n  v_lshlrev_b32 v{Y}, 3, v{T1}")
        a(f"  s_lshl_b32 s62, s{S_WAVE}, 8\n  s_add_u32 s62, s62, {RED2}\n  v_add_u32 v{X}, s62, v{Y}\n  v_add_u32 v{Y}, {RED2}, v{Y}")

    RV = (80, 84, 85, 86, 87, 88, 89, 90)

    def reducer(self):
        a = self.a; cfg = self.cfg
        D, E, W, V = 16, 32, 40, 44
        AD, T0, T1, VM, SA, X, Y, KEY = self.RV
        MASK = 40
        BAD = 52
        self.reducer_addr()
        if cfg.rack: a("  s_waitcnt vmcnt(0)")
        if cfg.rdelay: a(f"  s_sleep {cfg.rdelay}")
        if cfg.rdiag: self.stamp(1)
        a(f"  s_mul_i32 s62, s{S_RHO}, {PART_STRIDE}\n  s_add_u32 s62, s62, {PART_OFF}")
        for it in range(4): a(f"  buffer_load_dwordx4 {vr(D+4*it)}, v{AD+it}, {sr(R_WS)}, s62 offen sc1")
        a("  s_mov_b32 s63, s62")
        self.reducer_setup()
        a("  s_mov_b32 s62, s63")
        for it in range(4): a(f"  v_mov_b32 v{E+2*it+1}, 0")
        lp, ck, dn = self.lab("red"), self.lab("redc"), self.lab("redd")
        BADS = (48, 50, 52, 54)
        a(f"  s_mov_b32 s{S_SPIN}, 0\n  s_branch {ck}\n{lp}:")
        for it in range(4):
            sk = self.lab("skipld")
            a(f"  s_mov_b64 exec, s[{BADS[it]}:{BADS[it]+1}]\n  s_cbranch_execz {sk}")
            a(f"  buffer_load_dwordx4 {vr(D+4*it)}, v{AD+it}, {sr(R_WS)}, s62 offen sc1")
            a(f"{sk}:")
        a("  s_mov_b64 exec, -1")
        self.spin_guard(dn)
        a(f"{ck}:\n  s_waitcnt vmcnt(0)")
        for it in range(4): a(f"  v_xor_b32 v{E+2*it}, v{KEY}, v{D+4*it+3}")
        for it in range(4): a(f"  v_mov_b32_dpp v{E+2*it+1}, v{E+2*it} quad_perm:[0,0,0,0] row_mask:0xf bank_mask:0xa")
        for it in range(4): a(f"  v_cmp_ne_u32 s[{BADS[it]}:{BADS[it]+1}], v{E+2*it}, v{E+2*it+1}")
        a(f"  s_or_b64 s[60:61], s[48:49], s[50:51]\n  s_or_b64 vcc, s[52:53], s[54:55]\n  s_or_b64 s[60:61], s[60:61], vcc\n  s_cbranch_scc0 {dn}")
        if cfg.selpoll == 2:
            for it in range(4): a(f"  v_xor_b32 v{W+it}, v{E+2*it}, v{E+2*it+1}")
            for ctrl in ("row_half_mirror", "quad_perm:[1,0,3,2]", "quad_perm:[2,3,0,1]"):
                for it in range(4): a(f"  v_or_b32_dpp v{W+it}, v{W+it}, v{W+it} {ctrl} row_mask:0xf bank_mask:0xf")
            for it in range(4): a(f"  v_cmp_ne_u32 s[{BADS[it]}:{BADS[it]+1}], 0, v{W+it}")
        else:
            for it in range(4):
                b = BADS[it]
                if cfg.selpoll: a(f"  s_cmp_lg_u64 s[{b}:{b+1}], 0\n  s_cselect_b64 s[{b}:{b+1}], -1, 0")
                else: a(f"  s_mov_b64 s[{b}:{b+1}], -1")
        if cfg.rsleep: a(f"  s_sleep {cfg.rsleep}")
        a(f"  s_branch {lp}")
        a(f"{dn}:\n  s_waitcnt vmcnt(0)")
        if cfg.rdiag:
            self.stamp(2)
            a(f"  s_mov_b32 s{STAMP0+6}, s{S_SPIN}")
        for it in range(4): a(f"  v_mov_b32_dpp v{E+2*it}, v{E+2*it} row_shl:4 row_mask:0xf bank_mask:0x5")
        a(f"  v_mov_b32 v{T1}, 0xff800000")
        for it in range(4):
            a(f"  v_cndmask_b32 v{E+2*it}, v{T1}, v{E+2*it}, s[{MASK+2*it}:{MASK+2*it+1}]")
        a(f"  v_max3_f32 v{T0}, v{E}, v{E+2}, v{E+4}\n  v_max_f32 v{T0}, v{T0}, v{E+6}")
        a(f"  v_max_f32_dpp v{T0}, v{T0}, v{T0} row_ror:8 row_mask:0xf bank_mask:0xf")
        self.allred_g(T0, T1, "v_max_f32")
        for it in range(4): a(f"  v_sub_f32 v{W+it}, v{E+2*it}, v{T0}")
        for it in range(4): a(f"  v_exp_f32 v{W+it}, v{W+it}")
        a(f"  s_lshl_b32 s62, s{S_WAVE}, 2\n  s_add_u32 s62, s62, {MXW}\n  v_mov_b32 v{T1}, s62\n  ds_write_b32 v{T1}, v{T0}")
        for it in range(4):
            for q in range(3):
                c0 = "0" if it == 0 else f"v{V+2*q}"; c1 = "0" if it == 0 else f"v{V+2*q+1}"
                a(f"  v_fma_mix_f32 v{V+2*q}, v{D+4*it+q}, v{W+it}, {c0} op_sel_hi:[1,0,0]")
                a(f"  v_fma_mix_f32 v{V+2*q+1}, v{D+4*it+q}, v{W+it}, {c1} op_sel:[1,0,0] op_sel_hi:[1,0,0]")
        self.pk("v_pk_add_f32", W, W, W + 2)
        a(f"  v_add_f32 v{V+6}, v{W}, v{W+1}\n  v_mov_b32 v{V+7}, 0")
        for x, y in ((0, 2), (1, 3), (4, 6), (5, 7)): a(f"  v_permlane32_swap_b32 v{V+x}, v{V+y}")
        for x, y in ((0, 2), (1, 3), (4, 6), (5, 7)): a(f"  v_add_f32 v{V+x}, v{V+x}, v{V+y}")
        for x, y in ((0, 4), (1, 5)): a(f"  v_permlane16_swap_b32 v{V+x}, v{V+y}")
        for x, y in ((0, 4), (1, 5)): a(f"  v_add_f32 v{V+x}, v{V+x}, v{V+y}")
        for x in (0, 1): a(f"  v_add_f32_dpp v{V+x}, v{V+x}, v{V+x} row_ror:8 row_mask:0xf bank_mask:0xf")
        a(f"  ds_write_b64 v{X}, {vr(V,2)}\n  s_waitcnt lgkmcnt(0)")
        if cfg.rdiag: self.stamp(4)
        a("  s_barrier")
        if cfg.rdiag: self.stamp(5)
        a(f"  s_cmp_lg_u32 s{S_WAVE}, 0\n  s_cbranch_scc1 L_sdone")
        a(f"  v_mov_b32 v{T1}, {MXW}\n  ds_read_b128 {vr(W)}, v{T1}\n  ds_read_b128 {vr(W+4)}, v{T1} offset:16")
        for w in range(8): a(f"  ds_read_b64 {vr(D+2*w,2)}, v{Y} offset:{256*w}")
        a(f"  s_lshr_b32 s63, s{S_RHO}, 3\n  s_mul_i32 s63, s63, 768\n  s_add_u32 s63, s63, {RCTX_OFF}")
        a(f"  v_and_b32 v{X}, 8, v0\n  v_cmp_eq_u32 vcc, 0, v{X}\n  v_cmp_gt_u32 s[64:65], 48, v0\n  s_and_b64 s[64:65], vcc, s[64:65]")
        a("  s_waitcnt lgkmcnt(8)")
        a(f"  v_max3_f32 v{T0}, v{W}, v{W+1}, v{W+2}\n  v_max3_f32 v{T1}, v{W+3}, v{W+4}, v{W+5}\n  v_max3_f32 v{T0}, v{T0}, v{W+6}, v{W+7}\n  v_max_f32 v{T0}, v{T0}, v{T1}")
        for w in range(0, 8, 2): self.pk("v_pk_add_f32", W + w, W + w, T0, bc=(1,), neg=(1,))
        for w in range(8): a(f"  v_exp_f32 v{W+w}, v{W+w}")
        a("  s_waitcnt lgkmcnt(0)")
        for w in range(8):
            base = W + (w & ~1)
            sel = "op_sel:[0,1,0] op_sel_hi:[1,1,1]" if w & 1 else "op_sel_hi:[1,0,1]"
            if w == 0: a(f"  v_pk_mul_f32 {vr(E,2)}, {vr(D,2)}, {vr(base,2)} op_sel_hi:[1,0]")
            else: a(f"  v_pk_fma_f32 {vr(E,2)}, {vr(D+2*w,2)}, {vr(base,2)}, {vr(E,2)} {sel}")
        a(f"  v_readlane_b32 s62, v{E}, 48\n  v_rcp_f32 v{T0}, s62")
        self.pk("v_pk_mul_f32", E, E, T0, bc=(1,))
        a(f"  v_cvt_pk_bf16_f32 v{E}, v{E}, v{E+1}\n  v_min_u32 v{E}, -2, v{E}")
        a("  s_mov_b64 exec, s[64:65]")
        a(f"  buffer_store_dword v{E}, v{SA}, {sr(R_WS)}, s63 offen sc1")
        a("  s_mov_b64 exec, -1")

    def img_dma(self, srdr, lds, soff, vs0, vs1):
        for th in range(3):
            for q4 in range(4):
                self.img_dma1(srdr, lds, soff, vs0, vs1, th, q4)
    def img_dma1(self, srdr, lds, soff, vs0, vs1, th, q4, ldsreg=None):
        a = self.a
        if ldsreg is None: a(f"  s_mov_b32 m0, {lds + th*4096 + q4*1024}")
        else: a(f"  s_add_u32 m0, s{ldsreg}, {th*4096 + q4*1024}")
        a(f"  s_add_u32 s62, s{soff}, {q4*3072 + th*256}")
        a(f"  buffer_load_dwordx4 v{vs1 if q4 & 1 else vs0}, {sr(srdr)}, s62 offen{' nt' if self.cfg.hnt else ''} lds")

    def helper(self):
        a = self.a; cfg = self.cfg
        L16, N, Gq, T0, T1, T2, T3 = 1, 2, 3, 4, 5, 6, 7
        FL, TA, DS, VS0, VS1, ZERO = 8, 10, 11, 12, 13, 14
        IA = 16
        QF, AF, TR = 20, 68, 160
        WKF = 116
        D1, D2, D3, ST, ONES = 208, 212, 216, 220, 224
        a("L_helper:")
        if cfg.streamonly == 1:
            a("  s_waitcnt lgkmcnt(0)")
            srd(a, R_WS, P_WS, WS_BYTES)
            a("  s_branch L_hdone")
        a(f"  v_lshlrev_b32 v{L16}, 4, v0\n  v_and_b32 v{N}, 15, v0\n  v_lshrrev_b32 v{Gq}, 4, v0\n  v_mov_b32 v{ZERO}, 0")
        a(f"  v_lshlrev_b32 v{T0}, 1, v{Gq}\n  v_xor_b32 v{T0}, v{N}, v{T0}\n  v_mul_u32_u24 v{T1}, 768, v{Gq}")
        a(f"  v_lshl_add_u32 v{VS0}, v{T0}, 4, v{T1}\n  v_xor_b32 v{T0}, 8, v{T0}\n  v_lshl_add_u32 v{VS1}, v{T0}, 4, v{T1}")
        a(f"  v_lshrrev_b32 v{T0}, 1, v0\n  v_mul_u32_u24 v{T0}, 768, v{T0}\n  v_and_b32 v{T1}, 1, v0\n  v_lshl_add_u32 v{T0}, v{T1}, 4, v{T0}")
        a(f"  s_lshl_b32 s61, s{S_IDX}, 5\n  v_add_u32 v{DS}, s61, v{T0}")
        a(f"  s_lshr_b32 s60, s{S_IDX}, 1\n  s_lshl_b32 s60, s60, 10\n  s_and_b32 s61, s{S_IDX}, 1\n  s_lshl_b32 s61, s61, 9\n  s_add_u32 s60, s60, s61")
        a(f"  v_lshrrev_b32 v{T0}, 1, v{Gq}\n  v_lshlrev_b32 v{T0}, 8, v{T0}\n  v_lshl_add_u32 v{T0}, v{N}, 4, v{T0}")
        a(f"  v_and_b32 v{T1}, 1, v{Gq}\n  v_lshl_add_u32 v{T0}, v{T1}, 3, v{T0}\n  v_add_u32 v{FL}, s60, v{T0}")
        if cfg.hdiag: self.stamp(8)
        a("  s_waitcnt lgkmcnt(0)")
        if cfg.hdiag: self.stamp(2)
        srd(a, R_WS, P_WS, WS_BYTES)
        a(f"  s_cmp_eq_u32 s{S_WAVE}, 1\n  s_cbranch_scc1 L_h1a")
        a(f"  s_cmp_eq_u32 s{S_WAVE}, 0\n  s_cbranch_scc1 L_h0a")
        a("  s_branch L_hb1")
        a("L_h1a:")
        srd(a, R_B, P_WQ, W_BYTES)
        for k in range(12):
            a(f"  s_mov_b32 m0, {H_WQI + k*1024}\n  s_mov_b32 s62, {k*32*768}\n  buffer_load_dwordx4 v{DS}, {sr(R_B)}, s62 offen{' nt' if cfg.hnt else ''} lds")
        a(f"  buffer_load_dword v9, v{ZERO}, {sr(R_WS)}, 0 offen offset:{NONCE_OFF} sc1")
        a(f"  v_mov_b32 v{T0}, -1\n  v_mov_b32 v{T0+1}, -1\n  v_mov_b32 v{T0+2}, -1\n  v_mov_b32 v{T0+3}, -1")
        a(f"  s_lshl_b32 s60, s{S_IDX}, 9\n  s_add_u32 s62, s60, {RQ_OFF}\n  s_add_u32 s63, s60, {RQK_OFF}\n  s_add_u32 s61, s60, {RCTX_OFF}")
        a("  s_mov_b32 s64, -1\n  s_mov_b32 s65, 0\n  s_mov_b64 exec, s[64:65]")
        for r in ("s62", "s63", "s61"): a(f"  buffer_store_dwordx4 {vr(T0)}, v{L16}, {sr(R_WS)}, {r} offen sc1")
        a("  s_mov_b64 exec, -1")
        a("  s_waitcnt vmcnt(4)\n  s_branch L_hb1")
        a("L_h0a:")
        srd(a, R_A, P_Q, Q_BYTES)
        a("  s_mov_b32 s60, 0")
        self.img_dma(R_A, H_QI, 60, VS0, VS1)
        a(f"  buffer_load_dword v15, v{ZERO}, {sr(R_WS)}, 0 offen offset:{NONCE_OFF} sc1")
        a("  s_waitcnt vmcnt(0)\n  s_branch L_hb1")
        a("L_hb1:")
        self.stamp(7)
        T0, T1, T2 = 228, 229, 230
        srd(a, R_DBG, P_DBG, 256); srd(a, R_A, P_Q, Q_BYTES); srd(a, R_D, P_WV, W_BYTES); srd(a, R_F, P_OUT, Q_BYTES)
        a(f"  v_and_b32 v{T0}, 7, v{N}\n  v_lshlrev_b32 v{T0}, 1, v{T0}\n  v_lshlrev_b32 v{T1}, 8, v{N}")
        for m in range(4):
            a(f"  v_add_u32 v{T2}, {4*m}, v{Gq}\n  v_xor_b32 v{T2}, v{T2}, v{T0}\n  v_lshl_add_u32 v{IA+m}, v{T2}, 4, v{T1}")
        a(f"  v_lshrrev_b32 v{T0}, 2, v{N}\n  v_lshl_add_u32 v{T0}, v{Gq}, 3, v{T0}\n  v_lshlrev_b32 v{T0}, 5, v{T0}")
        a(f"  v_and_b32 v{T1}, 3, v{N}\n  v_lshl_add_u32 v{TA}, v{T1}, 3, v{T0}")
        for i in range(4): a(f"  v_mov_b32 v{ONES+i}, 0x3f803f80")
        a("  s_barrier")
        T0, T1, T2 = 4, 5, 6
        self.stamp(1)
        if cfg.cut >= 3: a("  s_branch L_hdone")
        a(f"  s_cmp_eq_u32 s{S_WAVE}, 0\n  s_cbranch_scc1 L_h0b")
        n1 = self.lab("notw1")
        a(f"  s_cmp_eq_u32 s{S_WAVE}, 1\n  s_cbranch_scc0 {n1}")
        a(f"  s_waitcnt vmcnt(0)\n  v_add_u32 v9, 1, v9\n  s_lshl_b32 s62, s{S_IDX}, 7\n  s_add_u32 s62, s62, {FLAG_OFF}\n  s_mov_b64 exec, 1")
        a(f"  buffer_store_dword v9, v{ZERO}, {sr(R_WS)}, s62 offen sc1\n  s_mov_b64 exec, -1\n  s_branch L_hb1c\n{n1}:")
        a(f"  s_cmp_eq_u32 s{S_WAVE}, 3\n  s_cbranch_scc1 L_h3b")
        a(f"  s_cmp_eq_u32 s{S_WAVE}, 2\n  s_cbranch_scc0 L_hb1c")
        srd(a, R_C, P_WK, W_BYTES)
        a(f"  s_mul_i32 s60, s{S_IDX}, {16*768}")
        self.img_dma(R_C, H_WKI, 60, VS0, VS1)
        a("  s_branch L_hb1c")
        a("L_h3b:")
        for j in range(12):
            a(f"  ds_read_b128 {vr(QF+4*j)}, v{IA+(j&3)} offset:{H_QI + (j>>2)*4096}")
        for j in range(12):
            a(f"  s_waitcnt lgkmcnt({11-j})")
            for i in range(4):
                a(f"  v_dot2_f32_bf16 v{ST+i}, v{QF+4*j+i}, v{QF+4*j+i}, {'0' if j == 0 else 'v%d' % (ST+i)}")
                a(f"  v_dot2_f32_bf16 v{D3+i}, v{QF+4*j+i}, v{ONES}, {'0' if j == 0 else 'v%d' % (D3+i)}")
        self.pk("v_pk_add_f32", ST, ST, ST + 2); self.pk("v_pk_add_f32", D3, D3, D3 + 2)
        a(f"  v_add_f32 v{ST}, v{ST}, v{ST+1}\n  v_add_f32 v{ST+1}, v{D3}, v{D3+1}")
        a(f"  v_permlane16_swap_b32 v{ST}, v{ST+1}\n  v_add_f32 v{ST}, v{ST}, v{ST+1}")
        a(f"  v_mov_b32 v{ST+1}, v{ST}\n  v_permlane32_swap_b32 v{ST+1}, v{ST}\n  v_add_f32 v{ST}, v{ST}, v{ST+1}")
        a(f"  v_mul_f32 v{ST}, {f32(1.0/384.0)}, v{ST}")
        a(f"  v_mov_b32 v{ST+1}, v{ST}\n  v_mov_b32 v{ST+2}, v{ST}\n  v_permlane16_swap_b32 v{ST+1}, v{ST+2}")
        a(f"  v_fma_f32 v{ST+3}, -v{ST+2}, v{ST+2}, v{ST+1}\n  v_max_f32 v{ST+3}, 0, v{ST+3}\n  v_add_f32 v{ST+3}, {f32(1e-5)}, v{ST+3}\n  v_rsq_f32 v{ST+3}, v{ST+3}")
        a(f"  v_lshlrev_b32 v{T0}, 3, v{N}\n  v_add_u32 v{T0}, {H_QS}, v{T0}\n  ds_write_b64 v{T0}, {vr(ST+2,2)}\n  s_waitcnt lgkmcnt(0)")
        a("L_hb1c:\n  s_barrier")
        a("  s_branch L_hb2")
        a("L_h0b:")
        a(f"  v_add_u32 v15, 1, v15")
        self.flag_addr(T3)
        a(f"  v_readfirstlane_b32 s{S_NONCE}, v15\n  buffer_load_dword v9, v{T3}, {sr(R_WS)}, 0 offen sc1")
        for j in range(12):
            a(f"  ds_read_b128 {vr(QF+4*j)}, v{IA+(j&3)} offset:{H_QI + (j>>2)*4096}")
        def tr(j):
            a(f"  ds_read_b64_tr_b16 {vr(TR+4*j,2)}, v{TA} offset:{H_WQI + j*1024}")
            a(f"  ds_read_b64_tr_b16 {vr(TR+4*j+2,2)}, v{TA} offset:{H_WQI + j*1024 + 128}")
        a("  s_waitcnt lgkmcnt(3)")
        for j in range(6): tr(j)
        for j in range(12):
            left = min(12, j + 6) - j - 1
            a(f"  s_waitcnt lgkmcnt({2*left})")
            if j + 6 < 12: tr(j + 6)
            a(f"  v_mfma_f32_16x16x32_bf16 {vr(D1)}, {vr(TR+4*j)}, {vr(QF+4*j)}, {'0' if j == 0 else vr(D1)}")
            a(f"  v_mfma_f32_16x16x32_bf16 {vr(D2)}, {vr(TR+4*j)}, {vr(ONES)}, {'0' if j == 0 else vr(D2)}")
        a("  s_barrier")
        a(f"  v_lshlrev_b32 v{T0}, 3, v{N}\n  v_add_u32 v{T0}, {H_QS}, v{T0}\n  ds_read_b64 {vr(ST,2)}, v{T0}\n  s_waitcnt lgkmcnt(0)")
        for r in range(4): a(f"  v_fma_f32 v{D1+r}, -v{ST}, v{D2+r}, v{D1+r}")
        for r in range(4): a(f"  v_mul_f32 v{D1+r}, v{ST+1}, v{D1+r}")
        a(f"  v_cvt_pk_bf16_f32 v{D2}, v{D1}, v{D1+1}\n  v_cvt_pk_bf16_f32 v{D2+1}, v{D1+2}, v{D1+3}")
        a(f"  v_min_u32 v{D2}, -2, v{D2}\n  v_min_u32 v{D2+1}, -2, v{D2+1}\n  s_mov_b32 s62, {RQ_OFF}")
        a(f"  buffer_store_dwordx2 {vr(D2,2)}, v{FL}, {sr(R_WS)}, s62 offen sc1")
        self.stamp(2)
        hv = self.lab("haveflags")
        a(f"  s_waitcnt vmcnt(1)\n  v_cmp_ne_u32 vcc, s{S_NONCE}, v9\n  s_cbranch_vccz {hv}")
        self.wait_flags(9, T3)
        a(f"{hv}:\n  s_mov_b32 s62, {RQ_OFF}")
        if cfg.qdelay: a(f"  s_sleep {cfg.qdelay}")
        self.gather_frags(12, AF, L16, 62, T0, "q", sleep=cfg.qsleep)
        self.stamp(3)
        a("  s_barrier")
        for j in range(12):
            a(f"  ds_read_b128 {vr(WKF+4*j)}, v{IA+(j&3)} offset:{H_WKI + (j>>2)*4096}")
        for j in range(12):
            dd = D1 if j % 2 == 0 else D2
            a(f"  s_waitcnt lgkmcnt({11-j})")
            a(f"  v_mfma_f32_16x16x32_bf16 {vr(dd)}, {vr(WKF+4*j)}, {vr(AF+4*j)}, {'0' if j < 2 else vr(dd)}")
        sc = f32(384 ** -0.5 * LOG2E)
        for r in range(4): a(f"  v_add_f32 v{D1+r}, v{D1+r}, v{D2+r}")
        for r in range(4): a(f"  v_mul_f32 v{D1+r}, {sc}, v{D1+r}")
        a(f"  v_cvt_pk_bf16_f32 v{D2}, v{D1}, v{D1+1}\n  v_cvt_pk_bf16_f32 v{D2+1}, v{D1+2}, v{D1+3}")
        a(f"  v_min_u32 v{D2}, -2, v{D2}\n  v_min_u32 v{D2+1}, -2, v{D2+1}\n  s_mov_b32 s62, {RQK_OFF}")
        a(f"  buffer_store_dwordx2 {vr(D2,2)}, v{FL}, {sr(R_WS)}, s62 offen sc1")
        self.stamp(4)
        a("  s_branch L_hwvo")
        a("L_hb2:\n  s_waitcnt vmcnt(0)\n  s_barrier")
        a("L_hwvo:")
        if cfg.cut >= 2: a("  s_branch L_hdone")
        a(f"  s_cmp_eq_u32 s{S_WAVE}, 3\n  s_cbranch_scc0 L_hwv2")
        srd(a, R_E, P_WO, W_BYTES)
        for k in range(12):
            a(f"  s_mov_b32 m0, {H_WOI + k*1024}\n  s_mov_b32 s62, {k*32*768}\n  buffer_load_dwordx4 v{DS}, {sr(R_E)}, s62 offen{' nt' if cfg.hnt else ''} lds")
        a("L_hwv2:")
        a(f"  s_mul_i32 s60, s{S_WAVE}, {48*768}\n  s_mul_i32 s61, s{S_WAVE}, 12288\n  s_add_u32 s61, s61, {H_WV}")
        for th in range(3):
            for q4 in range(4): self.img_dma1(R_D, 0, 60, VS0, VS1, th, q4, ldsreg=61)
        a("  s_waitcnt vmcnt(12)\n  s_barrier")
        for j in range(12):
            a(f"  ds_read_b64_tr_b16 {vr(TR+4*j,2)}, v{TA} offset:{H_WOI + j*1024}")
            a(f"  ds_read_b64_tr_b16 {vr(TR+4*j+2,2)}, v{TA} offset:{H_WOI + j*1024 + 128}")
            if j == 6: a("  s_waitcnt lgkmcnt(0)")
        for m in range(4): a(f"  v_add_u32 v{IA+m}, s61, v{IA+m}")
        a(f"  v_mul_u32_u24 v{T0}, 784, v{N}\n  v_lshl_add_u32 v{T0}, v{Gq}, 3, v{T0}\n  s_mul_i32 s62, s{S_WAVE}, 96\n  s_add_u32 s62, s62, {H_WT}\n  v_add_u32 v{T3}, s62, v{T0}")
        for tau in range(3):
            if tau < 2: a(f"  s_add_u32 s60, s60, {16*768}")
            for th in range(3):
                a(f"  s_waitcnt vmcnt({8 if tau < 2 else 8 - 4*th})")
                for m in range(4): a(f"  ds_read_b128 {vr(WKF+4*m)}, v{IA+m} offset:{th*4096}")
                a("  s_waitcnt lgkmcnt(0)")
                if tau < 2:
                    for q4 in range(4): self.img_dma1(R_D, 0, 60, VS0, VS1, th, q4, ldsreg=61)
                for m in range(4):
                    j = 4 * th + m
                    a(f"  v_mfma_f32_16x16x32_bf16 {vr(D1)}, {vr(WKF+4*m)}, {vr(TR+4*j)}, {'0' if j == 0 else vr(D1)}")
            a(f"  v_cvt_pk_bf16_f32 v{D2}, v{D1}, v{D1+1}\n  v_cvt_pk_bf16_f32 v{D2+1}, v{D1+2}, v{D1+3}")
            a(f"  ds_write_b64 v{T3}, {vr(D2,2)} offset:{tau*32}")
        a("  s_waitcnt lgkmcnt(0)\n  s_barrier")
        self.stamp(5)
        if cfg.cut >= 1: a("  s_branch L_hdone")
        a(f"  s_cmp_lg_u32 s{S_WAVE}, 0\n  s_cbranch_scc1 L_hdone")
        a(f"  v_mul_u32_u24 v{T0}, 784, v{N}\n  v_lshl_add_u32 v{T0}, v{Gq}, 4, v{T0}\n  v_add_u32 v{T0}, {H_WT}, v{T0}")
        for j in range(12): a(f"  ds_read_b128 {vr(WKF+4*j)}, v{T0} offset:{j*64}")
        a(f"  v_mul_u32_u24 v{T3}, 768, v{N}\n  v_lshl_add_u32 v{T3}, v{Gq}, 3, v{T3}\n  s_lshl_b32 s61, s{S_IDX}, 5")
        a(f"  buffer_load_dwordx2 {vr(QF,2)}, v{T3}, {sr(R_A)}, s61 offen")
        a("  s_waitcnt vmcnt(0) lgkmcnt(0)")
        a(f"  v_lshlrev_b32 v{QF+4}, 16, v{QF}\n  v_and_b32 v{QF+5}, 0xffff0000, v{QF}\n  v_lshlrev_b32 v{QF+6}, 16, v{QF+1}\n  v_and_b32 v{QF+7}, 0xffff0000, v{QF+1}")
        a(f"  v_mul_u32_u24 v{T2}, 768, v{N}\n  v_lshl_add_u32 v{T2}, v{Gq}, 4, v{T2}\n  s_mov_b32 s62, {RCTX_OFF}")
        if cfg.c1sleep:
            lp, dn = self.lab("c1"), self.lab("c1d")
            a(f"  s_mov_b32 s{S_SPIN}, 0\n{lp}:\n  buffer_load_dword v{AF}, v{T2}, {sr(R_WS)}, s62 offen sc1")
            self.spin_guard(dn)
            if cfg.call: a(f"  s_waitcnt vmcnt(0)\n  v_cmp_eq_u32 vcc, -1, v{AF}\n  s_cbranch_vccz {dn}\n  s_sleep {cfg.c1sleep}\n  s_branch {lp}\n{dn}:\n  s_waitcnt vmcnt(0)")
            else: a(f"  s_waitcnt vmcnt(0)\n  v_cmp_ne_u32 vcc, -1, v{AF}\n  s_cbranch_vccnz {dn}\n  s_sleep {cfg.c1sleep}\n  s_branch {lp}\n{dn}:\n  s_waitcnt vmcnt(0)")
        if cfg.cdelay: a(f"  s_sleep {cfg.cdelay}")
        self.gather_frags(12, AF, T2, 62, T0, "c", rowmajor=True, sleep=cfg.csleep)
        self.stamp(6)
        for j in range(12):
            dd = D1 if j % 2 == 0 else D2
            c1 = vr(QF+4) if j == 0 else ("0" if j == 1 else vr(dd))
            a(f"  v_mfma_f32_16x16x32_bf16 {vr(dd)}, {vr(WKF+4*j)}, {vr(AF+4*j)}, {c1}")
        for h in (0, 2): self.pk("v_pk_add_f32", D1 + h, D1 + h, D2 + h)
        a(f"  v_cvt_pk_bf16_f32 v{D2}, v{D1}, v{D1+1}\n  v_cvt_pk_bf16_f32 v{D2+1}, v{D1+2}, v{D1+3}")
        a(f"  buffer_store_dwordx2 {vr(D2,2)}, v{T3}, {sr(R_F)}, s61 offen")
        nn = self.lab("nononce")
        a(f"  s_cmp_lg_u32 s{S_IDX}, 0\n  s_cbranch_scc1 {nn}")
        a(f"  buffer_store_dword v15, v{ZERO}, {sr(R_WS)}, 0 offen offset:{NONCE_OFF} sc1\n{nn}:")
        a("L_hdone:")
        self.stamp(9); self.stamp_flush((0, 0, 2, (0, 1, 3, 4, 5, 6)))
        a("  s_endpgm")

    def collector(self):
        a = self.a
        a("L_collect:")
        a(f"  s_cmp_lg_u32 s{S_WAVE}, 0\n  s_cbranch_scc1 L_end\n  s_waitcnt lgkmcnt(0)")
        srd(a, R_WS, P_WS, WS_BYTES)
        a(f"  v_mov_b32 v2, 0\n  buffer_load_dword v3, v2, {sr(R_WS)}, 0 offen offset:{NONCE_OFF} sc1")
        self.flag_addr(4)
        a(f"  s_waitcnt vmcnt(0)\n  v_add_u32 v3, 1, v3\n  v_readfirstlane_b32 s{S_NONCE}, v3")
        self.wait_flags(5, 4)
        a(f"  s_mov_b32 s62, {GO_OFF}\n  s_mov_b64 exec, 1\n  buffer_store_dword v3, v2, {sr(R_WS)}, s62 offen sc1")
        a("  s_endpgm")

    def build(self):
        a = self.a
        hdr = open("standalone__detection_seg_dino__vision.s.ref").read().split("\n")
        for line in hdr:
            if line.startswith("; @launch"): break
            a(line)
        a("; @" + f"launch grid=(256,1,1) block=(512,1,1) lds={LDS_BYTES}")
        a('.amdgcn_target "amdgcn-amd-amdhsa--gfx950"\n.text')
        a(f".globl {KNAME}\n.p2align 8\n.type {KNAME},@function\n{KNAME}:")
        n0 = len(a.L)
        self.prologue(); self.streamer(); self.helper(); self.collector()
        a("L_end:\n  s_endpgm\nL_code_end:")
        body, added = hazard.fix(a.L[n0:])
        a.L = a.L[:n0] + body
        a('.section .rodata,"a"\n.p2align 6')
        a(f".amdhsa_kernel {KNAME}")
        a("  .amdhsa_next_free_vgpr 256\n  .amdhsa_next_free_sgpr 102\n  .amdhsa_accum_offset 256")
        a("  .amdhsa_group_segment_fixed_size 0\n  .amdhsa_kernarg_size 80\n  .amdhsa_user_sgpr_count 2")
        a("  .amdhsa_user_sgpr_kernarg_segment_ptr 1\n  .amdhsa_system_sgpr_workgroup_id_x 1")
        a("  .amdhsa_float_denorm_mode_32 3")
        a(".end_amdhsa_kernel")
        return a.text(), added

def generate(path, **kw):
    cfg = Cfg()
    for k, v in kw.items(): setattr(cfg, k, v)
    text, added = G(cfg).build()
    open(path, "w").write(text)
    return added

if __name__ == "__main__":
    path = sys.argv[1] if len(sys.argv) > 1 else "standalone__detection_seg_dino__vision.s"
    kw = {}
    for x in sys.argv[2:]:
        k, v = x.split("="); kw[k] = eval(v)
    print("nops added:", generate(path, **kw))
```

```python
import sys, struct
from asmlib import Asm
import hazard

KNAME = "standalone__detection_seg_dino__vision_kernel"

NH, NS, NPAIR = 24, 228, 9
F0_BYTES, F1_BYTES, W_BYTES, Q_BYTES = 50331648, 12582912, 294912, 12288
WS_BYTES = 268435456

NONCE_OFF = 0
HINT_OFF = 1024
RQ_OFF, RQK_OFF, RCTX_OFF = 4096, 20480, 36864
GO_OFF = 53248
FLAG_OFF = 49152
LSE_OFF = 65536
PART_OFF = 131072
PART_STRIDE = NS * 128
STAMP_OFF = 8 << 20

SLOT = 12288
STG = 12 * SLOT
TOP = 13 * SLOT
STAT = TOP
NONCE_LDS = TOP + 2304
FLAG_LDS = TOP + 2308
QS_LDS = TOP + 2320
MXW = TOP + 2400
MX = TOP + 2560
RED = TOP + 3072
RED2 = STG + 8192
LDS_BYTES = 163840
H_QI, H_WKI, H_WQI, H_WOI, H_WT, H_WV = 0, 12288, 24576, 36864, 49152, 65536
H_QS = 61952

LAG_LIMIT = 40.0
LOW_LIMIT = -60.0
KEYC = 0x9e3779b1
LOG2E = 1.4426950408889634
def f32(x): return "0x%08x" % struct.unpack("<I", struct.pack("<f", x))[0]

HEADER = """
Cross-attention of 16 queries over 65536 layer-normalised positions, one persistent launch of 256 workgroups.
  out = q + softmax(LN(q) wq wk^T LN(x)^T / sqrt(C)) LN(x) wv wo,  x = bf16(f0 + upsample(f1))
The weights are associated as Qk = LN(q) wq wk^T (16x384) and Wvo = wv wo, so x is read once and never projected.
LN(x) enters through its row statistics: logit = rstd (x.Qk - mean sum(Qk)), context = (sum P' x - sum P' mean) / L.
Roles by workgroup id (placement matters for speed only):
  helpers   (24: ids 0,8,..,184)  Q slice -> all helpers -> Qk slice -> all streamers; Wvo^T slice; final product
  streamers (228)                 nine pairs of 16-position tiles each; the first 128 also reduce one slice of the context
  collector (id 252)              folds the helpers' flags into one word
Streamer: waves 0..5 fuse f0+f1 into bf16 tiles in a ring of 12 LDS slots and accumulate row statistics, wave 6 fetches Qk.
  S^T = X Qk^T per tile, P' = 2^(logit - ref) rstd, context^T += X^T P'^T with the channels split over the eight waves.
  Softmax reference: 0 for the first eight tiles, then unchanged, while every logit stays inside [ref-60, ref+40]
  (lower bound: first eight tiles); any logit outside sends the workgroup to the path with exact running maxima.
  Partial results leave normalised (f16) with their log-sum-exp; the reducers weigh them with the exact global maximum.
Hand-offs through d_ws, all with sc1 stores and sc1 loads:
  nonce  = word 0 of d_ws at entry + 1, read by every role, written back by helper 0 after the last hand-off
  Q, Qk, context: words are set to 0xffffffff by their helper first (flag = nonce once acknowledged), data never equals that
  partial lines: every 16-byte unit carries the nonce (A units) or lse ^ (nonce + g*K) (B units, four must agree)
  Every poll loop is bounded.  s_sleep occurs only as back-off of a consumer that polls lines other workgroups are about
  to write: a line read too early has to be invalidated again, which delays its writer and the next read.
"""

class Cfg:
    nt = True
    stamp = False
    depth = 4
    hx0 = 0
    hnx = 1
    hint = True
    codepf = True
    nostream = False
    dbgstamp = False
    pfrows = 4
    cut = 0
    lite = False
    trig_a = 2
    trig_b = 4
    qsleep = 4
    c1sleep = 6
    lag = True
    prefuse = False
    late = False
    sched = 1
    streamonly = False
    rsleep = 0
    csleep = 0
    ext7 = 1
    ext8 = 1
    zref = True
    redsel = 0
    fdiag = False
    late8 = False
    dlate = 5
    xlate = 3
    pvfuse = False
    rdelay = 34
    rack = False
    cdelay = 16
    qdelay = 0
    kdelay = 0
    call = False
    hdiag = False
    gdiag = False
    rdiag = False
    bdiag_sb = 4
    bdiag = False
    selpoll = 2
    hnt = False

S_WAVE = 3
P_Q, P_F0, P_F1, P_WQ, P_WK, P_WV, P_WO, P_OUT, P_DBG, P_WS = 4, 6, 8, 10, 12, 14, 16, 18, 20, 22
R_A, R_B, R_WS, R_DBG, R_C, R_D, R_E, R_F = 24, 28, 32, 36, 40, 44, 48, 52
S_IDX, S_ONELO, S_ONEHI = 56, 57, 58
S_K, S_QBASE, S_LINK = 66, 67, 68
S_NONCE, S_SPIN = 70, 71
S_TI, S_TB, S_PB, S_BIAS, S_T, S_P0, S_SB, S_W0, S_NP, S_PVB, S_LAST = 72, 73, 74, 75, 76, 77, 78, 79, 80, 81, 59
S_SST = 48
S_STA, S_PAIR, S_POFF = 49, 52, 53
S_LINK2 = 54
S_LOW = 47
S_RHO = 79
S_QMASK = 50
SETA, SETB = 40, 44
STAMP0 = 82
SPIN_CAP = 200000
import os
if os.environ.get('CAP'): SPIN_CAP = int(os.environ['CAP'])

def srd(a, s, ptr, nbytes):
    a(f"  s_mov_b32 s{s}, s{ptr}\n  s_mov_b32 s{s+1}, s{ptr+1}\n  s_mov_b32 s{s+2}, {nbytes}\n  s_mov_b32 s{s+3}, 0x20000")
def vr(b, n=4): return f"v[{b}:{b+n-1}]"
def sr(b, n=4): return f"s[{b}:{b+n-1}]"

class G:
    def __init__(self, cfg):
        self.cfg = cfg; self.a = Asm(); self.uid = 0
    def lab(self, name):
        self.uid += 1
        return f"L_{name}_{self.uid}"
    def stamp(self, i):
        if self.cfg.fdiag: return
        if self.cfg.lite and i not in (0, 9): return
        if self.cfg.stamp and not self.cfg.bdiag:
            self.a(f"  s_memrealtime s[{STAMP0+2*i}:{STAMP0+2*i+1}]\n  s_waitcnt lgkmcnt(0)")
    def fstamp(self, i):
        if self.cfg.fdiag: self.a(f"  s_memtime s[{STAMP0+2*i}:{STAMP0+2*i+1}]\n  s_waitcnt lgkmcnt(0)")
    def cstamp(self, i):
        if self.cfg.bdiag:
            l = self.lab("cs")
            self.a(f"  s_cmp_lg_u32 s{S_SB}, {self.cfg.bdiag_sb}\n  s_cbranch_scc1 {l}\n  s_memtime s[{STAMP0+2*i}:{STAMP0+2*i+1}]\n  s_waitcnt lgkmcnt(0)\n{l}:")
    def stamp_init(self):
        if self.cfg.stamp:
            for i in range(20): self.a(f"  s_mov_b32 s{STAMP0+i}, 0")
    def stamp_flush(self, dbg=None):
        if not self.cfg.stamp: return
        a = self.a
        if self.cfg.dbgstamp and dbg:
            who, wave, first, which = dbg
            sk = self.lab("nodbg")
            a(f"  s_cmp_lg_u32 s{S_IDX}, {who}\n  s_cbranch_scc1 {sk}\n  s_cmp_lg_u32 s{S_WAVE}, {wave}\n  s_cbranch_scc1 {sk}")
            srd(a, R_DBG, P_DBG, 256)
            a("  v_mov_b32 v1, 0")
            for i, st in enumerate(which):
                a(f"  v_mov_b32 v2, s{STAMP0+2*st}\n  buffer_store_dword v2, v1, {sr(R_DBG)}, 0 offen offset:{4*(first+i)}\n  s_nop 0")
            a(f"{sk}:")
        if self.cfg.dbgstamp: return
        if self.cfg.lite:
            if dbg[0] != 0: return
            sk = self.lab("nolite")
            a(f"  s_cmp_lg_u32 s{S_WAVE}, 0\n  s_cbranch_scc1 {sk}")
            a("  s_lshl_b32 s60, s2, 3\n  s_lshl_b32 s60, s60, 6")
            a(f"  s_add_u32 s60, s60, {STAMP_OFF}\n  v_mov_b32 v1, 0\n  v_mov_b32 v2, s{STAMP0}\n  v_mov_b32 v3, s{STAMP0+18}")
            a(f"  buffer_store_dword v2, v1, {sr(R_WS)}, s60 offen\n  buffer_store_dword v3, v1, {sr(R_WS)}, s60 offen offset:36\n{sk}:")
            return
        a("  s_lshl_b32 s60, s2, 3\n  s_add_u32 s60, s60, s3\n  s_lshl_b32 s60, s60, 6")
        a(f"  s_add_u32 s60, s60, {STAMP_OFF}\n  v_mov_b32 v1, 0")
        for i in range(10):
            a(f"  v_mov_b32 v2, s{STAMP0+2*i}\n  buffer_store_dword v2, v1, {sr(R_WS)}, s60 offen offset:{4*i}\n  s_nop 0")

    def allred_g(self, x, t, op):
        a = self.a
        a(f"  v_mov_b32 v{t}, v{x}\n  v_permlane16_swap_b32 v{t}, v{x}\n  {op} v{x}, v{t}, v{x}")
        a(f"  v_mov_b32 v{t}, v{x}\n  v_permlane32_swap_b32 v{t}, v{x}\n  {op} v{x}, v{t}, v{x}")
    def valid_check(self, base, n, t, retry):
        a = self.a
        a(f"  v_max3_u32 v{t}, v{base}, v{base+1}, v{base+2}")
        h = n // 2
        a(f"  v_max3_u32 v{t+1}, v{base+h}, v{base+h+1}, v{base+h+2}")
        i, k = 3, h + 3
        while i < h or k < n:
            if i + 1 < h: a(f"  v_max3_u32 v{t}, v{t}, v{base+i}, v{base+i+1}"); i += 2
            elif i < h: a(f"  v_max_u32 v{t}, v{t}, v{base+i}"); i += 1
            if k + 1 < n: a(f"  v_max3_u32 v{t+1}, v{t+1}, v{base+k}, v{base+k+1}"); k += 2
            elif k < n: a(f"  v_max_u32 v{t+1}, v{t+1}, v{base+k}"); k += 1
        a(f"  v_max_u32 v{t}, v{t}, v{t+1}\n  v_cmp_eq_u32 vcc, -1, v{t}\n  s_cbranch_vccnz {retry}")
    def spin_guard(self, done):
        self.a(f"  s_add_u32 s{S_SPIN}, s{S_SPIN}, 1\n  s_cmp_gt_u32 s{S_SPIN}, {SPIN_CAP}\n  s_cbranch_scc1 {done}")
    def flag_addr(self, va):
        self.a(f"  v_min_u32 v{va}, {NH-1}, v0\n  v_lshlrev_b32 v{va}, 7, v{va}\n  v_add_u32 v{va}, {FLAG_OFF}, v{va}")
    def wait_flags(self, vd, va, first_issued=False):
        a = self.a
        lp, ck, dn = self.lab("flg"), self.lab("flgc"), self.lab("flgd")
        a(f"  s_mov_b32 s{S_SPIN}, 0")
        if first_issued: a(f"  s_branch {ck}")
        a(f"{lp}:\n  buffer_load_dword v{vd}, v{va}, {sr(R_WS)}, 0 offen sc1")
        self.spin_guard(dn)
        a(f"{ck}:\n  s_waitcnt vmcnt(0)\n  v_cmp_ne_u32 vcc, s{S_NONCE}, v{vd}\n  s_cbranch_vccnz {lp}")
        a(f"{dn}:\n  s_waitcnt vmcnt(0)")
    def gather_frags(self, nfr, dst, vaddr, off0, t, name, rowmajor=False, sleep=0):
        a = self.a
        lp, dn, l0 = self.lab(name), self.lab(name + "d"), self.lab(name + "0")
        a(f"  s_add_u32 s63, s{off0}, 4096\n  s_add_u32 s64, s{off0}, 8192\n  s_mov_b32 s{S_SPIN}, 0")
        if sleep: a(f"  s_branch {l0}\n{lp}:\n  s_sleep {sleep}\n{l0}:")
        else: a(f"{lp}:")
        for j in range(nfr):
            so = (f"s{off0}", "s63", "s64")[j >> 2]
            if rowmajor: a(f"  buffer_load_dwordx4 {vr(dst+4*j)}, v{vaddr}, {sr(R_WS)}, s{off0} offen offset:{j*64} sc1")
            else: a(f"  buffer_load_dwordx4 {vr(dst+4*j)}, v{vaddr}, {sr(R_WS)}, {so} offen offset:{(j&3)*1024} sc1")
        self.spin_guard(dn)
        a("  s_waitcnt vmcnt(0)")
        self.valid_check(dst, 4 * nfr, t, lp)
        a(f"{dn}:\n  s_waitcnt vmcnt(0)")

    def prologue(self):
        a = self.a; cfg = self.cfg
        a("  s_cmp_ge_u32 s2, 256\n  s_cbranch_scc1 L_end")
        a("  s_load_dwordx16 s[4:19], s[0:1], 0\n  s_load_dwordx4 s[20:23], s[0:1], 64")
        if cfg.codepf:
            l = self.lab("pc")
            a(f"  s_cmp_ge_u32 s2, {8*cfg.pfrows}\n  s_cbranch_scc1 L_nopf")
            a(f"  s_getpc_b64 s[60:61]\n{l}:\n  s_sub_u32 s60, s60, {l}-{KNAME}\n  s_subb_u32 s61, s61, 0")
            a(f"  s_bfe_u32 s62, s2, 0x20003\n  s_lshl_b32 s62, s62, 13\n  v_lshl_add_u32 v246, v0, 4, s62")
            a(f"  v_min_u32 v246, L_code_end-{KNAME}-16, v246\n  global_load_dwordx4 v[168:171], v246, s[60:61]")
            a("L_nopf:")
        a("  v_lshrrev_b32 v1, 6, v0\n  v_and_b32 v0, 63, v0")
        a(f"  v_readfirstlane_b32 s{S_WAVE}, v1")
        a(f"  s_mov_b32 s{S_ONELO}, 0x00003f80\n  s_mov_b32 s{S_ONEHI}, 0x3f800000")
        self.stamp_init(); self.stamp(0)
        rows = NH // cfg.hnx
        a(f"  s_and_b32 s60, s2, 7\n  s_lshr_b32 s61, s2, 3\n  s_sub_u32 s62, s60, {cfg.hx0}")
        a(f"  s_cmp_lt_u32 s61, {rows}\n  s_cbranch_scc0 L_late")
        a(f"  s_cmp_lt_u32 s62, {cfg.hnx}\n  s_cbranch_scc0 L_early")
        a(f"  s_mul_i32 s{S_IDX}, s61, {cfg.hnx}\n  s_add_u32 s{S_IDX}, s{S_IDX}, s62\n  s_branch L_helper")
        a("L_early:")
        a(f"  s_cmp_lt_u32 s60, {cfg.hx0}\n  s_cselect_b32 s62, 0, {cfg.hnx}\n  s_sub_u32 s62, s60, s62")
        a(f"  s_mul_i32 s{S_IDX}, s61, {8-cfg.hnx}\n  s_add_u32 s{S_IDX}, s{S_IDX}, s62\n  s_branch L_stream")
        a(f"L_late:\n  s_sub_u32 s{S_IDX}, s2, {NH}")
        a(f"  s_cmp_eq_u32 s{S_IDX}, {NS}\n  s_cbranch_scc1 L_collect")
        a(f"  s_cmp_ge_u32 s{S_IDX}, {NS}\n  s_cbranch_scc1 L_end")
        a("L_stream:      ; ---------------- streamers")
        if cfg.nostream: a("  s_branch L_end")

    def code_prefetch(self, vt, vd):
        if not self.cfg.codepf: return
        a = self.a
        l = self.lab("pc")
        a(f"  s_getpc_b64 s[60:61]\n{l}:")
        a(f"  s_sub_u32 s60, s60, {l}-{KNAME}\n  s_subb_u32 s61, s61, 0")
        a(f"  s_lshr_b32 s62, s2, 3\n  s_lshl_b32 s62, s62, 10\n  v_lshl_add_u32 v{vt}, v0, 4, s62")
        a(f"  v_min_u32 v{vt}, L_code_end-{KNAME}-16, v{vt}")
        a(f"  global_load_dwordx4 {vr(vd)}, v{vt}, s[60:61]")

    V_OFF1, V_OFF0, V_SA = 2, 3, 255
    V_WA = (4, 5, 253, 254)
    V_RA, V_PA = 6, 10
    V_PADDR, V_MXW, V_MXR = 13, 14, 15
    V_ST = 128
    V_BUF = (16, 36, 56)
    V_PU, V_TMP, V_OUT = 144, 152, 160
    V_LT, V_AT = 76, 78
    V_QK, V_A, V_ACC = 80, 128, 176
    V_S, V_SUM, V_SQ4, V_SQ, V_MU, V_RS, V_LG = 188, 192, 196, 200, 204, 208, 212
    V_ONES = 216
    V_M, V_AL, V_L2, V_AM2, V_QS, V_CINV, V_CEPS, V_BIAS = 220, 222, 224, 226, 228, 230, 232, 234
    V_T0, V_T1, V_T2, V_ONEF = 236, 237, 238, 239
    V_MXV, V_TA, V_L16 = 240, 248, 252
    V_PUB = 196
    V_REDW = 198
    V_STR = 1

    def task_bases(self, st, kconst, kreg=True):
        a = self.a
        if kreg: a(f"  s_add_u32 s62, s{S_K}, {kconst}")
        else: a(f"  s_mov_b32 s62, {kconst}")
        a(f"  s_lshl_b32 s63, s62, 1\n  s_add_u32 s63, s63, s{S_QBASE}")
        a(f"  s_mul_i32 s{st}, s63, 3072\n  s_lshr_b32 s64, s63, 5\n  s_mul_i32 s64, s64, 393216")
        a(f"  s_and_b32 s65, s63, 31\n  s_mul_i32 s65, s65, 6144\n  s_add_u32 s{st+1}, s64, s65")
        a(f"  s_cmp_gt_u32 s62, {NPAIR-1}\n  s_cselect_b32 s{st}, 0x80000000, s{st}\n  s_cselect_b32 s{st+1}, 0x80000000, s{st+1}")
        a(f"  s_add_u32 s{st+2}, s{st+1}, 196608")
    def issue_piece(self, st, par, i):
        a = self.a
        nt = " nt" if self.cfg.nt else ""
        b = self.V_BUF[par] + 4 * i
        if i == 0:
            a(f"  buffer_load_dwordx4 {vr(b)}, v{self.V_OFF1}, {sr(R_B)}, s{st} offen{nt}")
        else:
            t = i - 1
            off = " offset:768" if t & 1 else ""
            a(f"  buffer_load_dwordx4 {vr(b)}, v{self.V_OFF0}, {sr(R_A)}, s{st+1+(t>>1)} offen{off}{nt}")

    def fuse_sub(self, par, d, name, mode="roll"):
        a = self.a
        hold, roll = mode == "hold", mode == "roll"
        b = self.V_BUF[par]; u = self.V_PU; t8 = self.V_TMP
        SS, SQ, R, U = self.V_ST, self.V_ST + 4, self.V_ST + 8, self.V_ST + 12
        a0 = d // 5
        a(f"{name}:")
        if roll:
            a(f"  s_mov_b32 s{SETA}, s{SETB}\n  s_mov_b32 s{SETA+1}, s{SETB+1}\n  s_mov_b32 s{SETA+2}, s{SETB+2}")
            self.task_bases(SETB, a0 + 1)
        def nxt(i):
            if not roll: return
            aa, pi = (i + d) // 5, (i + d) % 5
            self.issue_piece(SETA if aa == a0 else SETB, par ^ (aa & 1), pi)
        def dpp(dst, src, ctrl, bank):
            a(f"  v_add_f32_dpp v{dst}, v{src}, v{src} {ctrl} row_mask:0xf bank_mask:{bank:#x}")
        a(f"  s_waitcnt vmcnt({d-1})")
        for i in range(4):
            a(f"  v_lshlrev_b32 v{u+2*i}, 16, v{b+i}\n  v_and_b32 v{u+2*i+1}, 0xffff0000, v{b+i}")
        nxt(0)
        for t in range(4):
            c = b + 4 + 4 * t; o = c if hold else self.V_OUT + 4 * (t & 1)
            a(f"  s_waitcnt vmcnt({d-1 if roll else d-2-t})")
            for i in range(4):
                a(f"  v_dot2_f32_bf16 v{t8+2*i}, v{c+i}, s{S_ONELO}, v{u+2*i}")
                a(f"  v_dot2_f32_bf16 v{t8+2*i+1}, v{c+i}, s{S_ONEHI}, v{u+2*i+1}")
            nxt(t + 1)
            for i in range(4):
                a(f"  v_cvt_pk_bf16_f32 v{o+i}, v{t8+2*i}, v{t8+2*i+1}")
            if not hold: a(f"  ds_write_b128 v{self.V_WA[t]}, {vr(o)} offset:{t*768}")
            if t > 0: dpp(R + t - 1, SS + t - 1, "row_ror:8", 0x3)
            for i in range(4):
                a(f"  v_dot2_f32_bf16 v{SS+t}, v{o+i}, v{self.V_ONES}, {'0' if i == 0 else 'v%d' % (SS+t)}")
                a(f"  v_dot2_f32_bf16 v{SQ+t}, v{o+i}, v{o+i}, {'0' if i == 0 else 'v%d' % (SQ+t)}")
            if t > 0: dpp(R + t - 1, SQ + t - 1, "row_ror:8", 0xc)
        WA = self.V_WA
        if hold: a("  s_mov_b32 s62, 0")
        else: a(f"  s_mov_b32 s62, 24576\n  s_cmp_eq_u32 s{S_K}, 5\n  s_cselect_b32 s62, {(-5*24576) & 0xffffffff:#x}, s62")
        dpp(U, R, "row_half_mirror", 0x5)
        dpp(R + 3, SS + 3, "row_ror:8", 0x3)
        a(f"  v_add_u32 v{WA[0]}, s62, v{WA[0]}")
        dpp(U, R + 1, "row_half_mirror", 0xa)
        dpp(R + 3, SQ + 3, "row_ror:8", 0xc)
        dpp(U + 1, R + 2, "row_half_mirror", 0x5)
        a(f"  v_add_u32 v{WA[1]}, s62, v{WA[1]}")
        dpp(U, U, "quad_perm:[1,0,3,2]", 0xf)
        dpp(U + 1, R + 3, "row_half_mirror", 0xa)
        a(f"  v_add_u32 v{WA[2]}, s62, v{WA[2]}")
        dpp(U, U, "quad_perm:[2,3,0,1]", 0xf)
        dpp(U + 1, U + 1, "quad_perm:[1,0,3,2]", 0xf)
        a(f"  v_add_u32 v{WA[3]}, s62, v{WA[3]}\n  s_mov_b64 exec, s[{S_QMASK}:{S_QMASK+1}]\n  ds_add_f32 v{self.V_SA}, v{U}\n  s_mov_b64 exec, -1")
        dpp(U + 1, U + 1, "quad_perm:[2,3,0,1]", 0xf)
        a(f"  s_add_u32 s{S_K}, s{S_K}, 1")
        a(f"  s_mov_b64 exec, s[{S_QMASK}:{S_QMASK+1}]\n  ds_add_f32 v{self.V_SA}, v{U+1} offset:8\n  s_mov_b64 exec, -1")
        a(f"  v_add_u32 v{self.V_SA}, 256, v{self.V_SA}")
        a(f"  s_setpc_b64 s[{S_LINK}:{S_LINK+1}]")

    def stream_consts(self):
        a = self.a
        a("  v_and_b32 v240, 15, v0\n  v_lshrrev_b32 v241, 4, v0")
        a("  v_and_b32 v242, 7, v240\n  v_lshlrev_b32 v242, 1, v242\n  v_mul_u32_u24 v243, 768, v240")
        for m in range(4):
            a(f"  v_add_u32 v244, {4*m}, v241\n  v_xor_b32 v244, v244, v242\n  v_lshl_add_u32 v{self.V_RA+m}, v244, 4, v243")
        a("  v_lshrrev_b32 v242, 2, v240\n  v_lshl_add_u32 v242, v241, 2, v242\n  v_mul_u32_u24 v243, 768, v242")
        a("  v_and_b32 v242, 7, v242\n  v_lshlrev_b32 v242, 1, v242")
        a("  v_and_b32 v244, 3, v240\n  v_lshrrev_b32 v245, 1, v244\n  v_and_b32 v244, 1, v244\n  v_lshl_add_u32 v243, v244, 3, v243")
        for tau in range(3):
            a(f"  s_mul_i32 s62, s{S_WAVE}, 3\n  s_add_u32 s62, s62, {tau}")
            a("  s_lshl_b32 s63, s62, 1\n  s_and_b32 s63, s63, 14\n  s_lshr_b32 s62, s62, 3\n  s_lshl_b32 s62, s62, 8")
            a(f"  v_xor_b32 v244, s63, v242\n  v_or_b32 v244, v244, v245\n  v_lshl_add_u32 v244, v244, 4, v243\n  v_add_u32 v{self.V_PA+tau}, s62, v244")
        a(f"  v_lshlrev_b32 v{self.V_L16}, 4, v0\n  v_add_u32 v{self.V_PADDR}, {STG}, v{self.V_L16}\n  v_lshlrev_b32 v{self.V_STR}, 4, v241")
        a(f"  v_lshlrev_b32 v244, 5, v240\n  v_add_u32 v{self.V_MXR}, {MX}, v244")
        a(f"  s_lshl_b32 s62, s{S_WAVE}, 2\n  v_add_u32 v{self.V_MXW}, s62, v{self.V_MXR}")
        for i in range(4): a(f"  v_mov_b32 v{self.V_ONES+i}, 0x3f803f80")
        a(f"  v_mov_b32 v{self.V_ONEF}, 1.0\n  v_mov_b32 v{self.V_CINV}, {f32(1/384)}\n  v_mov_b32 v{self.V_CEPS}, {f32(1e-5)}")
        for i in range(12): a(f"  v_mov_b32 v{self.V_ACC+i}, 0")
        a(f"  v_mov_b32 v{self.V_M}, 0xff800000")
        for r in (self.V_L2, self.V_L2+1, self.V_AM2, self.V_AM2+1, self.V_M+1, self.V_AL+1, self.V_QS+1, self.V_CINV+1, self.V_CEPS+1, self.V_BIAS+1):
            a(f"  v_mov_b32 v{r}, 0")

    def pk(self, op, d, x, y, z=None, bc=(), neg=()):
        n = 2 if z is None else 3
        ops = [x, y] + ([z] if z is not None else [])
        s = f"  {op} {vr(d,2)}, " + ", ".join(vr(o, 2) for o in ops)
        if bc: s += " op_sel_hi:[" + ",".join("0" if i in bc else "1" for i in range(n)) + "]"
        if neg:
            m = "[" + ",".join("1" if i in neg else "0" for i in range(n)) + "]"
            s += f" neg_lo:{m} neg_hi:{m}"
        self.a(s)

    def red_write(self, l, am, t):
        a = self.a
        a(f"  v_add_f32 v{t}, v{l}, v{l+1}\n  v_add_f32 v{t+1}, v{am}, v{am+1}")
        a(f"  v_permlane16_swap_b32 v{t}, v{t+1}\n  v_add_f32 v{t}, v{t}, v{t+1}")
        a(f"  v_mov_b32 v{t+1}, v{t}\n  v_permlane32_swap_b32 v{t+1}, v{t}\n  v_add_f32 v{t}, v{t}, v{t+1}")
        a(f"  ds_write_b32 v{self.V_REDW}, v{t}")

    def sphase_sub(self):
        a = self.a
        A, QK = self.V_A, self.V_QK
        S, SUM, SQ, MU, RS, LG, T1, T2 = self.V_S, self.V_SUM, self.V_SQ, self.V_MU, self.V_RS, self.V_LG, self.V_T1, self.V_T2
        a("L_sphase:")
        for m in range(4): a(f"  v_add_u32 v{self.V_TA+m}, s{S_TB}, v{self.V_RA+m}")
        a(f"  v_add_u32 v{T1}, s{S_STA}, v{self.V_STR}")
        a(f"  ds_read_b128 {vr(SUM)}, v{T1}\n  ds_read_b128 {vr(SQ)}, v{T1} offset:64")
        for j in range(12): a(f"  ds_read_b128 {vr(A+4*j)}, v{self.V_TA+(j&3)} offset:{(j>>2)*256}")
        a(f"  s_cmp_lt_u32 s{S_PAIR}, 2048\n  s_cselect_b32 s{S_BIAS}, 0, {f32(-1e30)}")
        a(f"  v_mov_b32 v{self.V_BIAS}, s{S_BIAS}\n  v_add_u32 v{T2}, s{S_POFF}, v{self.V_PADDR}")
        a("  s_waitcnt lgkmcnt(12)")
        stat = []
        for h in (0, 2): stat.append(lambda h=h: self.pk("v_pk_mul_f32", MU + h, SUM + h, self.V_CINV, bc=(1,)))
        for h in (0, 2): stat.append(lambda h=h: self.pk("v_pk_fma_f32", RS + h, SQ + h, self.V_CINV, self.V_CEPS, bc=(1, 2)))
        for h in (0, 2): stat.append(lambda h=h: self.pk("v_pk_fma_f32", RS + h, MU + h, MU + h, RS + h, neg=(0,)))
        for r in range(4): stat.append(lambda r=r: a(f"  v_max_f32 v{RS+r}, v{self.V_CEPS}, v{RS+r}"))
        for r in range(4): stat.append(lambda r=r: a(f"  v_rsq_f32 v{RS+r}, v{RS+r}"))
        for h in (0, 2): stat.append(lambda h=h: self.pk("v_pk_mul_f32", SUM + h, MU + h, self.V_QS, bc=(1,)))
        for j in range(12):
            a(f"  s_waitcnt lgkmcnt({11-j})")
            a(f"  v_mfma_f32_16x16x32_bf16 {vr(S)}, {vr(A+4*j)}, {vr(QK+4*j)}, {'0' if j == 0 else vr(S)}")
            for _ in range(2):
                if stat: stat.pop(0)()
        for h in (0, 2): self.pk("v_pk_add_f32", LG + h, S + h, SUM + h, neg=(1,))
        for h in (0, 2): self.pk("v_pk_fma_f32", LG + h, LG + h, RS + h, self.V_BIAS, bc=(2,))
        a(f"  s_setpc_b64 s[{S_LINK2}:{S_LINK2+1}]")

    def sp_sub(self):
        a = self.a
        MU, RS, LG, M, T0, T1, T2, MXV = self.V_MU, self.V_RS, self.V_LG, self.V_M, self.V_T0, self.V_T1, self.V_T2, self.V_MXV
        PT, LT, AT = MXV, self.V_LT, self.V_AT
        a("L_sp:")
        a(f"  s_call_b64 s[{S_LINK2}:{S_LINK2+1}], L_sphase")
        for h in (0, 2): self.pk("v_pk_add_f32", PT + h, LG + h, M, bc=(1,), neg=(1,))
        a(f"  v_max3_f32 v{T0}, v{PT}, v{PT+1}, v{PT+2}\n  v_max_f32 v{T0}, v{T0}, v{PT+3}")
        for r in range(4): a(f"  v_exp_f32 v{PT+r}, v{PT+r}")
        a(f"  v_cmp_lt_f32 vcc, {f32(LAG_LIMIT)}, v{T0}\n  v_cmp_gt_f32 s[60:61], s{S_LOW}, v{T0}\n  s_or_b64 vcc, vcc, s[60:61]")
        self.pk("v_pk_add_f32", LT, LT, PT); self.pk("v_pk_add_f32", LT, LT, PT + 2)
        for h in (0, 2): self.pk("v_pk_mul_f32", PT + h, PT + h, RS + h)
        a(f"  v_cvt_pk_bf16_f32 v{MXV+4}, v{PT}, v{PT+1}\n  v_cvt_pk_bf16_f32 v{MXV+5}, v{PT+2}, v{PT+3}")
        a(f"  ds_write_b64 v{T2}, {vr(MXV+4,2)}")
        for h in (0, 2): self.pk("v_pk_fma_f32", AT, PT + h, MU + h, AT)
        a(f"  s_cbranch_vccz L_sp_ret\n  v_mov_b32 v{T0}, {FLAG_LDS}\n  v_mov_b32 v{T1}, 1\n  ds_write_b32 v{T0}, v{T1}")
        a(f"L_sp_ret:\n  s_setpc_b64 s[{S_LINK}:{S_LINK+1}]")

    def batch_sub(self):
        a = self.a
        A = self.V_A
        MU, RS, LG = self.V_MU, self.V_RS, self.V_LG
        M, AL, L2, AM2, T0, T1, T2, MXV = self.V_M, self.V_AL, self.V_L2, self.V_AM2, self.V_T0, self.V_T1, self.V_T2, self.V_MXV
        PT = MXV
        a("L_batch:")
        self.cstamp(0)
        a(f"  s_sub_u32 s{S_TI}, s{S_WAVE}, s{S_W0}\n  s_cmp_ge_u32 s{S_TI}, s{S_T}\n  s_cbranch_scc1 L_b_bar2")
        a(f"  s_add_u32 s63, s{S_TI}, s{S_SB}\n  s_mul_i32 s{S_TB}, s63, {SLOT}")
        a(f"  s_lshl_b32 s62, s{S_TI}, 7\n  s_add_u32 s{S_STA}, s62, s{S_SST}")
        a(f"  s_lshr_b32 s62, s{S_TI}, 1\n  s_add_u32 s{S_PAIR}, s62, s{S_PB}")
        a(f"  s_lshl_b32 s62, s62, 10\n  s_and_b32 s63, s{S_TI}, 1\n  s_lshl_b32 s63, s63, 3\n  s_add_u32 s{S_POFF}, s62, s63")
        a(f"  s_call_b64 s[{S_LINK2}:{S_LINK2+1}], L_sphase")
        self.cstamp(1)
        a(f"  v_max3_f32 v{T0}, v{LG}, v{LG+1}, v{LG+2}\n  v_max_f32 v{T0}, v{T0}, v{LG+3}")
        self.allred_g(T0, T1, "v_max_f32")
        a(f"  ds_write_b32 v{self.V_MXW}, v{T0}")
        a("L_b_bar2:\n  s_waitcnt lgkmcnt(0)")
        self.cstamp(2)
        a("  s_barrier")
        self.cstamp(3)
        a(f"  ds_read_b128 {vr(MXV)}, v{self.V_MXR}\n  ds_read_b128 {vr(MXV+4)}, v{self.V_MXR} offset:16")
        a(f"  v_mov_b32 v{T0}, {FLAG_LDS}\n  v_mov_b32 v{T1}, 0\n  ds_write_b32 v{T0}, v{T1}")
        a("  s_waitcnt lgkmcnt(1)")
        a(f"  v_max3_f32 v{T0}, v{MXV}, v{MXV+1}, v{MXV+2}\n  v_max3_f32 v{T1}, v{MXV+3}, v{MXV+4}, v{MXV+5}")
        a(f"  v_max3_f32 v{T0}, v{T0}, v{MXV+6}, v{MXV+7}\n  v_max3_f32 v{T0}, v{T0}, v{T1}, v{M}")
        a(f"  v_sub_f32 v{AL}, v{M}, v{T0}\n  v_mov_b32 v{M}, v{T0}\n  v_exp_f32 v{AL}, v{AL}")
        self.cstamp(4)
        a(f"  s_cmp_ge_u32 s{S_TI}, s{S_T}\n  s_cbranch_scc1 L_b_nop")
        for h in (0, 2): self.pk("v_pk_add_f32", PT + h, LG + h, M, bc=(1,), neg=(1,))
        for r in range(4): a(f"  v_exp_f32 v{PT+r}, v{PT+r}")
        self.pk("v_pk_mul_f32", L2, L2, AL, bc=(1,)); self.pk("v_pk_mul_f32", AM2, AM2, AL, bc=(1,))
        self.pk("v_pk_add_f32", L2, L2, PT); self.pk("v_pk_add_f32", L2, L2, PT + 2)
        for h in (0, 2): self.pk("v_pk_mul_f32", PT + h, PT + h, RS + h)
        a(f"  v_cvt_pk_bf16_f32 v{MXV+4}, v{PT}, v{PT+1}\n  v_cvt_pk_bf16_f32 v{MXV+5}, v{PT+2}, v{PT+3}")
        a(f"  ds_write_b64 v{T2}, {vr(MXV+4,2)}")
        for h in (0, 2): self.pk("v_pk_fma_f32", AM2, PT + h, MU + h, AM2)
        a("  s_branch L_b_acc")
        a("L_b_nop:")
        self.pk("v_pk_mul_f32", L2, L2, AL, bc=(1,)); self.pk("v_pk_mul_f32", AM2, AM2, AL, bc=(1,))
        a("L_b_acc:")
        for i in range(0, 12, 2): self.pk("v_pk_mul_f32", self.V_ACC + i, self.V_ACC + i, AL, bc=(1,))
        a(f"  s_cmp_eq_u32 s{S_LAST}, 0\n  s_cbranch_scc1 L_b_bar3")
        self.red_write(L2, AM2, MXV + 6)
        a("L_b_bar3:\n  s_waitcnt lgkmcnt(0)")
        self.cstamp(5)
        a("  s_barrier")
        self.cstamp(6)
        a(f"  s_lshr_b32 s{S_NP}, s{S_T}, 1")
        a(f"  s_mul_i32 s{S_PVB}, s{S_SB}, {SLOT}")
        self.pv_reads(0, S_PVB, 0)
        for k in range(3):
            a(f"  s_cmp_le_u32 s{S_NP}, {k+1}\n  s_cbranch_scc1 L_pvl{k & 1}")
            a(f"  s_add_u32 s{S_PVB}, s{S_PVB}, {2*SLOT}")
            self.pv_reads((k + 1) & 1, S_PVB, (k + 1) * 1024)
            self.pv_mfmas(k & 1, 7)
        a("L_pvl1:")
        self.pv_mfmas(1, 0)
        self.cstamp(7)
        a(f"  s_setpc_b64 s[{S_LINK}:{S_LINK+1}]")
        a("L_pvl0:")
        self.pv_mfmas(0, 0)
        self.cstamp(7)
        a(f"  s_setpc_b64 s[{S_LINK}:{S_LINK+1}]")

    def pv_reads(self, buf, s_, poff, imm=0):
        a = self.a; o = self.V_A + 16 * buf
        a(f"  ds_read_b128 {vr(o)}, v{self.V_PADDR} offset:{poff}")
        for tau in range(3):
            if s_ is None:
                ad = self.V_PA + tau
            else:
                ad = self.V_TA + tau
                a(f"  v_add_u32 v{ad}, s{s_}, v{self.V_PA+tau}")
            a(f"  ds_read_b64_tr_b16 {vr(o+4+4*tau,2)}, v{ad} offset:{imm}")
            a(f"  ds_read_b64_tr_b16 {vr(o+6+4*tau,2)}, v{ad} offset:{imm + SLOT}")
    def pv_mfmas(self, buf, base):
        a = self.a; o = self.V_A + 16 * buf
        for tau in range(3):
            a(f"  s_waitcnt lgkmcnt({base + 4 - 2*tau})")
            a(f"  v_mfma_f32_16x16x32_bf16 {vr(self.V_ACC+4*tau)}, {vr(o+4+4*tau)}, {vr(o)}, {vr(self.V_ACC+4*tau)}")

    def pv_final(self):
        a = self.a; T0, T1 = self.V_T0, self.V_T1
        a(f"  v_mov_b32 v{T0}, {FLAG_LDS}\n  ds_read_b32 v{T1}, v{T0}")
        a(f"  s_mov_b32 s{S_PVB}, {8*SLOT}")
        self.pv_reads(0, S_PVB, 0)
        a(f"  s_waitcnt lgkmcnt(7)\n  v_readfirstlane_b32 s62, v{T1}\n  s_cmp_lg_u32 s62, 0\n  s_cbranch_scc1 L_slow")
        a(f"  s_mov_b32 s{S_PVB}, {10*SLOT}")
        self.pv_reads(1, S_PVB, 1024); self.pv_mfmas(0, 7)
        self.pv_reads(0, None, 2048, 0); self.pv_mfmas(1, 7)
        self.pv_reads(1, None, 3072, 2*SLOT); self.pv_mfmas(0, 7)
        self.pv_reads(0, None, 4096, 4*SLOT); self.pv_mfmas(1, 7)
        self.sums_read()
        self.pv_mfmas(0, 4)
        self.sums_math()

    V_SR = 16
    def sums_read(self):
        for i in range(4): self.a(f"  ds_read_b128 {vr(self.V_SR+4*i)}, v{self.V_PUB+3} offset:{16*i}")
    def sums_math(self):
        a = self.a; R = self.V_SR
        a("  s_waitcnt lgkmcnt(0)")
        for i in (0, 4, 8, 12): self.pk("v_pk_add_f32", R + i, R + i, R + i + 2)
        self.pk("v_pk_add_f32", R, R, R + 4); self.pk("v_pk_add_f32", R + 8, R + 8, R + 12); self.pk("v_pk_add_f32", R, R, R + 8)
        a(f"  v_rcp_f32 v{R+2}, v{R}\n  v_log_f32 v{R+5}, v{R}\n  v_mul_f32 v{R+4}, v{R+1}, v{R+2}\n  v_add_f32 v{R+6}, v{self.V_M}, v{R+5}")

    def hold_chunks(self):
        a = self.a
        b = self.V_BUF[0]; u, t8, st = 160, 168, 56
        SS, SQ, R, U = st, st + 4, st + 8, st + 12
        def dpp(dst, src, ctrl, bank):
            a(f"  v_add_f32_dpp v{dst}, v{src}, v{src} {ctrl} row_mask:0xf bank_mask:{bank:#x}")
        def child(t):
            c = b + 4 + 4 * t
            if t == 0:
                a("  s_waitcnt vmcnt(9)")
                for i in range(4): a(f"  v_lshlrev_b32 v{u+2*i}, 16, v{b+i}\n  v_and_b32 v{u+2*i+1}, 0xffff0000, v{b+i}")
            a(f"  s_waitcnt vmcnt({8-t})")
            for i in range(4):
                a(f"  v_dot2_f32_bf16 v{t8+2*i}, v{c+i}, s{S_ONELO}, v{u+2*i}")
                a(f"  v_dot2_f32_bf16 v{t8+2*i+1}, v{c+i}, s{S_ONEHI}, v{u+2*i+1}")
            if t > 0: dpp(R + t - 1, SS + t - 1, "row_ror:8", 0x3)
            for i in range(4): a(f"  v_cvt_pk_bf16_f32 v{c+i}, v{t8+2*i}, v{t8+2*i+1}")
            if t > 0: dpp(R + t - 1, SQ + t - 1, "row_ror:8", 0xc)
            for i in range(4):
                a(f"  v_dot2_f32_bf16 v{SS+t}, v{c+i}, v{self.V_ONES}, {'0' if i == 0 else 'v%d' % (SS+t)}")
                a(f"  v_dot2_f32_bf16 v{SQ+t}, v{c+i}, v{c+i}, {'0' if i == 0 else 'v%d' % (SQ+t)}")
        def close():
            dpp(U, R, "row_half_mirror", 0x5)
            dpp(R + 3, SS + 3, "row_ror:8", 0x3)
            dpp(U + 1, R + 2, "row_half_mirror", 0x5)
            dpp(U, R + 1, "row_half_mirror", 0xa)
            dpp(R + 3, SQ + 3, "row_ror:8", 0xc)
            a(f"  s_add_u32 s{S_K}, s{S_K}, 1")
            dpp(U, U, "quad_perm:[1,0,3,2]", 0xf)
            dpp(U + 1, R + 3, "row_half_mirror", 0xa)
            dpp(U, U, "quad_perm:[2,3,0,1]", 0xf)
            dpp(U + 1, U + 1, "quad_perm:[1,0,3,2]", 0xf)
            a(f"  s_mov_b64 exec, s[{S_QMASK}:{S_QMASK+1}]\n  ds_add_f32 v{self.V_SA}, v{U}\n  s_mov_b64 exec, -1")
            dpp(U + 1, U + 1, "quad_perm:[2,3,0,1]", 0xf)
            a(f"  s_mov_b64 exec, s[{S_QMASK}:{S_QMASK+1}]\n  ds_add_f32 v{self.V_SA}, v{U+1} offset:8\n  s_mov_b64 exec, -1")
            a(f"  v_add_u32 v{self.V_SA}, 256, v{self.V_SA}")
        return [lambda t=t: child(t) for t in range(4)], close

    def pv_first(self):
        a = self.a; T0, T1 = self.V_T0, self.V_T1
        def body(chunks, close):
            self.pv_reads(1, None, 1024, 2*SLOT)
            self.pk("v_pk_add_f32", self.V_L2, self.V_L2, self.V_LT); self.pk("v_pk_add_f32", self.V_AM2, self.V_AM2, self.V_AT)
            if chunks: chunks[0]()
            self.pv_mfmas(0, 7)
            self.pv_reads(0, None, 2048, 4*SLOT)
            for r in range(4): a(f"  v_mov_b32 v{self.V_LT+r}, 0")
            if chunks: chunks[1]()
            self.pv_mfmas(1, 7)
            a(f"  s_mov_b32 s{S_PVB}, {6*SLOT}")
            self.pv_reads(1, S_PVB, 3072)
            if chunks: chunks[2]()
            self.pv_mfmas(0, 7)
            if chunks: chunks[3]()
            self.pv_mfmas(1, 0)
            if close: close()
        a(f"  v_mov_b32 v{T0}, {FLAG_LDS}\n  ds_read_b32 v{T1}, v{T0}")
        self.pv_reads(0, None, 0, 0)
        a(f"  s_waitcnt lgkmcnt(7)\n  v_readfirstlane_b32 s62, v{T1}\n  s_cmp_lg_u32 s62, 0\n  s_cbranch_scc1 L_slow1")
        if self.cfg.pvfuse:
            plain, join = self.lab("pvplain"), self.lab("pvjoin")
            a(f"  s_cmp_ge_u32 s{S_WAVE}, 6\n  s_cbranch_scc1 {plain}")
            body(*self.hold_chunks())
            a(f"  s_branch {join}\n{plain}:")
            body(None, None)
            a(f"{join}:")
        else:
            body(None, None)

    def call_batch(self, T, w0, slot0, pair_add, last):
        self.a(f"  s_mov_b32 s{S_T}, {T}\n  s_mov_b32 s{S_W0}, {w0}\n  s_mov_b32 s{S_SB}, {slot0}\n  s_add_u32 s{S_PB}, s{S_P0}, {pair_add}\n  s_mov_b32 s{S_LAST}, {int(last)}")
        self.a(f"  s_mov_b32 s{S_SST}, {STAT + pair_add*256}")
        self.a(f"  s_call_b64 s[{S_LINK}:{S_LINK+1}], L_batch")

    def streamer(self):
        a = self.a; cfg = self.cfg; d = cfg.depth
        CALL = f"  s_call_b64 s[{S_LINK}:{S_LINK+1}], "
        a("  s_waitcnt lgkmcnt(0)")
        srd(a, R_A, P_F0, F0_BYTES); srd(a, R_B, P_F1, F1_BYTES)
        a(f"  s_cmp_ge_u32 s{S_WAVE}, 6\n  s_cbranch_scc1 L_sgather")
        a(f"  s_cmp_ge_u32 s{S_WAVE}, 3\n  s_cselect_b32 s60, 1, 0\n  s_mul_i32 s62, s60, 3\n  s_sub_u32 s61, s{S_WAVE}, s62")
        a(f"  s_mul_i32 s{S_QBASE}, s{S_IDX}, {2*NPAIR}\n  s_add_u32 s{S_QBASE}, s{S_QBASE}, s60\n  s_lshl_b32 s61, s61, 8")
        a("  v_and_b32 v240, 15, v0\n  v_lshrrev_b32 v241, 4, v0\n  v_lshl_add_u32 v242, v240, 4, s61")
        a(f"  v_mul_u32_u24 v243, 768, v241\n  v_add_u32 v{self.V_OFF1}, v242, v243\n  v_lshl_add_u32 v{self.V_OFF0}, v243, 1, v242")
        a(f"  s_mov_b32 s{S_K}, 0\n  s_mov_b32 s{S_QMASK}, 0x11111111\n  s_mov_b32 s{S_QMASK+1}, 0x11111111")
        def first_loads(d):
            self.task_bases(SETA, 0, False)
            for x in range(min(d, 5)): self.issue_piece(SETA, 0, x)
            self.task_bases(SETB, d // 5, False)
        two = cfg.dlate != d
        def both(f):
            if not two:
                f(d); return
            l1, l2 = self.lab("dl"), self.lab("dj")
            a(f"  s_and_b32 s62, s2, 7\n  s_cmp_ge_u32 s62, {cfg.xlate}\n  s_cbranch_scc1 {l1}")
            f(d)
            a(f"  s_branch {l2}\n{l1}:")
            f(cfg.dlate)
            a(f"{l2}:")
        assert d <= 5 and cfg.dlate <= 5
        if not cfg.late: both(first_loads)
        a(f"  s_mul_i32 s60, s60, {SLOT}\n  s_add_u32 s60, s60, s61")
        srd(a, R_WS, P_WS, WS_BYTES)
        a("  v_and_b32 v240, 15, v0\n  v_lshrrev_b32 v241, 4, v0\n  v_and_b32 v242, 1, v241\n  v_lshlrev_b32 v242, 3, v242\n  v_xor_b32 v242, v240, v242")
        a(f"  v_mul_u32_u24 v243, 3072, v241\n  v_add_u32 v243, s60, v243")
        for t in range(4):
            a(f"  v_xor_b32 v244, {2*t}, v242\n  v_lshl_add_u32 v{self.V_WA[t]}, v244, 4, v243")
        a(f"  v_bfe_u32 v242, v0, 3, 1\n  v_lshlrev_b32 v242, 6, v242\n  v_bfe_u32 v243, v0, 2, 1\n  v_lshl_add_u32 v243, v241, 2, v243\n  v_lshl_add_u32 v242, v243, 2, v242")
        a(f"  s_cmp_ge_u32 s{S_WAVE}, 3\n  s_cselect_b32 s62, 128, 0\n  s_add_u32 s62, s62, {STAT}\n  v_add_u32 v{self.V_SA}, s62, v242")
        a("  s_barrier")
        self.stream_consts()
        if cfg.late: both(first_loads)
        if cfg.streamonly:
            for k in range(9):
                a(CALL + f"L_fuse{k & 1}")
                if k == 5: self.stamp(3)
            self.stamp(7); self.stamp(8)
            a("  s_branch L_sdone")
        def phase1(dd):
            sfx = "" if dd == d else "L"
            for k in range(6):
                if k == cfg.trig_a: a("  s_barrier")
                if k == cfg.trig_b: a("  s_barrier")
                a(CALL + f"L_fuse{sfx}{k & 1}")
            if cfg.trig_a >= 6: a("  s_barrier")
            if cfg.trig_b >= 6: a("  s_barrier")
            if dd < 5:
                self.task_bases(SETA, 6, False)
                for x in range(30 + dd, 35): self.issue_piece(SETA, 0, x % 5)
        both(phase1)
        assert not (cfg.pvfuse and (cfg.prefuse or not cfg.zref or cfg.ext7 != 1 or cfg.ext8 != 1))
        self.stamp(3)
        if cfg.prefuse: a(CALL + "L_fuseH")
        if cfg.ext7 == 0:
            self.task_bases(SETA, 7, False)
            for x in range(5): self.issue_piece(SETA, 1, x)
        a("  s_waitcnt lgkmcnt(0)")
        a("  s_branch L_sb0")
        a("L_sgather:     ; waves 6,7: nonce, GO word, Qk into the staging area")
        if cfg.streamonly == 3:
            pass
        elif cfg.streamonly:
            srd(a, R_WS, P_WS, WS_BYTES)
            for i in range(4): a(f"  v_mov_b32 v{20+i}, 0")
            a("  s_barrier\n  s_branch L_sdone")
        for r in (self.V_OFF1, self.V_OFF0, self.V_SA) + self.V_WA: a(f"  v_mov_b32 v{r}, 0")
        for i in range(4): a(f"  v_mov_b32 v{20+i}, 0")
        a(f"  v_lshlrev_b32 v24, 4, v0\n  v_add_u32 v24, {STAT}, v24\n  ds_write_b128 v24, v[20:23]\n  ds_write_b128 v24, v[20:23] offset:1024")
        a(f"  v_cmp_gt_u32 vcc, {(2320 - 2048) // 16}, v0\n  s_and_saveexec_b64 s[64:65], vcc")
        a("  ds_write_b128 v24, v[20:23] offset:2048\n  s_mov_b64 exec, s[64:65]\n  s_waitcnt lgkmcnt(0)\n  s_barrier")
        a(f"  s_mov_b32 s{S_QBASE}, 0\n  s_mov_b32 s{S_K}, 0\n  s_mov_b32 s{S_QMASK}, 0\n  s_mov_b32 s{S_QMASK+1}, 0")
        for r in range(3): a(f"  s_mov_b32 s{SETA+r}, 0\n  s_mov_b32 s{SETB+r}, 0")
        srd(a, R_WS, P_WS, WS_BYTES)
        a(f"  s_cmp_eq_u32 s{S_WAVE}, 7\n  s_cbranch_scc1 L_sw7")
        a(f"  buffer_load_dword v17, v{self.V_OFF1}, {sr(R_WS)}, 0 offen offset:{NONCE_OFF} sc1")
        a(f"  v_mov_b32 v18, {GO_OFF}")
        self.stream_consts()
        a(f"  s_waitcnt vmcnt(0)\n  v_add_u32 v17, 1, v17\n  v_mov_b32 v{self.V_T0}, {NONCE_LDS}\n  ds_write_b32 v{self.V_T0}, v17\n  v_readfirstlane_b32 s{S_NONCE}, v17")
        if cfg.streamonly != 3: a("  s_barrier")
        a(f"  buffer_load_dword v16, v18, {sr(R_WS)}, 0 offen sc1")
        if cfg.streamonly != 3: a("  s_barrier")
        self.wait_flags(16, 18, first_issued=True)
        self.stamp(1)
        a(f"  s_mov_b32 s62, {RQK_OFF}")
        if cfg.kdelay: a(f"  s_sleep {cfg.kdelay}")
        self.gather_frags(12, self.V_QK, self.V_L16, 62, self.V_T0, "qk")
        if cfg.gdiag:
            a(f"  s_mov_b32 s{STAMP0+4}, s{S_SPIN}")
            self.stamp(5)
        for j in range(12): a(f"  ds_write_b128 v{self.V_PADDR}, {vr(self.V_QK+4*j)} offset:{j*1024}")
        SQ4 = self.V_SQ4
        for j in range(12):
            for i in range(4):
                a(f"  v_dot2_f32_bf16 v{SQ4+i}, v{self.V_QK+4*j+i}, v{self.V_ONES}, {'0' if j == 0 else 'v%d' % (SQ4+i)}")
        self.pk("v_pk_add_f32", SQ4, SQ4, SQ4 + 2)
        a(f"  v_add_f32 v{self.V_QS}, v{SQ4}, v{SQ4+1}")
        self.allred_g(self.V_QS, self.V_T0, "v_add_f32")
        a(f"  v_and_b32 v{self.V_T0}, 15, v0\n  v_lshlrev_b32 v{self.V_T0}, 2, v{self.V_T0}\n  v_add_u32 v{self.V_T0}, {QS_LDS}, v{self.V_T0}\n  ds_write_b32 v{self.V_T0}, v{self.V_QS}")
        a("  s_waitcnt lgkmcnt(0)")
        self.stamp(3)
        if cfg.streamonly == 3: a("  s_branch L_sdone")
        a("  s_branch L_sb0")
        a("L_sw7:")
        if cfg.streamonly == 3: a("  s_branch L_sdone")
        self.stream_consts()
        a("  s_waitcnt vmcnt(0)\n  s_barrier\n  s_barrier")
        a("L_sb0:         ; tiles 0..11 and Qk are in LDS\n  s_barrier")
        a(f"  v_and_b32 v{self.V_T2}, 15, v0\n  v_lshlrev_b32 v{self.V_T2}, 2, v{self.V_T2}\n  v_add_u32 v{self.V_T2}, {QS_LDS}, v{self.V_T2}")
        a(f"  v_mov_b32 v{self.V_T0}, {NONCE_LDS}\n  ds_read_b32 v{self.V_T1}, v{self.V_T0}\n  ds_read_b32 v{self.V_QS}, v{self.V_T2}")
        for j in range(12): a(f"  ds_read_b128 {vr(self.V_QK+4*j)}, v{self.V_PADDR} offset:{j*1024}")
        a(f"  s_mul_i32 s{S_P0}, s{S_IDX}, {NPAIR}")
        for r in range(4): a(f"  v_mov_b32 v{self.V_LT+r}, 0")
        a(f"  s_waitcnt lgkmcnt(0)\n  v_readfirstlane_b32 s{S_NONCE}, v{self.V_T1}")
        if cfg.zref: a("  s_barrier")
        sk = self.lab("noext")
        a(f"  s_cmp_ge_u32 s{S_WAVE}, 6\n  s_cbranch_scc1 {sk}")
        if cfg.ext7 == 1:
            self.task_bases(SETA, 7, False)
            for x in range(5): self.issue_piece(SETA, 1, x)
        if cfg.ext8 == 0:
            self.task_bases(SETB, 8, False)
            for x in range(5): self.issue_piece(SETB, 2, x)
        a(f"{sk}:")
        self.stamp(4)
        if cfg.zref:
            a(f"  s_mov_b32 s{S_LOW}, {f32(LOW_LIMIT)}\n  v_mov_b32 v{self.V_M}, 0")
            a(f"  s_mul_i32 s{S_TB}, s{S_WAVE}, {SLOT}\n  s_lshl_b32 s62, s{S_WAVE}, 7\n  s_add_u32 s{S_STA}, s62, {STAT}")
            a(f"  s_lshr_b32 s62, s{S_WAVE}, 1\n  s_add_u32 s{S_PAIR}, s62, s{S_P0}")
            a(f"  s_lshl_b32 s62, s62, 10\n  s_and_b32 s63, s{S_WAVE}, 1\n  s_lshl_b32 s63, s63, 3\n  s_add_u32 s{S_POFF}, s62, s63")
            a(CALL + "L_sp")
            if cfg.ext8 == 2:
                sk = self.lab("noe8")
                a(f"  s_cmp_ge_u32 s{S_WAVE}, 6\n  s_cbranch_scc1 {sk}")
                self.task_bases(SETB, 8, False)
                for x in range(5): self.issue_piece(SETB, 2, x)
                a(f"{sk}:")
            a("  s_waitcnt lgkmcnt(0)\n  s_barrier")
            self.pv_first()
            a("L_safter1:")
        else:
            self.call_batch(8, 0, 0, 0, False)
        a(f"  s_mov_b32 s{S_LOW}, {f32(-3.0e38)}")
        a("  s_barrier")
        if not cfg.gdiag: self.stamp(5)
        a(f"  s_cmp_ge_u32 s{S_WAVE}, 6\n  s_cbranch_scc1 L_s67")
        if cfg.ext8 == 1:
            self.task_bases(SETB, 8, False)
            if cfg.late8:
                a(f"  s_and_b32 s62, s2, 4\n  s_cmp_lg_u32 s62, 0\n  s_cselect_b32 s{SETB}, 0x80000000, s{SETB}\n  s_cselect_b32 s{SETB+1}, 0x80000000, s{SETB+1}\n  s_cselect_b32 s{SETB+2}, 0x80000000, s{SETB+2}")
            for x in range(5): self.issue_piece(SETB, 2, x)
        self.fstamp(0)
        if cfg.prefuse or cfg.pvfuse:
            b = self.V_BUF[0]
            for t in range(4): a(f"  ds_write_b128 v{self.V_WA[t]}, {vr(b+4+4*t)} offset:{t*768}")
            for t in range(4): a(f"  v_add_u32 v{self.V_WA[t]}, 24576, v{self.V_WA[t]}")
        else:
            a(CALL + "L_fuseR0")
        self.fstamp(1)
        a(CALL + "L_fuseR1")
        self.fstamp(2)
        if cfg.late8:
            sk8 = self.lab("skip8")
            a(f"  s_and_b32 s62, s2, 4\n  s_cmp_lg_u32 s62, 0\n  s_cbranch_scc1 {sk8}")
            a(CALL + "L_fuseR2")
            a(f"{sk8}:\n  s_waitcnt vmcnt(0)")
        else:
            a(CALL + "L_fuseR2")
        self.fstamp(3)
        a("  s_branch L_sx")
        a("L_s67:         ; waves 6,7: logits and P of tiles 8..11 beside the fuse steps of tasks 6..8")
        for i in range(2):
            a(f"  s_and_b32 s63, s{S_WAVE}, 1\n  s_add_u32 s62, s63, {8 + 2*i}\n  s_mul_i32 s{S_TB}, s62, {SLOT}")
            a(f"  s_lshl_b32 s62, s62, 7\n  s_add_u32 s{S_STA}, s62, {STAT}\n  s_add_u32 s{S_PAIR}, s{S_P0}, {4 + i}")
            a(f"  s_lshl_b32 s63, s63, 3\n  s_add_u32 s{S_POFF}, s63, {i*1024}")
            a(CALL + "L_sp")
        a("L_sx:")
        self.publish_setup()
        a("  s_waitcnt lgkmcnt(0)\n  s_barrier")
        if not cfg.gdiag: self.stamp(2)
        sk = self.lab("nosp")
        a(f"  s_cmp_ge_u32 s{S_WAVE}, 6\n  s_cbranch_scc1 {sk}")
        a(f"  s_mul_i32 s{S_TB}, s{S_WAVE}, {SLOT}\n  s_lshl_b32 s62, s{S_WAVE}, 7\n  s_add_u32 s{S_STA}, s62, {STAT + 12*128}")
        a(f"  s_lshr_b32 s62, s{S_WAVE}, 1\n  s_add_u32 s{S_PAIR}, s62, s{S_P0}\n  s_add_u32 s{S_PAIR}, s{S_PAIR}, 6")
        a(f"  s_lshl_b32 s62, s62, 10\n  s_and_b32 s63, s{S_WAVE}, 1\n  s_lshl_b32 s63, s63, 3\n  s_add_u32 s62, s62, s63\n  s_add_u32 s{S_POFF}, s62, 2048")
        a(CALL + "L_sp")
        a(f"{sk}:")
        MXV = self.V_MXV
        self.pk("v_pk_add_f32", MXV, self.V_L2, self.V_LT); self.pk("v_pk_add_f32", MXV + 2, self.V_AM2, self.V_AT)
        self.red_write(MXV, MXV + 2, MXV + 6)
        a("  s_waitcnt lgkmcnt(0)")
        if not cfg.gdiag: self.stamp(1)
        a("  s_barrier")
        self.stamp(6)
        self.pv_final()
        a("L_spub:        ; partial result of this workgroup")
        self.stamp(7)
        self.publish()
        self.cstamp(8)
        self.stamp(8)
        if cfg.cut >= 1: a("  s_branch L_sdone")
        self.reducer_index()
        a(f"  s_cmp_ge_u32 s{S_RHO}, 128\n  s_cbranch_scc1 L_sdone")
        self.reducer()
        a("L_sdone:")
        self.stamp(9); self.stamp_flush((5, 6, 8, (0, 1, 3, 5, 6, 7, 8, 9)))
        a("  s_endpgm")
        if cfg.zref:
            a("L_slow1:       ; a logit of tiles 0..7 left the range of the zero reference: exact maximum\n  s_waitcnt lgkmcnt(0)")
            a(f"  v_mov_b32 v{self.V_M}, 0xff800000")
            for r in range(4): a(f"  v_mov_b32 v{self.V_LT+r}, 0")
            self.call_batch(8, 0, 0, 0, False)
            if cfg.pvfuse:
                a(f"  s_cmp_ge_u32 s{S_WAVE}, 6\n  s_cbranch_scc1 L_safter1")
                a(CALL + "L_fuseH")
            a("  s_branch L_safter1")
        a("L_slow:        ; a later logit left the range of the reference: tiles 8..17 with exact maxima\n  s_waitcnt lgkmcnt(0)")
        self.call_batch(4, 4, 8, 4, False)
        self.call_batch(6, 0, 0, 6, True)
        self.sums_read(); self.sums_math()
        a("  s_branch L_spub")
        self.sp_sub(); self.sphase_sub(); self.batch_sub()
        self.fuse_sub(1, 10, "L_fuseR1", "drain"); self.fuse_sub(2, 5, "L_fuseR2", "drain")
        if cfg.pvfuse: self.fuse_sub(0, 10, "L_fuseH", "hold")
        elif cfg.prefuse: self.fuse_sub(0, 5, "L_fuseH", "hold")
        else: self.fuse_sub(0, 15, "L_fuseR0", "drain")
        self.fuse_sub(0, d, "L_fuse0"); self.fuse_sub(1, d, "L_fuse1")
        if cfg.dlate != d: self.fuse_sub(0, cfg.dlate, "L_fuseL0"); self.fuse_sub(1, cfg.dlate, "L_fuseL1")

    def publish_setup(self):
        a = self.a
        T0, T1, T2 = self.V_T0, self.V_T1, self.V_T2
        PA0, TAGB = self.V_PUB, self.V_PUB + 1
        a(f"  v_and_b32 v{T0}, 7, v0\n  v_lshlrev_b32 v{T0}, 3, v{T0}\n  v_add_u32 v{T0}, s{S_WAVE}, v{T0}\n  s_mov_b32 s62, {PART_STRIDE}\n  v_mul_lo_u32 v{T0}, v{T0}, s62")
        a(f"  v_bfe_u32 v{T1}, v0, 3, 1\n  v_lshl_add_u32 v{T0}, v{T1}, 6, v{T0}\n  v_lshrrev_b32 v{T1}, 4, v0\n  v_lshl_add_u32 v{PA0}, v{T1}, 4, v{T0}")
        a(f"  s_mov_b32 s62, {KEYC}\n  v_mul_lo_u32 v{T1}, v{T1}, s62\n  v_add_u32 v{TAGB}, s{S_NONCE}, v{T1}")
        a(f"  v_and_b32 v{T0}, 15, v0\n  v_lshlrev_b32 v{T0}, 6, v{T0}\n  v_bfe_u32 v{T1}, v0, 4, 1\n  v_lshl_add_u32 v{T0}, v{T1}, 2, v{T0}")
        a(f"  s_lshl_b32 s62, s{S_WAVE}, 3\n  s_add_u32 s62, s62, {RED}\n  v_add_u32 v{self.V_PUB+2}, s62, v{T0}")
        a(f"  v_and_b32 v{T0}, 15, v0\n  v_lshlrev_b32 v{T0}, 6, v{T0}\n  v_add_u32 v{self.V_PUB+3}, {RED}, v{T0}")

    def publish(self):
        a = self.a; cfg = self.cfg
        A, ACC, R = self.V_A, self.V_ACC, self.V_SR
        PA0, TAGB = self.V_PUB, self.V_PUB + 1
        UA, UB, TB = A + 24, A + 28, A + 32
        a(f"  s_lshl_b32 s62, s{S_IDX}, 7\n  s_add_u32 s62, s62, {PART_OFF}\n  s_add_u32 s63, s62, {64*PART_STRIDE}")
        a(f"  v_mov_b32 v{UA+3}, s{S_NONCE}\n  v_xor_b32 v{UB+3}, v{R+6}, v{TAGB}")
        for i in range(0, 12, 2): self.pk("v_pk_fma_f32", ACC + i, ACC + i, R + 2, R + 4, bc=(1, 2), neg=(2,))
        for i in range(3): a(f"  v_cvt_pk_f16_f32 v{UA+i}, v{ACC+2*i}, v{ACC+2*i+1}")
        for i in range(3): a(f"  v_cvt_pk_f16_f32 v{UB+i}, v{ACC+6+2*i}, v{ACC+7+2*i}")
        for i in range(4): a(f"  v_mov_b32 v{TB+i}, v{UB+i}")
        for i in range(3): a(f"  v_mov_b32_dpp v{UB+i}, v{UA+i} row_ror:8 row_mask:0xf bank_mask:0x3")
        a(f"  v_mov_b32_dpp v{UB+3}, v{UA+3} quad_perm:[0,1,2,3] row_mask:0xf bank_mask:0x3")
        for i in range(4): a(f"  v_mov_b32_dpp v{UA+i}, v{TB+i} row_ror:8 row_mask:0xf bank_mask:0xc")
        a(f"  buffer_store_dwordx4 {vr(UA)}, v{PA0}, {sr(R_WS)}, s62 offen sc1")
        a(f"  buffer_store_dwordx4 {vr(UB)}, v{PA0}, {sr(R_WS)}, s63 offen sc1")

    def reducer_index(self):
        a = self.a; cfg = self.cfg
        if cfg.redsel == 0:
            a(f"  s_mov_b32 s{S_RHO}, s{S_IDX}")
            return
        assert cfg.hnx == 4 and cfg.hx0 == 0
        a("  s_and_b32 s60, s2, 7\n  s_lshr_b32 s61, s2, 3")
        a("  s_and_b32 s62, s60, 3\n  s_cmp_ge_u32 s60, 4\n  s_cselect_b32 s63, 1, 0")
        a("  s_lshl_b32 s64, s61, 2\n  s_add_u32 s64, s64, s62")
        a("  s_sub_u32 s65, s64, 24")
        if cfg.redsel == 1:
            a(f"  s_add_u32 s64, s64, 104\n  s_cmp_eq_u32 s63, 0\n  s_cselect_b32 s{S_RHO}, s65, s64")
        else:
            a(f"  s_add_u32 s65, s65, 124\n  s_cmp_eq_u32 s63, 0\n  s_cselect_b32 s{S_RHO}, s65, s64")

    def reducer_addr(self):
        a = self.a
        AD, T0, T1, VM, SA, X, Y, KEY = self.RV
        MASK = 40
        a(f"  v_lshrrev_b32 v{T0}, 3, v0\n  s_lshl_b32 s62, s{S_WAVE}, 5\n  v_add_u32 v{VM}, s62, v{T0}")
        a(f"  v_and_b32 v{T1}, 7, v0\n  v_lshlrev_b32 v{T1}, 4, v{T1}\n  s_mov_b32 s62, {NS}")
        for it in range(4):
            a(f"  v_add_u32 v{T0}, {8*it}, v{VM}\n  v_cmp_gt_u32 s[{MASK+2*it}:{MASK+2*it+1}], s62, v{T0}\n  v_cndmask_b32 v{T0}, 0, v{T0}, s[{MASK+2*it}:{MASK+2*it+1}]")
            a(f"  v_lshl_add_u32 v{AD+it}, v{T0}, 7, v{T1}")

    def reducer_setup(self):
        a = self.a
        AD, T0, T1, VM, SA, X, Y, KEY = self.RV
        a(f"  v_and_b32 v{T0}, 3, v0\n  v_bfe_u32 v{T1}, v0, 2, 1\n  v_mul_u32_u24 v{T0}, v{T0}, v{T1}\n  s_mov_b32 s62, {KEYC}\n  v_mul_lo_u32 v{T0}, v{T0}, s62\n  v_add_u32 v{KEY}, s{S_NONCE}, v{T0}")
        a(f"  v_lshrrev_b32 v{T0}, 4, v0\n  v_and_b32 v{T1}, 1, v{T0}\n  v_lshlrev_b32 v{T1}, 1, v{T1}\n  v_lshrrev_b32 v{X}, 1, v{T0}\n  v_add_u32 v{T1}, v{T1}, v{X}")
        a(f"  v_bfe_u32 v{X}, v0, 2, 1\n  v_mul_u32_u24 v{X}, 3, v{X}\n  v_add_u32 v{T1}, v{T1}, v{X}")
        a(f"  v_lshrrev_b32 v{X}, 1, v{T1}\n  v_lshlrev_b32 v{X}, 4, v{X}\n  v_and_b32 v{T1}, 1, v{T1}\n  v_lshl_add_u32 v{X}, v{T1}, 1, v{X}")
        a(f"  v_and_b32 v{T1}, 3, v0\n  v_lshl_add_u32 v{X}, v{T1}, 2, v{X}")
        a(f"  s_and_b32 s62, s{S_RHO}, 7\n  s_mul_i32 s62, s62, 48\n  v_add_u32 v{X}, s62, v{X}\n  v_lshlrev_b32 v{SA}, 1, v{X}")
        a(f"  v_lshrrev_b32 v{T1}, 4, v0\n  v_lshlrev_b32 v{T1}, 3, v{T1}\n  v_and_b32 v{X}, 7, v0\n  v_add_u32 v{T1}, v{T1}, v{X}\n  v_lshlrev_b32 v{Y}, 3, v{T1}")
        a(f"  s_lshl_b32 s62, s{S_WAVE}, 8\n  s_add_u32 s62, s62, {RED2}\n  v_add_u32 v{X}, s62, v{Y}\n  v_add_u32 v{Y}, {RED2}, v{Y}")

    RV = (80, 84, 85, 86, 87, 88, 89, 90)

    def reducer(self):
        a = self.a; cfg = self.cfg
        D, E, W, V = 16, 32, 40, 44
        AD, T0, T1, VM, SA, X, Y, KEY = self.RV
        MASK = 40
        BAD = 52
        self.reducer_addr()
        if cfg.rack: a("  s_waitcnt vmcnt(0)")
        if cfg.rdelay: a(f"  s_sleep {cfg.rdelay}")
        if cfg.rdiag: self.stamp(1)
        a(f"  s_mul_i32 s62, s{S_RHO}, {PART_STRIDE}\n  s_add_u32 s62, s62, {PART_OFF}")
        for it in range(4): a(f"  buffer_load_dwordx4 {vr(D+4*it)}, v{AD+it}, {sr(R_WS)}, s62 offen sc1")
        a("  s_mov_b32 s63, s62")
        self.reducer_setup()
        a("  s_mov_b32 s62, s63")
        for it in range(4): a(f"  v_mov_b32 v{E+2*it+1}, 0")
        lp, ck, dn = self.lab("red"), self.lab("redc"), self.lab("redd")
        BADS = (48, 50, 52, 54)
        a(f"  s_mov_b32 s{S_SPIN}, 0\n  s_branch {ck}\n{lp}:")
        for it in range(4):
            sk = self.lab("skipld")
            a(f"  s_mov_b64 exec, s[{BADS[it]}:{BADS[it]+1}]\n  s_cbranch_execz {sk}")
            a(f"  buffer_load_dwordx4 {vr(D+4*it)}, v{AD+it}, {sr(R_WS)}, s62 offen sc1")
            a(f"{sk}:")
        a("  s_mov_b64 exec, -1")
        self.spin_guard(dn)
        a(f"{ck}:\n  s_waitcnt vmcnt(0)")
        for it in range(4): a(f"  v_xor_b32 v{E+2*it}, v{KEY}, v{D+4*it+3}")
        for it in range(4): a(f"  v_mov_b32_dpp v{E+2*it+1}, v{E+2*it} quad_perm:[0,0,0,0] row_mask:0xf bank_mask:0xa")
        for it in range(4): a(f"  v_cmp_ne_u32 s[{BADS[it]}:{BADS[it]+1}], v{E+2*it}, v{E+2*it+1}")
        a(f"  s_or_b64 s[60:61], s[48:49], s[50:51]\n  s_or_b64 vcc, s[52:53], s[54:55]\n  s_or_b64 s[60:61], s[60:61], vcc\n  s_cbranch_scc0 {dn}")
        if cfg.selpoll == 2:
            for it in range(4): a(f"  v_xor_b32 v{W+it}, v{E+2*it}, v{E+2*it+1}")
            for ctrl in ("row_half_mirror", "quad_perm:[1,0,3,2]", "quad_perm:[2,3,0,1]"):
                for it in range(4): a(f"  v_or_b32_dpp v{W+it}, v{W+it}, v{W+it} {ctrl} row_mask:0xf bank_mask:0xf")
            for it in range(4): a(f"  v_cmp_ne_u32 s[{BADS[it]}:{BADS[it]+1}], 0, v{W+it}")
        else:
            for it in range(4):
                b = BADS[it]
                if cfg.selpoll: a(f"  s_cmp_lg_u64 s[{b}:{b+1}], 0\n  s_cselect_b64 s[{b}:{b+1}], -1, 0")
                else: a(f"  s_mov_b64 s[{b}:{b+1}], -1")
        if cfg.rsleep: a(f"  s_sleep {cfg.rsleep}")
        a(f"  s_branch {lp}")
        a(f"{dn}:\n  s_waitcnt vmcnt(0)")
        if cfg.rdiag:
            self.stamp(2)
            a(f"  s_mov_b32 s{STAMP0+6}, s{S_SPIN}")
        for it in range(4): a(f"  v_mov_b32_dpp v{E+2*it}, v{E+2*it} row_shl:4 row_mask:0xf bank_mask:0x5")
        a(f"  v_mov_b32 v{T1}, 0xff800000")
        for it in range(4):
            a(f"  v_cndmask_b32 v{E+2*it}, v{T1}, v{E+2*it}, s[{MASK+2*it}:{MASK+2*it+1}]")
        a(f"  v_max3_f32 v{T0}, v{E}, v{E+2}, v{E+4}\n  v_max_f32 v{T0}, v{T0}, v{E+6}")
        a(f"  v_max_f32_dpp v{T0}, v{T0}, v{T0} row_ror:8 row_mask:0xf bank_mask:0xf")
        self.allred_g(T0, T1, "v_max_f32")
        for it in range(4): a(f"  v_sub_f32 v{W+it}, v{E+2*it}, v{T0}")
        for it in range(4): a(f"  v_exp_f32 v{W+it}, v{W+it}")
        a(f"  s_lshl_b32 s62, s{S_WAVE}, 2\n  s_add_u32 s62, s62, {MXW}\n  v_mov_b32 v{T1}, s62\n  ds_write_b32 v{T1}, v{T0}")
        for it in range(4):
            for q in range(3):
                c0 = "0" if it == 0 else f"v{V+2*q}"; c1 = "0" if it == 0 else f"v{V+2*q+1}"
                a(f"  v_fma_mix_f32 v{V+2*q}, v{D+4*it+q}, v{W+it}, {c0} op_sel_hi:[1,0,0]")
                a(f"  v_fma_mix_f32 v{V+2*q+1}, v{D+4*it+q}, v{W+it}, {c1} op_sel:[1,0,0] op_sel_hi:[1,0,0]")
        self.pk("v_pk_add_f32", W, W, W + 2)
        a(f"  v_add_f32 v{V+6}, v{W}, v{W+1}\n  v_mov_b32 v{V+7}, 0")
        for x, y in ((0, 2), (1, 3), (4, 6), (5, 7)): a(f"  v_permlane32_swap_b32 v{V+x}, v{V+y}")
        for x, y in ((0, 2), (1, 3), (4, 6), (5, 7)): a(f"  v_add_f32 v{V+x}, v{V+x}, v{V+y}")
        for x, y in ((0, 4), (1, 5)): a(f"  v_permlane16_swap_b32 v{V+x}, v{V+y}")
        for x, y in ((0, 4), (1, 5)): a(f"  v_add_f32 v{V+x}, v{V+x}, v{V+y}")
        for x in (0, 1): a(f"  v_add_f32_dpp v{V+x}, v{V+x}, v{V+x} row_ror:8 row_mask:0xf bank_mask:0xf")
        a(f"  ds_write_b64 v{X}, {vr(V,2)}\n  s_waitcnt lgkmcnt(0)")
        if cfg.rdiag: self.stamp(4)
        a("  s_barrier")
        if cfg.rdiag: self.stamp(5)
        a(f"  s_cmp_lg_u32 s{S_WAVE}, 0\n  s_cbranch_scc1 L_sdone")
        a(f"  v_mov_b32 v{T1}, {MXW}\n  ds_read_b128 {vr(W)}, v{T1}\n  ds_read_b128 {vr(W+4)}, v{T1} offset:16")
        for w in range(8): a(f"  ds_read_b64 {vr(D+2*w,2)}, v{Y} offset:{256*w}")
        a(f"  s_lshr_b32 s63, s{S_RHO}, 3\n  s_mul_i32 s63, s63, 768\n  s_add_u32 s63, s63, {RCTX_OFF}")
        a(f"  v_and_b32 v{X}, 8, v0\n  v_cmp_eq_u32 vcc, 0, v{X}\n  v_cmp_gt_u32 s[64:65], 48, v0\n  s_and_b64 s[64:65], vcc, s[64:65]")
        a("  s_waitcnt lgkmcnt(8)")
        a(f"  v_max3_f32 v{T0}, v{W}, v{W+1}, v{W+2}\n  v_max3_f32 v{T1}, v{W+3}, v{W+4}, v{W+5}\n  v_max3_f32 v{T0}, v{T0}, v{W+6}, v{W+7}\n  v_max_f32 v{T0}, v{T0}, v{T1}")
        for w in range(0, 8, 2): self.pk("v_pk_add_f32", W + w, W + w, T0, bc=(1,), neg=(1,))
        for w in range(8): a(f"  v_exp_f32 v{W+w}, v{W+w}")
        a("  s_waitcnt lgkmcnt(0)")
        for w in range(8):
            base = W + (w & ~1)
            sel = "op_sel:[0,1,0] op_sel_hi:[1,1,1]" if w & 1 else "op_sel_hi:[1,0,1]"
            if w == 0: a(f"  v_pk_mul_f32 {vr(E,2)}, {vr(D,2)}, {vr(base,2)} op_sel_hi:[1,0]")
            else: a(f"  v_pk_fma_f32 {vr(E,2)}, {vr(D+2*w,2)}, {vr(base,2)}, {vr(E,2)} {sel}")
        a(f"  v_readlane_b32 s62, v{E}, 48\n  v_rcp_f32 v{T0}, s62")
        self.pk("v_pk_mul_f32", E, E, T0, bc=(1,))
        a(f"  v_cvt_pk_bf16_f32 v{E}, v{E}, v{E+1}\n  v_min_u32 v{E}, -2, v{E}")
        a("  s_mov_b64 exec, s[64:65]")
        a(f"  buffer_store_dword v{E}, v{SA}, {sr(R_WS)}, s63 offen sc1")
        a("  s_mov_b64 exec, -1")

    def img_dma(self, srdr, lds, soff, vs0, vs1):
        for th in range(3):
            for q4 in range(4):
                self.img_dma1(srdr, lds, soff, vs0, vs1, th, q4)
    def img_dma1(self, srdr, lds, soff, vs0, vs1, th, q4, ldsreg=None):
        a = self.a
        if ldsreg is None: a(f"  s_mov_b32 m0, {lds + th*4096 + q4*1024}")
        else: a(f"  s_add_u32 m0, s{ldsreg}, {th*4096 + q4*1024}")
        a(f"  s_add_u32 s62, s{soff}, {q4*3072 + th*256}")
        a(f"  buffer_load_dwordx4 v{vs1 if q4 & 1 else vs0}, {sr(srdr)}, s62 offen{' nt' if self.cfg.hnt else ''} lds")

    def helper(self):
        a = self.a; cfg = self.cfg
        L16, N, Gq, T0, T1, T2, T3 = 1, 2, 3, 4, 5, 6, 7
        FL, TA, DS, VS0, VS1, ZERO = 8, 10, 11, 12, 13, 14
        IA = 16
        QF, AF, TR = 20, 68, 160
        WKF = 116
        D1, D2, D3, ST, ONES = 208, 212, 216, 220, 224
        a("L_helper:      ; ---------------- helpers")
        if cfg.streamonly == 1:
            a("  s_waitcnt lgkmcnt(0)")
            srd(a, R_WS, P_WS, WS_BYTES)
            a("  s_branch L_hdone")
        a(f"  v_lshlrev_b32 v{L16}, 4, v0\n  v_and_b32 v{N}, 15, v0\n  v_lshrrev_b32 v{Gq}, 4, v0\n  v_mov_b32 v{ZERO}, 0")
        a(f"  v_lshlrev_b32 v{T0}, 1, v{Gq}\n  v_xor_b32 v{T0}, v{N}, v{T0}\n  v_mul_u32_u24 v{T1}, 768, v{Gq}")
        a(f"  v_lshl_add_u32 v{VS0}, v{T0}, 4, v{T1}\n  v_xor_b32 v{T0}, 8, v{T0}\n  v_lshl_add_u32 v{VS1}, v{T0}, 4, v{T1}")
        a(f"  v_lshrrev_b32 v{T0}, 1, v0\n  v_mul_u32_u24 v{T0}, 768, v{T0}\n  v_and_b32 v{T1}, 1, v0\n  v_lshl_add_u32 v{T0}, v{T1}, 4, v{T0}")
        a(f"  s_lshl_b32 s61, s{S_IDX}, 5\n  v_add_u32 v{DS}, s61, v{T0}")
        a(f"  s_lshr_b32 s60, s{S_IDX}, 1\n  s_lshl_b32 s60, s60, 10\n  s_and_b32 s61, s{S_IDX}, 1\n  s_lshl_b32 s61, s61, 9\n  s_add_u32 s60, s60, s61")
        a(f"  v_lshrrev_b32 v{T0}, 1, v{Gq}\n  v_lshlrev_b32 v{T0}, 8, v{T0}\n  v_lshl_add_u32 v{T0}, v{N}, 4, v{T0}")
        a(f"  v_and_b32 v{T1}, 1, v{Gq}\n  v_lshl_add_u32 v{T0}, v{T1}, 3, v{T0}\n  v_add_u32 v{FL}, s60, v{T0}")
        if cfg.hdiag: self.stamp(8)
        a("  s_waitcnt lgkmcnt(0)")
        if cfg.hdiag: self.stamp(2)
        srd(a, R_WS, P_WS, WS_BYTES)
        a(f"  s_cmp_eq_u32 s{S_WAVE}, 1\n  s_cbranch_scc1 L_h1a")
        a(f"  s_cmp_eq_u32 s{S_WAVE}, 0\n  s_cbranch_scc1 L_h0a")
        a("  s_branch L_hb1")
        a("L_h1a:")
        srd(a, R_B, P_WQ, W_BYTES)
        for k in range(12):
            a(f"  s_mov_b32 m0, {H_WQI + k*1024}\n  s_mov_b32 s62, {k*32*768}\n  buffer_load_dwordx4 v{DS}, {sr(R_B)}, s62 offen{' nt' if cfg.hnt else ''} lds")
        a(f"  buffer_load_dword v9, v{ZERO}, {sr(R_WS)}, 0 offen offset:{NONCE_OFF} sc1")
        a(f"  v_mov_b32 v{T0}, -1\n  v_mov_b32 v{T0+1}, -1\n  v_mov_b32 v{T0+2}, -1\n  v_mov_b32 v{T0+3}, -1")
        a(f"  s_lshl_b32 s60, s{S_IDX}, 9\n  s_add_u32 s62, s60, {RQ_OFF}\n  s_add_u32 s63, s60, {RQK_OFF}\n  s_add_u32 s61, s60, {RCTX_OFF}")
        a("  s_mov_b32 s64, -1\n  s_mov_b32 s65, 0\n  s_mov_b64 exec, s[64:65]")
        for r in ("s62", "s63", "s61"): a(f"  buffer_store_dwordx4 {vr(T0)}, v{L16}, {sr(R_WS)}, {r} offen sc1")
        a("  s_mov_b64 exec, -1")
        a("  s_waitcnt vmcnt(4)\n  s_branch L_hb1")
        a("L_h0a:")
        srd(a, R_A, P_Q, Q_BYTES)
        a("  s_mov_b32 s60, 0")
        self.img_dma(R_A, H_QI, 60, VS0, VS1)
        a(f"  buffer_load_dword v15, v{ZERO}, {sr(R_WS)}, 0 offen offset:{NONCE_OFF} sc1")
        a("  s_waitcnt vmcnt(0)\n  s_branch L_hb1")
        a("L_hb1:")
        self.stamp(7)
        T0, T1, T2 = 228, 229, 230
        srd(a, R_A, P_Q, Q_BYTES); srd(a, R_D, P_WV, W_BYTES); srd(a, R_F, P_OUT, Q_BYTES)
        a(f"  v_and_b32 v{T0}, 7, v{N}\n  v_lshlrev_b32 v{T0}, 1, v{T0}\n  v_lshlrev_b32 v{T1}, 8, v{N}")
        for m in range(4):
            a(f"  v_add_u32 v{T2}, {4*m}, v{Gq}\n  v_xor_b32 v{T2}, v{T2}, v{T0}\n  v_lshl_add_u32 v{IA+m}, v{T2}, 4, v{T1}")
        a(f"  v_lshrrev_b32 v{T0}, 2, v{N}\n  v_lshl_add_u32 v{T0}, v{Gq}, 3, v{T0}\n  v_lshlrev_b32 v{T0}, 5, v{T0}")
        a(f"  v_and_b32 v{T1}, 3, v{N}\n  v_lshl_add_u32 v{TA}, v{T1}, 3, v{T0}")
        for i in range(4): a(f"  v_mov_b32 v{ONES+i}, 0x3f803f80")
        a("  s_barrier")
        T0, T1, T2 = 4, 5, 6
        self.stamp(1)
        if cfg.cut >= 3: a("  s_branch L_hdone")
        a(f"  s_cmp_eq_u32 s{S_WAVE}, 0\n  s_cbranch_scc1 L_h0b")
        n1 = self.lab("notw1")
        a(f"  s_cmp_eq_u32 s{S_WAVE}, 1\n  s_cbranch_scc0 {n1}")
        a(f"  s_waitcnt vmcnt(0)\n  v_add_u32 v9, 1, v9\n  s_lshl_b32 s62, s{S_IDX}, 7\n  s_add_u32 s62, s62, {FLAG_OFF}\n  s_mov_b64 exec, 1")
        a(f"  buffer_store_dword v9, v{ZERO}, {sr(R_WS)}, s62 offen sc1\n  s_mov_b64 exec, -1\n  s_branch L_hb1c\n{n1}:")
        a(f"  s_cmp_eq_u32 s{S_WAVE}, 3\n  s_cbranch_scc1 L_h3b")
        a(f"  s_cmp_eq_u32 s{S_WAVE}, 2\n  s_cbranch_scc0 L_hb1c")
        srd(a, R_C, P_WK, W_BYTES)
        a(f"  s_mul_i32 s60, s{S_IDX}, {16*768}")
        self.img_dma(R_C, H_WKI, 60, VS0, VS1)
        a("  s_branch L_hb1c")
        a("L_h3b:")
        for j in range(12):
            a(f"  ds_read_b128 {vr(QF+4*j)}, v{IA+(j&3)} offset:{H_QI + (j>>2)*4096}")
        for j in range(12):
            a(f"  s_waitcnt lgkmcnt({11-j})")
            for i in range(4):
                a(f"  v_dot2_f32_bf16 v{ST+i}, v{QF+4*j+i}, v{QF+4*j+i}, {'0' if j == 0 else 'v%d' % (ST+i)}")
                a(f"  v_dot2_f32_bf16 v{D3+i}, v{QF+4*j+i}, v{ONES}, {'0' if j == 0 else 'v%d' % (D3+i)}")
        self.pk("v_pk_add_f32", ST, ST, ST + 2); self.pk("v_pk_add_f32", D3, D3, D3 + 2)
        a(f"  v_add_f32 v{ST}, v{ST}, v{ST+1}\n  v_add_f32 v{ST+1}, v{D3}, v{D3+1}")
        a(f"  v_permlane16_swap_b32 v{ST}, v{ST+1}\n  v_add_f32 v{ST}, v{ST}, v{ST+1}")
        a(f"  v_mov_b32 v{ST+1}, v{ST}\n  v_permlane32_swap_b32 v{ST+1}, v{ST}\n  v_add_f32 v{ST}, v{ST}, v{ST+1}")
        a(f"  v_mul_f32 v{ST}, {f32(1.0/384.0)}, v{ST}")
        a(f"  v_mov_b32 v{ST+1}, v{ST}\n  v_mov_b32 v{ST+2}, v{ST}\n  v_permlane16_swap_b32 v{ST+1}, v{ST+2}")
        a(f"  v_fma_f32 v{ST+3}, -v{ST+2}, v{ST+2}, v{ST+1}\n  v_max_f32 v{ST+3}, 0, v{ST+3}\n  v_add_f32 v{ST+3}, {f32(1e-5)}, v{ST+3}\n  v_rsq_f32 v{ST+3}, v{ST+3}")
        a(f"  v_lshlrev_b32 v{T0}, 3, v{N}\n  v_add_u32 v{T0}, {H_QS}, v{T0}\n  ds_write_b64 v{T0}, {vr(ST+2,2)}\n  s_waitcnt lgkmcnt(0)")
        a("L_hb1c:\n  s_barrier")
        a("  s_branch L_hb2")
        a("L_h0b:")
        a(f"  v_add_u32 v15, 1, v15")
        self.flag_addr(T3)
        a(f"  v_readfirstlane_b32 s{S_NONCE}, v15\n  buffer_load_dword v9, v{T3}, {sr(R_WS)}, 0 offen sc1")
        for j in range(12):
            a(f"  ds_read_b128 {vr(QF+4*j)}, v{IA+(j&3)} offset:{H_QI + (j>>2)*4096}")
        def tr(j):
            a(f"  ds_read_b64_tr_b16 {vr(TR+4*j,2)}, v{TA} offset:{H_WQI + j*1024}")
            a(f"  ds_read_b64_tr_b16 {vr(TR+4*j+2,2)}, v{TA} offset:{H_WQI + j*1024 + 128}")
        a("  s_waitcnt lgkmcnt(3)")
        for j in range(6): tr(j)
        for j in range(12):
            left = min(12, j + 6) - j - 1
            a(f"  s_waitcnt lgkmcnt({2*left})")
            if j + 6 < 12: tr(j + 6)
            a(f"  v_mfma_f32_16x16x32_bf16 {vr(D1)}, {vr(TR+4*j)}, {vr(QF+4*j)}, {'0' if j == 0 else vr(D1)}")
            a(f"  v_mfma_f32_16x16x32_bf16 {vr(D2)}, {vr(TR+4*j)}, {vr(ONES)}, {'0' if j == 0 else vr(D2)}")
        a("  s_barrier")
        a(f"  v_lshlrev_b32 v{T0}, 3, v{N}\n  v_add_u32 v{T0}, {H_QS}, v{T0}\n  ds_read_b64 {vr(ST,2)}, v{T0}\n  s_waitcnt lgkmcnt(0)")
        for r in range(4): a(f"  v_fma_f32 v{D1+r}, -v{ST}, v{D2+r}, v{D1+r}")
        for r in range(4): a(f"  v_mul_f32 v{D1+r}, v{ST+1}, v{D1+r}")
        a(f"  v_cvt_pk_bf16_f32 v{D2}, v{D1}, v{D1+1}\n  v_cvt_pk_bf16_f32 v{D2+1}, v{D1+2}, v{D1+3}")
        a(f"  v_min_u32 v{D2}, -2, v{D2}\n  v_min_u32 v{D2+1}, -2, v{D2+1}\n  s_mov_b32 s62, {RQ_OFF}")
        a(f"  buffer_store_dwordx2 {vr(D2,2)}, v{FL}, {sr(R_WS)}, s62 offen sc1")
        self.stamp(2)
        hv = self.lab("haveflags")
        a(f"  s_waitcnt vmcnt(1)\n  v_cmp_ne_u32 vcc, s{S_NONCE}, v9\n  s_cbranch_vccz {hv}")
        self.wait_flags(9, T3)
        a(f"{hv}:\n  s_mov_b32 s62, {RQ_OFF}")
        if cfg.qdelay: a(f"  s_sleep {cfg.qdelay}")
        self.gather_frags(12, AF, L16, 62, T0, "q", sleep=cfg.qsleep)
        self.stamp(3)
        a("  s_barrier")
        for j in range(12):
            a(f"  ds_read_b128 {vr(WKF+4*j)}, v{IA+(j&3)} offset:{H_WKI + (j>>2)*4096}")
        for j in range(12):
            dd = D1 if j % 2 == 0 else D2
            a(f"  s_waitcnt lgkmcnt({11-j})")
            a(f"  v_mfma_f32_16x16x32_bf16 {vr(dd)}, {vr(WKF+4*j)}, {vr(AF+4*j)}, {'0' if j < 2 else vr(dd)}")
        sc = f32(384 ** -0.5 * LOG2E)
        for r in range(4): a(f"  v_add_f32 v{D1+r}, v{D1+r}, v{D2+r}")
        for r in range(4): a(f"  v_mul_f32 v{D1+r}, {sc}, v{D1+r}")
        a(f"  v_cvt_pk_bf16_f32 v{D2}, v{D1}, v{D1+1}\n  v_cvt_pk_bf16_f32 v{D2+1}, v{D1+2}, v{D1+3}")
        a(f"  v_min_u32 v{D2}, -2, v{D2}\n  v_min_u32 v{D2+1}, -2, v{D2+1}\n  s_mov_b32 s62, {RQK_OFF}")
        a(f"  buffer_store_dwordx2 {vr(D2,2)}, v{FL}, {sr(R_WS)}, s62 offen sc1")
        self.stamp(4)
        a("  s_branch L_hwvo")
        a("L_hb2:\n  s_waitcnt vmcnt(0)\n  s_barrier")
        a("L_hwvo:")
        if cfg.cut >= 2: a("  s_branch L_hdone")
        a(f"  s_cmp_eq_u32 s{S_WAVE}, 3\n  s_cbranch_scc0 L_hwv2")
        srd(a, R_E, P_WO, W_BYTES)
        for k in range(12):
            a(f"  s_mov_b32 m0, {H_WOI + k*1024}\n  s_mov_b32 s62, {k*32*768}\n  buffer_load_dwordx4 v{DS}, {sr(R_E)}, s62 offen{' nt' if cfg.hnt else ''} lds")
        a("L_hwv2:")
        a(f"  s_mul_i32 s60, s{S_WAVE}, {48*768}\n  s_mul_i32 s61, s{S_WAVE}, 12288\n  s_add_u32 s61, s61, {H_WV}")
        for th in range(3):
            for q4 in range(4): self.img_dma1(R_D, 0, 60, VS0, VS1, th, q4, ldsreg=61)
        a("  s_waitcnt vmcnt(12)\n  s_barrier")
        for j in range(12):
            a(f"  ds_read_b64_tr_b16 {vr(TR+4*j,2)}, v{TA} offset:{H_WOI + j*1024}")
            a(f"  ds_read_b64_tr_b16 {vr(TR+4*j+2,2)}, v{TA} offset:{H_WOI + j*1024 + 128}")
            if j == 6: a("  s_waitcnt lgkmcnt(0)")
        for m in range(4): a(f"  v_add_u32 v{IA+m}, s61, v{IA+m}")
        a(f"  v_mul_u32_u24 v{T0}, 784, v{N}\n  v_lshl_add_u32 v{T0}, v{Gq}, 3, v{T0}\n  s_mul_i32 s62, s{S_WAVE}, 96\n  s_add_u32 s62, s62, {H_WT}\n  v_add_u32 v{T3}, s62, v{T0}")
        for tau in range(3):
            if tau < 2: a(f"  s_add_u32 s60, s60, {16*768}")
            for th in range(3):
                a(f"  s_waitcnt vmcnt({8 if tau < 2 else 8 - 4*th})")
                for m in range(4): a(f"  ds_read_b128 {vr(WKF+4*m)}, v{IA+m} offset:{th*4096}")
                a("  s_waitcnt lgkmcnt(0)")
                if tau < 2:
                    for q4 in range(4): self.img_dma1(R_D, 0, 60, VS0, VS1, th, q4, ldsreg=61)
                for m in range(4):
                    j = 4 * th + m
                    a(f"  v_mfma_f32_16x16x32_bf16 {vr(D1)}, {vr(WKF+4*m)}, {vr(TR+4*j)}, {'0' if j == 0 else vr(D1)}")
            a(f"  v_cvt_pk_bf16_f32 v{D2}, v{D1}, v{D1+1}\n  v_cvt_pk_bf16_f32 v{D2+1}, v{D1+2}, v{D1+3}")
            a(f"  ds_write_b64 v{T3}, {vr(D2,2)} offset:{tau*32}")
        a("  s_waitcnt lgkmcnt(0)\n  s_barrier")
        self.stamp(5)
        if cfg.cut >= 1: a("  s_branch L_hdone")
        a(f"  s_cmp_lg_u32 s{S_WAVE}, 0\n  s_cbranch_scc1 L_hdone")
        a(f"  v_mul_u32_u24 v{T0}, 784, v{N}\n  v_lshl_add_u32 v{T0}, v{Gq}, 4, v{T0}\n  v_add_u32 v{T0}, {H_WT}, v{T0}")
        for j in range(12): a(f"  ds_read_b128 {vr(WKF+4*j)}, v{T0} offset:{j*64}")
        a(f"  v_mul_u32_u24 v{T3}, 768, v{N}\n  v_lshl_add_u32 v{T3}, v{Gq}, 3, v{T3}\n  s_lshl_b32 s61, s{S_IDX}, 5")
        a(f"  buffer_load_dwordx2 {vr(QF,2)}, v{T3}, {sr(R_A)}, s61 offen")
        a("  s_waitcnt vmcnt(0) lgkmcnt(0)")
        a(f"  v_lshlrev_b32 v{QF+4}, 16, v{QF}\n  v_and_b32 v{QF+5}, 0xffff0000, v{QF}\n  v_lshlrev_b32 v{QF+6}, 16, v{QF+1}\n  v_and_b32 v{QF+7}, 0xffff0000, v{QF+1}")
        a(f"  v_mul_u32_u24 v{T2}, 768, v{N}\n  v_lshl_add_u32 v{T2}, v{Gq}, 4, v{T2}\n  s_mov_b32 s62, {RCTX_OFF}")
        if cfg.c1sleep:
            lp, dn = self.lab("c1"), self.lab("c1d")
            a(f"  s_mov_b32 s{S_SPIN}, 0\n{lp}:\n  buffer_load_dword v{AF}, v{T2}, {sr(R_WS)}, s62 offen sc1")
            self.spin_guard(dn)
            if cfg.call: a(f"  s_waitcnt vmcnt(0)\n  v_cmp_eq_u32 vcc, -1, v{AF}\n  s_cbranch_vccz {dn}\n  s_sleep {cfg.c1sleep}\n  s_branch {lp}\n{dn}:\n  s_waitcnt vmcnt(0)")
            else: a(f"  s_waitcnt vmcnt(0)\n  v_cmp_ne_u32 vcc, -1, v{AF}\n  s_cbranch_vccnz {dn}\n  s_sleep {cfg.c1sleep}\n  s_branch {lp}\n{dn}:\n  s_waitcnt vmcnt(0)")
        if cfg.cdelay: a(f"  s_sleep {cfg.cdelay}")
        self.gather_frags(12, AF, T2, 62, T0, "c", rowmajor=True, sleep=cfg.csleep)
        self.stamp(6)
        for j in range(12):
            dd = D1 if j % 2 == 0 else D2
            c1 = vr(QF+4) if j == 0 else ("0" if j == 1 else vr(dd))
            a(f"  v_mfma_f32_16x16x32_bf16 {vr(dd)}, {vr(WKF+4*j)}, {vr(AF+4*j)}, {c1}")
        for h in (0, 2): self.pk("v_pk_add_f32", D1 + h, D1 + h, D2 + h)
        a(f"  v_cvt_pk_bf16_f32 v{D2}, v{D1}, v{D1+1}\n  v_cvt_pk_bf16_f32 v{D2+1}, v{D1+2}, v{D1+3}")
        a(f"  buffer_store_dwordx2 {vr(D2,2)}, v{T3}, {sr(R_F)}, s61 offen")
        nn = self.lab("nononce")
        a(f"  s_cmp_lg_u32 s{S_IDX}, 0\n  s_cbranch_scc1 {nn}")
        a(f"  buffer_store_dword v15, v{ZERO}, {sr(R_WS)}, 0 offen offset:{NONCE_OFF} sc1\n{nn}:")
        a("L_hdone:")
        self.stamp(9); self.stamp_flush((0, 0, 2, (0, 1, 3, 4, 5, 6)))
        a("  s_endpgm")

    def collector(self):
        a = self.a
        a("L_collect:     ; ---------------- collector")
        a(f"  s_cmp_lg_u32 s{S_WAVE}, 0\n  s_cbranch_scc1 L_end\n  s_waitcnt lgkmcnt(0)")
        srd(a, R_WS, P_WS, WS_BYTES)
        a(f"  v_mov_b32 v2, 0\n  buffer_load_dword v3, v2, {sr(R_WS)}, 0 offen offset:{NONCE_OFF} sc1")
        self.flag_addr(4)
        a(f"  s_waitcnt vmcnt(0)\n  v_add_u32 v3, 1, v3\n  v_readfirstlane_b32 s{S_NONCE}, v3")
        self.wait_flags(5, 4)
        a(f"  s_mov_b32 s62, {GO_OFF}\n  s_mov_b64 exec, 1\n  buffer_store_dword v3, v2, {sr(R_WS)}, s62 offen sc1")
        a("  s_endpgm")

    def build(self):
        a = self.a
        hdr = open("standalone__detection_seg_dino__vision.s.ref").read().split("\n")
        for line in hdr:
            if line.startswith("; @launch"): break
            a(line)
        a("; @" + f"launch grid=(256,1,1) block=(512,1,1) lds={LDS_BYTES}")
        for line in HEADER.strip("\n").split("\n"): a(("; " + line).rstrip())
        a('.amdgcn_target "amdgcn-amd-amdhsa--gfx950"\n.text')
        a(f".globl {KNAME}\n.p2align 8\n.type {KNAME},@function\n{KNAME}:")
        n0 = len(a.L)
        self.prologue(); self.streamer(); self.helper(); self.collector()
        a("L_end:\n  s_endpgm\nL_code_end:")
        body, added = hazard.fix(a.L[n0:])
        a.L = a.L[:n0] + body
        a('.section .rodata,"a"\n.p2align 6')
        a(f".amdhsa_kernel {KNAME}")
        a("  .amdhsa_next_free_vgpr 256\n  .amdhsa_next_free_sgpr 102\n  .amdhsa_accum_offset 256")
        a("  .amdhsa_group_segment_fixed_size 0\n  .amdhsa_kernarg_size 80\n  .amdhsa_user_sgpr_count 2")
        a("  .amdhsa_user_sgpr_kernarg_segment_ptr 1\n  .amdhsa_system_sgpr_workgroup_id_x 1")
        a("  .amdhsa_float_denorm_mode_32 3")
        a(".end_amdhsa_kernel")
        return a.text(), added

def generate(path, **kw):
    cfg = Cfg()
    for k, v in kw.items(): setattr(cfg, k, v)
    text, added = G(cfg).build()
    open(path, "w").write(text)
    return added

if __name__ == "__main__":
    path = sys.argv[1] if len(sys.argv) > 1 else "standalone__detection_seg_dino__vision.s"
    kw = {}
    for x in sys.argv[2:]:
        k, v = x.split("="); kw[k] = eval(v)
    print("nops added:", generate(path, **kw))
```

```python
import sys, struct
from asmlib import Asm
import hazard

KNAME = "standalone__detection_seg_dino__vision_kernel"

NH, NS, NPAIR = 24, 228, 9
F0_BYTES, F1_BYTES, W_BYTES, Q_BYTES = 50331648, 12582912, 294912, 12288
WS_BYTES = 268435456

NONCE_OFF = 0
HINT_OFF = 1024
RQ_OFF, RQK_OFF, RCTX_OFF = 4096, 20480, 36864
GO_OFF = 53248
FLAG_OFF = 49152
LSE_OFF = 65536
PART_OFF = 131072
PART_STRIDE = NS * 128
STAMP_OFF = 8 << 20

SLOT = 12288
STG = 12 * SLOT
TOP = 13 * SLOT
STAT = TOP
NONCE_LDS = TOP + 2304
FLAG_LDS = TOP + 2308
QS_LDS = TOP + 2320
MXW = TOP + 2400
MX = TOP + 2560
RED = TOP + 3072
RED2 = STG + 8192
LDS_BYTES = 163840
H_QI, H_WKI, H_WQI, H_WOI, H_WT, H_WV = 0, 12288, 24576, 36864, 49152, 65536
H_QS = 61952

LAG_LIMIT = 40.0
LOW_LIMIT = -60.0
KEYC = 0x9e3779b1
LOG2E = 1.4426950408889634
def f32(x): return "0x%08x" % struct.unpack("<I", struct.pack("<f", x))[0]

HEADER = """
Cross-attention of 16 queries over 65536 layer-normalised positions, one persistent launch of 256 workgroups.
  out = q + softmax(LN(q) wq wk^T LN(x)^T / sqrt(C)) LN(x) wv wo,  x = bf16(f0 + upsample(f1))
The weights are associated as Qk = LN(q) wq wk^T (16x384) and Wvo = wv wo, so x is read once and never projected.
LN(x) enters through its row statistics: logit = rstd (x.Qk - mean sum(Qk)), context = (sum P' x - sum P' mean) / L.
Roles by workgroup id (placement matters for speed only):
  helpers   (24: ids 0,8,..,184)  Q slice -> all helpers -> Qk slice -> all streamers; Wvo^T slice; final product
  streamers (228)                 nine pairs of 16-position tiles each; the first 128 also reduce one slice of the context
  collector (id 252)              folds the helpers' flags into one word
Streamer: waves 0..5 fuse f0+f1 into bf16 tiles in a ring of 12 LDS slots and accumulate row statistics, wave 6 fetches Qk.
  S^T = X Qk^T per tile, P' = 2^(logit - ref) rstd, context^T += X^T P'^T with the channels split over the eight waves.
  Softmax reference: 0 for the first eight tiles, then unchanged, while every logit stays inside [ref-60, ref+40]
  (lower bound: first eight tiles); any logit outside sends the workgroup to the path with exact running maxima.
  Partial results leave normalised (f16) with their log-sum-exp; the reducers weigh them with the exact global maximum.
Hand-offs through d_ws, all with sc1 stores and sc1 loads:
  nonce  = word 0 of d_ws at entry + 1, read by every role, written back by helper 0 after the last hand-off
  Q, Qk, context: words are set to 0xffffffff by their helper first (flag = nonce once acknowledged), data never equals that
  partial lines: every 16-byte unit carries the nonce (A units) or lse ^ (nonce + g*K) (B units, four must agree)
  Every poll loop is bounded.  s_sleep occurs only as back-off of a consumer that polls lines other workgroups are about
  to write: a line read too early has to be invalidated again, which delays its writer and the next read.
"""

class Cfg:
    nt = True
    stamp = False
    depth = 4
    hx0 = 0
    hnx = 1
    hint = True
    codepf = True
    nostream = False
    dbgstamp = False
    pfrows = 4
    cut = 0
    lite = False
    trig_a = 2
    trig_b = 4
    qsleep = 4
    c1sleep = 6
    lag = True
    prefuse = False
    late = False
    sched = 1
    streamonly = False
    rsleep = 0
    csleep = 0
    ext7 = 1
    ext8 = 1
    zref = True
    redsel = 0
    fdiag = False
    late8 = False
    dlate = 5
    xlate = 3
    pvfuse = False
    rdelay = 34
    rack = False
    cdelay = 16
    qdelay = 0
    kdelay = 0
    call = False
    noatom = False
    hdiag = False
    gdiag = False
    rdiag = False
    bdiag_sb = 4
    bdiag = False
    selpoll = 2
    hnt = False

S_WAVE = 3
P_Q, P_F0, P_F1, P_WQ, P_WK, P_WV, P_WO, P_OUT, P_DBG, P_WS = 4, 6, 8, 10, 12, 14, 16, 18, 20, 22
R_A, R_B, R_WS, R_DBG, R_C, R_D, R_E, R_F = 24, 28, 32, 36, 40, 44, 48, 52
S_IDX, S_ONELO, S_ONEHI = 56, 57, 58
S_K, S_QBASE, S_LINK = 66, 67, 68
S_NONCE, S_SPIN = 70, 71
S_TI, S_TB, S_PB, S_BIAS, S_T, S_P0, S_SB, S_W0, S_NP, S_PVB, S_LAST = 72, 73, 74, 75, 76, 77, 78, 79, 80, 81, 59
S_SST = 48
S_STA, S_PAIR, S_POFF = 49, 52, 53
S_LINK2 = 54
S_LOW = 47
S_RHO = 79
S_QMASK = 50
SETA, SETB = 40, 44
STAMP0 = 82
SPIN_CAP = 200000
import os
if os.environ.get('CAP'): SPIN_CAP = int(os.environ['CAP'])

def srd(a, s, ptr, nbytes):
    a(f"  s_mov_b32 s{s}, s{ptr}\n  s_mov_b32 s{s+1}, s{ptr+1}\n  s_mov_b32 s{s+2}, {nbytes}\n  s_mov_b32 s{s+3}, 0x20000")
def vr(b, n=4): return f"v[{b}:{b+n-1}]"
def sr(b, n=4): return f"s[{b}:{b+n-1}]"

class G:
    def __init__(self, cfg):
        self.cfg = cfg; self.a = Asm(); self.uid = 0
        self.dsadd = 'ds_write_b32' if cfg.noatom else 'ds_add_f32'
    def lab(self, name):
        self.uid += 1
        return f"L_{name}_{self.uid}"
    def stamp(self, i):
        if self.cfg.fdiag: return
        if self.cfg.lite and i not in (0, 9): return
        if self.cfg.stamp and not self.cfg.bdiag:
            self.a(f"  s_memrealtime s[{STAMP0+2*i}:{STAMP0+2*i+1}]\n  s_waitcnt lgkmcnt(0)")
    def fstamp(self, i):
        if self.cfg.fdiag: self.a(f"  s_memtime s[{STAMP0+2*i}:{STAMP0+2*i+1}]\n  s_waitcnt lgkmcnt(0)")
    def cstamp(self, i):
        if self.cfg.bdiag:
            l = self.lab("cs")
            self.a(f"  s_cmp_lg_u32 s{S_SB}, {self.cfg.bdiag_sb}\n  s_cbranch_scc1 {l}\n  s_memtime s[{STAMP0+2*i}:{STAMP0+2*i+1}]\n  s_waitcnt lgkmcnt(0)\n{l}:")
    def stamp_init(self):
        if self.cfg.stamp:
            for i in range(20): self.a(f"  s_mov_b32 s{STAMP0+i}, 0")
    def stamp_flush(self, dbg=None):
        if not self.cfg.stamp: return
        a = self.a
        if self.cfg.dbgstamp and dbg:
            who, wave, first, which = dbg
            sk = self.lab("nodbg")
            a(f"  s_cmp_lg_u32 s{S_IDX}, {who}\n  s_cbranch_scc1 {sk}\n  s_cmp_lg_u32 s{S_WAVE}, {wave}\n  s_cbranch_scc1 {sk}")
            srd(a, R_DBG, P_DBG, 256)
            a("  v_mov_b32 v1, 0")
            for i, st in enumerate(which):
                a(f"  v_mov_b32 v2, s{STAMP0+2*st}\n  buffer_store_dword v2, v1, {sr(R_DBG)}, 0 offen offset:{4*(first+i)}\n  s_nop 0")
            a(f"{sk}:")
        if self.cfg.dbgstamp: return
        if self.cfg.lite:
            if dbg[0] != 0: return
            sk = self.lab("nolite")
            a(f"  s_cmp_lg_u32 s{S_WAVE}, 0\n  s_cbranch_scc1 {sk}")
            a("  s_lshl_b32 s60, s2, 3\n  s_lshl_b32 s60, s60, 6")
            a(f"  s_add_u32 s60, s60, {STAMP_OFF}\n  v_mov_b32 v1, 0\n  v_mov_b32 v2, s{STAMP0}\n  v_mov_b32 v3, s{STAMP0+18}")
            a(f"  buffer_store_dword v2, v1, {sr(R_WS)}, s60 offen\n  buffer_store_dword v3, v1, {sr(R_WS)}, s60 offen offset:36\n{sk}:")
            return
        a("  s_lshl_b32 s60, s2, 3\n  s_add_u32 s60, s60, s3\n  s_lshl_b32 s60, s60, 6")
        a(f"  s_add_u32 s60, s60, {STAMP_OFF}\n  v_mov_b32 v1, 0")
        for i in range(10):
            a(f"  v_mov_b32 v2, s{STAMP0+2*i}\n  buffer_store_dword v2, v1, {sr(R_WS)}, s60 offen offset:{4*i}\n  s_nop 0")

    def allred_g(self, x, t, op):
        a = self.a
        a(f"  v_mov_b32 v{t}, v{x}\n  v_permlane16_swap_b32 v{t}, v{x}\n  {op} v{x}, v{t}, v{x}")
        a(f"  v_mov_b32 v{t}, v{x}\n  v_permlane32_swap_b32 v{t}, v{x}\n  {op} v{x}, v{t}, v{x}")
    def valid_check(self, base, n, t, retry):
        a = self.a
        a(f"  v_max3_u32 v{t}, v{base}, v{base+1}, v{base+2}")
        h = n // 2
        a(f"  v_max3_u32 v{t+1}, v{base+h}, v{base+h+1}, v{base+h+2}")
        i, k = 3, h + 3
        while i < h or k < n:
            if i + 1 < h: a(f"  v_max3_u32 v{t}, v{t}, v{base+i}, v{base+i+1}"); i += 2
            elif i < h: a(f"  v_max_u32 v{t}, v{t}, v{base+i}"); i += 1
            if k + 1 < n: a(f"  v_max3_u32 v{t+1}, v{t+1}, v{base+k}, v{base+k+1}"); k += 2
            elif k < n: a(f"  v_max_u32 v{t+1}, v{t+1}, v{base+k}"); k += 1
        a(f"  v_max_u32 v{t}, v{t}, v{t+1}\n  v_cmp_eq_u32 vcc, -1, v{t}\n  s_cbranch_vccnz {retry}")
    def spin_guard(self, done):
        self.a(f"  s_add_u32 s{S_SPIN}, s{S_SPIN}, 1\n  s_cmp_gt_u32 s{S_SPIN}, {SPIN_CAP}\n  s_cbranch_scc1 {done}")
    def flag_addr(self, va):
        self.a(f"  v_min_u32 v{va}, {NH-1}, v0\n  v_lshlrev_b32 v{va}, 7, v{va}\n  v_add_u32 v{va}, {FLAG_OFF}, v{va}")
    def wait_flags(self, vd, va, first_issued=False):
        a = self.a
        lp, ck, dn = self.lab("flg"), self.lab("flgc"), self.lab("flgd")
        a(f"  s_mov_b32 s{S_SPIN}, 0")
        if first_issued: a(f"  s_branch {ck}")
        a(f"{lp}:\n  buffer_load_dword v{vd}, v{va}, {sr(R_WS)}, 0 offen sc1")
        self.spin_guard(dn)
        a(f"{ck}:\n  s_waitcnt vmcnt(0)\n  v_cmp_ne_u32 vcc, s{S_NONCE}, v{vd}\n  s_cbranch_vccnz {lp}")
        a(f"{dn}:\n  s_waitcnt vmcnt(0)")
    def gather_frags(self, nfr, dst, vaddr, off0, t, name, rowmajor=False, sleep=0):
        a = self.a
        lp, dn, l0 = self.lab(name), self.lab(name + "d"), self.lab(name + "0")
        a(f"  s_add_u32 s63, s{off0}, 4096\n  s_add_u32 s64, s{off0}, 8192\n  s_mov_b32 s{S_SPIN}, 0")
        if sleep: a(f"  s_branch {l0}\n{lp}:\n  s_sleep {sleep}\n{l0}:")
        else: a(f"{lp}:")
        for j in range(nfr):
            so = (f"s{off0}", "s63", "s64")[j >> 2]
            if rowmajor: a(f"  buffer_load_dwordx4 {vr(dst+4*j)}, v{vaddr}, {sr(R_WS)}, s{off0} offen offset:{j*64} sc1")
            else: a(f"  buffer_load_dwordx4 {vr(dst+4*j)}, v{vaddr}, {sr(R_WS)}, {so} offen offset:{(j&3)*1024} sc1")
        self.spin_guard(dn)
        a("  s_waitcnt vmcnt(0)")
        self.valid_check(dst, 4 * nfr, t, lp)
        a(f"{dn}:\n  s_waitcnt vmcnt(0)")

    def prologue(self):
        a = self.a; cfg = self.cfg
        a("  s_cmp_ge_u32 s2, 256\n  s_cbranch_scc1 L_end")
        a("  s_load_dwordx16 s[4:19], s[0:1], 0\n  s_load_dwordx4 s[20:23], s[0:1], 64")
        if cfg.codepf:
            l = self.lab("pc")
            a(f"  s_cmp_ge_u32 s2, {8*cfg.pfrows}\n  s_cbranch_scc1 L_nopf")
            a(f"  s_getpc_b64 s[60:61]\n{l}:\n  s_sub_u32 s60, s60, {l}-{KNAME}\n  s_subb_u32 s61, s61, 0")
            a(f"  s_bfe_u32 s62, s2, 0x20003\n  s_lshl_b32 s62, s62, 13\n  v_lshl_add_u32 v246, v0, 4, s62")
            a(f"  v_min_u32 v246, L_code_end-{KNAME}-16, v246\n  global_load_dwordx4 v[168:171], v246, s[60:61]")
            a("L_nopf:")
        a("  v_lshrrev_b32 v1, 6, v0\n  v_and_b32 v0, 63, v0")
        a(f"  v_readfirstlane_b32 s{S_WAVE}, v1")
        a(f"  s_mov_b32 s{S_ONELO}, 0x00003f80\n  s_mov_b32 s{S_ONEHI}, 0x3f800000")
        self.stamp_init(); self.stamp(0)
        rows = NH // cfg.hnx
        a(f"  s_and_b32 s60, s2, 7\n  s_lshr_b32 s61, s2, 3\n  s_sub_u32 s62, s60, {cfg.hx0}")
        a(f"  s_cmp_lt_u32 s61, {rows}\n  s_cbranch_scc0 L_late")
        a(f"  s_cmp_lt_u32 s62, {cfg.hnx}\n  s_cbranch_scc0 L_early")
        a(f"  s_mul_i32 s{S_IDX}, s61, {cfg.hnx}\n  s_add_u32 s{S_IDX}, s{S_IDX}, s62\n  s_branch L_helper")
        a("L_early:")
        a(f"  s_cmp_lt_u32 s60, {cfg.hx0}\n  s_cselect_b32 s62, 0, {cfg.hnx}\n  s_sub_u32 s62, s60, s62")
        a(f"  s_mul_i32 s{S_IDX}, s61, {8-cfg.hnx}\n  s_add_u32 s{S_IDX}, s{S_IDX}, s62\n  s_branch L_stream")
        a(f"L_late:\n  s_sub_u32 s{S_IDX}, s2, {NH}")
        a(f"  s_cmp_eq_u32 s{S_IDX}, {NS}\n  s_cbranch_scc1 L_collect")
        a(f"  s_cmp_ge_u32 s{S_IDX}, {NS}\n  s_cbranch_scc1 L_end")
        a("L_stream:      ; ---------------- streamers")
        if cfg.nostream: a("  s_branch L_end")

    def code_prefetch(self, vt, vd):
        if not self.cfg.codepf: return
        a = self.a
        l = self.lab("pc")
        a(f"  s_getpc_b64 s[60:61]\n{l}:")
        a(f"  s_sub_u32 s60, s60, {l}-{KNAME}\n  s_subb_u32 s61, s61, 0")
        a(f"  s_lshr_b32 s62, s2, 3\n  s_lshl_b32 s62, s62, 10\n  v_lshl_add_u32 v{vt}, v0, 4, s62")
        a(f"  v_min_u32 v{vt}, L_code_end-{KNAME}-16, v{vt}")
        a(f"  global_load_dwordx4 {vr(vd)}, v{vt}, s[60:61]")

    V_OFF1, V_OFF0, V_SA = 2, 3, 255
    V_WA = (4, 5, 253, 254)
    V_RA, V_PA = 6, 10
    V_PADDR, V_MXW, V_MXR = 13, 14, 15
    V_ST = 128
    V_BUF = (16, 36, 56)
    V_PU, V_TMP, V_OUT = 144, 152, 160
    V_LT, V_AT = 76, 78
    V_QK, V_A, V_ACC = 80, 128, 176
    V_S, V_SUM, V_SQ4, V_SQ, V_MU, V_RS, V_LG = 188, 192, 196, 200, 204, 208, 212
    V_ONES = 216
    V_M, V_AL, V_L2, V_AM2, V_QS, V_CINV, V_CEPS, V_BIAS = 220, 222, 224, 226, 228, 230, 232, 234
    V_T0, V_T1, V_T2, V_ONEF = 236, 237, 238, 239
    V_MXV, V_TA, V_L16 = 240, 248, 252
    V_PUB = 196
    V_REDW = 198
    V_STR = 1

    def task_bases(self, st, kconst, kreg=True):
        a = self.a
        if kreg: a(f"  s_add_u32 s62, s{S_K}, {kconst}")
        else: a(f"  s_mov_b32 s62, {kconst}")
        a(f"  s_lshl_b32 s63, s62, 1\n  s_add_u32 s63, s63, s{S_QBASE}")
        a(f"  s_mul_i32 s{st}, s63, 3072\n  s_lshr_b32 s64, s63, 5\n  s_mul_i32 s64, s64, 393216")
        a(f"  s_and_b32 s65, s63, 31\n  s_mul_i32 s65, s65, 6144\n  s_add_u32 s{st+1}, s64, s65")
        a(f"  s_cmp_gt_u32 s62, {NPAIR-1}\n  s_cselect_b32 s{st}, 0x80000000, s{st}\n  s_cselect_b32 s{st+1}, 0x80000000, s{st+1}")
        a(f"  s_add_u32 s{st+2}, s{st+1}, 196608")
    def issue_piece(self, st, par, i):
        a = self.a
        nt = " nt" if self.cfg.nt else ""
        b = self.V_BUF[par] + 4 * i
        if i == 0:
            a(f"  buffer_load_dwordx4 {vr(b)}, v{self.V_OFF1}, {sr(R_B)}, s{st} offen{nt}")
        else:
            t = i - 1
            off = " offset:768" if t & 1 else ""
            a(f"  buffer_load_dwordx4 {vr(b)}, v{self.V_OFF0}, {sr(R_A)}, s{st+1+(t>>1)} offen{off}{nt}")

    def fuse_sub(self, par, d, name, mode="roll"):
        a = self.a
        hold, roll = mode == "hold", mode == "roll"
        b = self.V_BUF[par]; u = self.V_PU; t8 = self.V_TMP
        SS, SQ, R, U = self.V_ST, self.V_ST + 4, self.V_ST + 8, self.V_ST + 12
        a0 = d // 5
        a(f"{name}:")
        if roll:
            a(f"  s_mov_b32 s{SETA}, s{SETB}\n  s_mov_b32 s{SETA+1}, s{SETB+1}\n  s_mov_b32 s{SETA+2}, s{SETB+2}")
            self.task_bases(SETB, a0 + 1)
        def nxt(i):
            if not roll: return
            aa, pi = (i + d) // 5, (i + d) % 5
            self.issue_piece(SETA if aa == a0 else SETB, par ^ (aa & 1), pi)
        def dpp(dst, src, ctrl, bank):
            a(f"  v_add_f32_dpp v{dst}, v{src}, v{src} {ctrl} row_mask:0xf bank_mask:{bank:#x}")
        a(f"  s_waitcnt vmcnt({d-1})")
        for i in range(4):
            a(f"  v_lshlrev_b32 v{u+2*i}, 16, v{b+i}\n  v_and_b32 v{u+2*i+1}, 0xffff0000, v{b+i}")
        nxt(0)
        for t in range(4):
            c = b + 4 + 4 * t; o = c if hold else self.V_OUT + 4 * (t & 1)
            a(f"  s_waitcnt vmcnt({d-1 if roll else d-2-t})")
            for i in range(4):
                a(f"  v_dot2_f32_bf16 v{t8+2*i}, v{c+i}, s{S_ONELO}, v{u+2*i}")
                a(f"  v_dot2_f32_bf16 v{t8+2*i+1}, v{c+i}, s{S_ONEHI}, v{u+2*i+1}")
            nxt(t + 1)
            for i in range(4):
                a(f"  v_cvt_pk_bf16_f32 v{o+i}, v{t8+2*i}, v{t8+2*i+1}")
            if not hold: a(f"  ds_write_b128 v{self.V_WA[t]}, {vr(o)} offset:{t*768}")
            if t > 0: dpp(R + t - 1, SS + t - 1, "row_ror:8", 0x3)
            for i in range(4):
                a(f"  v_dot2_f32_bf16 v{SS+t}, v{o+i}, v{self.V_ONES}, {'0' if i == 0 else 'v%d' % (SS+t)}")
                a(f"  v_dot2_f32_bf16 v{SQ+t}, v{o+i}, v{o+i}, {'0' if i == 0 else 'v%d' % (SQ+t)}")
            if t > 0: dpp(R + t - 1, SQ + t - 1, "row_ror:8", 0xc)
        WA = self.V_WA
        if hold: a("  s_mov_b32 s62, 0")
        else: a(f"  s_mov_b32 s62, 24576\n  s_cmp_eq_u32 s{S_K}, 5\n  s_cselect_b32 s62, {(-5*24576) & 0xffffffff:#x}, s62")
        dpp(U, R, "row_half_mirror", 0x5)
        dpp(R + 3, SS + 3, "row_ror:8", 0x3)
        a(f"  v_add_u32 v{WA[0]}, s62, v{WA[0]}")
        dpp(U, R + 1, "row_half_mirror", 0xa)
        dpp(R + 3, SQ + 3, "row_ror:8", 0xc)
        dpp(U + 1, R + 2, "row_half_mirror", 0x5)
        a(f"  v_add_u32 v{WA[1]}, s62, v{WA[1]}")
        dpp(U, U, "quad_perm:[1,0,3,2]", 0xf)
        dpp(U + 1, R + 3, "row_half_mirror", 0xa)
        a(f"  v_add_u32 v{WA[2]}, s62, v{WA[2]}")
        dpp(U, U, "quad_perm:[2,3,0,1]", 0xf)
        dpp(U + 1, U + 1, "quad_perm:[1,0,3,2]", 0xf)
        a(f"  v_add_u32 v{WA[3]}, s62, v{WA[3]}\n  s_mov_b64 exec, s[{S_QMASK}:{S_QMASK+1}]\n  {self.dsadd} v{self.V_SA}, v{U}\n  s_mov_b64 exec, -1")
        dpp(U + 1, U + 1, "quad_perm:[2,3,0,1]", 0xf)
        a(f"  s_add_u32 s{S_K}, s{S_K}, 1")
        a(f"  s_mov_b64 exec, s[{S_QMASK}:{S_QMASK+1}]\n  {self.dsadd} v{self.V_SA}, v{U+1} offset:8\n  s_mov_b64 exec, -1")
        a(f"  v_add_u32 v{self.V_SA}, 256, v{self.V_SA}")
        a(f"  s_setpc_b64 s[{S_LINK}:{S_LINK+1}]")

    def stream_consts(self):
        a = self.a
        a("  v_and_b32 v240, 15, v0\n  v_lshrrev_b32 v241, 4, v0")
        a("  v_and_b32 v242, 7, v240\n  v_lshlrev_b32 v242, 1, v242\n  v_mul_u32_u24 v243, 768, v240")
        for m in range(4):
            a(f"  v_add_u32 v244, {4*m}, v241\n  v_xor_b32 v244, v244, v242\n  v_lshl_add_u32 v{self.V_RA+m}, v244, 4, v243")
        a("  v_lshrrev_b32 v242, 2, v240\n  v_lshl_add_u32 v242, v241, 2, v242\n  v_mul_u32_u24 v243, 768, v242")
        a("  v_and_b32 v242, 7, v242\n  v_lshlrev_b32 v242, 1, v242")
        a("  v_and_b32 v244, 3, v240\n  v_lshrrev_b32 v245, 1, v244\n  v_and_b32 v244, 1, v244\n  v_lshl_add_u32 v243, v244, 3, v243")
        for tau in range(3):
            a(f"  s_mul_i32 s62, s{S_WAVE}, 3\n  s_add_u32 s62, s62, {tau}")
            a("  s_lshl_b32 s63, s62, 1\n  s_and_b32 s63, s63, 14\n  s_lshr_b32 s62, s62, 3\n  s_lshl_b32 s62, s62, 8")
            a(f"  v_xor_b32 v244, s63, v242\n  v_or_b32 v244, v244, v245\n  v_lshl_add_u32 v244, v244, 4, v243\n  v_add_u32 v{self.V_PA+tau}, s62, v244")
        a(f"  v_lshlrev_b32 v{self.V_L16}, 4, v0\n  v_add_u32 v{self.V_PADDR}, {STG}, v{self.V_L16}\n  v_lshlrev_b32 v{self.V_STR}, 4, v241")
        a(f"  v_lshlrev_b32 v244, 5, v240\n  v_add_u32 v{self.V_MXR}, {MX}, v244")
        a(f"  s_lshl_b32 s62, s{S_WAVE}, 2\n  v_add_u32 v{self.V_MXW}, s62, v{self.V_MXR}")
        for i in range(4): a(f"  v_mov_b32 v{self.V_ONES+i}, 0x3f803f80")
        a(f"  v_mov_b32 v{self.V_ONEF}, 1.0\n  v_mov_b32 v{self.V_CINV}, {f32(1/384)}\n  v_mov_b32 v{self.V_CEPS}, {f32(1e-5)}")
        for i in range(12): a(f"  v_mov_b32 v{self.V_ACC+i}, 0")
        a(f"  v_mov_b32 v{self.V_M}, 0xff800000")
        for r in (self.V_L2, self.V_L2+1, self.V_AM2, self.V_AM2+1, self.V_M+1, self.V_AL+1, self.V_QS+1, self.V_CINV+1, self.V_CEPS+1, self.V_BIAS+1):
            a(f"  v_mov_b32 v{r}, 0")

    def pk(self, op, d, x, y, z=None, bc=(), neg=()):
        n = 2 if z is None else 3
        ops = [x, y] + ([z] if z is not None else [])
        s = f"  {op} {vr(d,2)}, " + ", ".join(vr(o, 2) for o in ops)
        if bc: s += " op_sel_hi:[" + ",".join("0" if i in bc else "1" for i in range(n)) + "]"
        if neg:
            m = "[" + ",".join("1" if i in neg else "0" for i in range(n)) + "]"
            s += f" neg_lo:{m} neg_hi:{m}"
        self.a(s)

    def red_write(self, l, am, t):
        a = self.a
        a(f"  v_add_f32 v{t}, v{l}, v{l+1}\n  v_add_f32 v{t+1}, v{am}, v{am+1}")
        a(f"  v_permlane16_swap_b32 v{t}, v{t+1}\n  v_add_f32 v{t}, v{t}, v{t+1}")
        a(f"  v_mov_b32 v{t+1}, v{t}\n  v_permlane32_swap_b32 v{t+1}, v{t}\n  v_add_f32 v{t}, v{t}, v{t+1}")
        a(f"  ds_write_b32 v{self.V_REDW}, v{t}")

    def sphase_sub(self):
        a = self.a
        A, QK = self.V_A, self.V_QK
        S, SUM, SQ, MU, RS, LG, T1, T2 = self.V_S, self.V_SUM, self.V_SQ, self.V_MU, self.V_RS, self.V_LG, self.V_T1, self.V_T2
        a("L_sphase:")
        for m in range(4): a(f"  v_add_u32 v{self.V_TA+m}, s{S_TB}, v{self.V_RA+m}")
        a(f"  v_add_u32 v{T1}, s{S_STA}, v{self.V_STR}")
        a(f"  ds_read_b128 {vr(SUM)}, v{T1}\n  ds_read_b128 {vr(SQ)}, v{T1} offset:64")
        for j in range(12): a(f"  ds_read_b128 {vr(A+4*j)}, v{self.V_TA+(j&3)} offset:{(j>>2)*256}")
        a(f"  s_cmp_lt_u32 s{S_PAIR}, 2048\n  s_cselect_b32 s{S_BIAS}, 0, {f32(-1e30)}")
        a(f"  v_mov_b32 v{self.V_BIAS}, s{S_BIAS}\n  v_add_u32 v{T2}, s{S_POFF}, v{self.V_PADDR}")
        a("  s_waitcnt lgkmcnt(12)")
        stat = []
        for h in (0, 2): stat.append(lambda h=h: self.pk("v_pk_mul_f32", MU + h, SUM + h, self.V_CINV, bc=(1,)))
        for h in (0, 2): stat.append(lambda h=h: self.pk("v_pk_fma_f32", RS + h, SQ + h, self.V_CINV, self.V_CEPS, bc=(1, 2)))
        for h in (0, 2): stat.append(lambda h=h: self.pk("v_pk_fma_f32", RS + h, MU + h, MU + h, RS + h, neg=(0,)))
        for r in range(4): stat.append(lambda r=r: a(f"  v_max_f32 v{RS+r}, v{self.V_CEPS}, v{RS+r}"))
        for r in range(4): stat.append(lambda r=r: a(f"  v_rsq_f32 v{RS+r}, v{RS+r}"))
        for h in (0, 2): stat.append(lambda h=h: self.pk("v_pk_mul_f32", SUM + h, MU + h, self.V_QS, bc=(1,)))
        for j in range(12):
            a(f"  s_waitcnt lgkmcnt({11-j})")
            a(f"  v_mfma_f32_16x16x32_bf16 {vr(S)}, {vr(A+4*j)}, {vr(QK+4*j)}, {'0' if j == 0 else vr(S)}")
            for _ in range(2):
                if stat: stat.pop(0)()
        for h in (0, 2): self.pk("v_pk_add_f32", LG + h, S + h, SUM + h, neg=(1,))
        for h in (0, 2): self.pk("v_pk_fma_f32", LG + h, LG + h, RS + h, self.V_BIAS, bc=(2,))
        a(f"  s_setpc_b64 s[{S_LINK2}:{S_LINK2+1}]")

    def sp_sub(self):
        a = self.a
        MU, RS, LG, M, T0, T1, T2, MXV = self.V_MU, self.V_RS, self.V_LG, self.V_M, self.V_T0, self.V_T1, self.V_T2, self.V_MXV
        PT, LT, AT = MXV, self.V_LT, self.V_AT
        a("L_sp:")
        a(f"  s_call_b64 s[{S_LINK2}:{S_LINK2+1}], L_sphase")
        for h in (0, 2): self.pk("v_pk_add_f32", PT + h, LG + h, M, bc=(1,), neg=(1,))
        a(f"  v_max3_f32 v{T0}, v{PT}, v{PT+1}, v{PT+2}\n  v_max_f32 v{T0}, v{T0}, v{PT+3}")
        for r in range(4): a(f"  v_exp_f32 v{PT+r}, v{PT+r}")
        a(f"  v_cmp_lt_f32 vcc, {f32(LAG_LIMIT)}, v{T0}\n  v_cmp_gt_f32 s[60:61], s{S_LOW}, v{T0}\n  s_or_b64 vcc, vcc, s[60:61]")
        self.pk("v_pk_add_f32", LT, LT, PT); self.pk("v_pk_add_f32", LT, LT, PT + 2)
        for h in (0, 2): self.pk("v_pk_mul_f32", PT + h, PT + h, RS + h)
        a(f"  v_cvt_pk_bf16_f32 v{MXV+4}, v{PT}, v{PT+1}\n  v_cvt_pk_bf16_f32 v{MXV+5}, v{PT+2}, v{PT+3}")
        a(f"  ds_write_b64 v{T2}, {vr(MXV+4,2)}")
        for h in (0, 2): self.pk("v_pk_fma_f32", AT, PT + h, MU + h, AT)
        a(f"  s_cbranch_vccz L_sp_ret\n  v_mov_b32 v{T0}, {FLAG_LDS}\n  v_mov_b32 v{T1}, 1\n  ds_write_b32 v{T0}, v{T1}")
        a(f"L_sp_ret:\n  s_setpc_b64 s[{S_LINK}:{S_LINK+1}]")

    def batch_sub(self):
        a = self.a
        A = self.V_A
        MU, RS, LG = self.V_MU, self.V_RS, self.V_LG
        M, AL, L2, AM2, T0, T1, T2, MXV = self.V_M, self.V_AL, self.V_L2, self.V_AM2, self.V_T0, self.V_T1, self.V_T2, self.V_MXV
        PT = MXV
        a("L_batch:")
        self.cstamp(0)
        a(f"  s_sub_u32 s{S_TI}, s{S_WAVE}, s{S_W0}\n  s_cmp_ge_u32 s{S_TI}, s{S_T}\n  s_cbranch_scc1 L_b_bar2")
        a(f"  s_add_u32 s63, s{S_TI}, s{S_SB}\n  s_mul_i32 s{S_TB}, s63, {SLOT}")
        a(f"  s_lshl_b32 s62, s{S_TI}, 7\n  s_add_u32 s{S_STA}, s62, s{S_SST}")
        a(f"  s_lshr_b32 s62, s{S_TI}, 1\n  s_add_u32 s{S_PAIR}, s62, s{S_PB}")
        a(f"  s_lshl_b32 s62, s62, 10\n  s_and_b32 s63, s{S_TI}, 1\n  s_lshl_b32 s63, s63, 3\n  s_add_u32 s{S_POFF}, s62, s63")
        a(f"  s_call_b64 s[{S_LINK2}:{S_LINK2+1}], L_sphase")
        self.cstamp(1)
        a(f"  v_max3_f32 v{T0}, v{LG}, v{LG+1}, v{LG+2}\n  v_max_f32 v{T0}, v{T0}, v{LG+3}")
        self.allred_g(T0, T1, "v_max_f32")
        a(f"  ds_write_b32 v{self.V_MXW}, v{T0}")
        a("L_b_bar2:\n  s_waitcnt lgkmcnt(0)")
        self.cstamp(2)
        a("  s_barrier")
        self.cstamp(3)
        a(f"  ds_read_b128 {vr(MXV)}, v{self.V_MXR}\n  ds_read_b128 {vr(MXV+4)}, v{self.V_MXR} offset:16")
        a(f"  v_mov_b32 v{T0}, {FLAG_LDS}\n  v_mov_b32 v{T1}, 0\n  ds_write_b32 v{T0}, v{T1}")
        a("  s_waitcnt lgkmcnt(1)")
        a(f"  v_max3_f32 v{T0}, v{MXV}, v{MXV+1}, v{MXV+2}\n  v_max3_f32 v{T1}, v{MXV+3}, v{MXV+4}, v{MXV+5}")
        a(f"  v_max3_f32 v{T0}, v{T0}, v{MXV+6}, v{MXV+7}\n  v_max3_f32 v{T0}, v{T0}, v{T1}, v{M}")
        a(f"  v_sub_f32 v{AL}, v{M}, v{T0}\n  v_mov_b32 v{M}, v{T0}\n  v_exp_f32 v{AL}, v{AL}")
        self.cstamp(4)
        a(f"  s_cmp_ge_u32 s{S_TI}, s{S_T}\n  s_cbranch_scc1 L_b_nop")
        for h in (0, 2): self.pk("v_pk_add_f32", PT + h, LG + h, M, bc=(1,), neg=(1,))
        for r in range(4): a(f"  v_exp_f32 v{PT+r}, v{PT+r}")
        self.pk("v_pk_mul_f32", L2, L2, AL, bc=(1,)); self.pk("v_pk_mul_f32", AM2, AM2, AL, bc=(1,))
        self.pk("v_pk_add_f32", L2, L2, PT); self.pk("v_pk_add_f32", L2, L2, PT + 2)
        for h in (0, 2): self.pk("v_pk_mul_f32", PT + h, PT + h, RS + h)
        a(f"  v_cvt_pk_bf16_f32 v{MXV+4}, v{PT}, v{PT+1}\n  v_cvt_pk_bf16_f32 v{MXV+5}, v{PT+2}, v{PT+3}")
        a(f"  ds_write_b64 v{T2}, {vr(MXV+4,2)}")
        for h in (0, 2): self.pk("v_pk_fma_f32", AM2, PT + h, MU + h, AM2)
        a("  s_branch L_b_acc")
        a("L_b_nop:")
        self.pk("v_pk_mul_f32", L2, L2, AL, bc=(1,)); self.pk("v_pk_mul_f32", AM2, AM2, AL, bc=(1,))
        a("L_b_acc:")
        for i in range(0, 12, 2): self.pk("v_pk_mul_f32", self.V_ACC + i, self.V_ACC + i, AL, bc=(1,))
        a(f"  s_cmp_eq_u32 s{S_LAST}, 0\n  s_cbranch_scc1 L_b_bar3")
        self.red_write(L2, AM2, MXV + 6)
        a("L_b_bar3:\n  s_waitcnt lgkmcnt(0)")
        self.cstamp(5)
        a("  s_barrier")
        self.cstamp(6)
        a(f"  s_lshr_b32 s{S_NP}, s{S_T}, 1")
        a(f"  s_mul_i32 s{S_PVB}, s{S_SB}, {SLOT}")
        self.pv_reads(0, S_PVB, 0)
        for k in range(3):
            a(f"  s_cmp_le_u32 s{S_NP}, {k+1}\n  s_cbranch_scc1 L_pvl{k & 1}")
            a(f"  s_add_u32 s{S_PVB}, s{S_PVB}, {2*SLOT}")
            self.pv_reads((k + 1) & 1, S_PVB, (k + 1) * 1024)
            self.pv_mfmas(k & 1, 7)
        a("L_pvl1:")
        self.pv_mfmas(1, 0)
        self.cstamp(7)
        a(f"  s_setpc_b64 s[{S_LINK}:{S_LINK+1}]")
        a("L_pvl0:")
        self.pv_mfmas(0, 0)
        self.cstamp(7)
        a(f"  s_setpc_b64 s[{S_LINK}:{S_LINK+1}]")

    def pv_reads(self, buf, s_, poff, imm=0):
        a = self.a; o = self.V_A + 16 * buf
        a(f"  ds_read_b128 {vr(o)}, v{self.V_PADDR} offset:{poff}")
        for tau in range(3):
            if s_ is None:
                ad = self.V_PA + tau
            else:
                ad = self.V_TA + tau
                a(f"  v_add_u32 v{ad}, s{s_}, v{self.V_PA+tau}")
            a(f"  ds_read_b64_tr_b16 {vr(o+4+4*tau,2)}, v{ad} offset:{imm}")
            a(f"  ds_read_b64_tr_b16 {vr(o+6+4*tau,2)}, v{ad} offset:{imm + SLOT}")
    def pv_mfmas(self, buf, base):
        a = self.a; o = self.V_A + 16 * buf
        for tau in range(3):
            a(f"  s_waitcnt lgkmcnt({base + 4 - 2*tau})")
            a(f"  v_mfma_f32_16x16x32_bf16 {vr(self.V_ACC+4*tau)}, {vr(o+4+4*tau)}, {vr(o)}, {vr(self.V_ACC+4*tau)}")

    def pv_final(self):
        a = self.a; T0, T1 = self.V_T0, self.V_T1
        a(f"  v_mov_b32 v{T0}, {FLAG_LDS}\n  ds_read_b32 v{T1}, v{T0}")
        a(f"  s_mov_b32 s{S_PVB}, {8*SLOT}")
        self.pv_reads(0, S_PVB, 0)
        a(f"  s_waitcnt lgkmcnt(7)\n  v_readfirstlane_b32 s62, v{T1}\n  s_cmp_lg_u32 s62, 0\n  s_cbranch_scc1 L_slow")
        a(f"  s_mov_b32 s{S_PVB}, {10*SLOT}")
        self.pv_reads(1, S_PVB, 1024); self.pv_mfmas(0, 7)
        self.pv_reads(0, None, 2048, 0); self.pv_mfmas(1, 7)
        self.pv_reads(1, None, 3072, 2*SLOT); self.pv_mfmas(0, 7)
        self.pv_reads(0, None, 4096, 4*SLOT); self.pv_mfmas(1, 7)
        self.sums_read()
        self.pv_mfmas(0, 4)
        self.sums_math()

    V_SR = 16
    def sums_read(self):
        for i in range(4): self.a(f"  ds_read_b128 {vr(self.V_SR+4*i)}, v{self.V_PUB+3} offset:{16*i}")
    def sums_math(self):
        a = self.a; R = self.V_SR
        a("  s_waitcnt lgkmcnt(0)")
        for i in (0, 4, 8, 12): self.pk("v_pk_add_f32", R + i, R + i, R + i + 2)
        self.pk("v_pk_add_f32", R, R, R + 4); self.pk("v_pk_add_f32", R + 8, R + 8, R + 12); self.pk("v_pk_add_f32", R, R, R + 8)
        a(f"  v_rcp_f32 v{R+2}, v{R}\n  v_log_f32 v{R+5}, v{R}\n  v_mul_f32 v{R+4}, v{R+1}, v{R+2}\n  v_add_f32 v{R+6}, v{self.V_M}, v{R+5}")

    def hold_chunks(self):
        a = self.a
        b = self.V_BUF[0]; u, t8, st = 160, 168, 56
        SS, SQ, R, U = st, st + 4, st + 8, st + 12
        def dpp(dst, src, ctrl, bank):
            a(f"  v_add_f32_dpp v{dst}, v{src}, v{src} {ctrl} row_mask:0xf bank_mask:{bank:#x}")
        def child(t):
            c = b + 4 + 4 * t
            if t == 0:
                a("  s_waitcnt vmcnt(9)")
                for i in range(4): a(f"  v_lshlrev_b32 v{u+2*i}, 16, v{b+i}\n  v_and_b32 v{u+2*i+1}, 0xffff0000, v{b+i}")
            a(f"  s_waitcnt vmcnt({8-t})")
            for i in range(4):
                a(f"  v_dot2_f32_bf16 v{t8+2*i}, v{c+i}, s{S_ONELO}, v{u+2*i}")
                a(f"  v_dot2_f32_bf16 v{t8+2*i+1}, v{c+i}, s{S_ONEHI}, v{u+2*i+1}")
            if t > 0: dpp(R + t - 1, SS + t - 1, "row_ror:8", 0x3)
            for i in range(4): a(f"  v_cvt_pk_bf16_f32 v{c+i}, v{t8+2*i}, v{t8+2*i+1}")
            if t > 0: dpp(R + t - 1, SQ + t - 1, "row_ror:8", 0xc)
            for i in range(4):
                a(f"  v_dot2_f32_bf16 v{SS+t}, v{c+i}, v{self.V_ONES}, {'0' if i == 0 else 'v%d' % (SS+t)}")
                a(f"  v_dot2_f32_bf16 v{SQ+t}, v{c+i}, v{c+i}, {'0' if i == 0 else 'v%d' % (SQ+t)}")
        def close():
            dpp(U, R, "row_half_mirror", 0x5)
            dpp(R + 3, SS + 3, "row_ror:8", 0x3)
            dpp(U + 1, R + 2, "row_half_mirror", 0x5)
            dpp(U, R + 1, "row_half_mirror", 0xa)
            dpp(R + 3, SQ + 3, "row_ror:8", 0xc)
            a(f"  s_add_u32 s{S_K}, s{S_K}, 1")
            dpp(U, U, "quad_perm:[1,0,3,2]", 0xf)
            dpp(U + 1, R + 3, "row_half_mirror", 0xa)
            dpp(U, U, "quad_perm:[2,3,0,1]", 0xf)
            dpp(U + 1, U + 1, "quad_perm:[1,0,3,2]", 0xf)
            a(f"  s_mov_b64 exec, s[{S_QMASK}:{S_QMASK+1}]\n  {self.dsadd} v{self.V_SA}, v{U}\n  s_mov_b64 exec, -1")
            dpp(U + 1, U + 1, "quad_perm:[2,3,0,1]", 0xf)
            a(f"  s_mov_b64 exec, s[{S_QMASK}:{S_QMASK+1}]\n  {self.dsadd} v{self.V_SA}, v{U+1} offset:8\n  s_mov_b64 exec, -1")
            a(f"  v_add_u32 v{self.V_SA}, 256, v{self.V_SA}")
        return [lambda t=t: child(t) for t in range(4)], close

    def pv_first(self):
        a = self.a; T0, T1 = self.V_T0, self.V_T1
        def body(chunks, close):
            self.pv_reads(1, None, 1024, 2*SLOT)
            self.pk("v_pk_add_f32", self.V_L2, self.V_L2, self.V_LT); self.pk("v_pk_add_f32", self.V_AM2, self.V_AM2, self.V_AT)
            if chunks: chunks[0]()
            self.pv_mfmas(0, 7)
            self.pv_reads(0, None, 2048, 4*SLOT)
            for r in range(4): a(f"  v_mov_b32 v{self.V_LT+r}, 0")
            if chunks: chunks[1]()
            self.pv_mfmas(1, 7)
            a(f"  s_mov_b32 s{S_PVB}, {6*SLOT}")
            self.pv_reads(1, S_PVB, 3072)
            if chunks: chunks[2]()
            self.pv_mfmas(0, 7)
            if chunks: chunks[3]()
            self.pv_mfmas(1, 0)
            if close: close()
        a(f"  v_mov_b32 v{T0}, {FLAG_LDS}\n  ds_read_b32 v{T1}, v{T0}")
        self.pv_reads(0, None, 0, 0)
        a(f"  s_waitcnt lgkmcnt(7)\n  v_readfirstlane_b32 s62, v{T1}\n  s_cmp_lg_u32 s62, 0\n  s_cbranch_scc1 L_slow1")
        if self.cfg.pvfuse:
            plain, join = self.lab("pvplain"), self.lab("pvjoin")
            a(f"  s_cmp_ge_u32 s{S_WAVE}, 6\n  s_cbranch_scc1 {plain}")
            body(*self.hold_chunks())
            a(f"  s_branch {join}\n{plain}:")
            body(None, None)
            a(f"{join}:")
        else:
            body(None, None)

    def call_batch(self, T, w0, slot0, pair_add, last):
        self.a(f"  s_mov_b32 s{S_T}, {T}\n  s_mov_b32 s{S_W0}, {w0}\n  s_mov_b32 s{S_SB}, {slot0}\n  s_add_u32 s{S_PB}, s{S_P0}, {pair_add}\n  s_mov_b32 s{S_LAST}, {int(last)}")
        self.a(f"  s_mov_b32 s{S_SST}, {STAT + pair_add*256}")
        self.a(f"  s_call_b64 s[{S_LINK}:{S_LINK+1}], L_batch")

    def streamer(self):
        a = self.a; cfg = self.cfg; d = cfg.depth
        CALL = f"  s_call_b64 s[{S_LINK}:{S_LINK+1}], "
        a("  s_waitcnt lgkmcnt(0)")
        srd(a, R_A, P_F0, F0_BYTES); srd(a, R_B, P_F1, F1_BYTES)
        a(f"  s_cmp_ge_u32 s{S_WAVE}, 6\n  s_cbranch_scc1 L_sgather")
        a(f"  s_cmp_ge_u32 s{S_WAVE}, 3\n  s_cselect_b32 s60, 1, 0\n  s_mul_i32 s62, s60, 3\n  s_sub_u32 s61, s{S_WAVE}, s62")
        a(f"  s_mul_i32 s{S_QBASE}, s{S_IDX}, {2*NPAIR}\n  s_add_u32 s{S_QBASE}, s{S_QBASE}, s60\n  s_lshl_b32 s61, s61, 8")
        a("  v_and_b32 v240, 15, v0\n  v_lshrrev_b32 v241, 4, v0\n  v_lshl_add_u32 v242, v240, 4, s61")
        a(f"  v_mul_u32_u24 v243, 768, v241\n  v_add_u32 v{self.V_OFF1}, v242, v243\n  v_lshl_add_u32 v{self.V_OFF0}, v243, 1, v242")
        a(f"  s_mov_b32 s{S_K}, 0\n  s_mov_b32 s{S_QMASK}, 0x11111111\n  s_mov_b32 s{S_QMASK+1}, 0x11111111")
        def first_loads(d):
            self.task_bases(SETA, 0, False)
            for x in range(min(d, 5)): self.issue_piece(SETA, 0, x)
            self.task_bases(SETB, d // 5, False)
        two = cfg.dlate != d
        def both(f):
            if not two:
                f(d); return
            l1, l2 = self.lab("dl"), self.lab("dj")
            a(f"  s_and_b32 s62, s2, 7\n  s_cmp_ge_u32 s62, {cfg.xlate}\n  s_cbranch_scc1 {l1}")
            f(d)
            a(f"  s_branch {l2}\n{l1}:")
            f(cfg.dlate)
            a(f"{l2}:")
        assert d <= 5 and cfg.dlate <= 5
        if not cfg.late: both(first_loads)
        a(f"  s_mul_i32 s60, s60, {SLOT}\n  s_add_u32 s60, s60, s61")
        srd(a, R_WS, P_WS, WS_BYTES)
        a("  v_and_b32 v240, 15, v0\n  v_lshrrev_b32 v241, 4, v0\n  v_and_b32 v242, 1, v241\n  v_lshlrev_b32 v242, 3, v242\n  v_xor_b32 v242, v240, v242")
        a(f"  v_mul_u32_u24 v243, 3072, v241\n  v_add_u32 v243, s60, v243")
        for t in range(4):
            a(f"  v_xor_b32 v244, {2*t}, v242\n  v_lshl_add_u32 v{self.V_WA[t]}, v244, 4, v243")
        a(f"  v_bfe_u32 v242, v0, 3, 1\n  v_lshlrev_b32 v242, 6, v242\n  v_bfe_u32 v243, v0, 2, 1\n  v_lshl_add_u32 v243, v241, 2, v243\n  v_lshl_add_u32 v242, v243, 2, v242")
        a(f"  s_cmp_ge_u32 s{S_WAVE}, 3\n  s_cselect_b32 s62, 128, 0\n  s_add_u32 s62, s62, {STAT}\n  v_add_u32 v{self.V_SA}, s62, v242")
        a("  s_barrier")
        self.stream_consts()
        if cfg.late: both(first_loads)
        if cfg.streamonly:
            for k in range(9):
                a(CALL + f"L_fuse{k & 1}")
                if k == 5: self.stamp(3)
            self.stamp(7); self.stamp(8)
            a("  s_branch L_sdone")
        def phase1(dd):
            sfx = "" if dd == d else "L"
            for k in range(6):
                if k == cfg.trig_a: a("  s_barrier")
                if k == cfg.trig_b: a("  s_barrier")
                a(CALL + f"L_fuse{sfx}{k & 1}")
            if cfg.trig_a >= 6: a("  s_barrier")
            if cfg.trig_b >= 6: a("  s_barrier")
            if dd < 5:
                self.task_bases(SETA, 6, False)
                for x in range(30 + dd, 35): self.issue_piece(SETA, 0, x % 5)
        both(phase1)
        assert not (cfg.pvfuse and (cfg.prefuse or not cfg.zref or cfg.ext7 != 1 or cfg.ext8 != 1))
        self.stamp(3)
        if cfg.prefuse: a(CALL + "L_fuseH")
        if cfg.ext7 == 0:
            self.task_bases(SETA, 7, False)
            for x in range(5): self.issue_piece(SETA, 1, x)
        a("  s_waitcnt lgkmcnt(0)")
        a("  s_branch L_sb0")
        a("L_sgather:     ; waves 6,7: nonce, GO word, Qk into the staging area")
        if cfg.streamonly == 3:
            pass
        elif cfg.streamonly:
            srd(a, R_WS, P_WS, WS_BYTES)
            for i in range(4): a(f"  v_mov_b32 v{20+i}, 0")
            a("  s_barrier\n  s_branch L_sdone")
        for r in (self.V_OFF1, self.V_OFF0, self.V_SA) + self.V_WA: a(f"  v_mov_b32 v{r}, 0")
        for i in range(4): a(f"  v_mov_b32 v{20+i}, 0")
        a(f"  v_lshlrev_b32 v24, 4, v0\n  v_add_u32 v24, {STAT}, v24\n  ds_write_b128 v24, v[20:23]\n  ds_write_b128 v24, v[20:23] offset:1024")
        a(f"  v_cmp_gt_u32 vcc, {(2320 - 2048) // 16}, v0\n  s_and_saveexec_b64 s[64:65], vcc")
        a("  ds_write_b128 v24, v[20:23] offset:2048\n  s_mov_b64 exec, s[64:65]\n  s_waitcnt lgkmcnt(0)\n  s_barrier")
        a(f"  s_mov_b32 s{S_QBASE}, 0\n  s_mov_b32 s{S_K}, 0\n  s_mov_b32 s{S_QMASK}, 0\n  s_mov_b32 s{S_QMASK+1}, 0")
        for r in range(3): a(f"  s_mov_b32 s{SETA+r}, 0\n  s_mov_b32 s{SETB+r}, 0")
        srd(a, R_WS, P_WS, WS_BYTES)
        a(f"  s_cmp_eq_u32 s{S_WAVE}, 7\n  s_cbranch_scc1 L_sw7")
        a(f"  buffer_load_dword v17, v{self.V_OFF1}, {sr(R_WS)}, 0 offen offset:{NONCE_OFF} sc1")
        a(f"  v_mov_b32 v18, {GO_OFF}")
        self.stream_consts()
        a(f"  s_waitcnt vmcnt(0)\n  v_add_u32 v17, 1, v17\n  v_mov_b32 v{self.V_T0}, {NONCE_LDS}\n  ds_write_b32 v{self.V_T0}, v17\n  v_readfirstlane_b32 s{S_NONCE}, v17")
        if cfg.streamonly != 3: a("  s_barrier")
        a(f"  buffer_load_dword v16, v18, {sr(R_WS)}, 0 offen sc1")
        if cfg.streamonly != 3: a("  s_barrier")
        self.wait_flags(16, 18, first_issued=True)
        self.stamp(1)
        a(f"  s_mov_b32 s62, {RQK_OFF}")
        if cfg.kdelay: a(f"  s_sleep {cfg.kdelay}")
        self.gather_frags(12, self.V_QK, self.V_L16, 62, self.V_T0, "qk")
        if cfg.gdiag:
            a(f"  s_mov_b32 s{STAMP0+4}, s{S_SPIN}")
            self.stamp(5)
        for j in range(12): a(f"  ds_write_b128 v{self.V_PADDR}, {vr(self.V_QK+4*j)} offset:{j*1024}")
        SQ4 = self.V_SQ4
        for j in range(12):
            for i in range(4):
                a(f"  v_dot2_f32_bf16 v{SQ4+i}, v{self.V_QK+4*j+i}, v{self.V_ONES}, {'0' if j == 0 else 'v%d' % (SQ4+i)}")
        self.pk("v_pk_add_f32", SQ4, SQ4, SQ4 + 2)
        a(f"  v_add_f32 v{self.V_QS}, v{SQ4}, v{SQ4+1}")
        self.allred_g(self.V_QS, self.V_T0, "v_add_f32")
        a(f"  v_and_b32 v{self.V_T0}, 15, v0\n  v_lshlrev_b32 v{self.V_T0}, 2, v{self.V_T0}\n  v_add_u32 v{self.V_T0}, {QS_LDS}, v{self.V_T0}\n  ds_write_b32 v{self.V_T0}, v{self.V_QS}")
        a("  s_waitcnt lgkmcnt(0)")
        self.stamp(3)
        if cfg.streamonly == 3: a("  s_branch L_sdone")
        a("  s_branch L_sb0")
        a("L_sw7:")
        if cfg.streamonly == 3: a("  s_branch L_sdone")
        self.stream_consts()
        a("  s_waitcnt vmcnt(0)\n  s_barrier\n  s_barrier")
        a("L_sb0:         ; tiles 0..11 and Qk are in LDS\n  s_barrier")
        a(f"  v_and_b32 v{self.V_T2}, 15, v0\n  v_lshlrev_b32 v{self.V_T2}, 2, v{self.V_T2}\n  v_add_u32 v{self.V_T2}, {QS_LDS}, v{self.V_T2}")
        a(f"  v_mov_b32 v{self.V_T0}, {NONCE_LDS}\n  ds_read_b32 v{self.V_T1}, v{self.V_T0}\n  ds_read_b32 v{self.V_QS}, v{self.V_T2}")
        for j in range(12): a(f"  ds_read_b128 {vr(self.V_QK+4*j)}, v{self.V_PADDR} offset:{j*1024}")
        a(f"  s_mul_i32 s{S_P0}, s{S_IDX}, {NPAIR}")
        for r in range(4): a(f"  v_mov_b32 v{self.V_LT+r}, 0")
        a(f"  s_waitcnt lgkmcnt(0)\n  v_readfirstlane_b32 s{S_NONCE}, v{self.V_T1}")
        if cfg.zref: a("  s_barrier")
        sk = self.lab("noext")
        a(f"  s_cmp_ge_u32 s{S_WAVE}, 6\n  s_cbranch_scc1 {sk}")
        if cfg.ext7 == 1:
            self.task_bases(SETA, 7, False)
            for x in range(5): self.issue_piece(SETA, 1, x)
        if cfg.ext8 == 0:
            self.task_bases(SETB, 8, False)
            for x in range(5): self.issue_piece(SETB, 2, x)
        a(f"{sk}:")
        self.stamp(4)
        if cfg.zref:
            a(f"  s_mov_b32 s{S_LOW}, {f32(LOW_LIMIT)}\n  v_mov_b32 v{self.V_M}, 0")
            a(f"  s_mul_i32 s{S_TB}, s{S_WAVE}, {SLOT}\n  s_lshl_b32 s62, s{S_WAVE}, 7\n  s_add_u32 s{S_STA}, s62, {STAT}")
            a(f"  s_lshr_b32 s62, s{S_WAVE}, 1\n  s_add_u32 s{S_PAIR}, s62, s{S_P0}")
            a(f"  s_lshl_b32 s62, s62, 10\n  s_and_b32 s63, s{S_WAVE}, 1\n  s_lshl_b32 s63, s63, 3\n  s_add_u32 s{S_POFF}, s62, s63")
            a(CALL + "L_sp")
            if cfg.ext8 == 2:
                sk = self.lab("noe8")
                a(f"  s_cmp_ge_u32 s{S_WAVE}, 6\n  s_cbranch_scc1 {sk}")
                self.task_bases(SETB, 8, False)
                for x in range(5): self.issue_piece(SETB, 2, x)
                a(f"{sk}:")
            a("  s_waitcnt lgkmcnt(0)\n  s_barrier")
            self.pv_first()
            a("L_safter1:")
        else:
            self.call_batch(8, 0, 0, 0, False)
        a(f"  s_mov_b32 s{S_LOW}, {f32(-3.0e38)}")
        a("  s_barrier")
        if not cfg.gdiag: self.stamp(5)
        a(f"  s_cmp_ge_u32 s{S_WAVE}, 6\n  s_cbranch_scc1 L_s67")
        if cfg.ext8 == 1:
            self.task_bases(SETB, 8, False)
            if cfg.late8:
                a(f"  s_and_b32 s62, s2, 4\n  s_cmp_lg_u32 s62, 0\n  s_cselect_b32 s{SETB}, 0x80000000, s{SETB}\n  s_cselect_b32 s{SETB+1}, 0x80000000, s{SETB+1}\n  s_cselect_b32 s{SETB+2}, 0x80000000, s{SETB+2}")
            for x in range(5): self.issue_piece(SETB, 2, x)
        self.fstamp(0)
        if cfg.prefuse or cfg.pvfuse:
            b = self.V_BUF[0]
            for t in range(4): a(f"  ds_write_b128 v{self.V_WA[t]}, {vr(b+4+4*t)} offset:{t*768}")
            for t in range(4): a(f"  v_add_u32 v{self.V_WA[t]}, 24576, v{self.V_WA[t]}")
        else:
            a(CALL + "L_fuseR0")
        self.fstamp(1)
        a(CALL + "L_fuseR1")
        self.fstamp(2)
        if cfg.late8:
            sk8 = self.lab("skip8")
            a(f"  s_and_b32 s62, s2, 4\n  s_cmp_lg_u32 s62, 0\n  s_cbranch_scc1 {sk8}")
            a(CALL + "L_fuseR2")
            a(f"{sk8}:\n  s_waitcnt vmcnt(0)")
        else:
            a(CALL + "L_fuseR2")
        self.fstamp(3)
        a("  s_branch L_sx")
        a("L_s67:         ; waves 6,7: logits and P of tiles 8..11 beside the fuse steps of tasks 6..8")
        for i in range(2):
            a(f"  s_and_b32 s63, s{S_WAVE}, 1\n  s_add_u32 s62, s63, {8 + 2*i}\n  s_mul_i32 s{S_TB}, s62, {SLOT}")
            a(f"  s_lshl_b32 s62, s62, 7\n  s_add_u32 s{S_STA}, s62, {STAT}\n  s_add_u32 s{S_PAIR}, s{S_P0}, {4 + i}")
            a(f"  s_lshl_b32 s63, s63, 3\n  s_add_u32 s{S_POFF}, s63, {i*1024}")
            a(CALL + "L_sp")
        a("L_sx:")
        self.publish_setup()
        a("  s_waitcnt lgkmcnt(0)\n  s_barrier")
        if not cfg.gdiag: self.stamp(2)
        sk = self.lab("nosp")
        a(f"  s_cmp_ge_u32 s{S_WAVE}, 6\n  s_cbranch_scc1 {sk}")
        a(f"  s_mul_i32 s{S_TB}, s{S_WAVE}, {SLOT}\n  s_lshl_b32 s62, s{S_WAVE}, 7\n  s_add_u32 s{S_STA}, s62, {STAT + 12*128}")
        a(f"  s_lshr_b32 s62, s{S_WAVE}, 1\n  s_add_u32 s{S_PAIR}, s62, s{S_P0}\n  s_add_u32 s{S_PAIR}, s{S_PAIR}, 6")
        a(f"  s_lshl_b32 s62, s62, 10\n  s_and_b32 s63, s{S_WAVE}, 1\n  s_lshl_b32 s63, s63, 3\n  s_add_u32 s62, s62, s63\n  s_add_u32 s{S_POFF}, s62, 2048")
        a(CALL + "L_sp")
        a(f"{sk}:")
        MXV = self.V_MXV
        self.pk("v_pk_add_f32", MXV, self.V_L2, self.V_LT); self.pk("v_pk_add_f32", MXV + 2, self.V_AM2, self.V_AT)
        self.red_write(MXV, MXV + 2, MXV + 6)
        a("  s_waitcnt lgkmcnt(0)")
        if not cfg.gdiag: self.stamp(1)
        a("  s_barrier")
        self.stamp(6)
        self.pv_final()
        a("L_spub:        ; partial result of this workgroup")
        self.stamp(7)
        self.publish()
        self.cstamp(8)
        self.stamp(8)
        if cfg.cut >= 1: a("  s_branch L_sdone")
        self.reducer_index()
        a(f"  s_cmp_ge_u32 s{S_RHO}, 128\n  s_cbranch_scc1 L_sdone")
        self.reducer()
        a("L_sdone:")
        self.stamp(9); self.stamp_flush((5, 6, 8, (0, 1, 3, 5, 6, 7, 8, 9)))
        a("  s_endpgm")
        if cfg.zref:
            a("L_slow1:       ; a logit of tiles 0..7 left the range of the zero reference: exact maximum\n  s_waitcnt lgkmcnt(0)")
            a(f"  v_mov_b32 v{self.V_M}, 0xff800000")
            for r in range(4): a(f"  v_mov_b32 v{self.V_LT+r}, 0")
            self.call_batch(8, 0, 0, 0, False)
            if cfg.pvfuse:
                a(f"  s_cmp_ge_u32 s{S_WAVE}, 6\n  s_cbranch_scc1 L_safter1")
                a(CALL + "L_fuseH")
            a("  s_branch L_safter1")
        a("L_slow:        ; a later logit left the range of the reference: tiles 8..17 with exact maxima\n  s_waitcnt lgkmcnt(0)")
        self.call_batch(4, 4, 8, 4, False)
        self.call_batch(6, 0, 0, 6, True)
        self.sums_read(); self.sums_math()
        a("  s_branch L_spub")
        self.sp_sub(); self.sphase_sub(); self.batch_sub()
        self.fuse_sub(1, 10, "L_fuseR1", "drain"); self.fuse_sub(2, 5, "L_fuseR2", "drain")
        if cfg.pvfuse: self.fuse_sub(0, 10, "L_fuseH", "hold")
        elif cfg.prefuse: self.fuse_sub(0, 5, "L_fuseH", "hold")
        else: self.fuse_sub(0, 15, "L_fuseR0", "drain")
        self.fuse_sub(0, d, "L_fuse0"); self.fuse_sub(1, d, "L_fuse1")
        if cfg.dlate != d: self.fuse_sub(0, cfg.dlate, "L_fuseL0"); self.fuse_sub(1, cfg.dlate, "L_fuseL1")

    def publish_setup(self):
        a = self.a
        T0, T1, T2 = self.V_T0, self.V_T1, self.V_T2
        PA0, TAGB = self.V_PUB, self.V_PUB + 1
        a(f"  v_and_b32 v{T0}, 7, v0\n  v_lshlrev_b32 v{T0}, 3, v{T0}\n  v_add_u32 v{T0}, s{S_WAVE}, v{T0}\n  s_mov_b32 s62, {PART_STRIDE}\n  v_mul_lo_u32 v{T0}, v{T0}, s62")
        a(f"  v_bfe_u32 v{T1}, v0, 3, 1\n  v_lshl_add_u32 v{T0}, v{T1}, 6, v{T0}\n  v_lshrrev_b32 v{T1}, 4, v0\n  v_lshl_add_u32 v{PA0}, v{T1}, 4, v{T0}")
        a(f"  s_mov_b32 s62, {KEYC}\n  v_mul_lo_u32 v{T1}, v{T1}, s62\n  v_add_u32 v{TAGB}, s{S_NONCE}, v{T1}")
        a(f"  v_and_b32 v{T0}, 15, v0\n  v_lshlrev_b32 v{T0}, 6, v{T0}\n  v_bfe_u32 v{T1}, v0, 4, 1\n  v_lshl_add_u32 v{T0}, v{T1}, 2, v{T0}")
        a(f"  s_lshl_b32 s62, s{S_WAVE}, 3\n  s_add_u32 s62, s62, {RED}\n  v_add_u32 v{self.V_PUB+2}, s62, v{T0}")
        a(f"  v_and_b32 v{T0}, 15, v0\n  v_lshlrev_b32 v{T0}, 6, v{T0}\n  v_add_u32 v{self.V_PUB+3}, {RED}, v{T0}")

    def publish(self):
        a = self.a; cfg = self.cfg
        A, ACC, R = self.V_A, self.V_ACC, self.V_SR
        PA0, TAGB = self.V_PUB, self.V_PUB + 1
        UA, UB, TB = A + 24, A + 28, A + 32
        a(f"  s_lshl_b32 s62, s{S_IDX}, 7\n  s_add_u32 s62, s62, {PART_OFF}\n  s_add_u32 s63, s62, {64*PART_STRIDE}")
        a(f"  v_mov_b32 v{UA+3}, s{S_NONCE}\n  v_xor_b32 v{UB+3}, v{R+6}, v{TAGB}")
        for i in range(0, 12, 2): self.pk("v_pk_fma_f32", ACC + i, ACC + i, R + 2, R + 4, bc=(1, 2), neg=(2,))
        for i in range(3): a(f"  v_cvt_pk_f16_f32 v{UA+i}, v{ACC+2*i}, v{ACC+2*i+1}")
        for i in range(3): a(f"  v_cvt_pk_f16_f32 v{UB+i}, v{ACC+6+2*i}, v{ACC+7+2*i}")
        for i in range(4): a(f"  v_mov_b32 v{TB+i}, v{UB+i}")
        for i in range(3): a(f"  v_mov_b32_dpp v{UB+i}, v{UA+i} row_ror:8 row_mask:0xf bank_mask:0x3")
        a(f"  v_mov_b32_dpp v{UB+3}, v{UA+3} quad_perm:[0,1,2,3] row_mask:0xf bank_mask:0x3")
        for i in range(4): a(f"  v_mov_b32_dpp v{UA+i}, v{TB+i} row_ror:8 row_mask:0xf bank_mask:0xc")
        a(f"  buffer_store_dwordx4 {vr(UA)}, v{PA0}, {sr(R_WS)}, s62 offen sc1")
        a(f"  buffer_store_dwordx4 {vr(UB)}, v{PA0}, {sr(R_WS)}, s63 offen sc1")

    def reducer_index(self):
        a = self.a; cfg = self.cfg
        if cfg.redsel == 0:
            a(f"  s_mov_b32 s{S_RHO}, s{S_IDX}")
            return
        assert cfg.hnx == 4 and cfg.hx0 == 0
        a("  s_and_b32 s60, s2, 7\n  s_lshr_b32 s61, s2, 3")
        a("  s_and_b32 s62, s60, 3\n  s_cmp_ge_u32 s60, 4\n  s_cselect_b32 s63, 1, 0")
        a("  s_lshl_b32 s64, s61, 2\n  s_add_u32 s64, s64, s62")
        a("  s_sub_u32 s65, s64, 24")
        if cfg.redsel == 1:
            a(f"  s_add_u32 s64, s64, 104\n  s_cmp_eq_u32 s63, 0\n  s_cselect_b32 s{S_RHO}, s65, s64")
        else:
            a(f"  s_add_u32 s65, s65, 124\n  s_cmp_eq_u32 s63, 0\n  s_cselect_b32 s{S_RHO}, s65, s64")

    def reducer_addr(self):
        a = self.a
        AD, T0, T1, VM, SA, X, Y, KEY = self.RV
        MASK = 40
        a(f"  v_lshrrev_b32 v{T0}, 3, v0\n  s_lshl_b32 s62, s{S_WAVE}, 5\n  v_add_u32 v{VM}, s62, v{T0}")
        a(f"  v_and_b32 v{T1}, 7, v0\n  v_lshlrev_b32 v{T1}, 4, v{T1}\n  s_mov_b32 s62, {NS}")
        for it in range(4):
            a(f"  v_add_u32 v{T0}, {8*it}, v{VM}\n  v_cmp_gt_u32 s[{MASK+2*it}:{MASK+2*it+1}], s62, v{T0}\n  v_cndmask_b32 v{T0}, 0, v{T0}, s[{MASK+2*it}:{MASK+2*it+1}]")
            a(f"  v_lshl_add_u32 v{AD+it}, v{T0}, 7, v{T1}")

    def reducer_setup(self):
        a = self.a
        AD, T0, T1, VM, SA, X, Y, KEY = self.RV
        a(f"  v_and_b32 v{T0}, 3, v0\n  v_bfe_u32 v{T1}, v0, 2, 1\n  v_mul_u32_u24 v{T0}, v{T0}, v{T1}\n  s_mov_b32 s62, {KEYC}\n  v_mul_lo_u32 v{T0}, v{T0}, s62\n  v_add_u32 v{KEY}, s{S_NONCE}, v{T0}")
        a(f"  v_lshrrev_b32 v{T0}, 4, v0\n  v_and_b32 v{T1}, 1, v{T0}\n  v_lshlrev_b32 v{T1}, 1, v{T1}\n  v_lshrrev_b32 v{X}, 1, v{T0}\n  v_add_u32 v{T1}, v{T1}, v{X}")
        a(f"  v_bfe_u32 v{X}, v0, 2, 1\n  v_mul_u32_u24 v{X}, 3, v{X}\n  v_add_u32 v{T1}, v{T1}, v{X}")
        a(f"  v_lshrrev_b32 v{X}, 1, v{T1}\n  v_lshlrev_b32 v{X}, 4, v{X}\n  v_and_b32 v{T1}, 1, v{T1}\n  v_lshl_add_u32 v{X}, v{T1}, 1, v{X}")
        a(f"  v_and_b32 v{T1}, 3, v0\n  v_lshl_add_u32 v{X}, v{T1}, 2, v{X}")
        a(f"  s_and_b32 s62, s{S_RHO}, 7\n  s_mul_i32 s62, s62, 48\n  v_add_u32 v{X}, s62, v{X}\n  v_lshlrev_b32 v{SA}, 1, v{X}")
        a(f"  v_lshrrev_b32 v{T1}, 4, v0\n  v_lshlrev_b32 v{T1}, 3, v{T1}\n  v_and_b32 v{X}, 7, v0\n  v_add_u32 v{T1}, v{T1}, v{X}\n  v_lshlrev_b32 v{Y}, 3, v{T1}")
        a(f"  s_lshl_b32 s62, s{S_WAVE}, 8\n  s_add_u32 s62, s62, {RED2}\n  v_add_u32 v{X}, s62, v{Y}\n  v_add_u32 v{Y}, {RED2}, v{Y}")

    RV = (80, 84, 85, 86, 87, 88, 89, 90)

    def reducer(self):
        a = self.a; cfg = self.cfg
        D, E, W, V = 16, 32, 40, 44
        AD, T0, T1, VM, SA, X, Y, KEY = self.RV
        MASK = 40
        BAD = 52
        self.reducer_addr()
        if cfg.rack: a("  s_waitcnt vmcnt(0)")
        if cfg.rdelay: a(f"  s_sleep {cfg.rdelay}")
        if cfg.rdiag: self.stamp(1)
        a(f"  s_mul_i32 s62, s{S_RHO}, {PART_STRIDE}\n  s_add_u32 s62, s62, {PART_OFF}")
        for it in range(4): a(f"  buffer_load_dwordx4 {vr(D+4*it)}, v{AD+it}, {sr(R_WS)}, s62 offen sc1")
        a("  s_mov_b32 s63, s62")
        self.reducer_setup()
        a("  s_mov_b32 s62, s63")
        for it in range(4): a(f"  v_mov_b32 v{E+2*it+1}, 0")
        lp, ck, dn = self.lab("red"), self.lab("redc"), self.lab("redd")
        BADS = (48, 50, 52, 54)
        a(f"  s_mov_b32 s{S_SPIN}, 0\n  s_branch {ck}\n{lp}:")
        for it in range(4):
            sk = self.lab("skipld")
            a(f"  s_mov_b64 exec, s[{BADS[it]}:{BADS[it]+1}]\n  s_cbranch_execz {sk}")
            a(f"  buffer_load_dwordx4 {vr(D+4*it)}, v{AD+it}, {sr(R_WS)}, s62 offen sc1")
            a(f"{sk}:")
        a("  s_mov_b64 exec, -1")
        self.spin_guard(dn)
        a(f"{ck}:\n  s_waitcnt vmcnt(0)")
        for it in range(4): a(f"  v_xor_b32 v{E+2*it}, v{KEY}, v{D+4*it+3}")
        for it in range(4): a(f"  v_mov_b32_dpp v{E+2*it+1}, v{E+2*it} quad_perm:[0,0,0,0] row_mask:0xf bank_mask:0xa")
        for it in range(4): a(f"  v_cmp_ne_u32 s[{BADS[it]}:{BADS[it]+1}], v{E+2*it}, v{E+2*it+1}")
        a(f"  s_or_b64 s[60:61], s[48:49], s[50:51]\n  s_or_b64 vcc, s[52:53], s[54:55]\n  s_or_b64 s[60:61], s[60:61], vcc\n  s_cbranch_scc0 {dn}")
        if cfg.selpoll == 2:
            for it in range(4): a(f"  v_xor_b32 v{W+it}, v{E+2*it}, v{E+2*it+1}")
            for ctrl in ("row_half_mirror", "quad_perm:[1,0,3,2]", "quad_perm:[2,3,0,1]"):
                for it in range(4): a(f"  v_or_b32_dpp v{W+it}, v{W+it}, v{W+it} {ctrl} row_mask:0xf bank_mask:0xf")
            for it in range(4): a(f"  v_cmp_ne_u32 s[{BADS[it]}:{BADS[it]+1}], 0, v{W+it}")
        else:
            for it in range(4):
                b = BADS[it]
                if cfg.selpoll: a(f"  s_cmp_lg_u64 s[{b}:{b+1}], 0\n  s_cselect_b64 s[{b}:{b+1}], -1, 0")
                else: a(f"  s_mov_b64 s[{b}:{b+1}], -1")
        if cfg.rsleep: a(f"  s_sleep {cfg.rsleep}")
        a(f"  s_branch {lp}")
        a(f"{dn}:\n  s_waitcnt vmcnt(0)")
        if cfg.rdiag:
            self.stamp(2)
            a(f"  s_mov_b32 s{STAMP0+6}, s{S_SPIN}")
        for it in range(4): a(f"  v_mov_b32_dpp v{E+2*it}, v{E+2*it} row_shl:4 row_mask:0xf bank_mask:0x5")
        a(f"  v_mov_b32 v{T1}, 0xff800000")
        for it in range(4):
            a(f"  v_cndmask_b32 v{E+2*it}, v{T1}, v{E+2*it}, s[{MASK+2*it}:{MASK+2*it+1}]")
        a(f"  v_max3_f32 v{T0}, v{E}, v{E+2}, v{E+4}\n  v_max_f32 v{T0}, v{T0}, v{E+6}")
        a(f"  v_max_f32_dpp v{T0}, v{T0}, v{T0} row_ror:8 row_mask:0xf bank_mask:0xf")
        self.allred_g(T0, T1, "v_max_f32")
        for it in range(4): a(f"  v_sub_f32 v{W+it}, v{E+2*it}, v{T0}")
        for it in range(4): a(f"  v_exp_f32 v{W+it}, v{W+it}")
        a(f"  s_lshl_b32 s62, s{S_WAVE}, 2\n  s_add_u32 s62, s62, {MXW}\n  v_mov_b32 v{T1}, s62\n  ds_write_b32 v{T1}, v{T0}")
        for it in range(4):
            for q in range(3):
                c0 = "0" if it == 0 else f"v{V+2*q}"; c1 = "0" if it == 0 else f"v{V+2*q+1}"
                a(f"  v_fma_mix_f32 v{V+2*q}, v{D+4*it+q}, v{W+it}, {c0} op_sel_hi:[1,0,0]")
                a(f"  v_fma_mix_f32 v{V+2*q+1}, v{D+4*it+q}, v{W+it}, {c1} op_sel:[1,0,0] op_sel_hi:[1,0,0]")
        self.pk("v_pk_add_f32", W, W, W + 2)
        a(f"  v_add_f32 v{V+6}, v{W}, v{W+1}\n  v_mov_b32 v{V+7}, 0")
        for x, y in ((0, 2), (1, 3), (4, 6), (5, 7)): a(f"  v_permlane32_swap_b32 v{V+x}, v{V+y}")
        for x, y in ((0, 2), (1, 3), (4, 6), (5, 7)): a(f"  v_add_f32 v{V+x}, v{V+x}, v{V+y}")
        for x, y in ((0, 4), (1, 5)): a(f"  v_permlane16_swap_b32 v{V+x}, v{V+y}")
        for x, y in ((0, 4), (1, 5)): a(f"  v_add_f32 v{V+x}, v{V+x}, v{V+y}")
        for x in (0, 1): a(f"  v_add_f32_dpp v{V+x}, v{V+x}, v{V+x} row_ror:8 row_mask:0xf bank_mask:0xf")
        a(f"  ds_write_b64 v{X}, {vr(V,2)}\n  s_waitcnt lgkmcnt(0)")
        if cfg.rdiag: self.stamp(4)
        a("  s_barrier")
        if cfg.rdiag: self.stamp(5)
        a(f"  s_cmp_lg_u32 s{S_WAVE}, 0\n  s_cbranch_scc1 L_sdone")
        a(f"  v_mov_b32 v{T1}, {MXW}\n  ds_read_b128 {vr(W)}, v{T1}\n  ds_read_b128 {vr(W+4)}, v{T1} offset:16")
        for w in range(8): a(f"  ds_read_b64 {vr(D+2*w,2)}, v{Y} offset:{256*w}")
        a(f"  s_lshr_b32 s63, s{S_RHO}, 3\n  s_mul_i32 s63, s63, 768\n  s_add_u32 s63, s63, {RCTX_OFF}")
        a(f"  v_and_b32 v{X}, 8, v0\n  v_cmp_eq_u32 vcc, 0, v{X}\n  v_cmp_gt_u32 s[64:65], 48, v0\n  s_and_b64 s[64:65], vcc, s[64:65]")
        a("  s_waitcnt lgkmcnt(8)")
        a(f"  v_max3_f32 v{T0}, v{W}, v{W+1}, v{W+2}\n  v_max3_f32 v{T1}, v{W+3}, v{W+4}, v{W+5}\n  v_max3_f32 v{T0}, v{T0}, v{W+6}, v{W+7}\n  v_max_f32 v{T0}, v{T0}, v{T1}")
        for w in range(0, 8, 2): self.pk("v_pk_add_f32", W + w, W + w, T0, bc=(1,), neg=(1,))
        for w in range(8): a(f"  v_exp_f32 v{W+w}, v{W+w}")
        a("  s_waitcnt lgkmcnt(0)")
        for w in range(8):
            base = W + (w & ~1)
            sel = "op_sel:[0,1,0] op_sel_hi:[1,1,1]" if w & 1 else "op_sel_hi:[1,0,1]"
            if w == 0: a(f"  v_pk_mul_f32 {vr(E,2)}, {vr(D,2)}, {vr(base,2)} op_sel_hi:[1,0]")
            else: a(f"  v_pk_fma_f32 {vr(E,2)}, {vr(D+2*w,2)}, {vr(base,2)}, {vr(E,2)} {sel}")
        a(f"  v_readlane_b32 s62, v{E}, 48\n  v_rcp_f32 v{T0}, s62")
        self.pk("v_pk_mul_f32", E, E, T0, bc=(1,))
        a(f"  v_cvt_pk_bf16_f32 v{E}, v{E}, v{E+1}\n  v_min_u32 v{E}, -2, v{E}")
        a("  s_mov_b64 exec, s[64:65]")
        a(f"  buffer_store_dword v{E}, v{SA}, {sr(R_WS)}, s63 offen sc1")
        a("  s_mov_b64 exec, -1")

    def img_dma(self, srdr, lds, soff, vs0, vs1):
        for th in range(3):
            for q4 in range(4):
                self.img_dma1(srdr, lds, soff, vs0, vs1, th, q4)
    def img_dma1(self, srdr, lds, soff, vs0, vs1, th, q4, ldsreg=None):
        a = self.a
        if ldsreg is None: a(f"  s_mov_b32 m0, {lds + th*4096 + q4*1024}")
        else: a(f"  s_add_u32 m0, s{ldsreg}, {th*4096 + q4*1024}")
        a(f"  s_add_u32 s62, s{soff}, {q4*3072 + th*256}")
        a(f"  buffer_load_dwordx4 v{vs1 if q4 & 1 else vs0}, {sr(srdr)}, s62 offen{' nt' if self.cfg.hnt else ''} lds")

    def helper(self):
        a = self.a; cfg = self.cfg
        L16, N, Gq, T0, T1, T2, T3 = 1, 2, 3, 4, 5, 6, 7
        FL, TA, DS, VS0, VS1, ZERO = 8, 10, 11, 12, 13, 14
        IA = 16
        QF, AF, TR = 20, 68, 160
        WKF = 116
        D1, D2, D3, ST, ONES = 208, 212, 216, 220, 224
        a("L_helper:      ; ---------------- helpers")
        if cfg.streamonly == 1:
            a("  s_waitcnt lgkmcnt(0)")
            srd(a, R_WS, P_WS, WS_BYTES)
            a("  s_branch L_hdone")
        a(f"  v_lshlrev_b32 v{L16}, 4, v0\n  v_and_b32 v{N}, 15, v0\n  v_lshrrev_b32 v{Gq}, 4, v0\n  v_mov_b32 v{ZERO}, 0")
        a(f"  v_lshlrev_b32 v{T0}, 1, v{Gq}\n  v_xor_b32 v{T0}, v{N}, v{T0}\n  v_mul_u32_u24 v{T1}, 768, v{Gq}")
        a(f"  v_lshl_add_u32 v{VS0}, v{T0}, 4, v{T1}\n  v_xor_b32 v{T0}, 8, v{T0}\n  v_lshl_add_u32 v{VS1}, v{T0}, 4, v{T1}")
        a(f"  v_lshrrev_b32 v{T0}, 1, v0\n  v_mul_u32_u24 v{T0}, 768, v{T0}\n  v_and_b32 v{T1}, 1, v0\n  v_lshl_add_u32 v{T0}, v{T1}, 4, v{T0}")
        a(f"  s_lshl_b32 s61, s{S_IDX}, 5\n  v_add_u32 v{DS}, s61, v{T0}")
        a(f"  s_lshr_b32 s60, s{S_IDX}, 1\n  s_lshl_b32 s60, s60, 10\n  s_and_b32 s61, s{S_IDX}, 1\n  s_lshl_b32 s61, s61, 9\n  s_add_u32 s60, s60, s61")
        a(f"  v_lshrrev_b32 v{T0}, 1, v{Gq}\n  v_lshlrev_b32 v{T0}, 8, v{T0}\n  v_lshl_add_u32 v{T0}, v{N}, 4, v{T0}")
        a(f"  v_and_b32 v{T1}, 1, v{Gq}\n  v_lshl_add_u32 v{T0}, v{T1}, 3, v{T0}\n  v_add_u32 v{FL}, s60, v{T0}")
        if cfg.hdiag: self.stamp(8)
        a("  s_waitcnt lgkmcnt(0)")
        if cfg.hdiag: self.stamp(2)
        srd(a, R_WS, P_WS, WS_BYTES)
        a(f"  s_cmp_eq_u32 s{S_WAVE}, 1\n  s_cbranch_scc1 L_h1a")
        a(f"  s_cmp_eq_u32 s{S_WAVE}, 0\n  s_cbranch_scc1 L_h0a")
        a("  s_branch L_hb1")
        a("L_h1a:")
        srd(a, R_B, P_WQ, W_BYTES)
        for k in range(12):
            a(f"  s_mov_b32 m0, {H_WQI + k*1024}\n  s_mov_b32 s62, {k*32*768}\n  buffer_load_dwordx4 v{DS}, {sr(R_B)}, s62 offen{' nt' if cfg.hnt else ''} lds")
        a(f"  buffer_load_dword v9, v{ZERO}, {sr(R_WS)}, 0 offen offset:{NONCE_OFF} sc1")
        a(f"  v_mov_b32 v{T0}, -1\n  v_mov_b32 v{T0+1}, -1\n  v_mov_b32 v{T0+2}, -1\n  v_mov_b32 v{T0+3}, -1")
        a(f"  s_lshl_b32 s60, s{S_IDX}, 9\n  s_add_u32 s62, s60, {RQ_OFF}\n  s_add_u32 s63, s60, {RQK_OFF}\n  s_add_u32 s61, s60, {RCTX_OFF}")
        a("  s_mov_b32 s64, -1\n  s_mov_b32 s65, 0\n  s_mov_b64 exec, s[64:65]")
        for r in ("s62", "s63", "s61"): a(f"  buffer_store_dwordx4 {vr(T0)}, v{L16}, {sr(R_WS)}, {r} offen sc1")
        a("  s_mov_b64 exec, -1")
        a("  s_waitcnt vmcnt(4)\n  s_branch L_hb1")
        a("L_h0a:")
        srd(a, R_A, P_Q, Q_BYTES)
        a("  s_mov_b32 s60, 0")
        self.img_dma(R_A, H_QI, 60, VS0, VS1)
        a(f"  buffer_load_dword v15, v{ZERO}, {sr(R_WS)}, 0 offen offset:{NONCE_OFF} sc1")
        a("  s_waitcnt vmcnt(0)\n  s_branch L_hb1")
        a("L_hb1:")
        self.stamp(7)
        T0, T1, T2 = 228, 229, 230
        srd(a, R_A, P_Q, Q_BYTES); srd(a, R_D, P_WV, W_BYTES); srd(a, R_F, P_OUT, Q_BYTES)
        a(f"  v_and_b32 v{T0}, 7, v{N}\n  v_lshlrev_b32 v{T0}, 1, v{T0}\n  v_lshlrev_b32 v{T1}, 8, v{N}")
        for m in range(4):
            a(f"  v_add_u32 v{T2}, {4*m}, v{Gq}\n  v_xor_b32 v{T2}, v{T2}, v{T0}\n  v_lshl_add_u32 v{IA+m}, v{T2}, 4, v{T1}")
        a(f"  v_lshrrev_b32 v{T0}, 2, v{N}\n  v_lshl_add_u32 v{T0}, v{Gq}, 3, v{T0}\n  v_lshlrev_b32 v{T0}, 5, v{T0}")
        a(f"  v_and_b32 v{T1}, 3, v{N}\n  v_lshl_add_u32 v{TA}, v{T1}, 3, v{T0}")
        for i in range(4): a(f"  v_mov_b32 v{ONES+i}, 0x3f803f80")
        a("  s_barrier")
        T0, T1, T2 = 4, 5, 6
        self.stamp(1)
        if cfg.cut >= 3: a("  s_branch L_hdone")
        a(f"  s_cmp_eq_u32 s{S_WAVE}, 0\n  s_cbranch_scc1 L_h0b")
        n1 = self.lab("notw1")
        a(f"  s_cmp_eq_u32 s{S_WAVE}, 1\n  s_cbranch_scc0 {n1}")
        a(f"  s_waitcnt vmcnt(0)\n  v_add_u32 v9, 1, v9\n  s_lshl_b32 s62, s{S_IDX}, 7\n  s_add_u32 s62, s62, {FLAG_OFF}\n  s_mov_b64 exec, 1")
        a(f"  buffer_store_dword v9, v{ZERO}, {sr(R_WS)}, s62 offen sc1\n  s_mov_b64 exec, -1\n  s_branch L_hb1c\n{n1}:")
        a(f"  s_cmp_eq_u32 s{S_WAVE}, 3\n  s_cbranch_scc1 L_h3b")
        a(f"  s_cmp_eq_u32 s{S_WAVE}, 2\n  s_cbranch_scc0 L_hb1c")
        srd(a, R_C, P_WK, W_BYTES)
        a(f"  s_mul_i32 s60, s{S_IDX}, {16*768}")
        self.img_dma(R_C, H_WKI, 60, VS0, VS1)
        a("  s_branch L_hb1c")
        a("L_h3b:")
        for j in range(12):
            a(f"  ds_read_b128 {vr(QF+4*j)}, v{IA+(j&3)} offset:{H_QI + (j>>2)*4096}")
        for j in range(12):
            a(f"  s_waitcnt lgkmcnt({11-j})")
            for i in range(4):
                a(f"  v_dot2_f32_bf16 v{ST+i}, v{QF+4*j+i}, v{QF+4*j+i}, {'0' if j == 0 else 'v%d' % (ST+i)}")
                a(f"  v_dot2_f32_bf16 v{D3+i}, v{QF+4*j+i}, v{ONES}, {'0' if j == 0 else 'v%d' % (D3+i)}")
        self.pk("v_pk_add_f32", ST, ST, ST + 2); self.pk("v_pk_add_f32", D3, D3, D3 + 2)
        a(f"  v_add_f32 v{ST}, v{ST}, v{ST+1}\n  v_add_f32 v{ST+1}, v{D3}, v{D3+1}")
        a(f"  v_permlane16_swap_b32 v{ST}, v{ST+1}\n  v_add_f32 v{ST}, v{ST}, v{ST+1}")
        a(f"  v_mov_b32 v{ST+1}, v{ST}\n  v_permlane32_swap_b32 v{ST+1}, v{ST}\n  v_add_f32 v{ST}, v{ST}, v{ST+1}")
        a(f"  v_mul_f32 v{ST}, {f32(1.0/384.0)}, v{ST}")
        a(f"  v_mov_b32 v{ST+1}, v{ST}\n  v_mov_b32 v{ST+2}, v{ST}\n  v_permlane16_swap_b32 v{ST+1}, v{ST+2}")
        a(f"  v_fma_f32 v{ST+3}, -v{ST+2}, v{ST+2}, v{ST+1}\n  v_max_f32 v{ST+3}, 0, v{ST+3}\n  v_add_f32 v{ST+3}, {f32(1e-5)}, v{ST+3}\n  v_rsq_f32 v{ST+3}, v{ST+3}")
        a(f"  v_lshlrev_b32 v{T0}, 3, v{N}\n  v_add_u32 v{T0}, {H_QS}, v{T0}\n  ds_write_b64 v{T0}, {vr(ST+2,2)}\n  s_waitcnt lgkmcnt(0)")
        a("L_hb1c:\n  s_barrier")
        a("  s_branch L_hb2")
        a("L_h0b:")
        a(f"  v_add_u32 v15, 1, v15")
        self.flag_addr(T3)
        a(f"  v_readfirstlane_b32 s{S_NONCE}, v15\n  buffer_load_dword v9, v{T3}, {sr(R_WS)}, 0 offen sc1")
        for j in range(12):
            a(f"  ds_read_b128 {vr(QF+4*j)}, v{IA+(j&3)} offset:{H_QI + (j>>2)*4096}")
        def tr(j):
            a(f"  ds_read_b64_tr_b16 {vr(TR+4*j,2)}, v{TA} offset:{H_WQI + j*1024}")
            a(f"  ds_read_b64_tr_b16 {vr(TR+4*j+2,2)}, v{TA} offset:{H_WQI + j*1024 + 128}")
        a("  s_waitcnt lgkmcnt(3)")
        for j in range(6): tr(j)
        for j in range(12):
            left = min(12, j + 6) - j - 1
            a(f"  s_waitcnt lgkmcnt({2*left})")
            if j + 6 < 12: tr(j + 6)
            a(f"  v_mfma_f32_16x16x32_bf16 {vr(D1)}, {vr(TR+4*j)}, {vr(QF+4*j)}, {'0' if j == 0 else vr(D1)}")
            a(f"  v_mfma_f32_16x16x32_bf16 {vr(D2)}, {vr(TR+4*j)}, {vr(ONES)}, {'0' if j == 0 else vr(D2)}")
        a("  s_barrier")
        a(f"  v_lshlrev_b32 v{T0}, 3, v{N}\n  v_add_u32 v{T0}, {H_QS}, v{T0}\n  ds_read_b64 {vr(ST,2)}, v{T0}\n  s_waitcnt lgkmcnt(0)")
        for r in range(4): a(f"  v_fma_f32 v{D1+r}, -v{ST}, v{D2+r}, v{D1+r}")
        for r in range(4): a(f"  v_mul_f32 v{D1+r}, v{ST+1}, v{D1+r}")
        a(f"  v_cvt_pk_bf16_f32 v{D2}, v{D1}, v{D1+1}\n  v_cvt_pk_bf16_f32 v{D2+1}, v{D1+2}, v{D1+3}")
        a(f"  v_min_u32 v{D2}, -2, v{D2}\n  v_min_u32 v{D2+1}, -2, v{D2+1}\n  s_mov_b32 s62, {RQ_OFF}")
        a(f"  buffer_store_dwordx2 {vr(D2,2)}, v{FL}, {sr(R_WS)}, s62 offen sc1")
        self.stamp(2)
        hv = self.lab("haveflags")
        a(f"  s_waitcnt vmcnt(1)\n  v_cmp_ne_u32 vcc, s{S_NONCE}, v9\n  s_cbranch_vccz {hv}")
        self.wait_flags(9, T3)
        a(f"{hv}:\n  s_mov_b32 s62, {RQ_OFF}")
        if cfg.qdelay: a(f"  s_sleep {cfg.qdelay}")
        self.gather_frags(12, AF, L16, 62, T0, "q", sleep=cfg.qsleep)
        self.stamp(3)
        a("  s_barrier")
        for j in range(12):
            a(f"  ds_read_b128 {vr(WKF+4*j)}, v{IA+(j&3)} offset:{H_WKI + (j>>2)*4096}")
        for j in range(12):
            dd = D1 if j % 2 == 0 else D2
            a(f"  s_waitcnt lgkmcnt({11-j})")
            a(f"  v_mfma_f32_16x16x32_bf16 {vr(dd)}, {vr(WKF+4*j)}, {vr(AF+4*j)}, {'0' if j < 2 else vr(dd)}")
        sc = f32(384 ** -0.5 * LOG2E)
        for r in range(4): a(f"  v_add_f32 v{D1+r}, v{D1+r}, v{D2+r}")
        for r in range(4): a(f"  v_mul_f32 v{D1+r}, {sc}, v{D1+r}")
        a(f"  v_cvt_pk_bf16_f32 v{D2}, v{D1}, v{D1+1}\n  v_cvt_pk_bf16_f32 v{D2+1}, v{D1+2}, v{D1+3}")
        a(f"  v_min_u32 v{D2}, -2, v{D2}\n  v_min_u32 v{D2+1}, -2, v{D2+1}\n  s_mov_b32 s62, {RQK_OFF}")
        a(f"  buffer_store_dwordx2 {vr(D2,2)}, v{FL}, {sr(R_WS)}, s62 offen sc1")
        self.stamp(4)
        a("  s_branch L_hwvo")
        a("L_hb2:\n  s_waitcnt vmcnt(0)\n  s_barrier")
        a("L_hwvo:")
        if cfg.cut >= 2: a("  s_branch L_hdone")
        a(f"  s_cmp_eq_u32 s{S_WAVE}, 3\n  s_cbranch_scc0 L_hwv2")
        srd(a, R_E, P_WO, W_BYTES)
        for k in range(12):
            a(f"  s_mov_b32 m0, {H_WOI + k*1024}\n  s_mov_b32 s62, {k*32*768}\n  buffer_load_dwordx4 v{DS}, {sr(R_E)}, s62 offen{' nt' if cfg.hnt else ''} lds")
        a("L_hwv2:")
        a(f"  s_mul_i32 s60, s{S_WAVE}, {48*768}\n  s_mul_i32 s61, s{S_WAVE}, 12288\n  s_add_u32 s61, s61, {H_WV}")
        for th in range(3):
            for q4 in range(4): self.img_dma1(R_D, 0, 60, VS0, VS1, th, q4, ldsreg=61)
        a("  s_waitcnt vmcnt(12)\n  s_barrier")
        for j in range(12):
            a(f"  ds_read_b64_tr_b16 {vr(TR+4*j,2)}, v{TA} offset:{H_WOI + j*1024}")
            a(f"  ds_read_b64_tr_b16 {vr(TR+4*j+2,2)}, v{TA} offset:{H_WOI + j*1024 + 128}")
            if j == 6: a("  s_waitcnt lgkmcnt(0)")
        for m in range(4): a(f"  v_add_u32 v{IA+m}, s61, v{IA+m}")
        a(f"  v_mul_u32_u24 v{T0}, 784, v{N}\n  v_lshl_add_u32 v{T0}, v{Gq}, 3, v{T0}\n  s_mul_i32 s62, s{S_WAVE}, 96\n  s_add_u32 s62, s62, {H_WT}\n  v_add_u32 v{T3}, s62, v{T0}")
        for tau in range(3):
            if tau < 2: a(f"  s_add_u32 s60, s60, {16*768}")
            for th in range(3):
                a(f"  s_waitcnt vmcnt({8 if tau < 2 else 8 - 4*th})")
                for m in range(4): a(f"  ds_read_b128 {vr(WKF+4*m)}, v{IA+m} offset:{th*4096}")
                a("  s_waitcnt lgkmcnt(0)")
                if tau < 2:
                    for q4 in range(4): self.img_dma1(R_D, 0, 60, VS0, VS1, th, q4, ldsreg=61)
                for m in range(4):
                    j = 4 * th + m
                    a(f"  v_mfma_f32_16x16x32_bf16 {vr(D1)}, {vr(WKF+4*m)}, {vr(TR+4*j)}, {'0' if j == 0 else vr(D1)}")
            a(f"  v_cvt_pk_bf16_f32 v{D2}, v{D1}, v{D1+1}\n  v_cvt_pk_bf16_f32 v{D2+1}, v{D1+2}, v{D1+3}")
            a(f"  ds_write_b64 v{T3}, {vr(D2,2)} offset:{tau*32}")
        a("  s_waitcnt lgkmcnt(0)\n  s_barrier")
        self.stamp(5)
        if cfg.cut >= 1: a("  s_branch L_hdone")
        a(f"  s_cmp_lg_u32 s{S_WAVE}, 0\n  s_cbranch_scc1 L_hdone")
        a(f"  v_mul_u32_u24 v{T0}, 784, v{N}\n  v_lshl_add_u32 v{T0}, v{Gq}, 4, v{T0}\n  v_add_u32 v{T0}, {H_WT}, v{T0}")
        for j in range(12): a(f"  ds_read_b128 {vr(WKF+4*j)}, v{T0} offset:{j*64}")
        a(f"  v_mul_u32_u24 v{T3}, 768, v{N}\n  v_lshl_add_u32 v{T3}, v{Gq}, 3, v{T3}\n  s_lshl_b32 s61, s{S_IDX}, 5")
        a(f"  buffer_load_dwordx2 {vr(QF,2)}, v{T3}, {sr(R_A)}, s61 offen")
        a("  s_waitcnt vmcnt(0) lgkmcnt(0)")
        a(f"  v_lshlrev_b32 v{QF+4}, 16, v{QF}\n  v_and_b32 v{QF+5}, 0xffff0000, v{QF}\n  v_lshlrev_b32 v{QF+6}, 16, v{QF+1}\n  v_and_b32 v{QF+7}, 0xffff0000, v{QF+1}")
        a(f"  v_mul_u32_u24 v{T2}, 768, v{N}\n  v_lshl_add_u32 v{T2}, v{Gq}, 4, v{T2}\n  s_mov_b32 s62, {RCTX_OFF}")
        if cfg.c1sleep:
            lp, dn = self.lab("c1"), self.lab("c1d")
            a(f"  s_mov_b32 s{S_SPIN}, 0\n{lp}:\n  buffer_load_dword v{AF}, v{T2}, {sr(R_WS)}, s62 offen sc1")
            self.spin_guard(dn)
            if cfg.call: a(f"  s_waitcnt vmcnt(0)\n  v_cmp_eq_u32 vcc, -1, v{AF}\n  s_cbranch_vccz {dn}\n  s_sleep {cfg.c1sleep}\n  s_branch {lp}\n{dn}:\n  s_waitcnt vmcnt(0)")
            else: a(f"  s_waitcnt vmcnt(0)\n  v_cmp_ne_u32 vcc, -1, v{AF}\n  s_cbranch_vccnz {dn}\n  s_sleep {cfg.c1sleep}\n  s_branch {lp}\n{dn}:\n  s_waitcnt vmcnt(0)")
        if cfg.cdelay: a(f"  s_sleep {cfg.cdelay}")
        self.gather_frags(12, AF, T2, 62, T0, "c", rowmajor=True, sleep=cfg.csleep)
        self.stamp(6)
        for j in range(12):
            dd = D1 if j % 2 == 0 else D2
            c1 = vr(QF+4) if j == 0 else ("0" if j == 1 else vr(dd))
            a(f"  v_mfma_f32_16x16x32_bf16 {vr(dd)}, {vr(WKF+4*j)}, {vr(AF+4*j)}, {c1}")
        for h in (0, 2): self.pk("v_pk_add_f32", D1 + h, D1 + h, D2 + h)
        a(f"  v_cvt_pk_bf16_f32 v{D2}, v{D1}, v{D1+1}\n  v_cvt_pk_bf16_f32 v{D2+1}, v{D1+2}, v{D1+3}")
        a(f"  buffer_store_dwordx2 {vr(D2,2)}, v{T3}, {sr(R_F)}, s61 offen")
        nn = self.lab("nononce")
        a(f"  s_cmp_lg_u32 s{S_IDX}, 0\n  s_cbranch_scc1 {nn}")
        a(f"  buffer_store_dword v15, v{ZERO}, {sr(R_WS)}, 0 offen offset:{NONCE_OFF} sc1\n{nn}:")
        a("L_hdone:")
        self.stamp(9); self.stamp_flush((0, 0, 2, (0, 1, 3, 4, 5, 6)))
        a("  s_endpgm")

    def collector(self):
        a = self.a
        a("L_collect:     ; ---------------- collector")
        a(f"  s_cmp_lg_u32 s{S_WAVE}, 0\n  s_cbranch_scc1 L_end\n  s_waitcnt lgkmcnt(0)")
        srd(a, R_WS, P_WS, WS_BYTES)
        a(f"  v_mov_b32 v2, 0\n  buffer_load_dword v3, v2, {sr(R_WS)}, 0 offen offset:{NONCE_OFF} sc1")
        self.flag_addr(4)
        a(f"  s_waitcnt vmcnt(0)\n  v_add_u32 v3, 1, v3\n  v_readfirstlane_b32 s{S_NONCE}, v3")
        self.wait_flags(5, 4)
        a(f"  s_mov_b32 s62, {GO_OFF}\n  s_mov_b64 exec, 1\n  buffer_store_dword v3, v2, {sr(R_WS)}, s62 offen sc1")
        a("  s_endpgm")

    def build(self):
        a = self.a
        hdr = open("standalone__detection_seg_dino__vision.s.ref").read().split("\n")
        for line in hdr:
            if line.startswith("; @launch"): break
            a(line)
        a("; @" + f"launch grid=(256,1,1) block=(512,1,1) lds={LDS_BYTES}")
        for line in HEADER.strip("\n").split("\n"): a(("; " + line).rstrip())
        a('.amdgcn_target "amdgcn-amd-amdhsa--gfx950"\n.text')
        a(f".globl {KNAME}\n.p2align 8\n.type {KNAME},@function\n{KNAME}:")
        n0 = len(a.L)
        self.prologue(); self.streamer(); self.helper(); self.collector()
        a("L_end:\n  s_endpgm\nL_code_end:")
        body, added = hazard.fix(a.L[n0:])
        a.L = a.L[:n0] + body
        a('.section .rodata,"a"\n.p2align 6')
        a(f".amdhsa_kernel {KNAME}")
        a("  .amdhsa_next_free_vgpr 256\n  .amdhsa_next_free_sgpr 102\n  .amdhsa_accum_offset 256")
        a("  .amdhsa_group_segment_fixed_size 0\n  .amdhsa_kernarg_size 80\n  .amdhsa_user_sgpr_count 2")
        a("  .amdhsa_user_sgpr_kernarg_segment_ptr 1\n  .amdhsa_system_sgpr_workgroup_id_x 1")
        a("  .amdhsa_float_denorm_mode_32 3")
        a(".end_amdhsa_kernel")
        return a.text(), added

def generate(path, **kw):
    cfg = Cfg()
    for k, v in kw.items(): setattr(cfg, k, v)
    text, added = G(cfg).build()
    open(path, "w").write(text)
    return added

if __name__ == "__main__":
    path = sys.argv[1] if len(sys.argv) > 1 else "standalone__detection_seg_dino__vision.s"
    kw = {}
    for x in sys.argv[2:]:
        k, v = x.split("="); kw[k] = eval(v)
    print("nops added:", generate(path, **kw))
```

```python
import sys, struct
from asmlib import Asm
import hazard

KNAME = "standalone__detection_seg_dino__vision_kernel"

NH, NS, NPAIR = 24, 228, 9
F0_BYTES, F1_BYTES, W_BYTES, Q_BYTES = 50331648, 12582912, 294912, 12288
WS_BYTES = 268435456

NONCE_OFF = 0
HINT_OFF = 1024
RQ_OFF, RQK_OFF, RCTX_OFF = 4096, 20480, 36864
GO_OFF = 53248
FLAG_OFF = 49152
LSE_OFF = 65536
PART_OFF = 131072
PART_STRIDE = NS * 128
STAMP_OFF = 8 << 20

SLOT = 12288
STG = 12 * SLOT
TOP = 13 * SLOT
STAT = TOP
STAT_S = 384
STAT2 = STG + 7168
NONCE_LDS = TOP + 3840
FLAG_LDS = TOP + 3844
QS_LDS = TOP + 3856
RED = STG + 5120
MX = STG + 6144
MXW = STG + 6656
RED2 = STG + 8192
LDS_BYTES = 163840
H_QI, H_WKI, H_WQI, H_WOI, H_WT, H_WV = 0, 12288, 24576, 36864, 49152, 65536
H_QS = 61952

LAG_LIMIT = 40.0
LOW_LIMIT = -60.0
KEYC = 0x9e3779b1
LOG2E = 1.4426950408889634
def f32(x): return "0x%08x" % struct.unpack("<I", struct.pack("<f", x))[0]

HEADER = """
Cross-attention of 16 queries over 65536 layer-normalised positions, one persistent launch of 256 workgroups.
  out = q + softmax(LN(q) wq wk^T LN(x)^T / sqrt(C)) LN(x) wv wo,  x = bf16(f0 + upsample(f1))
The weights are associated as Qk = LN(q) wq wk^T (16x384) and Wvo = wv wo, so x is read once and never projected.
LN(x) enters through its row statistics: logit = rstd (x.Qk - mean sum(Qk)), context = (sum P' x - sum P' mean) / L.
Roles by workgroup id (placement matters for speed only):
  helpers   (24: ids 0,8,..,184)  Q slice -> all helpers -> Qk slice -> all streamers; Wvo^T slice; final product
  streamers (228)                 nine pairs of 16-position tiles each; the first 128 also reduce one slice of the context
  collector (id 252)              folds the helpers' flags into one word
Streamer: waves 0..5 fuse f0+f1 into bf16 tiles in a ring of 12 LDS slots and accumulate row statistics, wave 6 fetches Qk.
  S^T = X Qk^T per tile, P' = 2^(logit - ref) rstd, context^T += X^T P'^T with the channels split over the eight waves.
  Softmax reference: 0 for the first eight tiles, then unchanged, while every logit stays inside [ref-60, ref+40]
  (lower bound: first eight tiles); any logit outside sends the workgroup to the path with exact running maxima.
  Partial results leave normalised (f16) with their log-sum-exp; the reducers weigh them with the exact global maximum.
Hand-offs through d_ws, all with sc1 stores and sc1 loads:
  nonce  = word 0 of d_ws at entry + 1, read by every role, written back by helper 0 after the last hand-off
  Q, Qk, context: words are set to 0xffffffff by their helper first (flag = nonce once acknowledged), data never equals that
  partial lines: every 16-byte unit carries the nonce (A units) or lse ^ (nonce + g*K) (B units, four must agree)
  Every poll loop is bounded.  s_sleep occurs only as back-off of a consumer that polls lines other workgroups are about
  to write: a line read too early has to be invalidated again, which delays its writer and the next read.
"""

class Cfg:
    nt = True
    stamp = False
    depth = 4
    hx0 = 0
    hnx = 1
    hint = True
    codepf = True
    nostream = False
    dbgstamp = False
    pfrows = 4
    cut = 0
    lite = False
    trig_a = 2
    trig_b = 4
    qsleep = 4
    c1sleep = 6
    lag = True
    prefuse = False
    late = False
    sched = 1
    streamonly = False
    rsleep = 0
    csleep = 0
    ext7 = 1
    ext8 = 1
    zref = True
    redsel = 0
    fdiag = False
    late8 = False
    dlate = 5
    xlate = 3
    pvfuse = False
    rdelay = 34
    rack = False
    cdelay = 16
    qdelay = 0
    kdelay = 0
    call = False
    noatom = False
    hdiag = False
    gdiag = False
    rdiag = False
    bdiag_sb = 4
    bdiag = False
    selpoll = 2
    hnt = False

S_WAVE = 3
P_Q, P_F0, P_F1, P_WQ, P_WK, P_WV, P_WO, P_OUT, P_DBG, P_WS = 4, 6, 8, 10, 12, 14, 16, 18, 20, 22
R_A, R_B, R_WS, R_DBG, R_C, R_D, R_E, R_F = 24, 28, 32, 36, 40, 44, 48, 52
S_IDX, S_ONELO, S_ONEHI = 56, 57, 58
S_K, S_QBASE, S_LINK = 66, 67, 68
S_NONCE, S_SPIN = 70, 71
S_TI, S_TB, S_PB, S_BIAS, S_T, S_P0, S_SB, S_W0, S_NP, S_PVB, S_LAST = 72, 73, 74, 75, 76, 77, 78, 79, 80, 81, 59
S_SST = 48
S_STA, S_PAIR, S_POFF = 49, 52, 53
S_LINK2 = 54
S_LOW = 47
S_RHO = 79
S_QMASK = 50
SETA, SETB = 40, 44
STAMP0 = 82
SPIN_CAP = 200000
import os
if os.environ.get('CAP'): SPIN_CAP = int(os.environ['CAP'])

def srd(a, s, ptr, nbytes):
    a(f"  s_mov_b32 s{s}, s{ptr}\n  s_mov_b32 s{s+1}, s{ptr+1}\n  s_mov_b32 s{s+2}, {nbytes}\n  s_mov_b32 s{s+3}, 0x20000")
def vr(b, n=4): return f"v[{b}:{b+n-1}]"
def sr(b, n=4): return f"s[{b}:{b+n-1}]"

class G:
    def __init__(self, cfg):
        self.cfg = cfg; self.a = Asm(); self.uid = 0
        self.dsadd = 'ds_write_b32' if cfg.noatom else 'ds_add_f32'
    def lab(self, name):
        self.uid += 1
        return f"L_{name}_{self.uid}"
    def stamp(self, i):
        if self.cfg.fdiag: return
        if self.cfg.lite and i not in (0, 9): return
        if self.cfg.stamp and not self.cfg.bdiag:
            self.a(f"  s_memrealtime s[{STAMP0+2*i}:{STAMP0+2*i+1}]\n  s_waitcnt lgkmcnt(0)")
    def fstamp(self, i):
        if self.cfg.fdiag: self.a(f"  s_memtime s[{STAMP0+2*i}:{STAMP0+2*i+1}]\n  s_waitcnt lgkmcnt(0)")
    def cstamp(self, i):
        if self.cfg.bdiag:
            l = self.lab("cs")
            self.a(f"  s_cmp_lg_u32 s{S_SB}, {self.cfg.bdiag_sb}\n  s_cbranch_scc1 {l}\n  s_memtime s[{STAMP0+2*i}:{STAMP0+2*i+1}]\n  s_waitcnt lgkmcnt(0)\n{l}:")
    def stamp_init(self):
        if self.cfg.stamp:
            for i in range(20): self.a(f"  s_mov_b32 s{STAMP0+i}, 0")
    def stamp_flush(self, dbg=None):
        if not self.cfg.stamp: return
        a = self.a
        if self.cfg.dbgstamp and dbg:
            who, wave, first, which = dbg
            sk = self.lab("nodbg")
            a(f"  s_cmp_lg_u32 s{S_IDX}, {who}\n  s_cbranch_scc1 {sk}\n  s_cmp_lg_u32 s{S_WAVE}, {wave}\n  s_cbranch_scc1 {sk}")
            srd(a, R_DBG, P_DBG, 256)
            a("  v_mov_b32 v1, 0")
            for i, st in enumerate(which):
                a(f"  v_mov_b32 v2, s{STAMP0+2*st}\n  buffer_store_dword v2, v1, {sr(R_DBG)}, 0 offen offset:{4*(first+i)}\n  s_nop 0")
            a(f"{sk}:")
        if self.cfg.dbgstamp: return
        if self.cfg.lite:
            if dbg[0] != 0: return
            sk = self.lab("nolite")
            a(f"  s_cmp_lg_u32 s{S_WAVE}, 0\n  s_cbranch_scc1 {sk}")
            a("  s_lshl_b32 s60, s2, 3\n  s_lshl_b32 s60, s60, 6")
            a(f"  s_add_u32 s60, s60, {STAMP_OFF}\n  v_mov_b32 v1, 0\n  v_mov_b32 v2, s{STAMP0}\n  v_mov_b32 v3, s{STAMP0+18}")
            a(f"  buffer_store_dword v2, v1, {sr(R_WS)}, s60 offen\n  buffer_store_dword v3, v1, {sr(R_WS)}, s60 offen offset:36\n{sk}:")
            return
        a("  s_lshl_b32 s60, s2, 3\n  s_add_u32 s60, s60, s3\n  s_lshl_b32 s60, s60, 6")
        a(f"  s_add_u32 s60, s60, {STAMP_OFF}\n  v_mov_b32 v1, 0")
        for i in range(10):
            a(f"  v_mov_b32 v2, s{STAMP0+2*i}\n  buffer_store_dword v2, v1, {sr(R_WS)}, s60 offen offset:{4*i}\n  s_nop 0")

    def allred_g(self, x, t, op):
        a = self.a
        a(f"  v_mov_b32 v{t}, v{x}\n  v_permlane16_swap_b32 v{t}, v{x}\n  {op} v{x}, v{t}, v{x}")
        a(f"  v_mov_b32 v{t}, v{x}\n  v_permlane32_swap_b32 v{t}, v{x}\n  {op} v{x}, v{t}, v{x}")
    def valid_check(self, base, n, t, retry):
        a = self.a
        a(f"  v_max3_u32 v{t}, v{base}, v{base+1}, v{base+2}")
        h = n // 2
        a(f"  v_max3_u32 v{t+1}, v{base+h}, v{base+h+1}, v{base+h+2}")
        i, k = 3, h + 3
        while i < h or k < n:
            if i + 1 < h: a(f"  v_max3_u32 v{t}, v{t}, v{base+i}, v{base+i+1}"); i += 2
            elif i < h: a(f"  v_max_u32 v{t}, v{t}, v{base+i}"); i += 1
            if k + 1 < n: a(f"  v_max3_u32 v{t+1}, v{t+1}, v{base+k}, v{base+k+1}"); k += 2
            elif k < n: a(f"  v_max_u32 v{t+1}, v{t+1}, v{base+k}"); k += 1
        a(f"  v_max_u32 v{t}, v{t}, v{t+1}\n  v_cmp_eq_u32 vcc, -1, v{t}\n  s_cbranch_vccnz {retry}")
    def spin_guard(self, done):
        self.a(f"  s_add_u32 s{S_SPIN}, s{S_SPIN}, 1\n  s_cmp_gt_u32 s{S_SPIN}, {SPIN_CAP}\n  s_cbranch_scc1 {done}")
    def flag_addr(self, va):
        self.a(f"  v_min_u32 v{va}, {NH-1}, v0\n  v_lshlrev_b32 v{va}, 7, v{va}\n  v_add_u32 v{va}, {FLAG_OFF}, v{va}")
    def wait_flags(self, vd, va, first_issued=False):
        a = self.a
        lp, ck, dn = self.lab("flg"), self.lab("flgc"), self.lab("flgd")
        a(f"  s_mov_b32 s{S_SPIN}, 0")
        if first_issued: a(f"  s_branch {ck}")
        a(f"{lp}:\n  buffer_load_dword v{vd}, v{va}, {sr(R_WS)}, 0 offen sc1")
        self.spin_guard(dn)
        a(f"{ck}:\n  s_waitcnt vmcnt(0)\n  v_cmp_ne_u32 vcc, s{S_NONCE}, v{vd}\n  s_cbranch_vccnz {lp}")
        a(f"{dn}:\n  s_waitcnt vmcnt(0)")
    def gather_frags(self, nfr, dst, vaddr, off0, t, name, rowmajor=False, sleep=0):
        a = self.a
        lp, dn, l0 = self.lab(name), self.lab(name + "d"), self.lab(name + "0")
        a(f"  s_add_u32 s63, s{off0}, 4096\n  s_add_u32 s64, s{off0}, 8192\n  s_mov_b32 s{S_SPIN}, 0")
        if sleep: a(f"  s_branch {l0}\n{lp}:\n  s_sleep {sleep}\n{l0}:")
        else: a(f"{lp}:")
        for j in range(nfr):
            so = (f"s{off0}", "s63", "s64")[j >> 2]
            if rowmajor: a(f"  buffer_load_dwordx4 {vr(dst+4*j)}, v{vaddr}, {sr(R_WS)}, s{off0} offen offset:{j*64} sc1")
            else: a(f"  buffer_load_dwordx4 {vr(dst+4*j)}, v{vaddr}, {sr(R_WS)}, {so} offen offset:{(j&3)*1024} sc1")
        self.spin_guard(dn)
        a("  s_waitcnt vmcnt(0)")
        self.valid_check(dst, 4 * nfr, t, lp)
        a(f"{dn}:\n  s_waitcnt vmcnt(0)")

    def prologue(self):
        a = self.a; cfg = self.cfg
        a("  s_cmp_ge_u32 s2, 256\n  s_cbranch_scc1 L_end")
        a("  s_load_dwordx16 s[4:19], s[0:1], 0\n  s_load_dwordx4 s[20:23], s[0:1], 64")
        if cfg.codepf:
            l = self.lab("pc")
            a(f"  s_cmp_ge_u32 s2, {8*cfg.pfrows}\n  s_cbranch_scc1 L_nopf")
            a(f"  s_getpc_b64 s[60:61]\n{l}:\n  s_sub_u32 s60, s60, {l}-{KNAME}\n  s_subb_u32 s61, s61, 0")
            a(f"  s_bfe_u32 s62, s2, 0x20003\n  s_lshl_b32 s62, s62, 13\n  v_lshl_add_u32 v246, v0, 4, s62")
            a(f"  v_min_u32 v246, L_code_end-{KNAME}-16, v246\n  global_load_dwordx4 v[168:171], v246, s[60:61]")
            a("L_nopf:")
        a("  v_lshrrev_b32 v1, 6, v0\n  v_and_b32 v0, 63, v0")
        a(f"  v_readfirstlane_b32 s{S_WAVE}, v1")
        a(f"  s_mov_b32 s{S_ONELO}, 0x00003f80\n  s_mov_b32 s{S_ONEHI}, 0x3f800000")
        self.stamp_init(); self.stamp(0)
        rows = NH // cfg.hnx
        a(f"  s_and_b32 s60, s2, 7\n  s_lshr_b32 s61, s2, 3\n  s_sub_u32 s62, s60, {cfg.hx0}")
        a(f"  s_cmp_lt_u32 s61, {rows}\n  s_cbranch_scc0 L_late")
        a(f"  s_cmp_lt_u32 s62, {cfg.hnx}\n  s_cbranch_scc0 L_early")
        a(f"  s_mul_i32 s{S_IDX}, s61, {cfg.hnx}\n  s_add_u32 s{S_IDX}, s{S_IDX}, s62\n  s_branch L_helper")
        a("L_early:")
        a(f"  s_cmp_lt_u32 s60, {cfg.hx0}\n  s_cselect_b32 s62, 0, {cfg.hnx}\n  s_sub_u32 s62, s60, s62")
        a(f"  s_mul_i32 s{S_IDX}, s61, {8-cfg.hnx}\n  s_add_u32 s{S_IDX}, s{S_IDX}, s62\n  s_branch L_stream")
        a(f"L_late:\n  s_sub_u32 s{S_IDX}, s2, {NH}")
        a(f"  s_cmp_eq_u32 s{S_IDX}, {NS}\n  s_cbranch_scc1 L_collect")
        a(f"  s_cmp_ge_u32 s{S_IDX}, {NS}\n  s_cbranch_scc1 L_end")
        a("L_stream:      ; ---------------- streamers")
        if cfg.nostream: a("  s_branch L_end")

    def code_prefetch(self, vt, vd):
        if not self.cfg.codepf: return
        a = self.a
        l = self.lab("pc")
        a(f"  s_getpc_b64 s[60:61]\n{l}:")
        a(f"  s_sub_u32 s60, s60, {l}-{KNAME}\n  s_subb_u32 s61, s61, 0")
        a(f"  s_lshr_b32 s62, s2, 3\n  s_lshl_b32 s62, s62, 10\n  v_lshl_add_u32 v{vt}, v0, 4, s62")
        a(f"  v_min_u32 v{vt}, L_code_end-{KNAME}-16, v{vt}")
        a(f"  global_load_dwordx4 {vr(vd)}, v{vt}, s[60:61]")

    V_OFF1, V_OFF0, V_SA = 2, 3, 255
    V_WA = (4, 5, 253, 254)
    V_RA, V_PA = 6, 10
    V_PADDR, V_MXW, V_MXR = 13, 14, 15
    V_ST = 128
    V_BUF = (16, 36, 56)
    V_PU, V_TMP, V_OUT = 144, 152, 160
    V_LT, V_AT = 76, 78
    V_QK, V_A, V_ACC = 80, 128, 176
    V_S, V_SUM, V_SQ4, V_SQ, V_MU, V_RS, V_LG = 188, 192, 196, 200, 204, 208, 212
    V_ONES = 216
    V_M, V_AL, V_L2, V_AM2, V_QS, V_CINV, V_CEPS, V_BIAS = 220, 222, 224, 226, 228, 230, 232, 234
    V_T0, V_T1, V_T2, V_ONEF = 236, 237, 238, 239
    V_MXV, V_TA, V_L16 = 240, 248, 252
    V_PUB = 196
    V_REDW = 198
    V_STR = 1

    def task_bases(self, st, kconst, kreg=True):
        a = self.a
        if kreg: a(f"  s_add_u32 s62, s{S_K}, {kconst}")
        else: a(f"  s_mov_b32 s62, {kconst}")
        a(f"  s_lshl_b32 s63, s62, 1\n  s_add_u32 s63, s63, s{S_QBASE}")
        a(f"  s_mul_i32 s{st}, s63, 3072\n  s_lshr_b32 s64, s63, 5\n  s_mul_i32 s64, s64, 393216")
        a(f"  s_and_b32 s65, s63, 31\n  s_mul_i32 s65, s65, 6144\n  s_add_u32 s{st+1}, s64, s65")
        a(f"  s_cmp_gt_u32 s62, {NPAIR-1}\n  s_cselect_b32 s{st}, 0x80000000, s{st}\n  s_cselect_b32 s{st+1}, 0x80000000, s{st+1}")
        a(f"  s_add_u32 s{st+2}, s{st+1}, 196608")
    def issue_piece(self, st, par, i):
        a = self.a
        nt = " nt" if self.cfg.nt else ""
        b = self.V_BUF[par] + 4 * i
        if i == 0:
            a(f"  buffer_load_dwordx4 {vr(b)}, v{self.V_OFF1}, {sr(R_B)}, s{st} offen{nt}")
        else:
            t = i - 1
            off = " offset:768" if t & 1 else ""
            a(f"  buffer_load_dwordx4 {vr(b)}, v{self.V_OFF0}, {sr(R_A)}, s{st+1+(t>>1)} offen{off}{nt}")

    def fuse_sub(self, par, d, name, mode="roll"):
        a = self.a
        hold, roll = mode == "hold", mode == "roll"
        b = self.V_BUF[par]; u = self.V_PU; t8 = self.V_TMP
        SS, SQ, R, U = self.V_ST, self.V_ST + 4, self.V_ST + 8, self.V_ST + 12
        a0 = d // 5
        a(f"{name}:")
        if roll:
            a(f"  s_mov_b32 s{SETA}, s{SETB}\n  s_mov_b32 s{SETA+1}, s{SETB+1}\n  s_mov_b32 s{SETA+2}, s{SETB+2}")
            self.task_bases(SETB, a0 + 1)
        def nxt(i):
            if not roll: return
            aa, pi = (i + d) // 5, (i + d) % 5
            self.issue_piece(SETA if aa == a0 else SETB, par ^ (aa & 1), pi)
        def dpp(dst, src, ctrl, bank):
            a(f"  v_add_f32_dpp v{dst}, v{src}, v{src} {ctrl} row_mask:0xf bank_mask:{bank:#x}")
        a(f"  s_waitcnt vmcnt({d-1})")
        for i in range(4):
            a(f"  v_lshlrev_b32 v{u+2*i}, 16, v{b+i}\n  v_and_b32 v{u+2*i+1}, 0xffff0000, v{b+i}")
        nxt(0)
        for t in range(4):
            c = b + 4 + 4 * t; o = c if hold else self.V_OUT + 4 * (t & 1)
            a(f"  s_waitcnt vmcnt({d-1 if roll else d-2-t})")
            for i in range(4):
                a(f"  v_dot2_f32_bf16 v{t8+2*i}, v{c+i}, s{S_ONELO}, v{u+2*i}")
                a(f"  v_dot2_f32_bf16 v{t8+2*i+1}, v{c+i}, s{S_ONEHI}, v{u+2*i+1}")
            nxt(t + 1)
            for i in range(4):
                a(f"  v_cvt_pk_bf16_f32 v{o+i}, v{t8+2*i}, v{t8+2*i+1}")
            if not hold: a(f"  ds_write_b128 v{self.V_WA[t]}, {vr(o)} offset:{t*768}")
            if t > 0: dpp(R + t - 1, SS + t - 1, "row_ror:8", 0x3)
            for i in range(4):
                a(f"  v_dot2_f32_bf16 v{SS+t}, v{o+i}, v{self.V_ONES}, {'0' if i == 0 else 'v%d' % (SS+t)}")
                a(f"  v_dot2_f32_bf16 v{SQ+t}, v{o+i}, v{o+i}, {'0' if i == 0 else 'v%d' % (SQ+t)}")
            if t > 0: dpp(R + t - 1, SQ + t - 1, "row_ror:8", 0xc)
        WA = self.V_WA
        if hold: a("  s_mov_b32 s62, 0")
        else: a(f"  s_mov_b32 s62, 24576\n  s_cmp_eq_u32 s{S_K}, 5\n  s_cselect_b32 s62, {(-5*24576) & 0xffffffff:#x}, s62")
        dpp(U, R, "row_half_mirror", 0x5)
        dpp(R + 3, SS + 3, "row_ror:8", 0x3)
        a(f"  v_add_u32 v{WA[0]}, s62, v{WA[0]}")
        dpp(U, R + 1, "row_half_mirror", 0xa)
        dpp(R + 3, SQ + 3, "row_ror:8", 0xc)
        dpp(U + 1, R + 2, "row_half_mirror", 0x5)
        a(f"  v_add_u32 v{WA[1]}, s62, v{WA[1]}")
        dpp(U, U, "quad_perm:[1,0,3,2]", 0xf)
        dpp(U + 1, R + 3, "row_half_mirror", 0xa)
        a(f"  v_add_u32 v{WA[2]}, s62, v{WA[2]}")
        dpp(U, U, "quad_perm:[2,3,0,1]", 0xf)
        dpp(U + 1, U + 1, "quad_perm:[1,0,3,2]", 0xf)
        a(f"  v_add_u32 v{WA[3]}, s62, v{WA[3]}")
        if roll: a(f"  s_cmp_eq_u32 s{S_K}, 5\n  s_cselect_b32 s62, {(-5*2*STAT_S) & 0xffffffff:#x}, {2*STAT_S}" .replace(f", {2*STAT_S}", ", s63") .replace("  s_cmp_eq", f"  s_mov_b32 s63, {2*STAT_S}\n  s_cmp_eq"))
        else: a(f"  s_mov_b32 s62, {2*STAT_S}")
        dpp(U + 1, U + 1, "quad_perm:[2,3,0,1]", 0xf)
        if roll:
            sk = self.lab("keepst")
            a(f"  s_cbranch_scc1 {sk}")
        a(f"  s_mov_b64 exec, s[{S_QMASK}:{S_QMASK+1}]\n  ds_write_b32 v{self.V_SA}, v{U}\n  ds_write_b32 v{self.V_SA}, v{U+1} offset:8\n  s_mov_b64 exec, -1")
        if roll: a(f"{sk}:")
        a(f"  s_add_u32 s{S_K}, s{S_K}, 1\n  v_add_u32 v{self.V_SA}, s62, v{self.V_SA}")
        a(f"  s_setpc_b64 s[{S_LINK}:{S_LINK+1}]")

    def stream_consts(self):
        a = self.a
        a("  v_and_b32 v240, 15, v0\n  v_lshrrev_b32 v241, 4, v0")
        a("  v_and_b32 v242, 7, v240\n  v_lshlrev_b32 v242, 1, v242\n  v_mul_u32_u24 v243, 768, v240")
        for m in range(4):
            a(f"  v_add_u32 v244, {4*m}, v241\n  v_xor_b32 v244, v244, v242\n  v_lshl_add_u32 v{self.V_RA+m}, v244, 4, v243")
        a("  v_lshrrev_b32 v242, 2, v240\n  v_lshl_add_u32 v242, v241, 2, v242\n  v_mul_u32_u24 v243, 768, v242")
        a("  v_and_b32 v242, 7, v242\n  v_lshlrev_b32 v242, 1, v242")
        a("  v_and_b32 v244, 3, v240\n  v_lshrrev_b32 v245, 1, v244\n  v_and_b32 v244, 1, v244\n  v_lshl_add_u32 v243, v244, 3, v243")
        for tau in range(3):
            a(f"  s_mul_i32 s62, s{S_WAVE}, 3\n  s_add_u32 s62, s62, {tau}")
            a("  s_lshl_b32 s63, s62, 1\n  s_and_b32 s63, s63, 14\n  s_lshr_b32 s62, s62, 3\n  s_lshl_b32 s62, s62, 8")
            a(f"  v_xor_b32 v244, s63, v242\n  v_or_b32 v244, v244, v245\n  v_lshl_add_u32 v244, v244, 4, v243\n  v_add_u32 v{self.V_PA+tau}, s62, v244")
        a(f"  v_lshlrev_b32 v{self.V_L16}, 4, v0\n  v_add_u32 v{self.V_PADDR}, {STG}, v{self.V_L16}\n  v_lshlrev_b32 v{self.V_STR}, 4, v241")
        a(f"  v_lshlrev_b32 v244, 5, v240\n  v_add_u32 v{self.V_MXR}, {MX}, v244")
        a(f"  s_lshl_b32 s62, s{S_WAVE}, 2\n  v_add_u32 v{self.V_MXW}, s62, v{self.V_MXR}")
        for i in range(4): a(f"  v_mov_b32 v{self.V_ONES+i}, 0x3f803f80")
        a(f"  v_mov_b32 v{self.V_ONEF}, 1.0\n  v_mov_b32 v{self.V_CINV}, {f32(1/384)}\n  v_mov_b32 v{self.V_CEPS}, {f32(1e-5)}")
        for i in range(12): a(f"  v_mov_b32 v{self.V_ACC+i}, 0")
        a(f"  v_mov_b32 v{self.V_M}, 0xff800000")
        for r in (self.V_L2, self.V_L2+1, self.V_AM2, self.V_AM2+1, self.V_M+1, self.V_AL+1, self.V_QS+1, self.V_CINV+1, self.V_CEPS+1, self.V_BIAS+1):
            a(f"  v_mov_b32 v{r}, 0")

    def pk(self, op, d, x, y, z=None, bc=(), neg=()):
        n = 2 if z is None else 3
        ops = [x, y] + ([z] if z is not None else [])
        s = f"  {op} {vr(d,2)}, " + ", ".join(vr(o, 2) for o in ops)
        if bc: s += " op_sel_hi:[" + ",".join("0" if i in bc else "1" for i in range(n)) + "]"
        if neg:
            m = "[" + ",".join("1" if i in neg else "0" for i in range(n)) + "]"
            s += f" neg_lo:{m} neg_hi:{m}"
        self.a(s)

    def red_write(self, l, am, t):
        a = self.a
        a(f"  v_add_f32 v{t}, v{l}, v{l+1}\n  v_add_f32 v{t+1}, v{am}, v{am+1}")
        a(f"  v_permlane16_swap_b32 v{t}, v{t+1}\n  v_add_f32 v{t}, v{t}, v{t+1}")
        a(f"  v_mov_b32 v{t+1}, v{t}\n  v_permlane32_swap_b32 v{t+1}, v{t}\n  v_add_f32 v{t}, v{t}, v{t+1}")
        a(f"  ds_write_b32 v{self.V_REDW}, v{t}")

    def sphase_sub(self):
        a = self.a
        A, QK = self.V_A, self.V_QK
        S, SUM, SQ, MU, RS, LG, T1, T2 = self.V_S, self.V_SUM, self.V_SQ, self.V_MU, self.V_RS, self.V_LG, self.V_T1, self.V_T2
        a("L_sphase:")
        for m in range(4): a(f"  v_add_u32 v{self.V_TA+m}, s{S_TB}, v{self.V_RA+m}")
        a(f"  v_add_u32 v{T1}, s{S_STA}, v{self.V_STR}")
        X = self.V_MXV
        for reg, off in ((SUM, 0), (SQ, 64), (LG, 128), (RS, 192), (MU, 256), (X, 320)):
            a(f"  ds_read_b128 {vr(reg)}, v{T1} offset:{off}")
        for j in range(9): a(f"  ds_read_b128 {vr(A+4*j)}, v{self.V_TA+(j&3)} offset:{(j>>2)*256}")
        a(f"  s_cmp_lt_u32 s{S_PAIR}, 2048\n  s_cselect_b32 s{S_BIAS}, 0, {f32(-1e30)}")
        a(f"  v_mov_b32 v{self.V_BIAS}, s{S_BIAS}\n  v_add_u32 v{T2}, s{S_POFF}, v{self.V_PADDR}")
        a("  s_waitcnt lgkmcnt(9)")
        for j in range(9, 12): a(f"  ds_read_b128 {vr(A+4*j)}, v{self.V_TA+(j&3)} offset:{(j>>2)*256}")
        stat = []
        for h in (0, 2): stat.append(lambda h=h: self.pk("v_pk_add_f32", SUM + h, SUM + h, LG + h))
        for h in (0, 2): stat.append(lambda h=h: self.pk("v_pk_add_f32", SQ + h, SQ + h, RS + h))
        for h in (0, 2): stat.append(lambda h=h: self.pk("v_pk_add_f32", SUM + h, SUM + h, MU + h))
        for h in (0, 2): stat.append(lambda h=h: self.pk("v_pk_add_f32", SQ + h, SQ + h, X + h))
        for h in (0, 2): stat.append(lambda h=h: self.pk("v_pk_mul_f32", MU + h, SUM + h, self.V_CINV, bc=(1,)))
        for h in (0, 2): stat.append(lambda h=h: self.pk("v_pk_fma_f32", RS + h, SQ + h, self.V_CINV, self.V_CEPS, bc=(1, 2)))
        for h in (0, 2): stat.append(lambda h=h: self.pk("v_pk_fma_f32", RS + h, MU + h, MU + h, RS + h, neg=(0,)))
        for r in range(4): stat.append(lambda r=r: a(f"  v_max_f32 v{RS+r}, v{self.V_CEPS}, v{RS+r}"))
        for r in range(4): stat.append(lambda r=r: a(f"  v_rsq_f32 v{RS+r}, v{RS+r}"))
        for h in (0, 2): stat.append(lambda h=h: self.pk("v_pk_mul_f32", SUM + h, MU + h, self.V_QS, bc=(1,)))
        for j in range(12):
            a(f"  s_waitcnt lgkmcnt({11-j})")
            a(f"  v_mfma_f32_16x16x32_bf16 {vr(S)}, {vr(A+4*j)}, {vr(QK+4*j)}, {'0' if j == 0 else vr(S)}")
            for _ in range(2):
                if stat: stat.pop(0)()
        for h in (0, 2): self.pk("v_pk_add_f32", LG + h, S + h, SUM + h, neg=(1,))
        for h in (0, 2): self.pk("v_pk_fma_f32", LG + h, LG + h, RS + h, self.V_BIAS, bc=(2,))
        a(f"  s_setpc_b64 s[{S_LINK2}:{S_LINK2+1}]")

    def sp_sub(self):
        a = self.a
        MU, RS, LG, M, T0, T1, T2, MXV = self.V_MU, self.V_RS, self.V_LG, self.V_M, self.V_T0, self.V_T1, self.V_T2, self.V_MXV
        PT, LT, AT = MXV, self.V_LT, self.V_AT
        a("L_sp:")
        a(f"  s_call_b64 s[{S_LINK2}:{S_LINK2+1}], L_sphase")
        for h in (0, 2): self.pk("v_pk_add_f32", PT + h, LG + h, M, bc=(1,), neg=(1,))
        a(f"  v_max3_f32 v{T0}, v{PT}, v{PT+1}, v{PT+2}\n  v_max_f32 v{T0}, v{T0}, v{PT+3}")
        for r in range(4): a(f"  v_exp_f32 v{PT+r}, v{PT+r}")
        a(f"  v_cmp_lt_f32 vcc, {f32(LAG_LIMIT)}, v{T0}\n  v_cmp_gt_f32 s[60:61], s{S_LOW}, v{T0}\n  s_or_b64 vcc, vcc, s[60:61]")
        self.pk("v_pk_add_f32", LT, LT, PT); self.pk("v_pk_add_f32", LT, LT, PT + 2)
        for h in (0, 2): self.pk("v_pk_mul_f32", PT + h, PT + h, RS + h)
        a(f"  v_cvt_pk_bf16_f32 v{MXV+4}, v{PT}, v{PT+1}\n  v_cvt_pk_bf16_f32 v{MXV+5}, v{PT+2}, v{PT+3}")
        a(f"  ds_write_b64 v{T2}, {vr(MXV+4,2)}")
        for h in (0, 2): self.pk("v_pk_fma_f32", AT, PT + h, MU + h, AT)
        a(f"  s_cbranch_vccz L_sp_ret\n  v_mov_b32 v{T0}, {FLAG_LDS}\n  v_mov_b32 v{T1}, 1\n  ds_write_b32 v{T0}, v{T1}")
        a(f"L_sp_ret:\n  s_setpc_b64 s[{S_LINK}:{S_LINK+1}]")

    def batch_sub(self):
        a = self.a
        A = self.V_A
        MU, RS, LG = self.V_MU, self.V_RS, self.V_LG
        M, AL, L2, AM2, T0, T1, T2, MXV = self.V_M, self.V_AL, self.V_L2, self.V_AM2, self.V_T0, self.V_T1, self.V_T2, self.V_MXV
        PT = MXV
        a("L_batch:")
        self.cstamp(0)
        a(f"  s_sub_u32 s{S_TI}, s{S_WAVE}, s{S_W0}\n  s_cmp_ge_u32 s{S_TI}, s{S_T}\n  s_cbranch_scc1 L_b_bar2")
        a(f"  s_add_u32 s63, s{S_TI}, s{S_SB}\n  s_mul_i32 s{S_TB}, s63, {SLOT}")
        a(f"  s_mul_i32 s62, s63, {STAT_S}\n  s_add_u32 s{S_STA}, s62, {STAT}\n  s_add_u32 s62, s62, {STAT2 - 10*STAT_S}\n  s_cmp_ge_u32 s63, 10\n  s_cselect_b32 s{S_STA}, s62, s{S_STA}")
        a(f"  s_lshr_b32 s62, s{S_TI}, 1\n  s_add_u32 s{S_PAIR}, s62, s{S_PB}")
        a(f"  s_lshl_b32 s62, s62, 10\n  s_and_b32 s63, s{S_TI}, 1\n  s_lshl_b32 s63, s63, 3\n  s_add_u32 s{S_POFF}, s62, s63")
        a(f"  s_call_b64 s[{S_LINK2}:{S_LINK2+1}], L_sphase")
        self.cstamp(1)
        a(f"  v_max3_f32 v{T0}, v{LG}, v{LG+1}, v{LG+2}\n  v_max_f32 v{T0}, v{T0}, v{LG+3}")
        self.allred_g(T0, T1, "v_max_f32")
        a(f"  ds_write_b32 v{self.V_MXW}, v{T0}")
        a("L_b_bar2:\n  s_waitcnt lgkmcnt(0)")
        self.cstamp(2)
        a("  s_barrier")
        self.cstamp(3)
        a(f"  ds_read_b128 {vr(MXV)}, v{self.V_MXR}\n  ds_read_b128 {vr(MXV+4)}, v{self.V_MXR} offset:16")
        a(f"  v_mov_b32 v{T0}, {FLAG_LDS}\n  v_mov_b32 v{T1}, 0\n  ds_write_b32 v{T0}, v{T1}")
        a("  s_waitcnt lgkmcnt(1)")
        a(f"  v_max3_f32 v{T0}, v{MXV}, v{MXV+1}, v{MXV+2}\n  v_max3_f32 v{T1}, v{MXV+3}, v{MXV+4}, v{MXV+5}")
        a(f"  v_max3_f32 v{T0}, v{T0}, v{MXV+6}, v{MXV+7}\n  v_max3_f32 v{T0}, v{T0}, v{T1}, v{M}")
        a(f"  v_sub_f32 v{AL}, v{M}, v{T0}\n  v_mov_b32 v{M}, v{T0}\n  v_exp_f32 v{AL}, v{AL}")
        self.cstamp(4)
        a(f"  s_cmp_ge_u32 s{S_TI}, s{S_T}\n  s_cbranch_scc1 L_b_nop")
        for h in (0, 2): self.pk("v_pk_add_f32", PT + h, LG + h, M, bc=(1,), neg=(1,))
        for r in range(4): a(f"  v_exp_f32 v{PT+r}, v{PT+r}")
        self.pk("v_pk_mul_f32", L2, L2, AL, bc=(1,)); self.pk("v_pk_mul_f32", AM2, AM2, AL, bc=(1,))
        self.pk("v_pk_add_f32", L2, L2, PT); self.pk("v_pk_add_f32", L2, L2, PT + 2)
        for h in (0, 2): self.pk("v_pk_mul_f32", PT + h, PT + h, RS + h)
        a(f"  v_cvt_pk_bf16_f32 v{MXV+4}, v{PT}, v{PT+1}\n  v_cvt_pk_bf16_f32 v{MXV+5}, v{PT+2}, v{PT+3}")
        a(f"  ds_write_b64 v{T2}, {vr(MXV+4,2)}")
        for h in (0, 2): self.pk("v_pk_fma_f32", AM2, PT + h, MU + h, AM2)
        a("  s_branch L_b_acc")
        a("L_b_nop:")
        self.pk("v_pk_mul_f32", L2, L2, AL, bc=(1,)); self.pk("v_pk_mul_f32", AM2, AM2, AL, bc=(1,))
        a("L_b_acc:")
        for i in range(0, 12, 2): self.pk("v_pk_mul_f32", self.V_ACC + i, self.V_ACC + i, AL, bc=(1,))
        a(f"  s_cmp_eq_u32 s{S_LAST}, 0\n  s_cbranch_scc1 L_b_bar3")
        self.red_write(L2, AM2, MXV + 6)
        a("L_b_bar3:\n  s_waitcnt lgkmcnt(0)")
        self.cstamp(5)
        a("  s_barrier")
        self.cstamp(6)
        a(f"  s_lshr_b32 s{S_NP}, s{S_T}, 1")
        a(f"  s_mul_i32 s{S_PVB}, s{S_SB}, {SLOT}")
        self.pv_reads(0, S_PVB, 0)
        for k in range(3):
            a(f"  s_cmp_le_u32 s{S_NP}, {k+1}\n  s_cbranch_scc1 L_pvl{k & 1}")
            a(f"  s_add_u32 s{S_PVB}, s{S_PVB}, {2*SLOT}")
            self.pv_reads((k + 1) & 1, S_PVB, (k + 1) * 1024)
            self.pv_mfmas(k & 1, 7)
        a("L_pvl1:")
        self.pv_mfmas(1, 0)
        self.cstamp(7)
        a(f"  s_setpc_b64 s[{S_LINK}:{S_LINK+1}]")
        a("L_pvl0:")
        self.pv_mfmas(0, 0)
        self.cstamp(7)
        a(f"  s_setpc_b64 s[{S_LINK}:{S_LINK+1}]")

    def pv_reads(self, buf, s_, poff, imm=0):
        a = self.a; o = self.V_A + 16 * buf
        a(f"  ds_read_b128 {vr(o)}, v{self.V_PADDR} offset:{poff}")
        for tau in range(3):
            if s_ is None:
                ad = self.V_PA + tau
            else:
                ad = self.V_TA + tau
                a(f"  v_add_u32 v{ad}, s{s_}, v{self.V_PA+tau}")
            a(f"  ds_read_b64_tr_b16 {vr(o+4+4*tau,2)}, v{ad} offset:{imm}")
            a(f"  ds_read_b64_tr_b16 {vr(o+6+4*tau,2)}, v{ad} offset:{imm + SLOT}")
    def pv_mfmas(self, buf, base):
        a = self.a; o = self.V_A + 16 * buf
        for tau in range(3):
            a(f"  s_waitcnt lgkmcnt({base + 4 - 2*tau})")
            a(f"  v_mfma_f32_16x16x32_bf16 {vr(self.V_ACC+4*tau)}, {vr(o+4+4*tau)}, {vr(o)}, {vr(self.V_ACC+4*tau)}")

    def pv_final(self):
        a = self.a; T0, T1 = self.V_T0, self.V_T1
        a(f"  v_mov_b32 v{T0}, {FLAG_LDS}\n  ds_read_b32 v{T1}, v{T0}")
        a(f"  s_mov_b32 s{S_PVB}, {8*SLOT}")
        self.pv_reads(0, S_PVB, 0)
        a(f"  s_waitcnt lgkmcnt(7)\n  v_readfirstlane_b32 s62, v{T1}\n  s_cmp_lg_u32 s62, 0\n  s_cbranch_scc1 L_slow")
        a(f"  s_mov_b32 s{S_PVB}, {10*SLOT}")
        self.pv_reads(1, S_PVB, 1024); self.pv_mfmas(0, 7)
        self.pv_reads(0, None, 2048, 0); self.pv_mfmas(1, 7)
        self.pv_reads(1, None, 3072, 2*SLOT); self.pv_mfmas(0, 7)
        self.pv_reads(0, None, 4096, 4*SLOT); self.pv_mfmas(1, 7)
        self.sums_read()
        self.pv_mfmas(0, 4)
        self.sums_math()

    V_SR = 16
    def sums_read(self):
        for i in range(4): self.a(f"  ds_read_b128 {vr(self.V_SR+4*i)}, v{self.V_PUB+3} offset:{16*i}")
    def sums_math(self):
        a = self.a; R = self.V_SR
        a("  s_waitcnt lgkmcnt(0)")
        for i in (0, 4, 8, 12): self.pk("v_pk_add_f32", R + i, R + i, R + i + 2)
        self.pk("v_pk_add_f32", R, R, R + 4); self.pk("v_pk_add_f32", R + 8, R + 8, R + 12); self.pk("v_pk_add_f32", R, R, R + 8)
        a(f"  v_rcp_f32 v{R+2}, v{R}\n  v_log_f32 v{R+5}, v{R}\n  v_mul_f32 v{R+4}, v{R+1}, v{R+2}\n  v_add_f32 v{R+6}, v{self.V_M}, v{R+5}")

    def hold_chunks(self):
        a = self.a
        b = self.V_BUF[0]; u, t8, st = 160, 168, 56
        SS, SQ, R, U = st, st + 4, st + 8, st + 12
        def dpp(dst, src, ctrl, bank):
            a(f"  v_add_f32_dpp v{dst}, v{src}, v{src} {ctrl} row_mask:0xf bank_mask:{bank:#x}")
        def child(t):
            c = b + 4 + 4 * t
            if t == 0:
                a("  s_waitcnt vmcnt(9)")
                for i in range(4): a(f"  v_lshlrev_b32 v{u+2*i}, 16, v{b+i}\n  v_and_b32 v{u+2*i+1}, 0xffff0000, v{b+i}")
            a(f"  s_waitcnt vmcnt({8-t})")
            for i in range(4):
                a(f"  v_dot2_f32_bf16 v{t8+2*i}, v{c+i}, s{S_ONELO}, v{u+2*i}")
                a(f"  v_dot2_f32_bf16 v{t8+2*i+1}, v{c+i}, s{S_ONEHI}, v{u+2*i+1}")
            if t > 0: dpp(R + t - 1, SS + t - 1, "row_ror:8", 0x3)
            for i in range(4): a(f"  v_cvt_pk_bf16_f32 v{c+i}, v{t8+2*i}, v{t8+2*i+1}")
            if t > 0: dpp(R + t - 1, SQ + t - 1, "row_ror:8", 0xc)
            for i in range(4):
                a(f"  v_dot2_f32_bf16 v{SS+t}, v{c+i}, v{self.V_ONES}, {'0' if i == 0 else 'v%d' % (SS+t)}")
                a(f"  v_dot2_f32_bf16 v{SQ+t}, v{c+i}, v{c+i}, {'0' if i == 0 else 'v%d' % (SQ+t)}")
        def close():
            dpp(U, R, "row_half_mirror", 0x5)
            dpp(R + 3, SS + 3, "row_ror:8", 0x3)
            dpp(U + 1, R + 2, "row_half_mirror", 0x5)
            dpp(U, R + 1, "row_half_mirror", 0xa)
            dpp(R + 3, SQ + 3, "row_ror:8", 0xc)
            a(f"  s_add_u32 s{S_K}, s{S_K}, 1")
            dpp(U, U, "quad_perm:[1,0,3,2]", 0xf)
            dpp(U + 1, R + 3, "row_half_mirror", 0xa)
            dpp(U, U, "quad_perm:[2,3,0,1]", 0xf)
            dpp(U + 1, U + 1, "quad_perm:[1,0,3,2]", 0xf)
            a(f"  s_mov_b64 exec, s[{S_QMASK}:{S_QMASK+1}]\n  {self.dsadd} v{self.V_SA}, v{U}\n  s_mov_b64 exec, -1")
            dpp(U + 1, U + 1, "quad_perm:[2,3,0,1]", 0xf)
            a(f"  s_mov_b64 exec, s[{S_QMASK}:{S_QMASK+1}]\n  {self.dsadd} v{self.V_SA}, v{U+1} offset:8\n  s_mov_b64 exec, -1")
            a(f"  v_add_u32 v{self.V_SA}, 256, v{self.V_SA}")
        return [lambda t=t: child(t) for t in range(4)], close

    def pv_first(self):
        a = self.a; T0, T1 = self.V_T0, self.V_T1
        def body(chunks, close):
            self.pv_reads(1, None, 1024, 2*SLOT)
            self.pk("v_pk_add_f32", self.V_L2, self.V_L2, self.V_LT); self.pk("v_pk_add_f32", self.V_AM2, self.V_AM2, self.V_AT)
            if chunks: chunks[0]()
            self.pv_mfmas(0, 7)
            self.pv_reads(0, None, 2048, 4*SLOT)
            for r in range(4): a(f"  v_mov_b32 v{self.V_LT+r}, 0")
            if chunks: chunks[1]()
            self.pv_mfmas(1, 7)
            a(f"  s_mov_b32 s{S_PVB}, {6*SLOT}")
            self.pv_reads(1, S_PVB, 3072)
            if chunks: chunks[2]()
            self.pv_mfmas(0, 7)
            if chunks: chunks[3]()
            self.pv_mfmas(1, 0)
            if close: close()
        a(f"  v_mov_b32 v{T0}, {FLAG_LDS}\n  ds_read_b32 v{T1}, v{T0}")
        self.pv_reads(0, None, 0, 0)
        a(f"  s_waitcnt lgkmcnt(7)\n  v_readfirstlane_b32 s62, v{T1}\n  s_cmp_lg_u32 s62, 0\n  s_cbranch_scc1 L_slow1")
        if self.cfg.pvfuse:
            plain, join = self.lab("pvplain"), self.lab("pvjoin")
            a(f"  s_cmp_ge_u32 s{S_WAVE}, 6\n  s_cbranch_scc1 {plain}")
            body(*self.hold_chunks())
            a(f"  s_branch {join}\n{plain}:")
            body(None, None)
            a(f"{join}:")
        else:
            body(None, None)

    def call_batch(self, T, w0, slot0, pair_add, last):
        self.a(f"  s_mov_b32 s{S_T}, {T}\n  s_mov_b32 s{S_W0}, {w0}\n  s_mov_b32 s{S_SB}, {slot0}\n  s_add_u32 s{S_PB}, s{S_P0}, {pair_add}\n  s_mov_b32 s{S_LAST}, {int(last)}")
        self.a(f"  s_call_b64 s[{S_LINK}:{S_LINK+1}], L_batch")

    def streamer(self):
        a = self.a; cfg = self.cfg; d = cfg.depth
        CALL = f"  s_call_b64 s[{S_LINK}:{S_LINK+1}], "
        a("  s_waitcnt lgkmcnt(0)")
        srd(a, R_A, P_F0, F0_BYTES); srd(a, R_B, P_F1, F1_BYTES)
        a(f"  s_cmp_ge_u32 s{S_WAVE}, 6\n  s_cbranch_scc1 L_sgather")
        a(f"  s_cmp_ge_u32 s{S_WAVE}, 3\n  s_cselect_b32 s60, 1, 0\n  s_mul_i32 s62, s60, 3\n  s_sub_u32 s61, s{S_WAVE}, s62")
        a(f"  s_mul_i32 s{S_QBASE}, s{S_IDX}, {2*NPAIR}\n  s_add_u32 s{S_QBASE}, s{S_QBASE}, s60\n  s_lshl_b32 s61, s61, 8")
        a("  v_and_b32 v240, 15, v0\n  v_lshrrev_b32 v241, 4, v0\n  v_lshl_add_u32 v242, v240, 4, s61")
        a(f"  v_mul_u32_u24 v243, 768, v241\n  v_add_u32 v{self.V_OFF1}, v242, v243\n  v_lshl_add_u32 v{self.V_OFF0}, v243, 1, v242")
        a(f"  s_mov_b32 s{S_K}, 0\n  s_mov_b32 s{S_QMASK}, 0x11111111\n  s_mov_b32 s{S_QMASK+1}, 0x11111111")
        def first_loads(d):
            self.task_bases(SETA, 0, False)
            for x in range(min(d, 5)): self.issue_piece(SETA, 0, x)
            self.task_bases(SETB, d // 5, False)
        two = cfg.dlate != d
        def both(f):
            if not two:
                f(d); return
            l1, l2 = self.lab("dl"), self.lab("dj")
            a(f"  s_and_b32 s62, s2, 7\n  s_cmp_ge_u32 s62, {cfg.xlate}\n  s_cbranch_scc1 {l1}")
            f(d)
            a(f"  s_branch {l2}\n{l1}:")
            f(cfg.dlate)
            a(f"{l2}:")
        assert d <= 5 and cfg.dlate <= 5
        if not cfg.late: both(first_loads)
        a(f"  s_mul_i32 s60, s60, {SLOT}\n  s_add_u32 s60, s60, s61")
        srd(a, R_WS, P_WS, WS_BYTES)
        a("  v_and_b32 v240, 15, v0\n  v_lshrrev_b32 v241, 4, v0\n  v_and_b32 v242, 1, v241\n  v_lshlrev_b32 v242, 3, v242\n  v_xor_b32 v242, v240, v242")
        a(f"  v_mul_u32_u24 v243, 3072, v241\n  v_add_u32 v243, s60, v243")
        for t in range(4):
            a(f"  v_xor_b32 v244, {2*t}, v242\n  v_lshl_add_u32 v{self.V_WA[t]}, v244, 4, v243")
        a(f"  v_bfe_u32 v242, v0, 3, 1\n  v_lshlrev_b32 v242, 6, v242\n  v_bfe_u32 v243, v0, 2, 1\n  v_lshl_add_u32 v243, v241, 2, v243\n  v_lshl_add_u32 v242, v243, 2, v242")
        a(f"  s_cmp_ge_u32 s{S_WAVE}, 3\n  s_cselect_b32 s62, {STAT_S}, 0\n  s_add_u32 s62, s62, {STAT}\n  s_lshr_b32 s63, s61, 1\n  s_add_u32 s62, s62, s63\n  v_add_u32 v{self.V_SA}, s62, v242")
        a("  s_barrier")
        self.stream_consts()
        if cfg.late: both(first_loads)
        if cfg.streamonly:
            for k in range(9):
                a(CALL + f"L_fuse{k & 1}")
                if k == 5: self.stamp(3)
            self.stamp(7); self.stamp(8)
            a("  s_branch L_sdone")
        def phase1(dd):
            sfx = "" if dd == d else "L"
            for k in range(6):
                if k == cfg.trig_a: a("  s_barrier")
                if k == cfg.trig_b: a("  s_barrier")
                a(CALL + f"L_fuse{sfx}{k & 1}")
            if cfg.trig_a >= 6: a("  s_barrier")
            if cfg.trig_b >= 6: a("  s_barrier")
            if dd < 5:
                self.task_bases(SETA, 6, False)
                for x in range(30 + dd, 35): self.issue_piece(SETA, 0, x % 5)
        both(phase1)
        assert not (cfg.pvfuse and (cfg.prefuse or not cfg.zref or cfg.ext7 != 1 or cfg.ext8 != 1))
        self.stamp(3)
        if cfg.prefuse: a(CALL + "L_fuseH")
        if cfg.ext7 == 0:
            self.task_bases(SETA, 7, False)
            for x in range(5): self.issue_piece(SETA, 1, x)
        a("  s_waitcnt lgkmcnt(0)")
        a("  s_branch L_sb0")
        a("L_sgather:     ; waves 6,7: nonce, GO word, Qk into the staging area")
        if cfg.streamonly == 3:
            pass
        elif cfg.streamonly:
            srd(a, R_WS, P_WS, WS_BYTES)
            for i in range(4): a(f"  v_mov_b32 v{20+i}, 0")
            a("  s_barrier\n  s_branch L_sdone")
        for r in (self.V_OFF1, self.V_OFF0, self.V_SA) + self.V_WA: a(f"  v_mov_b32 v{r}, 0")
        a(f"  v_mov_b32 v20, 0\n  v_mov_b32 v24, {FLAG_LDS}\n  ds_write_b32 v24, v20\n  s_waitcnt lgkmcnt(0)\n  s_barrier")
        a(f"  s_mov_b32 s{S_QBASE}, 0\n  s_mov_b32 s{S_K}, 0\n  s_mov_b32 s{S_QMASK}, 0\n  s_mov_b32 s{S_QMASK+1}, 0")
        for r in range(3): a(f"  s_mov_b32 s{SETA+r}, 0\n  s_mov_b32 s{SETB+r}, 0")
        srd(a, R_WS, P_WS, WS_BYTES)
        a(f"  s_cmp_eq_u32 s{S_WAVE}, 7\n  s_cbranch_scc1 L_sw7")
        a(f"  buffer_load_dword v17, v{self.V_OFF1}, {sr(R_WS)}, 0 offen offset:{NONCE_OFF} sc1")
        a(f"  v_mov_b32 v18, {GO_OFF}")
        self.stream_consts()
        a(f"  s_waitcnt vmcnt(0)\n  v_add_u32 v17, 1, v17\n  v_mov_b32 v{self.V_T0}, {NONCE_LDS}\n  ds_write_b32 v{self.V_T0}, v17\n  v_readfirstlane_b32 s{S_NONCE}, v17")
        if cfg.streamonly != 3: a("  s_barrier")
        a(f"  buffer_load_dword v16, v18, {sr(R_WS)}, 0 offen sc1")
        if cfg.streamonly != 3: a("  s_barrier")
        self.wait_flags(16, 18, first_issued=True)
        self.stamp(1)
        a(f"  s_mov_b32 s62, {RQK_OFF}")
        if cfg.kdelay: a(f"  s_sleep {cfg.kdelay}")
        self.gather_frags(12, self.V_QK, self.V_L16, 62, self.V_T0, "qk")
        if cfg.gdiag:
            a(f"  s_mov_b32 s{STAMP0+4}, s{S_SPIN}")
            self.stamp(5)
        for j in range(12): a(f"  ds_write_b128 v{self.V_PADDR}, {vr(self.V_QK+4*j)} offset:{j*1024}")
        SQ4 = self.V_SQ4
        for j in range(12):
            for i in range(4):
                a(f"  v_dot2_f32_bf16 v{SQ4+i}, v{self.V_QK+4*j+i}, v{self.V_ONES}, {'0' if j == 0 else 'v%d' % (SQ4+i)}")
        self.pk("v_pk_add_f32", SQ4, SQ4, SQ4 + 2)
        a(f"  v_add_f32 v{self.V_QS}, v{SQ4}, v{SQ4+1}")
        self.allred_g(self.V_QS, self.V_T0, "v_add_f32")
        a(f"  v_and_b32 v{self.V_T0}, 15, v0\n  v_lshlrev_b32 v{self.V_T0}, 2, v{self.V_T0}\n  v_add_u32 v{self.V_T0}, {QS_LDS}, v{self.V_T0}\n  ds_write_b32 v{self.V_T0}, v{self.V_QS}")
        a("  s_waitcnt lgkmcnt(0)")
        self.stamp(3)
        if cfg.streamonly == 3: a("  s_branch L_sdone")
        a("  s_branch L_sb0")
        a("L_sw7:")
        if cfg.streamonly == 3: a("  s_branch L_sdone")
        self.stream_consts()
        a("  s_waitcnt vmcnt(0)\n  s_barrier\n  s_barrier")
        a("L_sb0:         ; tiles 0..11 and Qk are in LDS\n  s_barrier")
        a(f"  v_and_b32 v{self.V_T2}, 15, v0\n  v_lshlrev_b32 v{self.V_T2}, 2, v{self.V_T2}\n  v_add_u32 v{self.V_T2}, {QS_LDS}, v{self.V_T2}")
        a(f"  v_mov_b32 v{self.V_T0}, {NONCE_LDS}\n  ds_read_b32 v{self.V_T1}, v{self.V_T0}\n  ds_read_b32 v{self.V_QS}, v{self.V_T2}")
        for j in range(12): a(f"  ds_read_b128 {vr(self.V_QK+4*j)}, v{self.V_PADDR} offset:{j*1024}")
        a(f"  s_mul_i32 s{S_P0}, s{S_IDX}, {NPAIR}")
        for r in range(4): a(f"  v_mov_b32 v{self.V_LT+r}, 0")
        a(f"  s_waitcnt lgkmcnt(0)\n  v_readfirstlane_b32 s{S_NONCE}, v{self.V_T1}")
        if cfg.zref: a("  s_barrier")
        sk = self.lab("noext")
        a(f"  s_cmp_ge_u32 s{S_WAVE}, 6\n  s_cbranch_scc1 {sk}")
        U = self.V_ST + 12
        a(f"  v_add_u32 v{self.V_T0}, {(STAT2 - STAT) & 0xffffffff:#x}, v{self.V_SA}\n  s_mov_b64 exec, s[{S_QMASK}:{S_QMASK+1}]")
        a(f"  ds_write_b32 v{self.V_T0}, v{U}\n  ds_write_b32 v{self.V_T0}, v{U+1} offset:8\n  s_mov_b64 exec, -1")
        if cfg.ext7 == 1:
            self.task_bases(SETA, 7, False)
            for x in range(5): self.issue_piece(SETA, 1, x)
        if cfg.ext8 == 0:
            self.task_bases(SETB, 8, False)
            for x in range(5): self.issue_piece(SETB, 2, x)
        a(f"{sk}:")
        self.stamp(4)
        if cfg.zref:
            a(f"  s_mov_b32 s{S_LOW}, {f32(LOW_LIMIT)}\n  v_mov_b32 v{self.V_M}, 0")
            a(f"  s_mul_i32 s{S_TB}, s{S_WAVE}, {SLOT}\n  s_mul_i32 s62, s{S_WAVE}, {STAT_S}\n  s_add_u32 s{S_STA}, s62, {STAT}")
            a(f"  s_lshr_b32 s62, s{S_WAVE}, 1\n  s_add_u32 s{S_PAIR}, s62, s{S_P0}")
            a(f"  s_lshl_b32 s62, s62, 10\n  s_and_b32 s63, s{S_WAVE}, 1\n  s_lshl_b32 s63, s63, 3\n  s_add_u32 s{S_POFF}, s62, s63")
            a(CALL + "L_sp")
            if cfg.ext8 == 2:
                sk = self.lab("noe8")
                a(f"  s_cmp_ge_u32 s{S_WAVE}, 6\n  s_cbranch_scc1 {sk}")
                self.task_bases(SETB, 8, False)
                for x in range(5): self.issue_piece(SETB, 2, x)
                a(f"{sk}:")
            a("  s_waitcnt lgkmcnt(0)\n  s_barrier")
            self.pv_first()
            a("L_safter1:")
        else:
            self.call_batch(8, 0, 0, 0, False)
        a(f"  s_mov_b32 s{S_LOW}, {f32(-3.0e38)}")
        a("  s_barrier")
        if not cfg.gdiag: self.stamp(5)
        a(f"  s_cmp_ge_u32 s{S_WAVE}, 6\n  s_cbranch_scc1 L_s67")
        if cfg.ext8 == 1:
            self.task_bases(SETB, 8, False)
            if cfg.late8:
                a(f"  s_and_b32 s62, s2, 4\n  s_cmp_lg_u32 s62, 0\n  s_cselect_b32 s{SETB}, 0x80000000, s{SETB}\n  s_cselect_b32 s{SETB+1}, 0x80000000, s{SETB+1}\n  s_cselect_b32 s{SETB+2}, 0x80000000, s{SETB+2}")
            for x in range(5): self.issue_piece(SETB, 2, x)
        self.fstamp(0)
        if cfg.prefuse or cfg.pvfuse:
            b = self.V_BUF[0]
            for t in range(4): a(f"  ds_write_b128 v{self.V_WA[t]}, {vr(b+4+4*t)} offset:{t*768}")
            for t in range(4): a(f"  v_add_u32 v{self.V_WA[t]}, 24576, v{self.V_WA[t]}")
        else:
            a(CALL + "L_fuseR0")
        self.fstamp(1)
        a(CALL + "L_fuseR1")
        self.fstamp(2)
        if cfg.late8:
            sk8 = self.lab("skip8")
            a(f"  s_and_b32 s62, s2, 4\n  s_cmp_lg_u32 s62, 0\n  s_cbranch_scc1 {sk8}")
            a(CALL + "L_fuseR2")
            a(f"{sk8}:\n  s_waitcnt vmcnt(0)")
        else:
            a(CALL + "L_fuseR2")
        self.fstamp(3)
        a("  s_branch L_sx")
        a("L_s67:         ; waves 6,7: logits and P of tiles 8..11 beside the fuse steps of tasks 6..8")
        for i in range(2):
            a(f"  s_and_b32 s63, s{S_WAVE}, 1\n  s_add_u32 s62, s63, {8 + 2*i}\n  s_mul_i32 s{S_TB}, s62, {SLOT}")
            a(f"  s_mul_i32 s62, s63, {STAT_S}\n  s_add_u32 s{S_STA}, s62, {STAT + 8*STAT_S if i == 0 else STAT2}\n  s_add_u32 s{S_PAIR}, s{S_P0}, {4 + i}")
            a(f"  s_lshl_b32 s63, s63, 3\n  s_add_u32 s{S_POFF}, s63, {i*1024}")
            a(CALL + "L_sp")
        a("L_sx:")
        self.publish_setup()
        a("  s_waitcnt lgkmcnt(0)\n  s_barrier")
        if not cfg.gdiag: self.stamp(2)
        sk = self.lab("nosp")
        a(f"  s_cmp_ge_u32 s{S_WAVE}, 6\n  s_cbranch_scc1 {sk}")
        a(f"  s_mul_i32 s{S_TB}, s{S_WAVE}, {SLOT}\n  s_mul_i32 s62, s{S_WAVE}, {STAT_S}\n  s_add_u32 s{S_STA}, s62, {STAT}")
        a(f"  s_lshr_b32 s62, s{S_WAVE}, 1\n  s_add_u32 s{S_PAIR}, s62, s{S_P0}\n  s_add_u32 s{S_PAIR}, s{S_PAIR}, 6")
        a(f"  s_lshl_b32 s62, s62, 10\n  s_and_b32 s63, s{S_WAVE}, 1\n  s_lshl_b32 s63, s63, 3\n  s_add_u32 s62, s62, s63\n  s_add_u32 s{S_POFF}, s62, 2048")
        a(CALL + "L_sp")
        a(f"{sk}:")
        MXV = self.V_MXV
        self.pk("v_pk_add_f32", MXV, self.V_L2, self.V_LT); self.pk("v_pk_add_f32", MXV + 2, self.V_AM2, self.V_AT)
        self.red_write(MXV, MXV + 2, MXV + 6)
        a("  s_waitcnt lgkmcnt(0)")
        if not cfg.gdiag: self.stamp(1)
        a("  s_barrier")
        self.stamp(6)
        self.pv_final()
        a("L_spub:        ; partial result of this workgroup")
        self.stamp(7)
        self.publish()
        self.cstamp(8)
        self.stamp(8)
        if cfg.cut >= 1: a("  s_branch L_sdone")
        self.reducer_index()
        a(f"  s_cmp_ge_u32 s{S_RHO}, 128\n  s_cbranch_scc1 L_sdone")
        self.reducer()
        a("L_sdone:")
        self.stamp(9); self.stamp_flush((5, 6, 8, (0, 1, 3, 5, 6, 7, 8, 9)))
        a("  s_endpgm")
        if cfg.zref:
            a("L_slow1:       ; a logit of tiles 0..7 left the range of the zero reference: exact maximum\n  s_waitcnt lgkmcnt(0)")
            a(f"  v_mov_b32 v{self.V_M}, 0xff800000")
            for r in range(4): a(f"  v_mov_b32 v{self.V_LT+r}, 0")
            self.call_batch(8, 0, 0, 0, False)
            if cfg.pvfuse:
                a(f"  s_cmp_ge_u32 s{S_WAVE}, 6\n  s_cbranch_scc1 L_safter1")
                a(CALL + "L_fuseH")
            a("  s_branch L_safter1")
        a("L_slow:        ; a later logit left the range of the reference: tiles 8..17 with exact maxima\n  s_waitcnt lgkmcnt(0)")
        self.call_batch(4, 4, 8, 4, False)
        self.call_batch(6, 0, 0, 6, True)
        self.sums_read(); self.sums_math()
        a("  s_branch L_spub")
        self.sp_sub(); self.sphase_sub(); self.batch_sub()
        self.fuse_sub(1, 10, "L_fuseR1", "drain"); self.fuse_sub(2, 5, "L_fuseR2", "drain")
        if cfg.pvfuse: self.fuse_sub(0, 10, "L_fuseH", "hold")
        elif cfg.prefuse: self.fuse_sub(0, 5, "L_fuseH", "hold")
        else: self.fuse_sub(0, 15, "L_fuseR0", "drain")
        self.fuse_sub(0, d, "L_fuse0"); self.fuse_sub(1, d, "L_fuse1")
        if cfg.dlate != d: self.fuse_sub(0, cfg.dlate, "L_fuseL0"); self.fuse_sub(1, cfg.dlate, "L_fuseL1")

    def publish_setup(self):
        a = self.a
        T0, T1, T2 = self.V_T0, self.V_T1, self.V_T2
        PA0, TAGB = self.V_PUB, self.V_PUB + 1
        a(f"  v_and_b32 v{T0}, 7, v0\n  v_lshlrev_b32 v{T0}, 3, v{T0}\n  v_add_u32 v{T0}, s{S_WAVE}, v{T0}\n  s_mov_b32 s62, {PART_STRIDE}\n  v_mul_lo_u32 v{T0}, v{T0}, s62")
        a(f"  v_bfe_u32 v{T1}, v0, 3, 1\n  v_lshl_add_u32 v{T0}, v{T1}, 6, v{T0}\n  v_lshrrev_b32 v{T1}, 4, v0\n  v_lshl_add_u32 v{PA0}, v{T1}, 4, v{T0}")
        a(f"  s_mov_b32 s62, {KEYC}\n  v_mul_lo_u32 v{T1}, v{T1}, s62\n  v_add_u32 v{TAGB}, s{S_NONCE}, v{T1}")
        a(f"  v_and_b32 v{T0}, 15, v0\n  v_lshlrev_b32 v{T0}, 6, v{T0}\n  v_bfe_u32 v{T1}, v0, 4, 1\n  v_lshl_add_u32 v{T0}, v{T1}, 2, v{T0}")
        a(f"  s_lshl_b32 s62, s{S_WAVE}, 3\n  s_add_u32 s62, s62, {RED}\n  v_add_u32 v{self.V_PUB+2}, s62, v{T0}")
        a(f"  v_and_b32 v{T0}, 15, v0\n  v_lshlrev_b32 v{T0}, 6, v{T0}\n  v_add_u32 v{self.V_PUB+3}, {RED}, v{T0}")

    def publish(self):
        a = self.a; cfg = self.cfg
        A, ACC, R = self.V_A, self.V_ACC, self.V_SR
        PA0, TAGB = self.V_PUB, self.V_PUB + 1
        UA, UB, TB = A + 24, A + 28, A + 32
        a(f"  s_lshl_b32 s62, s{S_IDX}, 7\n  s_add_u32 s62, s62, {PART_OFF}\n  s_add_u32 s63, s62, {64*PART_STRIDE}")
        a(f"  v_mov_b32 v{UA+3}, s{S_NONCE}\n  v_xor_b32 v{UB+3}, v{R+6}, v{TAGB}")
        for i in range(0, 12, 2): self.pk("v_pk_fma_f32", ACC + i, ACC + i, R + 2, R + 4, bc=(1, 2), neg=(2,))
        for i in range(3): a(f"  v_cvt_pk_f16_f32 v{UA+i}, v{ACC+2*i}, v{ACC+2*i+1}")
        for i in range(3): a(f"  v_cvt_pk_f16_f32 v{UB+i}, v{ACC+6+2*i}, v{ACC+7+2*i}")
        for i in range(4): a(f"  v_mov_b32 v{TB+i}, v{UB+i}")
        for i in range(3): a(f"  v_mov_b32_dpp v{UB+i}, v{UA+i} row_ror:8 row_mask:0xf bank_mask:0x3")
        a(f"  v_mov_b32_dpp v{UB+3}, v{UA+3} quad_perm:[0,1,2,3] row_mask:0xf bank_mask:0x3")
        for i in range(4): a(f"  v_mov_b32_dpp v{UA+i}, v{TB+i} row_ror:8 row_mask:0xf bank_mask:0xc")
        a(f"  buffer_store_dwordx4 {vr(UA)}, v{PA0}, {sr(R_WS)}, s62 offen sc1")
        a(f"  buffer_store_dwordx4 {vr(UB)}, v{PA0}, {sr(R_WS)}, s63 offen sc1")

    def reducer_index(self):
        a = self.a; cfg = self.cfg
        if cfg.redsel == 0:
            a(f"  s_mov_b32 s{S_RHO}, s{S_IDX}")
            return
        assert cfg.hnx == 4 and cfg.hx0 == 0
        a("  s_and_b32 s60, s2, 7\n  s_lshr_b32 s61, s2, 3")
        a("  s_and_b32 s62, s60, 3\n  s_cmp_ge_u32 s60, 4\n  s_cselect_b32 s63, 1, 0")
        a("  s_lshl_b32 s64, s61, 2\n  s_add_u32 s64, s64, s62")
        a("  s_sub_u32 s65, s64, 24")
        if cfg.redsel == 1:
            a(f"  s_add_u32 s64, s64, 104\n  s_cmp_eq_u32 s63, 0\n  s_cselect_b32 s{S_RHO}, s65, s64")
        else:
            a(f"  s_add_u32 s65, s65, 124\n  s_cmp_eq_u32 s63, 0\n  s_cselect_b32 s{S_RHO}, s65, s64")

    def reducer_addr(self):
        a = self.a
        AD, T0, T1, VM, SA, X, Y, KEY = self.RV
        MASK = 40
        a(f"  v_lshrrev_b32 v{T0}, 3, v0\n  s_lshl_b32 s62, s{S_WAVE}, 5\n  v_add_u32 v{VM}, s62, v{T0}")
        a(f"  v_and_b32 v{T1}, 7, v0\n  v_lshlrev_b32 v{T1}, 4, v{T1}\n  s_mov_b32 s62, {NS}")
        for it in range(4):
            a(f"  v_add_u32 v{T0}, {8*it}, v{VM}\n  v_cmp_gt_u32 s[{MASK+2*it}:{MASK+2*it+1}], s62, v{T0}\n  v_cndmask_b32 v{T0}, 0, v{T0}, s[{MASK+2*it}:{MASK+2*it+1}]")
            a(f"  v_lshl_add_u32 v{AD+it}, v{T0}, 7, v{T1}")

    def reducer_setup(self):
        a = self.a
        AD, T0, T1, VM, SA, X, Y, KEY = self.RV
        a(f"  v_and_b32 v{T0}, 3, v0\n  v_bfe_u32 v{T1}, v0, 2, 1\n  v_mul_u32_u24 v{T0}, v{T0}, v{T1}\n  s_mov_b32 s62, {KEYC}\n  v_mul_lo_u32 v{T0}, v{T0}, s62\n  v_add_u32 v{KEY}, s{S_NONCE}, v{T0}")
        a(f"  v_lshrrev_b32 v{T0}, 4, v0\n  v_and_b32 v{T1}, 1, v{T0}\n  v_lshlrev_b32 v{T1}, 1, v{T1}\n  v_lshrrev_b32 v{X}, 1, v{T0}\n  v_add_u32 v{T1}, v{T1}, v{X}")
        a(f"  v_bfe_u32 v{X}, v0, 2, 1\n  v_mul_u32_u24 v{X}, 3, v{X}\n  v_add_u32 v{T1}, v{T1}, v{X}")
        a(f"  v_lshrrev_b32 v{X}, 1, v{T1}\n  v_lshlrev_b32 v{X}, 4, v{X}\n  v_and_b32 v{T1}, 1, v{T1}\n  v_lshl_add_u32 v{X}, v{T1}, 1, v{X}")
        a(f"  v_and_b32 v{T1}, 3, v0\n  v_lshl_add_u32 v{X}, v{T1}, 2, v{X}")
        a(f"  s_and_b32 s62, s{S_RHO}, 7\n  s_mul_i32 s62, s62, 48\n  v_add_u32 v{X}, s62, v{X}\n  v_lshlrev_b32 v{SA}, 1, v{X}")
        a(f"  v_lshrrev_b32 v{T1}, 4, v0\n  v_lshlrev_b32 v{T1}, 3, v{T1}\n  v_and_b32 v{X}, 7, v0\n  v_add_u32 v{T1}, v{T1}, v{X}\n  v_lshlrev_b32 v{Y}, 3, v{T1}")
        a(f"  s_lshl_b32 s62, s{S_WAVE}, 8\n  s_add_u32 s62, s62, {RED2}\n  v_add_u32 v{X}, s62, v{Y}\n  v_add_u32 v{Y}, {RED2}, v{Y}")

    RV = (80, 84, 85, 86, 87, 88, 89, 90)

    def reducer(self):
        a = self.a; cfg = self.cfg
        D, E, W, V = 16, 32, 40, 44
        AD, T0, T1, VM, SA, X, Y, KEY = self.RV
        MASK = 40
        BAD = 52
        self.reducer_addr()
        if cfg.rack: a("  s_waitcnt vmcnt(0)")
        if cfg.rdelay: a(f"  s_sleep {cfg.rdelay}")
        if cfg.rdiag: self.stamp(1)
        a(f"  s_mul_i32 s62, s{S_RHO}, {PART_STRIDE}\n  s_add_u32 s62, s62, {PART_OFF}")
        for it in range(4): a(f"  buffer_load_dwordx4 {vr(D+4*it)}, v{AD+it}, {sr(R_WS)}, s62 offen sc1")
        a("  s_mov_b32 s63, s62")
        self.reducer_setup()
        a("  s_mov_b32 s62, s63")
        for it in range(4): a(f"  v_mov_b32 v{E+2*it+1}, 0")
        lp, ck, dn = self.lab("red"), self.lab("redc"), self.lab("redd")
        BADS = (48, 50, 52, 54)
        a(f"  s_mov_b32 s{S_SPIN}, 0\n  s_branch {ck}\n{lp}:")
        for it in range(4):
            sk = self.lab("skipld")
            a(f"  s_mov_b64 exec, s[{BADS[it]}:{BADS[it]+1}]\n  s_cbranch_execz {sk}")
            a(f"  buffer_load_dwordx4 {vr(D+4*it)}, v{AD+it}, {sr(R_WS)}, s62 offen sc1")
            a(f"{sk}:")
        a("  s_mov_b64 exec, -1")
        self.spin_guard(dn)
        a(f"{ck}:\n  s_waitcnt vmcnt(0)")
        for it in range(4): a(f"  v_xor_b32 v{E+2*it}, v{KEY}, v{D+4*it+3}")
        for it in range(4): a(f"  v_mov_b32_dpp v{E+2*it+1}, v{E+2*it} quad_perm:[0,0,0,0] row_mask:0xf bank_mask:0xa")
        for it in range(4): a(f"  v_cmp_ne_u32 s[{BADS[it]}:{BADS[it]+1}], v{E+2*it}, v{E+2*it+1}")
        a(f"  s_or_b64 s[60:61], s[48:49], s[50:51]\n  s_or_b64 vcc, s[52:53], s[54:55]\n  s_or_b64 s[60:61], s[60:61], vcc\n  s_cbranch_scc0 {dn}")
        if cfg.selpoll == 2:
            for it in range(4): a(f"  v_xor_b32 v{W+it}, v{E+2*it}, v{E+2*it+1}")
            for ctrl in ("row_half_mirror", "quad_perm:[1,0,3,2]", "quad_perm:[2,3,0,1]"):
                for it in range(4): a(f"  v_or_b32_dpp v{W+it}, v{W+it}, v{W+it} {ctrl} row_mask:0xf bank_mask:0xf")
            for it in range(4): a(f"  v_cmp_ne_u32 s[{BADS[it]}:{BADS[it]+1}], 0, v{W+it}")
        else:
            for it in range(4):
                b = BADS[it]
                if cfg.selpoll: a(f"  s_cmp_lg_u64 s[{b}:{b+1}], 0\n  s_cselect_b64 s[{b}:{b+1}], -1, 0")
                else: a(f"  s_mov_b64 s[{b}:{b+1}], -1")
        if cfg.rsleep: a(f"  s_sleep {cfg.rsleep}")
        a(f"  s_branch {lp}")
        a(f"{dn}:\n  s_waitcnt vmcnt(0)")
        if cfg.rdiag:
            self.stamp(2)
            a(f"  s_mov_b32 s{STAMP0+6}, s{S_SPIN}")
        for it in range(4): a(f"  v_mov_b32_dpp v{E+2*it}, v{E+2*it} row_shl:4 row_mask:0xf bank_mask:0x5")
        a(f"  v_mov_b32 v{T1}, 0xff800000")
        for it in range(4):
            a(f"  v_cndmask_b32 v{E+2*it}, v{T1}, v{E+2*it}, s[{MASK+2*it}:{MASK+2*it+1}]")
        a(f"  v_max3_f32 v{T0}, v{E}, v{E+2}, v{E+4}\n  v_max_f32 v{T0}, v{T0}, v{E+6}")
        a(f"  v_max_f32_dpp v{T0}, v{T0}, v{T0} row_ror:8 row_mask:0xf bank_mask:0xf")
        self.allred_g(T0, T1, "v_max_f32")
        for it in range(4): a(f"  v_sub_f32 v{W+it}, v{E+2*it}, v{T0}")
        for it in range(4): a(f"  v_exp_f32 v{W+it}, v{W+it}")
        a(f"  s_lshl_b32 s62, s{S_WAVE}, 2\n  s_add_u32 s62, s62, {MXW}\n  v_mov_b32 v{T1}, s62\n  ds_write_b32 v{T1}, v{T0}")
        for it in range(4):
            for q in range(3):
                c0 = "0" if it == 0 else f"v{V+2*q}"; c1 = "0" if it == 0 else f"v{V+2*q+1}"
                a(f"  v_fma_mix_f32 v{V+2*q}, v{D+4*it+q}, v{W+it}, {c0} op_sel_hi:[1,0,0]")
                a(f"  v_fma_mix_f32 v{V+2*q+1}, v{D+4*it+q}, v{W+it}, {c1} op_sel:[1,0,0] op_sel_hi:[1,0,0]")
        self.pk("v_pk_add_f32", W, W, W + 2)
        a(f"  v_add_f32 v{V+6}, v{W}, v{W+1}\n  v_mov_b32 v{V+7}, 0")
        for x, y in ((0, 2), (1, 3), (4, 6), (5, 7)): a(f"  v_permlane32_swap_b32 v{V+x}, v{V+y}")
        for x, y in ((0, 2), (1, 3), (4, 6), (5, 7)): a(f"  v_add_f32 v{V+x}, v{V+x}, v{V+y}")
        for x, y in ((0, 4), (1, 5)): a(f"  v_permlane16_swap_b32 v{V+x}, v{V+y}")
        for x, y in ((0, 4), (1, 5)): a(f"  v_add_f32 v{V+x}, v{V+x}, v{V+y}")
        for x in (0, 1): a(f"  v_add_f32_dpp v{V+x}, v{V+x}, v{V+x} row_ror:8 row_mask:0xf bank_mask:0xf")
        a(f"  ds_write_b64 v{X}, {vr(V,2)}\n  s_waitcnt lgkmcnt(0)")
        if cfg.rdiag: self.stamp(4)
        a("  s_barrier")
        if cfg.rdiag: self.stamp(5)
        a(f"  s_cmp_lg_u32 s{S_WAVE}, 0\n  s_cbranch_scc1 L_sdone")
        a(f"  v_mov_b32 v{T1}, {MXW}\n  ds_read_b128 {vr(W)}, v{T1}\n  ds_read_b128 {vr(W+4)}, v{T1} offset:16")
        for w in range(8): a(f"  ds_read_b64 {vr(D+2*w,2)}, v{Y} offset:{256*w}")
        a(f"  s_lshr_b32 s63, s{S_RHO}, 3\n  s_mul_i32 s63, s63, 768\n  s_add_u32 s63, s63, {RCTX_OFF}")
        a(f"  v_and_b32 v{X}, 8, v0\n  v_cmp_eq_u32 vcc, 0, v{X}\n  v_cmp_gt_u32 s[64:65], 48, v0\n  s_and_b64 s[64:65], vcc, s[64:65]")
        a("  s_waitcnt lgkmcnt(8)")
        a(f"  v_max3_f32 v{T0}, v{W}, v{W+1}, v{W+2}\n  v_max3_f32 v{T1}, v{W+3}, v{W+4}, v{W+5}\n  v_max3_f32 v{T0}, v{T0}, v{W+6}, v{W+7}\n  v_max_f32 v{T0}, v{T0}, v{T1}")
        for w in range(0, 8, 2): self.pk("v_pk_add_f32", W + w, W + w, T0, bc=(1,), neg=(1,))
        for w in range(8): a(f"  v_exp_f32 v{W+w}, v{W+w}")
        a("  s_waitcnt lgkmcnt(0)")
        for w in range(8):
            base = W + (w & ~1)
            sel = "op_sel:[0,1,0] op_sel_hi:[1,1,1]" if w & 1 else "op_sel_hi:[1,0,1]"
            if w == 0: a(f"  v_pk_mul_f32 {vr(E,2)}, {vr(D,2)}, {vr(base,2)} op_sel_hi:[1,0]")
            else: a(f"  v_pk_fma_f32 {vr(E,2)}, {vr(D+2*w,2)}, {vr(base,2)}, {vr(E,2)} {sel}")
        a(f"  v_readlane_b32 s62, v{E}, 48\n  v_rcp_f32 v{T0}, s62")
        self.pk("v_pk_mul_f32", E, E, T0, bc=(1,))
        a(f"  v_cvt_pk_bf16_f32 v{E}, v{E}, v{E+1}\n  v_min_u32 v{E}, -2, v{E}")
        a("  s_mov_b64 exec, s[64:65]")
        a(f"  buffer_store_dword v{E}, v{SA}, {sr(R_WS)}, s63 offen sc1")
        a("  s_mov_b64 exec, -1")

    def img_dma(self, srdr, lds, soff, vs0, vs1):
        for th in range(3):
            for q4 in range(4):
                self.img_dma1(srdr, lds, soff, vs0, vs1, th, q4)
    def img_dma1(self, srdr, lds, soff, vs0, vs1, th, q4, ldsreg=None):
        a = self.a
        if ldsreg is None: a(f"  s_mov_b32 m0, {lds + th*4096 + q4*1024}")
        else: a(f"  s_add_u32 m0, s{ldsreg}, {th*4096 + q4*1024}")
        a(f"  s_add_u32 s62, s{soff}, {q4*3072 + th*256}")
        a(f"  buffer_load_dwordx4 v{vs1 if q4 & 1 else vs0}, {sr(srdr)}, s62 offen{' nt' if self.cfg.hnt else ''} lds")

    def helper(self):
        a = self.a; cfg = self.cfg
        L16, N, Gq, T0, T1, T2, T3 = 1, 2, 3, 4, 5, 6, 7
        FL, TA, DS, VS0, VS1, ZERO = 8, 10, 11, 12, 13, 14
        IA = 16
        QF, AF, TR = 20, 68, 160
        WKF = 116
        D1, D2, D3, ST, ONES = 208, 212, 216, 220, 224
        a("L_helper:      ; ---------------- helpers")
        if cfg.streamonly == 1:
            a("  s_waitcnt lgkmcnt(0)")
            srd(a, R_WS, P_WS, WS_BYTES)
            a("  s_branch L_hdone")
        a(f"  v_lshlrev_b32 v{L16}, 4, v0\n  v_and_b32 v{N}, 15, v0\n  v_lshrrev_b32 v{Gq}, 4, v0\n  v_mov_b32 v{ZERO}, 0")
        a(f"  v_lshlrev_b32 v{T0}, 1, v{Gq}\n  v_xor_b32 v{T0}, v{N}, v{T0}\n  v_mul_u32_u24 v{T1}, 768, v{Gq}")
        a(f"  v_lshl_add_u32 v{VS0}, v{T0}, 4, v{T1}\n  v_xor_b32 v{T0}, 8, v{T0}\n  v_lshl_add_u32 v{VS1}, v{T0}, 4, v{T1}")
        a(f"  v_lshrrev_b32 v{T0}, 1, v0\n  v_mul_u32_u24 v{T0}, 768, v{T0}\n  v_and_b32 v{T1}, 1, v0\n  v_lshl_add_u32 v{T0}, v{T1}, 4, v{T0}")
        a(f"  s_lshl_b32 s61, s{S_IDX}, 5\n  v_add_u32 v{DS}, s61, v{T0}")
        a(f"  s_lshr_b32 s60, s{S_IDX}, 1\n  s_lshl_b32 s60, s60, 10\n  s_and_b32 s61, s{S_IDX}, 1\n  s_lshl_b32 s61, s61, 9\n  s_add_u32 s60, s60, s61")
        a(f"  v_lshrrev_b32 v{T0}, 1, v{Gq}\n  v_lshlrev_b32 v{T0}, 8, v{T0}\n  v_lshl_add_u32 v{T0}, v{N}, 4, v{T0}")
        a(f"  v_and_b32 v{T1}, 1, v{Gq}\n  v_lshl_add_u32 v{T0}, v{T1}, 3, v{T0}\n  v_add_u32 v{FL}, s60, v{T0}")
        if cfg.hdiag: self.stamp(8)
        a("  s_waitcnt lgkmcnt(0)")
        if cfg.hdiag: self.stamp(2)
        srd(a, R_WS, P_WS, WS_BYTES)
        a(f"  s_cmp_eq_u32 s{S_WAVE}, 1\n  s_cbranch_scc1 L_h1a")
        a(f"  s_cmp_eq_u32 s{S_WAVE}, 0\n  s_cbranch_scc1 L_h0a")
        a("  s_branch L_hb1")
        a("L_h1a:")
        srd(a, R_B, P_WQ, W_BYTES)
        for k in range(12):
            a(f"  s_mov_b32 m0, {H_WQI + k*1024}\n  s_mov_b32 s62, {k*32*768}\n  buffer_load_dwordx4 v{DS}, {sr(R_B)}, s62 offen{' nt' if cfg.hnt else ''} lds")
        a(f"  buffer_load_dword v9, v{ZERO}, {sr(R_WS)}, 0 offen offset:{NONCE_OFF} sc1")
        a(f"  v_mov_b32 v{T0}, -1\n  v_mov_b32 v{T0+1}, -1\n  v_mov_b32 v{T0+2}, -1\n  v_mov_b32 v{T0+3}, -1")
        a(f"  s_lshl_b32 s60, s{S_IDX}, 9\n  s_add_u32 s62, s60, {RQ_OFF}\n  s_add_u32 s63, s60, {RQK_OFF}\n  s_add_u32 s61, s60, {RCTX_OFF}")
        a("  s_mov_b32 s64, -1\n  s_mov_b32 s65, 0\n  s_mov_b64 exec, s[64:65]")
        for r in ("s62", "s63", "s61"): a(f"  buffer_store_dwordx4 {vr(T0)}, v{L16}, {sr(R_WS)}, {r} offen sc1")
        a("  s_mov_b64 exec, -1")
        a("  s_waitcnt vmcnt(4)\n  s_branch L_hb1")
        a("L_h0a:")
        srd(a, R_A, P_Q, Q_BYTES)
        a("  s_mov_b32 s60, 0")
        self.img_dma(R_A, H_QI, 60, VS0, VS1)
        a(f"  buffer_load_dword v15, v{ZERO}, {sr(R_WS)}, 0 offen offset:{NONCE_OFF} sc1")
        a("  s_waitcnt vmcnt(0)\n  s_branch L_hb1")
        a("L_hb1:")
        self.stamp(7)
        T0, T1, T2 = 228, 229, 230
        srd(a, R_A, P_Q, Q_BYTES); srd(a, R_D, P_WV, W_BYTES); srd(a, R_F, P_OUT, Q_BYTES)
        a(f"  v_and_b32 v{T0}, 7, v{N}\n  v_lshlrev_b32 v{T0}, 1, v{T0}\n  v_lshlrev_b32 v{T1}, 8, v{N}")
        for m in range(4):
            a(f"  v_add_u32 v{T2}, {4*m}, v{Gq}\n  v_xor_b32 v{T2}, v{T2}, v{T0}\n  v_lshl_add_u32 v{IA+m}, v{T2}, 4, v{T1}")
        a(f"  v_lshrrev_b32 v{T0}, 2, v{N}\n  v_lshl_add_u32 v{T0}, v{Gq}, 3, v{T0}\n  v_lshlrev_b32 v{T0}, 5, v{T0}")
        a(f"  v_and_b32 v{T1}, 3, v{N}\n  v_lshl_add_u32 v{TA}, v{T1}, 3, v{T0}")
        for i in range(4): a(f"  v_mov_b32 v{ONES+i}, 0x3f803f80")
        a("  s_barrier")
        T0, T1, T2 = 4, 5, 6
        self.stamp(1)
        if cfg.cut >= 3: a("  s_branch L_hdone")
        a(f"  s_cmp_eq_u32 s{S_WAVE}, 0\n  s_cbranch_scc1 L_h0b")
        n1 = self.lab("notw1")
        a(f"  s_cmp_eq_u32 s{S_WAVE}, 1\n  s_cbranch_scc0 {n1}")
        a(f"  s_waitcnt vmcnt(0)\n  v_add_u32 v9, 1, v9\n  s_lshl_b32 s62, s{S_IDX}, 7\n  s_add_u32 s62, s62, {FLAG_OFF}\n  s_mov_b64 exec, 1")
        a(f"  buffer_store_dword v9, v{ZERO}, {sr(R_WS)}, s62 offen sc1\n  s_mov_b64 exec, -1\n  s_branch L_hb1c\n{n1}:")
        a(f"  s_cmp_eq_u32 s{S_WAVE}, 3\n  s_cbranch_scc1 L_h3b")
        a(f"  s_cmp_eq_u32 s{S_WAVE}, 2\n  s_cbranch_scc0 L_hb1c")
        srd(a, R_C, P_WK, W_BYTES)
        a(f"  s_mul_i32 s60, s{S_IDX}, {16*768}")
        self.img_dma(R_C, H_WKI, 60, VS0, VS1)
        a("  s_branch L_hb1c")
        a("L_h3b:")
        for j in range(12):
            a(f"  ds_read_b128 {vr(QF+4*j)}, v{IA+(j&3)} offset:{H_QI + (j>>2)*4096}")
        for j in range(12):
            a(f"  s_waitcnt lgkmcnt({11-j})")
            for i in range(4):
                a(f"  v_dot2_f32_bf16 v{ST+i}, v{QF+4*j+i}, v{QF+4*j+i}, {'0' if j == 0 else 'v%d' % (ST+i)}")
                a(f"  v_dot2_f32_bf16 v{D3+i}, v{QF+4*j+i}, v{ONES}, {'0' if j == 0 else 'v%d' % (D3+i)}")
        self.pk("v_pk_add_f32", ST, ST, ST + 2); self.pk("v_pk_add_f32", D3, D3, D3 + 2)
        a(f"  v_add_f32 v{ST}, v{ST}, v{ST+1}\n  v_add_f32 v{ST+1}, v{D3}, v{D3+1}")
        a(f"  v_permlane16_swap_b32 v{ST}, v{ST+1}\n  v_add_f32 v{ST}, v{ST}, v{ST+1}")
        a(f"  v_mov_b32 v{ST+1}, v{ST}\n  v_permlane32_swap_b32 v{ST+1}, v{ST}\n  v_add_f32 v{ST}, v{ST}, v{ST+1}")
        a(f"  v_mul_f32 v{ST}, {f32(1.0/384.0)}, v{ST}")
        a(f"  v_mov_b32 v{ST+1}, v{ST}\n  v_mov_b32 v{ST+2}, v{ST}\n  v_permlane16_swap_b32 v{ST+1}, v{ST+2}")
        a(f"  v_fma_f32 v{ST+3}, -v{ST+2}, v{ST+2}, v{ST+1}\n  v_max_f32 v{ST+3}, 0, v{ST+3}\n  v_add_f32 v{ST+3}, {f32(1e-5)}, v{ST+3}\n  v_rsq_f32 v{ST+3}, v{ST+3}")
        a(f"  v_lshlrev_b32 v{T0}, 3, v{N}\n  v_add_u32 v{T0}, {H_QS}, v{T0}\n  ds_write_b64 v{T0}, {vr(ST+2,2)}\n  s_waitcnt lgkmcnt(0)")
        a("L_hb1c:\n  s_barrier")
        a("  s_branch L_hb2")
        a("L_h0b:")
        a(f"  v_add_u32 v15, 1, v15")
        self.flag_addr(T3)
        a(f"  v_readfirstlane_b32 s{S_NONCE}, v15\n  buffer_load_dword v9, v{T3}, {sr(R_WS)}, 0 offen sc1")
        for j in range(12):
            a(f"  ds_read_b128 {vr(QF+4*j)}, v{IA+(j&3)} offset:{H_QI + (j>>2)*4096}")
        def tr(j):
            a(f"  ds_read_b64_tr_b16 {vr(TR+4*j,2)}, v{TA} offset:{H_WQI + j*1024}")
            a(f"  ds_read_b64_tr_b16 {vr(TR+4*j+2,2)}, v{TA} offset:{H_WQI + j*1024 + 128}")
        a("  s_waitcnt lgkmcnt(3)")
        for j in range(6): tr(j)
        for j in range(12):
            left = min(12, j + 6) - j - 1
            a(f"  s_waitcnt lgkmcnt({2*left})")
            if j + 6 < 12: tr(j + 6)
            a(f"  v_mfma_f32_16x16x32_bf16 {vr(D1)}, {vr(TR+4*j)}, {vr(QF+4*j)}, {'0' if j == 0 else vr(D1)}")
            a(f"  v_mfma_f32_16x16x32_bf16 {vr(D2)}, {vr(TR+4*j)}, {vr(ONES)}, {'0' if j == 0 else vr(D2)}")
        a("  s_barrier")
        a(f"  v_lshlrev_b32 v{T0}, 3, v{N}\n  v_add_u32 v{T0}, {H_QS}, v{T0}\n  ds_read_b64 {vr(ST,2)}, v{T0}\n  s_waitcnt lgkmcnt(0)")
        for r in range(4): a(f"  v_fma_f32 v{D1+r}, -v{ST}, v{D2+r}, v{D1+r}")
        for r in range(4): a(f"  v_mul_f32 v{D1+r}, v{ST+1}, v{D1+r}")
        a(f"  v_cvt_pk_bf16_f32 v{D2}, v{D1}, v{D1+1}\n  v_cvt_pk_bf16_f32 v{D2+1}, v{D1+2}, v{D1+3}")
        a(f"  v_min_u32 v{D2}, -2, v{D2}\n  v_min_u32 v{D2+1}, -2, v{D2+1}\n  s_mov_b32 s62, {RQ_OFF}")
        a(f"  buffer_store_dwordx2 {vr(D2,2)}, v{FL}, {sr(R_WS)}, s62 offen sc1")
        self.stamp(2)
        hv = self.lab("haveflags")
        a(f"  s_waitcnt vmcnt(1)\n  v_cmp_ne_u32 vcc, s{S_NONCE}, v9\n  s_cbranch_vccz {hv}")
        self.wait_flags(9, T3)
        a(f"{hv}:\n  s_mov_b32 s62, {RQ_OFF}")
        if cfg.qdelay: a(f"  s_sleep {cfg.qdelay}")
        self.gather_frags(12, AF, L16, 62, T0, "q", sleep=cfg.qsleep)
        self.stamp(3)
        a("  s_barrier")
        for j in range(12):
            a(f"  ds_read_b128 {vr(WKF+4*j)}, v{IA+(j&3)} offset:{H_WKI + (j>>2)*4096}")
        for j in range(12):
            dd = D1 if j % 2 == 0 else D2
            a(f"  s_waitcnt lgkmcnt({11-j})")
            a(f"  v_mfma_f32_16x16x32_bf16 {vr(dd)}, {vr(WKF+4*j)}, {vr(AF+4*j)}, {'0' if j < 2 else vr(dd)}")
        sc = f32(384 ** -0.5 * LOG2E)
        for r in range(4): a(f"  v_add_f32 v{D1+r}, v{D1+r}, v{D2+r}")
        for r in range(4): a(f"  v_mul_f32 v{D1+r}, {sc}, v{D1+r}")
        a(f"  v_cvt_pk_bf16_f32 v{D2}, v{D1}, v{D1+1}\n  v_cvt_pk_bf16_f32 v{D2+1}, v{D1+2}, v{D1+3}")
        a(f"  v_min_u32 v{D2}, -2, v{D2}\n  v_min_u32 v{D2+1}, -2, v{D2+1}\n  s_mov_b32 s62, {RQK_OFF}")
        a(f"  buffer_store_dwordx2 {vr(D2,2)}, v{FL}, {sr(R_WS)}, s62 offen sc1")
        self.stamp(4)
        a("  s_branch L_hwvo")
        a("L_hb2:\n  s_waitcnt vmcnt(0)\n  s_barrier")
        a("L_hwvo:")
        if cfg.cut >= 2: a("  s_branch L_hdone")
        a(f"  s_cmp_eq_u32 s{S_WAVE}, 3\n  s_cbranch_scc0 L_hwv2")
        srd(a, R_E, P_WO, W_BYTES)
        for k in range(12):
            a(f"  s_mov_b32 m0, {H_WOI + k*1024}\n  s_mov_b32 s62, {k*32*768}\n  buffer_load_dwordx4 v{DS}, {sr(R_E)}, s62 offen{' nt' if cfg.hnt else ''} lds")
        a("L_hwv2:")
        a(f"  s_mul_i32 s60, s{S_WAVE}, {48*768}\n  s_mul_i32 s61, s{S_WAVE}, 12288\n  s_add_u32 s61, s61, {H_WV}")
        for th in range(3):
            for q4 in range(4): self.img_dma1(R_D, 0, 60, VS0, VS1, th, q4, ldsreg=61)
        a("  s_waitcnt vmcnt(12)\n  s_barrier")
        for j in range(12):
            a(f"  ds_read_b64_tr_b16 {vr(TR+4*j,2)}, v{TA} offset:{H_WOI + j*1024}")
            a(f"  ds_read_b64_tr_b16 {vr(TR+4*j+2,2)}, v{TA} offset:{H_WOI + j*1024 + 128}")
            if j == 6: a("  s_waitcnt lgkmcnt(0)")
        for m in range(4): a(f"  v_add_u32 v{IA+m}, s61, v{IA+m}")
        a(f"  v_mul_u32_u24 v{T0}, 784, v{N}\n  v_lshl_add_u32 v{T0}, v{Gq}, 3, v{T0}\n  s_mul_i32 s62, s{S_WAVE}, 96\n  s_add_u32 s62, s62, {H_WT}\n  v_add_u32 v{T3}, s62, v{T0}")
        for tau in range(3):
            if tau < 2: a(f"  s_add_u32 s60, s60, {16*768}")
            for th in range(3):
                a(f"  s_waitcnt vmcnt({8 if tau < 2 else 8 - 4*th})")
                for m in range(4): a(f"  ds_read_b128 {vr(WKF+4*m)}, v{IA+m} offset:{th*4096}")
                a("  s_waitcnt lgkmcnt(0)")
                if tau < 2:
                    for q4 in range(4): self.img_dma1(R_D, 0, 60, VS0, VS1, th, q4, ldsreg=61)
                for m in range(4):
                    j = 4 * th + m
                    a(f"  v_mfma_f32_16x16x32_bf16 {vr(D1)}, {vr(WKF+4*m)}, {vr(TR+4*j)}, {'0' if j == 0 else vr(D1)}")
            a(f"  v_cvt_pk_bf16_f32 v{D2}, v{D1}, v{D1+1}\n  v_cvt_pk_bf16_f32 v{D2+1}, v{D1+2}, v{D1+3}")
            a(f"  ds_write_b64 v{T3}, {vr(D2,2)} offset:{tau*32}")
        a("  s_waitcnt lgkmcnt(0)\n  s_barrier")
        self.stamp(5)
        if cfg.cut >= 1: a("  s_branch L_hdone")
        a(f"  s_cmp_lg_u32 s{S_WAVE}, 0\n  s_cbranch_scc1 L_hdone")
        a(f"  v_mul_u32_u24 v{T0}, 784, v{N}\n  v_lshl_add_u32 v{T0}, v{Gq}, 4, v{T0}\n  v_add_u32 v{T0}, {H_WT}, v{T0}")
        for j in range(12): a(f"  ds_read_b128 {vr(WKF+4*j)}, v{T0} offset:{j*64}")
        a(f"  v_mul_u32_u24 v{T3}, 768, v{N}\n  v_lshl_add_u32 v{T3}, v{Gq}, 3, v{T3}\n  s_lshl_b32 s61, s{S_IDX}, 5")
        a(f"  buffer_load_dwordx2 {vr(QF,2)}, v{T3}, {sr(R_A)}, s61 offen")
        a("  s_waitcnt vmcnt(0) lgkmcnt(0)")
        a(f"  v_lshlrev_b32 v{QF+4}, 16, v{QF}\n  v_and_b32 v{QF+5}, 0xffff0000, v{QF}\n  v_lshlrev_b32 v{QF+6}, 16, v{QF+1}\n  v_and_b32 v{QF+7}, 0xffff0000, v{QF+1}")
        a(f"  v_mul_u32_u24 v{T2}, 768, v{N}\n  v_lshl_add_u32 v{T2}, v{Gq}, 4, v{T2}\n  s_mov_b32 s62, {RCTX_OFF}")
        if cfg.c1sleep:
            lp, dn = self.lab("c1"), self.lab("c1d")
            a(f"  s_mov_b32 s{S_SPIN}, 0\n{lp}:\n  buffer_load_dword v{AF}, v{T2}, {sr(R_WS)}, s62 offen sc1")
            self.spin_guard(dn)
            if cfg.call: a(f"  s_waitcnt vmcnt(0)\n  v_cmp_eq_u32 vcc, -1, v{AF}\n  s_cbranch_vccz {dn}\n  s_sleep {cfg.c1sleep}\n  s_branch {lp}\n{dn}:\n  s_waitcnt vmcnt(0)")
            else: a(f"  s_waitcnt vmcnt(0)\n  v_cmp_ne_u32 vcc, -1, v{AF}\n  s_cbranch_vccnz {dn}\n  s_sleep {cfg.c1sleep}\n  s_branch {lp}\n{dn}:\n  s_waitcnt vmcnt(0)")
        if cfg.cdelay: a(f"  s_sleep {cfg.cdelay}")
        self.gather_frags(12, AF, T2, 62, T0, "c", rowmajor=True, sleep=cfg.csleep)
        self.stamp(6)
        for j in range(12):
            dd = D1 if j % 2 == 0 else D2
            c1 = vr(QF+4) if j == 0 else ("0" if j == 1 else vr(dd))
            a(f"  v_mfma_f32_16x16x32_bf16 {vr(dd)}, {vr(WKF+4*j)}, {vr(AF+4*j)}, {c1}")
        for h in (0, 2): self.pk("v_pk_add_f32", D1 + h, D1 + h, D2 + h)
        a(f"  v_cvt_pk_bf16_f32 v{D2}, v{D1}, v{D1+1}\n  v_cvt_pk_bf16_f32 v{D2+1}, v{D1+2}, v{D1+3}")
        a(f"  buffer_store_dwordx2 {vr(D2,2)}, v{T3}, {sr(R_F)}, s61 offen")
        nn = self.lab("nononce")
        a(f"  s_cmp_lg_u32 s{S_IDX}, 0\n  s_cbranch_scc1 {nn}")
        a(f"  buffer_store_dword v15, v{ZERO}, {sr(R_WS)}, 0 offen offset:{NONCE_OFF} sc1\n{nn}:")
        a("L_hdone:")
        self.stamp(9); self.stamp_flush((0, 0, 2, (0, 1, 3, 4, 5, 6)))
        a("  s_endpgm")

    def collector(self):
        a = self.a
        a("L_collect:     ; ---------------- collector")
        a(f"  s_cmp_lg_u32 s{S_WAVE}, 0\n  s_cbranch_scc1 L_end\n  s_waitcnt lgkmcnt(0)")
        srd(a, R_WS, P_WS, WS_BYTES)
        a(f"  v_mov_b32 v2, 0\n  buffer_load_dword v3, v2, {sr(R_WS)}, 0 offen offset:{NONCE_OFF} sc1")
        self.flag_addr(4)
        a(f"  s_waitcnt vmcnt(0)\n  v_add_u32 v3, 1, v3\n  v_readfirstlane_b32 s{S_NONCE}, v3")
        self.wait_flags(5, 4)
        a(f"  s_mov_b32 s62, {GO_OFF}\n  s_mov_b64 exec, 1\n  buffer_store_dword v3, v2, {sr(R_WS)}, s62 offen sc1")
        a("  s_endpgm")

    def build(self):
        a = self.a
        hdr = open("standalone__detection_seg_dino__vision.s.ref").read().split("\n")
        for line in hdr:
            if line.startswith("; @launch"): break
            a(line)
        a("; @" + f"launch grid=(256,1,1) block=(512,1,1) lds={LDS_BYTES}")
        for line in HEADER.strip("\n").split("\n"): a(("; " + line).rstrip())
        a('.amdgcn_target "amdgcn-amd-amdhsa--gfx950"\n.text')
        a(f".globl {KNAME}\n.p2align 8\n.type {KNAME},@function\n{KNAME}:")
        n0 = len(a.L)
        self.prologue(); self.streamer(); self.helper(); self.collector()
        a("L_end:\n  s_endpgm\nL_code_end:")
        body, added = hazard.fix(a.L[n0:])
        a.L = a.L[:n0] + body
        a('.section .rodata,"a"\n.p2align 6')
        a(f".amdhsa_kernel {KNAME}")
        a("  .amdhsa_next_free_vgpr 256\n  .amdhsa_next_free_sgpr 102\n  .amdhsa_accum_offset 256")
        a("  .amdhsa_group_segment_fixed_size 0\n  .amdhsa_kernarg_size 80\n  .amdhsa_user_sgpr_count 2")
        a("  .amdhsa_user_sgpr_kernarg_segment_ptr 1\n  .amdhsa_system_sgpr_workgroup_id_x 1")
        a("  .amdhsa_float_denorm_mode_32 3")
        a(".end_amdhsa_kernel")
        return a.text(), added

def generate(path, **kw):
    cfg = Cfg()
    for k, v in kw.items(): setattr(cfg, k, v)
    text, added = G(cfg).build()
    open(path, "w").write(text)
    return added

if __name__ == "__main__":
    path = sys.argv[1] if len(sys.argv) > 1 else "standalone__detection_seg_dino__vision.s"
    kw = {}
    for x in sys.argv[2:]:
        k, v = x.split("="); kw[k] = eval(v)
    print("nops added:", generate(path, **kw))
```

```python
import sys, struct
from asmlib import Asm
import hazard

KNAME = "standalone__detection_seg_dino__vision_kernel"

NH, NS, NPAIR = 24, 228, 9
F0_BYTES, F1_BYTES, W_BYTES, Q_BYTES = 50331648, 12582912, 294912, 12288
WS_BYTES = 268435456

NONCE_OFF = 0
HINT_OFF = 1024
RQ_OFF, RQK_OFF, RCTX_OFF = 4096, 20480, 36864
RQ2_OFF = 65536
GO_OFF = 53248
FLAG_OFF = 49152
LSE_OFF = 65536
PART_OFF = 131072
PART_STRIDE = NS * 128
STAMP_OFF = 8 << 20

SLOT = 12288
STG = 12 * SLOT
TOP = 13 * SLOT
STAT = TOP
STAT_S = 384
STAT2 = STG + 7168
NONCE_LDS = TOP + 3840
FLAG_LDS = TOP + 3844
QS_LDS = TOP + 3856
RED = STG + 5120
MX = STG + 6144
MXW = STG + 6656
RED2 = STG + 8192
LDS_BYTES = 163840
H_QI, H_WKI, H_WQI, H_WOI, H_WT, H_WV = 0, 12288, 24576, 36864, 49152, 65536
H_QS = 61952

LAG_LIMIT = 40.0
LOW_LIMIT = -60.0
KEYC = 0x9e3779b1
LOG2E = 1.4426950408889634
def f32(x): return "0x%08x" % struct.unpack("<I", struct.pack("<f", x))[0]

HEADER = """
Cross-attention of 16 queries over 65536 layer-normalised positions, one persistent launch of 256 workgroups.
  out = q + softmax(LN(q) wq wk^T LN(x)^T / sqrt(C)) LN(x) wv wo,  x = bf16(f0 + upsample(f1))
The weights are associated as Qk = LN(q) wq wk^T (16x384) and Wvo = wv wo, so x is read once and never projected.
LN(x) enters through its row statistics: logit = rstd (x.Qk - mean sum(Qk)), context = (sum P' x - sum P' mean) / L.
Roles by workgroup id (placement matters for speed only):
  helpers   (24: ids 0,8,..,184)  Q slice -> all helpers -> Qk slice -> all streamers; Wvo^T slice; final product
  streamers (228)                 nine pairs of 16-position tiles each; the first 128 also reduce one slice of the context
  collector (id 252)              folds the helpers' flags into one word
Streamer: waves 0..5 fuse f0+f1 into bf16 tiles in a ring of 12 LDS slots and accumulate row statistics, wave 6 fetches Qk.
  S^T = X Qk^T per tile, P' = 2^(logit - ref) rstd, context^T += X^T P'^T with the channels split over the eight waves.
  Softmax reference: 0 for the first eight tiles, then unchanged, while every logit stays inside [ref-60, ref+40]
  (lower bound: first eight tiles); any logit outside sends the workgroup to the path with exact running maxima.
  Partial results leave normalised (f16) with their log-sum-exp; the reducers weigh them with the exact global maximum.
Hand-offs through d_ws with sc1 stores and sc1 loads:
  nonce  = word 0 of d_ws at entry + 1, read by every role, written back by helper 0 after the last hand-off
  Q, Qk, context: words are set to 0xffffffff by their helper first (flag = nonce once acknowledged), data never equals that
  Q has a second copy written with plain stores: readers on the writer's XCD see it early, the sc1 copy serves any placement
  partial lines: every 16-byte unit carries the nonce (A units) or lse ^ (nonce + g*K) (B units, four must agree)
  Every poll loop is bounded.  s_sleep occurs only as back-off of a consumer that polls lines other workgroups are about
  to write: a line read too early has to be invalidated again, which delays its writer and the next read.
"""

class Cfg:
    nt = True
    stamp = False
    depth = 4
    hx0 = 0
    hnx = 1
    hint = True
    codepf = True
    nostream = False
    dbgstamp = False
    pfrows = 4
    cut = 0
    lite = False
    trig_a = 2
    trig_b = 4
    qsleep = 4
    c1sleep = 6
    lag = True
    prefuse = False
    late = False
    sched = 1
    streamonly = False
    rsleep = 0
    csleep = 0
    ext7 = 1
    ext8 = 1
    zref = True
    redsel = 0
    fdiag = False
    late8 = False
    dlate = 5
    xlate = 3
    pvfuse = False
    rdelay = 34
    rack = False
    cdelay = 16
    qdelay = 0
    kdelay = 0
    call = False
    noatom = False
    q2n = 4
    dualq = True
    hdiag = False
    gdiag = False
    rdiag = False
    bdiag_sb = 4
    bdiag = False
    selpoll = 2
    hnt = False

S_WAVE = 3
P_Q, P_F0, P_F1, P_WQ, P_WK, P_WV, P_WO, P_OUT, P_DBG, P_WS = 4, 6, 8, 10, 12, 14, 16, 18, 20, 22
R_A, R_B, R_WS, R_DBG, R_C, R_D, R_E, R_F = 24, 28, 32, 36, 40, 44, 48, 52
S_IDX, S_ONELO, S_ONEHI = 56, 57, 58
S_K, S_QBASE, S_LINK = 66, 67, 68
S_NONCE, S_SPIN = 70, 71
S_TI, S_TB, S_PB, S_BIAS, S_T, S_P0, S_SB, S_W0, S_NP, S_PVB, S_LAST = 72, 73, 74, 75, 76, 77, 78, 79, 80, 81, 59
S_SST = 48
S_STA, S_PAIR, S_POFF = 49, 52, 53
S_LINK2 = 54
S_LOW = 47
S_RHO = 79
S_QMASK = 50
SETA, SETB = 40, 44
STAMP0 = 82
SPIN_CAP = 200000
import os
if os.environ.get('CAP'): SPIN_CAP = int(os.environ['CAP'])

def srd(a, s, ptr, nbytes):
    a(f"  s_mov_b32 s{s}, s{ptr}\n  s_mov_b32 s{s+1}, s{ptr+1}\n  s_mov_b32 s{s+2}, {nbytes}\n  s_mov_b32 s{s+3}, 0x20000")
def vr(b, n=4): return f"v[{b}:{b+n-1}]"
def sr(b, n=4): return f"s[{b}:{b+n-1}]"

class G:
    def __init__(self, cfg):
        self.cfg = cfg; self.a = Asm(); self.uid = 0
        self.dsadd = 'ds_write_b32' if cfg.noatom else 'ds_add_f32'
    def lab(self, name):
        self.uid += 1
        return f"L_{name}_{self.uid}"
    def stamp(self, i):
        if self.cfg.fdiag: return
        if self.cfg.lite and i not in (0, 9): return
        if self.cfg.stamp and not self.cfg.bdiag:
            self.a(f"  s_memrealtime s[{STAMP0+2*i}:{STAMP0+2*i+1}]\n  s_waitcnt lgkmcnt(0)")
    def fstamp(self, i):
        if self.cfg.fdiag: self.a(f"  s_memtime s[{STAMP0+2*i}:{STAMP0+2*i+1}]\n  s_waitcnt lgkmcnt(0)")
    def cstamp(self, i):
        if self.cfg.bdiag:
            l = self.lab("cs")
            self.a(f"  s_cmp_lg_u32 s{S_SB}, {self.cfg.bdiag_sb}\n  s_cbranch_scc1 {l}\n  s_memtime s[{STAMP0+2*i}:{STAMP0+2*i+1}]\n  s_waitcnt lgkmcnt(0)\n{l}:")
    def stamp_init(self):
        if self.cfg.stamp:
            for i in range(20): self.a(f"  s_mov_b32 s{STAMP0+i}, 0")
    def stamp_flush(self, dbg=None):
        if not self.cfg.stamp: return
        a = self.a
        if self.cfg.dbgstamp and dbg:
            who, wave, first, which = dbg
            sk = self.lab("nodbg")
            a(f"  s_cmp_lg_u32 s{S_IDX}, {who}\n  s_cbranch_scc1 {sk}\n  s_cmp_lg_u32 s{S_WAVE}, {wave}\n  s_cbranch_scc1 {sk}")
            srd(a, R_DBG, P_DBG, 256)
            a("  v_mov_b32 v1, 0")
            for i, st in enumerate(which):
                a(f"  v_mov_b32 v2, s{STAMP0+2*st}\n  buffer_store_dword v2, v1, {sr(R_DBG)}, 0 offen offset:{4*(first+i)}\n  s_nop 0")
            a(f"{sk}:")
        if self.cfg.dbgstamp: return
        if self.cfg.lite:
            if dbg[0] != 0: return
            sk = self.lab("nolite")
            a(f"  s_cmp_lg_u32 s{S_WAVE}, 0\n  s_cbranch_scc1 {sk}")
            a("  s_lshl_b32 s60, s2, 3\n  s_lshl_b32 s60, s60, 6")
            a(f"  s_add_u32 s60, s60, {STAMP_OFF}\n  v_mov_b32 v1, 0\n  v_mov_b32 v2, s{STAMP0}\n  v_mov_b32 v3, s{STAMP0+18}")
            a(f"  buffer_store_dword v2, v1, {sr(R_WS)}, s60 offen\n  buffer_store_dword v3, v1, {sr(R_WS)}, s60 offen offset:36\n{sk}:")
            return
        a("  s_lshl_b32 s60, s2, 3\n  s_add_u32 s60, s60, s3\n  s_lshl_b32 s60, s60, 6")
        a(f"  s_add_u32 s60, s60, {STAMP_OFF}\n  v_mov_b32 v1, 0")
        for i in range(10):
            a(f"  v_mov_b32 v2, s{STAMP0+2*i}\n  buffer_store_dword v2, v1, {sr(R_WS)}, s60 offen offset:{4*i}\n  s_nop 0")

    def allred_g(self, x, t, op):
        a = self.a
        a(f"  v_mov_b32 v{t}, v{x}\n  v_permlane16_swap_b32 v{t}, v{x}\n  {op} v{x}, v{t}, v{x}")
        a(f"  v_mov_b32 v{t}, v{x}\n  v_permlane32_swap_b32 v{t}, v{x}\n  {op} v{x}, v{t}, v{x}")
    def valid_check(self, base, n, t, retry):
        a = self.a
        a(f"  v_max3_u32 v{t}, v{base}, v{base+1}, v{base+2}")
        h = n // 2
        a(f"  v_max3_u32 v{t+1}, v{base+h}, v{base+h+1}, v{base+h+2}")
        i, k = 3, h + 3
        while i < h or k < n:
            if i + 1 < h: a(f"  v_max3_u32 v{t}, v{t}, v{base+i}, v{base+i+1}"); i += 2
            elif i < h: a(f"  v_max_u32 v{t}, v{t}, v{base+i}"); i += 1
            if k + 1 < n: a(f"  v_max3_u32 v{t+1}, v{t+1}, v{base+k}, v{base+k+1}"); k += 2
            elif k < n: a(f"  v_max_u32 v{t+1}, v{t+1}, v{base+k}"); k += 1
        a(f"  v_max_u32 v{t}, v{t}, v{t+1}\n  v_cmp_eq_u32 vcc, -1, v{t}\n  s_cbranch_vccnz {retry}")
    def spin_guard(self, done):
        self.a(f"  s_add_u32 s{S_SPIN}, s{S_SPIN}, 1\n  s_cmp_gt_u32 s{S_SPIN}, {SPIN_CAP}\n  s_cbranch_scc1 {done}")
    def flag_addr(self, va):
        self.a(f"  v_min_u32 v{va}, {NH-1}, v0\n  v_lshlrev_b32 v{va}, 7, v{va}\n  v_add_u32 v{va}, {FLAG_OFF}, v{va}")
    def wait_flags(self, vd, va, first_issued=False):
        a = self.a
        lp, ck, dn = self.lab("flg"), self.lab("flgc"), self.lab("flgd")
        a(f"  s_mov_b32 s{S_SPIN}, 0")
        if first_issued: a(f"  s_branch {ck}")
        a(f"{lp}:\n  buffer_load_dword v{vd}, v{va}, {sr(R_WS)}, 0 offen sc1")
        self.spin_guard(dn)
        a(f"{ck}:\n  s_waitcnt vmcnt(0)\n  v_cmp_ne_u32 vcc, s{S_NONCE}, v{vd}\n  s_cbranch_vccnz {lp}")
        a(f"{dn}:\n  s_waitcnt vmcnt(0)")
    def gather_frags(self, nfr, dst, vaddr, off0, t, name, rowmajor=False, sleep=0):
        a = self.a
        lp, dn, l0 = self.lab(name), self.lab(name + "d"), self.lab(name + "0")
        a(f"  s_add_u32 s63, s{off0}, 4096\n  s_add_u32 s64, s{off0}, 8192\n  s_mov_b32 s{S_SPIN}, 0")
        if sleep: a(f"  s_branch {l0}\n{lp}:\n  s_sleep {sleep}\n{l0}:")
        else: a(f"{lp}:")
        for j in range(nfr):
            so = (f"s{off0}", "s63", "s64")[j >> 2]
            if rowmajor: a(f"  buffer_load_dwordx4 {vr(dst+4*j)}, v{vaddr}, {sr(R_WS)}, s{off0} offen offset:{j*64} sc1")
            else: a(f"  buffer_load_dwordx4 {vr(dst+4*j)}, v{vaddr}, {sr(R_WS)}, {so} offen offset:{(j&3)*1024} sc1")
        self.spin_guard(dn)
        a("  s_waitcnt vmcnt(0)")
        self.valid_check(dst, 4 * nfr, t, lp)
        a(f"{dn}:\n  s_waitcnt vmcnt(0)")

    def prologue(self):
        a = self.a; cfg = self.cfg
        a("  s_cmp_ge_u32 s2, 256\n  s_cbranch_scc1 L_end")
        a("  s_load_dwordx16 s[4:19], s[0:1], 0\n  s_load_dwordx4 s[20:23], s[0:1], 64")
        if cfg.codepf:
            l = self.lab("pc")
            a(f"  s_cmp_ge_u32 s2, {8*cfg.pfrows}\n  s_cbranch_scc1 L_nopf")
            a(f"  s_getpc_b64 s[60:61]\n{l}:\n  s_sub_u32 s60, s60, {l}-{KNAME}\n  s_subb_u32 s61, s61, 0")
            a(f"  s_bfe_u32 s62, s2, 0x20003\n  s_lshl_b32 s62, s62, 13\n  v_lshl_add_u32 v246, v0, 4, s62")
            a(f"  v_min_u32 v246, L_code_end-{KNAME}-16, v246\n  global_load_dwordx4 v[168:171], v246, s[60:61]")
            a("L_nopf:")
        a("  v_lshrrev_b32 v1, 6, v0\n  v_and_b32 v0, 63, v0")
        a(f"  v_readfirstlane_b32 s{S_WAVE}, v1")
        a(f"  s_mov_b32 s{S_ONELO}, 0x00003f80\n  s_mov_b32 s{S_ONEHI}, 0x3f800000")
        self.stamp_init(); self.stamp(0)
        rows = NH // cfg.hnx
        a(f"  s_and_b32 s60, s2, 7\n  s_lshr_b32 s61, s2, 3\n  s_sub_u32 s62, s60, {cfg.hx0}")
        a(f"  s_cmp_lt_u32 s61, {rows}\n  s_cbranch_scc0 L_late")
        a(f"  s_cmp_lt_u32 s62, {cfg.hnx}\n  s_cbranch_scc0 L_early")
        a(f"  s_mul_i32 s{S_IDX}, s61, {cfg.hnx}\n  s_add_u32 s{S_IDX}, s{S_IDX}, s62\n  s_branch L_helper")
        a("L_early:")
        a(f"  s_cmp_lt_u32 s60, {cfg.hx0}\n  s_cselect_b32 s62, 0, {cfg.hnx}\n  s_sub_u32 s62, s60, s62")
        a(f"  s_mul_i32 s{S_IDX}, s61, {8-cfg.hnx}\n  s_add_u32 s{S_IDX}, s{S_IDX}, s62\n  s_branch L_stream")
        a(f"L_late:\n  s_sub_u32 s{S_IDX}, s2, {NH}")
        a(f"  s_cmp_eq_u32 s{S_IDX}, {NS}\n  s_cbranch_scc1 L_collect")
        a(f"  s_cmp_ge_u32 s{S_IDX}, {NS}\n  s_cbranch_scc1 L_end")
        a("L_stream:      ; ---------------- streamers")
        if cfg.nostream: a("  s_branch L_end")

    def code_prefetch(self, vt, vd):
        if not self.cfg.codepf: return
        a = self.a
        l = self.lab("pc")
        a(f"  s_getpc_b64 s[60:61]\n{l}:")
        a(f"  s_sub_u32 s60, s60, {l}-{KNAME}\n  s_subb_u32 s61, s61, 0")
        a(f"  s_lshr_b32 s62, s2, 3\n  s_lshl_b32 s62, s62, 10\n  v_lshl_add_u32 v{vt}, v0, 4, s62")
        a(f"  v_min_u32 v{vt}, L_code_end-{KNAME}-16, v{vt}")
        a(f"  global_load_dwordx4 {vr(vd)}, v{vt}, s[60:61]")

    V_OFF1, V_OFF0, V_SA = 2, 3, 255
    V_WA = (4, 5, 253, 254)
    V_RA, V_PA = 6, 10
    V_PADDR, V_MXW, V_MXR = 13, 14, 15
    V_ST = 128
    V_BUF = (16, 36, 56)
    V_PU, V_TMP, V_OUT = 144, 152, 160
    V_LT, V_AT = 76, 78
    V_QK, V_A, V_ACC = 80, 128, 176
    V_S, V_SUM, V_SQ4, V_SQ, V_MU, V_RS, V_LG = 188, 192, 196, 200, 204, 208, 212
    V_ONES = 216
    V_M, V_AL, V_L2, V_AM2, V_QS, V_CINV, V_CEPS, V_BIAS = 220, 222, 224, 226, 228, 230, 232, 234
    V_T0, V_T1, V_T2, V_ONEF = 236, 237, 238, 239
    V_MXV, V_TA, V_L16 = 240, 248, 252
    V_PUB = 196
    V_REDW = 198
    V_STR = 1

    def task_bases(self, st, kconst, kreg=True):
        a = self.a
        if kreg: a(f"  s_add_u32 s62, s{S_K}, {kconst}")
        else: a(f"  s_mov_b32 s62, {kconst}")
        a(f"  s_lshl_b32 s63, s62, 1\n  s_add_u32 s63, s63, s{S_QBASE}")
        a(f"  s_mul_i32 s{st}, s63, 3072\n  s_lshr_b32 s64, s63, 5\n  s_mul_i32 s64, s64, 393216")
        a(f"  s_and_b32 s65, s63, 31\n  s_mul_i32 s65, s65, 6144\n  s_add_u32 s{st+1}, s64, s65")
        a(f"  s_cmp_gt_u32 s62, {NPAIR-1}\n  s_cselect_b32 s{st}, 0x80000000, s{st}\n  s_cselect_b32 s{st+1}, 0x80000000, s{st+1}")
        a(f"  s_add_u32 s{st+2}, s{st+1}, 196608")
    def issue_piece(self, st, par, i):
        a = self.a
        nt = " nt" if self.cfg.nt else ""
        b = self.V_BUF[par] + 4 * i
        if i == 0:
            a(f"  buffer_load_dwordx4 {vr(b)}, v{self.V_OFF1}, {sr(R_B)}, s{st} offen{nt}")
        else:
            t = i - 1
            off = " offset:768" if t & 1 else ""
            a(f"  buffer_load_dwordx4 {vr(b)}, v{self.V_OFF0}, {sr(R_A)}, s{st+1+(t>>1)} offen{off}{nt}")

    def fuse_sub(self, par, d, name, mode="roll"):
        a = self.a
        hold, roll = mode == "hold", mode == "roll"
        b = self.V_BUF[par]; u = self.V_PU; t8 = self.V_TMP
        SS, SQ, R, U = self.V_ST, self.V_ST + 4, self.V_ST + 8, self.V_ST + 12
        a0 = d // 5
        a(f"{name}:")
        if roll:
            a(f"  s_mov_b32 s{SETA}, s{SETB}\n  s_mov_b32 s{SETA+1}, s{SETB+1}\n  s_mov_b32 s{SETA+2}, s{SETB+2}")
            self.task_bases(SETB, a0 + 1)
        def nxt(i):
            if not roll: return
            aa, pi = (i + d) // 5, (i + d) % 5
            self.issue_piece(SETA if aa == a0 else SETB, par ^ (aa & 1), pi)
        def dpp(dst, src, ctrl, bank):
            a(f"  v_add_f32_dpp v{dst}, v{src}, v{src} {ctrl} row_mask:0xf bank_mask:{bank:#x}")
        a(f"  s_waitcnt vmcnt({d-1})")
        for i in range(4):
            a(f"  v_lshlrev_b32 v{u+2*i}, 16, v{b+i}\n  v_and_b32 v{u+2*i+1}, 0xffff0000, v{b+i}")
        nxt(0)
        for t in range(4):
            c = b + 4 + 4 * t; o = c if hold else self.V_OUT + 4 * (t & 1)
            a(f"  s_waitcnt vmcnt({d-1 if roll else d-2-t})")
            for i in range(4):
                a(f"  v_dot2_f32_bf16 v{t8+2*i}, v{c+i}, s{S_ONELO}, v{u+2*i}")
                a(f"  v_dot2_f32_bf16 v{t8+2*i+1}, v{c+i}, s{S_ONEHI}, v{u+2*i+1}")
            nxt(t + 1)
            for i in range(4):
                a(f"  v_cvt_pk_bf16_f32 v{o+i}, v{t8+2*i}, v{t8+2*i+1}")
            if not hold: a(f"  ds_write_b128 v{self.V_WA[t]}, {vr(o)} offset:{t*768}")
            if t > 0: dpp(R + t - 1, SS + t - 1, "row_ror:8", 0x3)
            for i in range(4):
                a(f"  v_dot2_f32_bf16 v{SS+t}, v{o+i}, v{self.V_ONES}, {'0' if i == 0 else 'v%d' % (SS+t)}")
                a(f"  v_dot2_f32_bf16 v{SQ+t}, v{o+i}, v{o+i}, {'0' if i == 0 else 'v%d' % (SQ+t)}")
            if t > 0: dpp(R + t - 1, SQ + t - 1, "row_ror:8", 0xc)
        WA = self.V_WA
        if hold: a("  s_mov_b32 s62, 0")
        else: a(f"  s_mov_b32 s62, 24576\n  s_cmp_eq_u32 s{S_K}, 5\n  s_cselect_b32 s62, {(-5*24576) & 0xffffffff:#x}, s62")
        dpp(U, R, "row_half_mirror", 0x5)
        dpp(R + 3, SS + 3, "row_ror:8", 0x3)
        a(f"  v_add_u32 v{WA[0]}, s62, v{WA[0]}")
        dpp(U, R + 1, "row_half_mirror", 0xa)
        dpp(R + 3, SQ + 3, "row_ror:8", 0xc)
        dpp(U + 1, R + 2, "row_half_mirror", 0x5)
        a(f"  v_add_u32 v{WA[1]}, s62, v{WA[1]}")
        dpp(U, U, "quad_perm:[1,0,3,2]", 0xf)
        dpp(U + 1, R + 3, "row_half_mirror", 0xa)
        a(f"  v_add_u32 v{WA[2]}, s62, v{WA[2]}")
        dpp(U, U, "quad_perm:[2,3,0,1]", 0xf)
        dpp(U + 1, U + 1, "quad_perm:[1,0,3,2]", 0xf)
        a(f"  v_add_u32 v{WA[3]}, s62, v{WA[3]}")
        if roll: a(f"  s_cmp_eq_u32 s{S_K}, 5\n  s_cselect_b32 s62, {(-5*2*STAT_S) & 0xffffffff:#x}, {2*STAT_S}" .replace(f", {2*STAT_S}", ", s63") .replace("  s_cmp_eq", f"  s_mov_b32 s63, {2*STAT_S}\n  s_cmp_eq"))
        else: a(f"  s_mov_b32 s62, {2*STAT_S}")
        dpp(U + 1, U + 1, "quad_perm:[2,3,0,1]", 0xf)
        if roll:
            sk = self.lab("keepst")
            a(f"  s_cbranch_scc1 {sk}")
        a(f"  s_mov_b64 exec, s[{S_QMASK}:{S_QMASK+1}]\n  ds_write_b32 v{self.V_SA}, v{U}\n  ds_write_b32 v{self.V_SA}, v{U+1} offset:8\n  s_mov_b64 exec, -1")
        if roll: a(f"{sk}:")
        a(f"  s_add_u32 s{S_K}, s{S_K}, 1\n  v_add_u32 v{self.V_SA}, s62, v{self.V_SA}")
        a(f"  s_setpc_b64 s[{S_LINK}:{S_LINK+1}]")

    def stream_consts(self):
        a = self.a
        a("  v_and_b32 v240, 15, v0\n  v_lshrrev_b32 v241, 4, v0")
        a("  v_and_b32 v242, 7, v240\n  v_lshlrev_b32 v242, 1, v242\n  v_mul_u32_u24 v243, 768, v240")
        for m in range(4):
            a(f"  v_add_u32 v244, {4*m}, v241\n  v_xor_b32 v244, v244, v242\n  v_lshl_add_u32 v{self.V_RA+m}, v244, 4, v243")
        a("  v_lshrrev_b32 v242, 2, v240\n  v_lshl_add_u32 v242, v241, 2, v242\n  v_mul_u32_u24 v243, 768, v242")
        a("  v_and_b32 v242, 7, v242\n  v_lshlrev_b32 v242, 1, v242")
        a("  v_and_b32 v244, 3, v240\n  v_lshrrev_b32 v245, 1, v244\n  v_and_b32 v244, 1, v244\n  v_lshl_add_u32 v243, v244, 3, v243")
        for tau in range(3):
            a(f"  s_mul_i32 s62, s{S_WAVE}, 3\n  s_add_u32 s62, s62, {tau}")
            a("  s_lshl_b32 s63, s62, 1\n  s_and_b32 s63, s63, 14\n  s_lshr_b32 s62, s62, 3\n  s_lshl_b32 s62, s62, 8")
            a(f"  v_xor_b32 v244, s63, v242\n  v_or_b32 v244, v244, v245\n  v_lshl_add_u32 v244, v244, 4, v243\n  v_add_u32 v{self.V_PA+tau}, s62, v244")
        a(f"  v_lshlrev_b32 v{self.V_L16}, 4, v0\n  v_add_u32 v{self.V_PADDR}, {STG}, v{self.V_L16}\n  v_lshlrev_b32 v{self.V_STR}, 4, v241")
        a(f"  v_lshlrev_b32 v244, 5, v240\n  v_add_u32 v{self.V_MXR}, {MX}, v244")
        a(f"  s_lshl_b32 s62, s{S_WAVE}, 2\n  v_add_u32 v{self.V_MXW}, s62, v{self.V_MXR}")
        for i in range(4): a(f"  v_mov_b32 v{self.V_ONES+i}, 0x3f803f80")
        a(f"  v_mov_b32 v{self.V_ONEF}, 1.0\n  v_mov_b32 v{self.V_CINV}, {f32(1/384)}\n  v_mov_b32 v{self.V_CEPS}, {f32(1e-5)}")
        for i in range(12): a(f"  v_mov_b32 v{self.V_ACC+i}, 0")
        a(f"  v_mov_b32 v{self.V_M}, 0xff800000")
        for r in (self.V_L2, self.V_L2+1, self.V_AM2, self.V_AM2+1, self.V_M+1, self.V_AL+1, self.V_QS+1, self.V_CINV+1, self.V_CEPS+1, self.V_BIAS+1):
            a(f"  v_mov_b32 v{r}, 0")

    def pk(self, op, d, x, y, z=None, bc=(), neg=()):
        n = 2 if z is None else 3
        ops = [x, y] + ([z] if z is not None else [])
        s = f"  {op} {vr(d,2)}, " + ", ".join(vr(o, 2) for o in ops)
        if bc: s += " op_sel_hi:[" + ",".join("0" if i in bc else "1" for i in range(n)) + "]"
        if neg:
            m = "[" + ",".join("1" if i in neg else "0" for i in range(n)) + "]"
            s += f" neg_lo:{m} neg_hi:{m}"
        self.a(s)

    def red_write(self, l, am, t):
        a = self.a
        a(f"  v_add_f32 v{t}, v{l}, v{l+1}\n  v_add_f32 v{t+1}, v{am}, v{am+1}")
        a(f"  v_permlane16_swap_b32 v{t}, v{t+1}\n  v_add_f32 v{t}, v{t}, v{t+1}")
        a(f"  v_mov_b32 v{t+1}, v{t}\n  v_permlane32_swap_b32 v{t+1}, v{t}\n  v_add_f32 v{t}, v{t}, v{t+1}")
        a(f"  ds_write_b32 v{self.V_REDW}, v{t}")

    def sphase_sub(self):
        a = self.a
        A, QK = self.V_A, self.V_QK
        S, SUM, SQ, MU, RS, LG, T1, T2 = self.V_S, self.V_SUM, self.V_SQ, self.V_MU, self.V_RS, self.V_LG, self.V_T1, self.V_T2
        a("L_sphase:")
        for m in range(4): a(f"  v_add_u32 v{self.V_TA+m}, s{S_TB}, v{self.V_RA+m}")
        a(f"  v_add_u32 v{T1}, s{S_STA}, v{self.V_STR}")
        X = self.V_MXV
        for reg, off in ((SUM, 0), (SQ, 64), (LG, 128), (RS, 192), (MU, 256), (X, 320)):
            a(f"  ds_read_b128 {vr(reg)}, v{T1} offset:{off}")
        for j in range(9): a(f"  ds_read_b128 {vr(A+4*j)}, v{self.V_TA+(j&3)} offset:{(j>>2)*256}")
        a(f"  s_cmp_lt_u32 s{S_PAIR}, 2048\n  s_cselect_b32 s{S_BIAS}, 0, {f32(-1e30)}")
        a(f"  v_mov_b32 v{self.V_BIAS}, s{S_BIAS}\n  v_add_u32 v{T2}, s{S_POFF}, v{self.V_PADDR}")
        a("  s_waitcnt lgkmcnt(9)")
        for j in range(9, 12): a(f"  ds_read_b128 {vr(A+4*j)}, v{self.V_TA+(j&3)} offset:{(j>>2)*256}")
        stat = []
        for h in (0, 2): stat.append(lambda h=h: self.pk("v_pk_add_f32", SUM + h, SUM + h, LG + h))
        for h in (0, 2): stat.append(lambda h=h: self.pk("v_pk_add_f32", SQ + h, SQ + h, RS + h))
        for h in (0, 2): stat.append(lambda h=h: self.pk("v_pk_add_f32", SUM + h, SUM + h, MU + h))
        for h in (0, 2): stat.append(lambda h=h: self.pk("v_pk_add_f32", SQ + h, SQ + h, X + h))
        for h in (0, 2): stat.append(lambda h=h: self.pk("v_pk_mul_f32", MU + h, SUM + h, self.V_CINV, bc=(1,)))
        for h in (0, 2): stat.append(lambda h=h: self.pk("v_pk_fma_f32", RS + h, SQ + h, self.V_CINV, self.V_CEPS, bc=(1, 2)))
        for h in (0, 2): stat.append(lambda h=h: self.pk("v_pk_fma_f32", RS + h, MU + h, MU + h, RS + h, neg=(0,)))
        for r in range(4): stat.append(lambda r=r: a(f"  v_max_f32 v{RS+r}, v{self.V_CEPS}, v{RS+r}"))
        for r in range(4): stat.append(lambda r=r: a(f"  v_rsq_f32 v{RS+r}, v{RS+r}"))
        for h in (0, 2): stat.append(lambda h=h: self.pk("v_pk_mul_f32", SUM + h, MU + h, self.V_QS, bc=(1,)))
        for j in range(12):
            a(f"  s_waitcnt lgkmcnt({11-j})")
            a(f"  v_mfma_f32_16x16x32_bf16 {vr(S)}, {vr(A+4*j)}, {vr(QK+4*j)}, {'0' if j == 0 else vr(S)}")
            for _ in range(2):
                if stat: stat.pop(0)()
        for h in (0, 2): self.pk("v_pk_add_f32", LG + h, S + h, SUM + h, neg=(1,))
        for h in (0, 2): self.pk("v_pk_fma_f32", LG + h, LG + h, RS + h, self.V_BIAS, bc=(2,))
        a(f"  s_setpc_b64 s[{S_LINK2}:{S_LINK2+1}]")

    def sp_sub(self):
        a = self.a
        MU, RS, LG, M, T0, T1, T2, MXV = self.V_MU, self.V_RS, self.V_LG, self.V_M, self.V_T0, self.V_T1, self.V_T2, self.V_MXV
        PT, LT, AT = MXV, self.V_LT, self.V_AT
        a("L_sp:")
        a(f"  s_call_b64 s[{S_LINK2}:{S_LINK2+1}], L_sphase")
        for h in (0, 2): self.pk("v_pk_add_f32", PT + h, LG + h, M, bc=(1,), neg=(1,))
        a(f"  v_max3_f32 v{T0}, v{PT}, v{PT+1}, v{PT+2}\n  v_max_f32 v{T0}, v{T0}, v{PT+3}")
        for r in range(4): a(f"  v_exp_f32 v{PT+r}, v{PT+r}")
        a(f"  v_cmp_lt_f32 vcc, {f32(LAG_LIMIT)}, v{T0}\n  v_cmp_gt_f32 s[60:61], s{S_LOW}, v{T0}\n  s_or_b64 vcc, vcc, s[60:61]")
        self.pk("v_pk_add_f32", LT, LT, PT); self.pk("v_pk_add_f32", LT, LT, PT + 2)
        for h in (0, 2): self.pk("v_pk_mul_f32", PT + h, PT + h, RS + h)
        a(f"  v_cvt_pk_bf16_f32 v{MXV+4}, v{PT}, v{PT+1}\n  v_cvt_pk_bf16_f32 v{MXV+5}, v{PT+2}, v{PT+3}")
        a(f"  ds_write_b64 v{T2}, {vr(MXV+4,2)}")
        for h in (0, 2): self.pk("v_pk_fma_f32", AT, PT + h, MU + h, AT)
        a(f"  s_cbranch_vccz L_sp_ret\n  v_mov_b32 v{T0}, {FLAG_LDS}\n  v_mov_b32 v{T1}, 1\n  ds_write_b32 v{T0}, v{T1}")
        a(f"L_sp_ret:\n  s_setpc_b64 s[{S_LINK}:{S_LINK+1}]")

    def batch_sub(self):
        a = self.a
        A = self.V_A
        MU, RS, LG = self.V_MU, self.V_RS, self.V_LG
        M, AL, L2, AM2, T0, T1, T2, MXV = self.V_M, self.V_AL, self.V_L2, self.V_AM2, self.V_T0, self.V_T1, self.V_T2, self.V_MXV
        PT = MXV
        a("L_batch:")
        self.cstamp(0)
        a(f"  s_sub_u32 s{S_TI}, s{S_WAVE}, s{S_W0}\n  s_cmp_ge_u32 s{S_TI}, s{S_T}\n  s_cbranch_scc1 L_b_bar2")
        a(f"  s_add_u32 s63, s{S_TI}, s{S_SB}\n  s_mul_i32 s{S_TB}, s63, {SLOT}")
        a(f"  s_mul_i32 s62, s63, {STAT_S}\n  s_add_u32 s{S_STA}, s62, {STAT}\n  s_add_u32 s62, s62, {STAT2 - 10*STAT_S}\n  s_cmp_ge_u32 s63, 10\n  s_cselect_b32 s{S_STA}, s62, s{S_STA}")
        a(f"  s_lshr_b32 s62, s{S_TI}, 1\n  s_add_u32 s{S_PAIR}, s62, s{S_PB}")
        a(f"  s_lshl_b32 s62, s62, 10\n  s_and_b32 s63, s{S_TI}, 1\n  s_lshl_b32 s63, s63, 3\n  s_add_u32 s{S_POFF}, s62, s63")
        a(f"  s_call_b64 s[{S_LINK2}:{S_LINK2+1}], L_sphase")
        self.cstamp(1)
        a(f"  v_max3_f32 v{T0}, v{LG}, v{LG+1}, v{LG+2}\n  v_max_f32 v{T0}, v{T0}, v{LG+3}")
        self.allred_g(T0, T1, "v_max_f32")
        a(f"  ds_write_b32 v{self.V_MXW}, v{T0}")
        a("L_b_bar2:\n  s_waitcnt lgkmcnt(0)")
        self.cstamp(2)
        a("  s_barrier")
        self.cstamp(3)
        a(f"  ds_read_b128 {vr(MXV)}, v{self.V_MXR}\n  ds_read_b128 {vr(MXV+4)}, v{self.V_MXR} offset:16")
        a(f"  v_mov_b32 v{T0}, {FLAG_LDS}\n  v_mov_b32 v{T1}, 0\n  ds_write_b32 v{T0}, v{T1}")
        a("  s_waitcnt lgkmcnt(1)")
        a(f"  v_max3_f32 v{T0}, v{MXV}, v{MXV+1}, v{MXV+2}\n  v_max3_f32 v{T1}, v{MXV+3}, v{MXV+4}, v{MXV+5}")
        a(f"  v_max3_f32 v{T0}, v{T0}, v{MXV+6}, v{MXV+7}\n  v_max3_f32 v{T0}, v{T0}, v{T1}, v{M}")
        a(f"  v_sub_f32 v{AL}, v{M}, v{T0}\n  v_mov_b32 v{M}, v{T0}\n  v_exp_f32 v{AL}, v{AL}")
        self.cstamp(4)
        a(f"  s_cmp_ge_u32 s{S_TI}, s{S_T}\n  s_cbranch_scc1 L_b_nop")
        for h in (0, 2): self.pk("v_pk_add_f32", PT + h, LG + h, M, bc=(1,), neg=(1,))
        for r in range(4): a(f"  v_exp_f32 v{PT+r}, v{PT+r}")
        self.pk("v_pk_mul_f32", L2, L2, AL, bc=(1,)); self.pk("v_pk_mul_f32", AM2, AM2, AL, bc=(1,))
        self.pk("v_pk_add_f32", L2, L2, PT); self.pk("v_pk_add_f32", L2, L2, PT + 2)
        for h in (0, 2): self.pk("v_pk_mul_f32", PT + h, PT + h, RS + h)
        a(f"  v_cvt_pk_bf16_f32 v{MXV+4}, v{PT}, v{PT+1}\n  v_cvt_pk_bf16_f32 v{MXV+5}, v{PT+2}, v{PT+3}")
        a(f"  ds_write_b64 v{T2}, {vr(MXV+4,2)}")
        for h in (0, 2): self.pk("v_pk_fma_f32", AM2, PT + h, MU + h, AM2)
        a("  s_branch L_b_acc")
        a("L_b_nop:")
        self.pk("v_pk_mul_f32", L2, L2, AL, bc=(1,)); self.pk("v_pk_mul_f32", AM2, AM2, AL, bc=(1,))
        a("L_b_acc:")
        for i in range(0, 12, 2): self.pk("v_pk_mul_f32", self.V_ACC + i, self.V_ACC + i, AL, bc=(1,))
        a(f"  s_cmp_eq_u32 s{S_LAST}, 0\n  s_cbranch_scc1 L_b_bar3")
        self.red_write(L2, AM2, MXV + 6)
        a("L_b_bar3:\n  s_waitcnt lgkmcnt(0)")
        self.cstamp(5)
        a("  s_barrier")
        self.cstamp(6)
        a(f"  s_lshr_b32 s{S_NP}, s{S_T}, 1")
        a(f"  s_mul_i32 s{S_PVB}, s{S_SB}, {SLOT}")
        self.pv_reads(0, S_PVB, 0)
        for k in range(3):
            a(f"  s_cmp_le_u32 s{S_NP}, {k+1}\n  s_cbranch_scc1 L_pvl{k & 1}")
            a(f"  s_add_u32 s{S_PVB}, s{S_PVB}, {2*SLOT}")
            self.pv_reads((k + 1) & 1, S_PVB, (k + 1) * 1024)
            self.pv_mfmas(k & 1, 7)
        a("L_pvl1:")
        self.pv_mfmas(1, 0)
        self.cstamp(7)
        a(f"  s_setpc_b64 s[{S_LINK}:{S_LINK+1}]")
        a("L_pvl0:")
        self.pv_mfmas(0, 0)
        self.cstamp(7)
        a(f"  s_setpc_b64 s[{S_LINK}:{S_LINK+1}]")

    def pv_reads(self, buf, s_, poff, imm=0):
        a = self.a; o = self.V_A + 16 * buf
        a(f"  ds_read_b128 {vr(o)}, v{self.V_PADDR} offset:{poff}")
        for tau in range(3):
            if s_ is None:
                ad = self.V_PA + tau
            else:
                ad = self.V_TA + tau
                a(f"  v_add_u32 v{ad}, s{s_}, v{self.V_PA+tau}")
            a(f"  ds_read_b64_tr_b16 {vr(o+4+4*tau,2)}, v{ad} offset:{imm}")
            a(f"  ds_read_b64_tr_b16 {vr(o+6+4*tau,2)}, v{ad} offset:{imm + SLOT}")
    def pv_mfmas(self, buf, base):
        a = self.a; o = self.V_A + 16 * buf
        for tau in range(3):
            a(f"  s_waitcnt lgkmcnt({base + 4 - 2*tau})")
            a(f"  v_mfma_f32_16x16x32_bf16 {vr(self.V_ACC+4*tau)}, {vr(o+4+4*tau)}, {vr(o)}, {vr(self.V_ACC+4*tau)}")

    def pv_final(self):
        a = self.a; T0, T1 = self.V_T0, self.V_T1
        a(f"  v_mov_b32 v{T0}, {FLAG_LDS}\n  ds_read_b32 v{T1}, v{T0}")
        a(f"  s_mov_b32 s{S_PVB}, {8*SLOT}")
        self.pv_reads(0, S_PVB, 0)
        a(f"  s_waitcnt lgkmcnt(7)\n  v_readfirstlane_b32 s62, v{T1}\n  s_cmp_lg_u32 s62, 0\n  s_cbranch_scc1 L_slow")
        a(f"  s_mov_b32 s{S_PVB}, {10*SLOT}")
        self.pv_reads(1, S_PVB, 1024); self.pv_mfmas(0, 7)
        self.pv_reads(0, None, 2048, 0); self.pv_mfmas(1, 7)
        self.pv_reads(1, None, 3072, 2*SLOT); self.pv_mfmas(0, 7)
        self.pv_reads(0, None, 4096, 4*SLOT); self.pv_mfmas(1, 7)
        self.sums_read()
        self.pv_mfmas(0, 4)
        self.sums_math()

    V_SR = 16
    def sums_read(self):
        for i in range(4): self.a(f"  ds_read_b128 {vr(self.V_SR+4*i)}, v{self.V_PUB+3} offset:{16*i}")
    def sums_math(self):
        a = self.a; R = self.V_SR
        a("  s_waitcnt lgkmcnt(0)")
        for i in (0, 4, 8, 12): self.pk("v_pk_add_f32", R + i, R + i, R + i + 2)
        self.pk("v_pk_add_f32", R, R, R + 4); self.pk("v_pk_add_f32", R + 8, R + 8, R + 12); self.pk("v_pk_add_f32", R, R, R + 8)
        a(f"  v_rcp_f32 v{R+2}, v{R}\n  v_log_f32 v{R+5}, v{R}\n  v_mul_f32 v{R+4}, v{R+1}, v{R+2}\n  v_add_f32 v{R+6}, v{self.V_M}, v{R+5}")

    def hold_chunks(self):
        a = self.a
        b = self.V_BUF[0]; u, t8, st = 160, 168, 56
        SS, SQ, R, U = st, st + 4, st + 8, st + 12
        def dpp(dst, src, ctrl, bank):
            a(f"  v_add_f32_dpp v{dst}, v{src}, v{src} {ctrl} row_mask:0xf bank_mask:{bank:#x}")
        def child(t):
            c = b + 4 + 4 * t
            if t == 0:
                a("  s_waitcnt vmcnt(9)")
                for i in range(4): a(f"  v_lshlrev_b32 v{u+2*i}, 16, v{b+i}\n  v_and_b32 v{u+2*i+1}, 0xffff0000, v{b+i}")
            a(f"  s_waitcnt vmcnt({8-t})")
            for i in range(4):
                a(f"  v_dot2_f32_bf16 v{t8+2*i}, v{c+i}, s{S_ONELO}, v{u+2*i}")
                a(f"  v_dot2_f32_bf16 v{t8+2*i+1}, v{c+i}, s{S_ONEHI}, v{u+2*i+1}")
            if t > 0: dpp(R + t - 1, SS + t - 1, "row_ror:8", 0x3)
            for i in range(4): a(f"  v_cvt_pk_bf16_f32 v{c+i}, v{t8+2*i}, v{t8+2*i+1}")
            if t > 0: dpp(R + t - 1, SQ + t - 1, "row_ror:8", 0xc)
            for i in range(4):
                a(f"  v_dot2_f32_bf16 v{SS+t}, v{c+i}, v{self.V_ONES}, {'0' if i == 0 else 'v%d' % (SS+t)}")
                a(f"  v_dot2_f32_bf16 v{SQ+t}, v{c+i}, v{c+i}, {'0' if i == 0 else 'v%d' % (SQ+t)}")
        def close():
            dpp(U, R, "row_half_mirror", 0x5)
            dpp(R + 3, SS + 3, "row_ror:8", 0x3)
            dpp(U + 1, R + 2, "row_half_mirror", 0x5)
            dpp(U, R + 1, "row_half_mirror", 0xa)
            dpp(R + 3, SQ + 3, "row_ror:8", 0xc)
            a(f"  s_add_u32 s{S_K}, s{S_K}, 1")
            dpp(U, U, "quad_perm:[1,0,3,2]", 0xf)
            dpp(U + 1, R + 3, "row_half_mirror", 0xa)
            dpp(U, U, "quad_perm:[2,3,0,1]", 0xf)
            dpp(U + 1, U + 1, "quad_perm:[1,0,3,2]", 0xf)
            a(f"  s_mov_b64 exec, s[{S_QMASK}:{S_QMASK+1}]\n  {self.dsadd} v{self.V_SA}, v{U}\n  s_mov_b64 exec, -1")
            dpp(U + 1, U + 1, "quad_perm:[2,3,0,1]", 0xf)
            a(f"  s_mov_b64 exec, s[{S_QMASK}:{S_QMASK+1}]\n  {self.dsadd} v{self.V_SA}, v{U+1} offset:8\n  s_mov_b64 exec, -1")
            a(f"  v_add_u32 v{self.V_SA}, 256, v{self.V_SA}")
        return [lambda t=t: child(t) for t in range(4)], close

    def pv_first(self):
        a = self.a; T0, T1 = self.V_T0, self.V_T1
        def body(chunks, close):
            self.pv_reads(1, None, 1024, 2*SLOT)
            self.pk("v_pk_add_f32", self.V_L2, self.V_L2, self.V_LT); self.pk("v_pk_add_f32", self.V_AM2, self.V_AM2, self.V_AT)
            if chunks: chunks[0]()
            self.pv_mfmas(0, 7)
            self.pv_reads(0, None, 2048, 4*SLOT)
            for r in range(4): a(f"  v_mov_b32 v{self.V_LT+r}, 0")
            if chunks: chunks[1]()
            self.pv_mfmas(1, 7)
            a(f"  s_mov_b32 s{S_PVB}, {6*SLOT}")
            self.pv_reads(1, S_PVB, 3072)
            if chunks: chunks[2]()
            self.pv_mfmas(0, 7)
            if chunks: chunks[3]()
            self.pv_mfmas(1, 0)
            if close: close()
        a(f"  v_mov_b32 v{T0}, {FLAG_LDS}\n  ds_read_b32 v{T1}, v{T0}")
        self.pv_reads(0, None, 0, 0)
        a(f"  s_waitcnt lgkmcnt(7)\n  v_readfirstlane_b32 s62, v{T1}\n  s_cmp_lg_u32 s62, 0\n  s_cbranch_scc1 L_slow1")
        if self.cfg.pvfuse:
            plain, join = self.lab("pvplain"), self.lab("pvjoin")
            a(f"  s_cmp_ge_u32 s{S_WAVE}, 6\n  s_cbranch_scc1 {plain}")
            body(*self.hold_chunks())
            a(f"  s_branch {join}\n{plain}:")
            body(None, None)
            a(f"{join}:")
        else:
            body(None, None)

    def call_batch(self, T, w0, slot0, pair_add, last):
        self.a(f"  s_mov_b32 s{S_T}, {T}\n  s_mov_b32 s{S_W0}, {w0}\n  s_mov_b32 s{S_SB}, {slot0}\n  s_add_u32 s{S_PB}, s{S_P0}, {pair_add}\n  s_mov_b32 s{S_LAST}, {int(last)}")
        self.a(f"  s_call_b64 s[{S_LINK}:{S_LINK+1}], L_batch")

    def streamer(self):
        a = self.a; cfg = self.cfg; d = cfg.depth
        CALL = f"  s_call_b64 s[{S_LINK}:{S_LINK+1}], "
        a("  s_waitcnt lgkmcnt(0)")
        srd(a, R_A, P_F0, F0_BYTES); srd(a, R_B, P_F1, F1_BYTES)
        a(f"  s_cmp_ge_u32 s{S_WAVE}, 6\n  s_cbranch_scc1 L_sgather")
        a(f"  s_cmp_ge_u32 s{S_WAVE}, 3\n  s_cselect_b32 s60, 1, 0\n  s_mul_i32 s62, s60, 3\n  s_sub_u32 s61, s{S_WAVE}, s62")
        a(f"  s_mul_i32 s{S_QBASE}, s{S_IDX}, {2*NPAIR}\n  s_add_u32 s{S_QBASE}, s{S_QBASE}, s60\n  s_lshl_b32 s61, s61, 8")
        a("  v_and_b32 v240, 15, v0\n  v_lshrrev_b32 v241, 4, v0\n  v_lshl_add_u32 v242, v240, 4, s61")
        a(f"  v_mul_u32_u24 v243, 768, v241\n  v_add_u32 v{self.V_OFF1}, v242, v243\n  v_lshl_add_u32 v{self.V_OFF0}, v243, 1, v242")
        a(f"  s_mov_b32 s{S_K}, 0\n  s_mov_b32 s{S_QMASK}, 0x11111111\n  s_mov_b32 s{S_QMASK+1}, 0x11111111")
        def first_loads(d):
            self.task_bases(SETA, 0, False)
            for x in range(min(d, 5)): self.issue_piece(SETA, 0, x)
            self.task_bases(SETB, d // 5, False)
        two = cfg.dlate != d
        def both(f):
            if not two:
                f(d); return
            l1, l2 = self.lab("dl"), self.lab("dj")
            a(f"  s_and_b32 s62, s2, 7\n  s_cmp_ge_u32 s62, {cfg.xlate}\n  s_cbranch_scc1 {l1}")
            f(d)
            a(f"  s_branch {l2}\n{l1}:")
            f(cfg.dlate)
            a(f"{l2}:")
        assert d <= 5 and cfg.dlate <= 5
        if not cfg.late: both(first_loads)
        a(f"  s_mul_i32 s60, s60, {SLOT}\n  s_add_u32 s60, s60, s61")
        srd(a, R_WS, P_WS, WS_BYTES)
        a("  v_and_b32 v240, 15, v0\n  v_lshrrev_b32 v241, 4, v0\n  v_and_b32 v242, 1, v241\n  v_lshlrev_b32 v242, 3, v242\n  v_xor_b32 v242, v240, v242")
        a(f"  v_mul_u32_u24 v243, 3072, v241\n  v_add_u32 v243, s60, v243")
        for t in range(4):
            a(f"  v_xor_b32 v244, {2*t}, v242\n  v_lshl_add_u32 v{self.V_WA[t]}, v244, 4, v243")
        a(f"  v_bfe_u32 v242, v0, 3, 1\n  v_lshlrev_b32 v242, 6, v242\n  v_bfe_u32 v243, v0, 2, 1\n  v_lshl_add_u32 v243, v241, 2, v243\n  v_lshl_add_u32 v242, v243, 2, v242")
        a(f"  s_cmp_ge_u32 s{S_WAVE}, 3\n  s_cselect_b32 s62, {STAT_S}, 0\n  s_add_u32 s62, s62, {STAT}\n  s_lshr_b32 s63, s61, 1\n  s_add_u32 s62, s62, s63\n  v_add_u32 v{self.V_SA}, s62, v242")
        a("  s_barrier")
        self.stream_consts()
        if cfg.late: both(first_loads)
        if cfg.streamonly:
            for k in range(9):
                a(CALL + f"L_fuse{k & 1}")
                if k == 5: self.stamp(3)
            self.stamp(7); self.stamp(8)
            a("  s_branch L_sdone")
        def phase1(dd):
            sfx = "" if dd == d else "L"
            for k in range(6):
                if k == cfg.trig_a: a("  s_barrier")
                if k == cfg.trig_b: a("  s_barrier")
                a(CALL + f"L_fuse{sfx}{k & 1}")
            if cfg.trig_a >= 6: a("  s_barrier")
            if cfg.trig_b >= 6: a("  s_barrier")
            if dd < 5:
                self.task_bases(SETA, 6, False)
                for x in range(30 + dd, 35): self.issue_piece(SETA, 0, x % 5)
        both(phase1)
        assert not (cfg.pvfuse and (cfg.prefuse or not cfg.zref or cfg.ext7 != 1 or cfg.ext8 != 1))
        self.stamp(3)
        if cfg.prefuse: a(CALL + "L_fuseH")
        if cfg.ext7 == 0:
            self.task_bases(SETA, 7, False)
            for x in range(5): self.issue_piece(SETA, 1, x)
        a("  s_waitcnt lgkmcnt(0)")
        a("  s_branch L_sb0")
        a("L_sgather:     ; waves 6,7: nonce, GO word, Qk into the staging area")
        if cfg.streamonly == 3:
            pass
        elif cfg.streamonly:
            srd(a, R_WS, P_WS, WS_BYTES)
            for i in range(4): a(f"  v_mov_b32 v{20+i}, 0")
            a("  s_barrier\n  s_branch L_sdone")
        for r in (self.V_OFF1, self.V_OFF0, self.V_SA) + self.V_WA: a(f"  v_mov_b32 v{r}, 0")
        a(f"  v_mov_b32 v20, 0\n  v_mov_b32 v24, {FLAG_LDS}\n  ds_write_b32 v24, v20\n  s_waitcnt lgkmcnt(0)\n  s_barrier")
        a(f"  s_mov_b32 s{S_QBASE}, 0\n  s_mov_b32 s{S_K}, 0\n  s_mov_b32 s{S_QMASK}, 0\n  s_mov_b32 s{S_QMASK+1}, 0")
        for r in range(3): a(f"  s_mov_b32 s{SETA+r}, 0\n  s_mov_b32 s{SETB+r}, 0")
        srd(a, R_WS, P_WS, WS_BYTES)
        a(f"  s_cmp_eq_u32 s{S_WAVE}, 7\n  s_cbranch_scc1 L_sw7")
        a(f"  buffer_load_dword v17, v{self.V_OFF1}, {sr(R_WS)}, 0 offen offset:{NONCE_OFF} sc1")
        a(f"  v_mov_b32 v18, {GO_OFF}")
        self.stream_consts()
        a(f"  s_waitcnt vmcnt(0)\n  v_add_u32 v17, 1, v17\n  v_mov_b32 v{self.V_T0}, {NONCE_LDS}\n  ds_write_b32 v{self.V_T0}, v17\n  v_readfirstlane_b32 s{S_NONCE}, v17")
        if cfg.streamonly != 3: a("  s_barrier")
        a(f"  buffer_load_dword v16, v18, {sr(R_WS)}, 0 offen sc1")
        if cfg.streamonly != 3: a("  s_barrier")
        self.wait_flags(16, 18, first_issued=True)
        self.stamp(1)
        a(f"  s_mov_b32 s62, {RQK_OFF}")
        if cfg.kdelay: a(f"  s_sleep {cfg.kdelay}")
        self.gather_frags(12, self.V_QK, self.V_L16, 62, self.V_T0, "qk")
        if cfg.gdiag:
            a(f"  s_mov_b32 s{STAMP0+4}, s{S_SPIN}")
            self.stamp(5)
        for j in range(12): a(f"  ds_write_b128 v{self.V_PADDR}, {vr(self.V_QK+4*j)} offset:{j*1024}")
        SQ4 = self.V_SQ4
        for j in range(12):
            for i in range(4):
                a(f"  v_dot2_f32_bf16 v{SQ4+i}, v{self.V_QK+4*j+i}, v{self.V_ONES}, {'0' if j == 0 else 'v%d' % (SQ4+i)}")
        self.pk("v_pk_add_f32", SQ4, SQ4, SQ4 + 2)
        a(f"  v_add_f32 v{self.V_QS}, v{SQ4}, v{SQ4+1}")
        self.allred_g(self.V_QS, self.V_T0, "v_add_f32")
        a(f"  v_and_b32 v{self.V_T0}, 15, v0\n  v_lshlrev_b32 v{self.V_T0}, 2, v{self.V_T0}\n  v_add_u32 v{self.V_T0}, {QS_LDS}, v{self.V_T0}\n  ds_write_b32 v{self.V_T0}, v{self.V_QS}")
        a("  s_waitcnt lgkmcnt(0)")
        self.stamp(3)
        if cfg.streamonly == 3: a("  s_branch L_sdone")
        a("  s_branch L_sb0")
        a("L_sw7:")
        if cfg.streamonly == 3: a("  s_branch L_sdone")
        self.stream_consts()
        a("  s_waitcnt vmcnt(0)\n  s_barrier\n  s_barrier")
        a("L_sb0:         ; tiles 0..11 and Qk are in LDS\n  s_barrier")
        a(f"  v_and_b32 v{self.V_T2}, 15, v0\n  v_lshlrev_b32 v{self.V_T2}, 2, v{self.V_T2}\n  v_add_u32 v{self.V_T2}, {QS_LDS}, v{self.V_T2}")
        a(f"  v_mov_b32 v{self.V_T0}, {NONCE_LDS}\n  ds_read_b32 v{self.V_T1}, v{self.V_T0}\n  ds_read_b32 v{self.V_QS}, v{self.V_T2}")
        for j in range(12): a(f"  ds_read_b128 {vr(self.V_QK+4*j)}, v{self.V_PADDR} offset:{j*1024}")
        a(f"  s_mul_i32 s{S_P0}, s{S_IDX}, {NPAIR}")
        for r in range(4): a(f"  v_mov_b32 v{self.V_LT+r}, 0")
        a(f"  s_waitcnt lgkmcnt(0)\n  v_readfirstlane_b32 s{S_NONCE}, v{self.V_T1}")
        if cfg.zref: a("  s_barrier")
        sk = self.lab("noext")
        a(f"  s_cmp_ge_u32 s{S_WAVE}, 6\n  s_cbranch_scc1 {sk}")
        U = self.V_ST + 12
        a(f"  v_add_u32 v{self.V_T0}, {(STAT2 - STAT) & 0xffffffff:#x}, v{self.V_SA}\n  s_mov_b64 exec, s[{S_QMASK}:{S_QMASK+1}]")
        a(f"  ds_write_b32 v{self.V_T0}, v{U}\n  ds_write_b32 v{self.V_T0}, v{U+1} offset:8\n  s_mov_b64 exec, -1")
        if cfg.ext7 == 1:
            self.task_bases(SETA, 7, False)
            for x in range(5): self.issue_piece(SETA, 1, x)
        if cfg.ext8 == 0:
            self.task_bases(SETB, 8, False)
            for x in range(5): self.issue_piece(SETB, 2, x)
        a(f"{sk}:")
        self.stamp(4)
        if cfg.zref:
            a(f"  s_mov_b32 s{S_LOW}, {f32(LOW_LIMIT)}\n  v_mov_b32 v{self.V_M}, 0")
            a(f"  s_mul_i32 s{S_TB}, s{S_WAVE}, {SLOT}\n  s_mul_i32 s62, s{S_WAVE}, {STAT_S}\n  s_add_u32 s{S_STA}, s62, {STAT}")
            a(f"  s_lshr_b32 s62, s{S_WAVE}, 1\n  s_add_u32 s{S_PAIR}, s62, s{S_P0}")
            a(f"  s_lshl_b32 s62, s62, 10\n  s_and_b32 s63, s{S_WAVE}, 1\n  s_lshl_b32 s63, s63, 3\n  s_add_u32 s{S_POFF}, s62, s63")
            a(CALL + "L_sp")
            if cfg.ext8 == 2:
                sk = self.lab("noe8")
                a(f"  s_cmp_ge_u32 s{S_WAVE}, 6\n  s_cbranch_scc1 {sk}")
                self.task_bases(SETB, 8, False)
                for x in range(5): self.issue_piece(SETB, 2, x)
                a(f"{sk}:")
            a("  s_waitcnt lgkmcnt(0)\n  s_barrier")
            self.pv_first()
            a("L_safter1:")
        else:
            self.call_batch(8, 0, 0, 0, False)
        a(f"  s_mov_b32 s{S_LOW}, {f32(-3.0e38)}")
        a("  s_barrier")
        if not cfg.gdiag: self.stamp(5)
        a(f"  s_cmp_ge_u32 s{S_WAVE}, 6\n  s_cbranch_scc1 L_s67")
        if cfg.ext8 == 1:
            self.task_bases(SETB, 8, False)
            if cfg.late8:
                a(f"  s_and_b32 s62, s2, 4\n  s_cmp_lg_u32 s62, 0\n  s_cselect_b32 s{SETB}, 0x80000000, s{SETB}\n  s_cselect_b32 s{SETB+1}, 0x80000000, s{SETB+1}\n  s_cselect_b32 s{SETB+2}, 0x80000000, s{SETB+2}")
            for x in range(5): self.issue_piece(SETB, 2, x)
        self.fstamp(0)
        if cfg.prefuse or cfg.pvfuse:
            b = self.V_BUF[0]
            for t in range(4): a(f"  ds_write_b128 v{self.V_WA[t]}, {vr(b+4+4*t)} offset:{t*768}")
            for t in range(4): a(f"  v_add_u32 v{self.V_WA[t]}, 24576, v{self.V_WA[t]}")
        else:
            a(CALL + "L_fuseR0")
        self.fstamp(1)
        a(CALL + "L_fuseR1")
        self.fstamp(2)
        if cfg.late8:
            sk8 = self.lab("skip8")
            a(f"  s_and_b32 s62, s2, 4\n  s_cmp_lg_u32 s62, 0\n  s_cbranch_scc1 {sk8}")
            a(CALL + "L_fuseR2")
            a(f"{sk8}:\n  s_waitcnt vmcnt(0)")
        else:
            a(CALL + "L_fuseR2")
        self.fstamp(3)
        a("  s_branch L_sx")
        a("L_s67:         ; waves 6,7: logits and P of tiles 8..11 beside the fuse steps of tasks 6..8")
        for i in range(2):
            a(f"  s_and_b32 s63, s{S_WAVE}, 1\n  s_add_u32 s62, s63, {8 + 2*i}\n  s_mul_i32 s{S_TB}, s62, {SLOT}")
            a(f"  s_mul_i32 s62, s63, {STAT_S}\n  s_add_u32 s{S_STA}, s62, {STAT + 8*STAT_S if i == 0 else STAT2}\n  s_add_u32 s{S_PAIR}, s{S_P0}, {4 + i}")
            a(f"  s_lshl_b32 s63, s63, 3\n  s_add_u32 s{S_POFF}, s63, {i*1024}")
            a(CALL + "L_sp")
        a("L_sx:")
        self.publish_setup()
        a("  s_waitcnt lgkmcnt(0)\n  s_barrier")
        if not cfg.gdiag: self.stamp(2)
        sk = self.lab("nosp")
        a(f"  s_cmp_ge_u32 s{S_WAVE}, 6\n  s_cbranch_scc1 {sk}")
        a(f"  s_mul_i32 s{S_TB}, s{S_WAVE}, {SLOT}\n  s_mul_i32 s62, s{S_WAVE}, {STAT_S}\n  s_add_u32 s{S_STA}, s62, {STAT}")
        a(f"  s_lshr_b32 s62, s{S_WAVE}, 1\n  s_add_u32 s{S_PAIR}, s62, s{S_P0}\n  s_add_u32 s{S_PAIR}, s{S_PAIR}, 6")
        a(f"  s_lshl_b32 s62, s62, 10\n  s_and_b32 s63, s{S_WAVE}, 1\n  s_lshl_b32 s63, s63, 3\n  s_add_u32 s62, s62, s63\n  s_add_u32 s{S_POFF}, s62, 2048")
        a(CALL + "L_sp")
        a(f"{sk}:")
        MXV = self.V_MXV
        self.pk("v_pk_add_f32", MXV, self.V_L2, self.V_LT); self.pk("v_pk_add_f32", MXV + 2, self.V_AM2, self.V_AT)
        self.red_write(MXV, MXV + 2, MXV + 6)
        a("  s_waitcnt lgkmcnt(0)")
        if not cfg.gdiag: self.stamp(1)
        a("  s_barrier")
        self.stamp(6)
        self.pv_final()
        a("L_spub:        ; partial result of this workgroup")
        self.stamp(7)
        self.publish()
        self.cstamp(8)
        self.stamp(8)
        if cfg.cut >= 1: a("  s_branch L_sdone")
        self.reducer_index()
        a(f"  s_cmp_ge_u32 s{S_RHO}, 128\n  s_cbranch_scc1 L_sdone")
        self.reducer()
        a("L_sdone:")
        self.stamp(9); self.stamp_flush((5, 6, 8, (0, 1, 3, 5, 6, 7, 8, 9)))
        a("  s_endpgm")
        if cfg.zref:
            a("L_slow1:       ; a logit of tiles 0..7 left the range of the zero reference: exact maximum\n  s_waitcnt lgkmcnt(0)")
            a(f"  v_mov_b32 v{self.V_M}, 0xff800000")
            for r in range(4): a(f"  v_mov_b32 v{self.V_LT+r}, 0")
            self.call_batch(8, 0, 0, 0, False)
            if cfg.pvfuse:
                a(f"  s_cmp_ge_u32 s{S_WAVE}, 6\n  s_cbranch_scc1 L_safter1")
                a(CALL + "L_fuseH")
            a("  s_branch L_safter1")
        a("L_slow:        ; a later logit left the range of the reference: tiles 8..17 with exact maxima\n  s_waitcnt lgkmcnt(0)")
        self.call_batch(4, 4, 8, 4, False)
        self.call_batch(6, 0, 0, 6, True)
        self.sums_read(); self.sums_math()
        a("  s_branch L_spub")
        self.sp_sub(); self.sphase_sub(); self.batch_sub()
        self.fuse_sub(1, 10, "L_fuseR1", "drain"); self.fuse_sub(2, 5, "L_fuseR2", "drain")
        if cfg.pvfuse: self.fuse_sub(0, 10, "L_fuseH", "hold")
        elif cfg.prefuse: self.fuse_sub(0, 5, "L_fuseH", "hold")
        else: self.fuse_sub(0, 15, "L_fuseR0", "drain")
        self.fuse_sub(0, d, "L_fuse0"); self.fuse_sub(1, d, "L_fuse1")
        if cfg.dlate != d: self.fuse_sub(0, cfg.dlate, "L_fuseL0"); self.fuse_sub(1, cfg.dlate, "L_fuseL1")

    def publish_setup(self):
        a = self.a
        T0, T1, T2 = self.V_T0, self.V_T1, self.V_T2
        PA0, TAGB = self.V_PUB, self.V_PUB + 1
        a(f"  v_and_b32 v{T0}, 7, v0\n  v_lshlrev_b32 v{T0}, 3, v{T0}\n  v_add_u32 v{T0}, s{S_WAVE}, v{T0}\n  s_mov_b32 s62, {PART_STRIDE}\n  v_mul_lo_u32 v{T0}, v{T0}, s62")
        a(f"  v_bfe_u32 v{T1}, v0, 3, 1\n  v_lshl_add_u32 v{T0}, v{T1}, 6, v{T0}\n  v_lshrrev_b32 v{T1}, 4, v0\n  v_lshl_add_u32 v{PA0}, v{T1}, 4, v{T0}")
        a(f"  s_mov_b32 s62, {KEYC}\n  v_mul_lo_u32 v{T1}, v{T1}, s62\n  v_add_u32 v{TAGB}, s{S_NONCE}, v{T1}")
        a(f"  v_and_b32 v{T0}, 15, v0\n  v_lshlrev_b32 v{T0}, 6, v{T0}\n  v_bfe_u32 v{T1}, v0, 4, 1\n  v_lshl_add_u32 v{T0}, v{T1}, 2, v{T0}")
        a(f"  s_lshl_b32 s62, s{S_WAVE}, 3\n  s_add_u32 s62, s62, {RED}\n  v_add_u32 v{self.V_PUB+2}, s62, v{T0}")
        a(f"  v_and_b32 v{T0}, 15, v0\n  v_lshlrev_b32 v{T0}, 6, v{T0}\n  v_add_u32 v{self.V_PUB+3}, {RED}, v{T0}")

    def publish(self):
        a = self.a; cfg = self.cfg
        A, ACC, R = self.V_A, self.V_ACC, self.V_SR
        PA0, TAGB = self.V_PUB, self.V_PUB + 1
        UA, UB, TB = A + 24, A + 28, A + 32
        a(f"  s_lshl_b32 s62, s{S_IDX}, 7\n  s_add_u32 s62, s62, {PART_OFF}\n  s_add_u32 s63, s62, {64*PART_STRIDE}")
        a(f"  v_mov_b32 v{UA+3}, s{S_NONCE}\n  v_xor_b32 v{UB+3}, v{R+6}, v{TAGB}")
        for i in range(0, 12, 2): self.pk("v_pk_fma_f32", ACC + i, ACC + i, R + 2, R + 4, bc=(1, 2), neg=(2,))
        for i in range(3): a(f"  v_cvt_pk_f16_f32 v{UA+i}, v{ACC+2*i}, v{ACC+2*i+1}")
        for i in range(3): a(f"  v_cvt_pk_f16_f32 v{UB+i}, v{ACC+6+2*i}, v{ACC+7+2*i}")
        for i in range(4): a(f"  v_mov_b32 v{TB+i}, v{UB+i}")
        for i in range(3): a(f"  v_mov_b32_dpp v{UB+i}, v{UA+i} row_ror:8 row_mask:0xf bank_mask:0x3")
        a(f"  v_mov_b32_dpp v{UB+3}, v{UA+3} quad_perm:[0,1,2,3] row_mask:0xf bank_mask:0x3")
        for i in range(4): a(f"  v_mov_b32_dpp v{UA+i}, v{TB+i} row_ror:8 row_mask:0xf bank_mask:0xc")
        a(f"  buffer_store_dwordx4 {vr(UA)}, v{PA0}, {sr(R_WS)}, s62 offen sc1")
        a(f"  buffer_store_dwordx4 {vr(UB)}, v{PA0}, {sr(R_WS)}, s63 offen sc1")

    def reducer_index(self):
        a = self.a; cfg = self.cfg
        if cfg.redsel == 0:
            a(f"  s_mov_b32 s{S_RHO}, s{S_IDX}")
            return
        assert cfg.hnx == 4 and cfg.hx0 == 0
        a("  s_and_b32 s60, s2, 7\n  s_lshr_b32 s61, s2, 3")
        a("  s_and_b32 s62, s60, 3\n  s_cmp_ge_u32 s60, 4\n  s_cselect_b32 s63, 1, 0")
        a("  s_lshl_b32 s64, s61, 2\n  s_add_u32 s64, s64, s62")
        a("  s_sub_u32 s65, s64, 24")
        if cfg.redsel == 1:
            a(f"  s_add_u32 s64, s64, 104\n  s_cmp_eq_u32 s63, 0\n  s_cselect_b32 s{S_RHO}, s65, s64")
        else:
            a(f"  s_add_u32 s65, s65, 124\n  s_cmp_eq_u32 s63, 0\n  s_cselect_b32 s{S_RHO}, s65, s64")

    def reducer_addr(self):
        a = self.a
        AD, T0, T1, VM, SA, X, Y, KEY = self.RV
        MASK = 40
        a(f"  v_lshrrev_b32 v{T0}, 3, v0\n  s_lshl_b32 s62, s{S_WAVE}, 5\n  v_add_u32 v{VM}, s62, v{T0}")
        a(f"  v_and_b32 v{T1}, 7, v0\n  v_lshlrev_b32 v{T1}, 4, v{T1}\n  s_mov_b32 s62, {NS}")
        for it in range(4):
            a(f"  v_add_u32 v{T0}, {8*it}, v{VM}\n  v_cmp_gt_u32 s[{MASK+2*it}:{MASK+2*it+1}], s62, v{T0}\n  v_cndmask_b32 v{T0}, 0, v{T0}, s[{MASK+2*it}:{MASK+2*it+1}]")
            a(f"  v_lshl_add_u32 v{AD+it}, v{T0}, 7, v{T1}")

    def reducer_setup(self):
        a = self.a
        AD, T0, T1, VM, SA, X, Y, KEY = self.RV
        a(f"  v_and_b32 v{T0}, 3, v0\n  v_bfe_u32 v{T1}, v0, 2, 1\n  v_mul_u32_u24 v{T0}, v{T0}, v{T1}\n  s_mov_b32 s62, {KEYC}\n  v_mul_lo_u32 v{T0}, v{T0}, s62\n  v_add_u32 v{KEY}, s{S_NONCE}, v{T0}")
        a(f"  v_lshrrev_b32 v{T0}, 4, v0\n  v_and_b32 v{T1}, 1, v{T0}\n  v_lshlrev_b32 v{T1}, 1, v{T1}\n  v_lshrrev_b32 v{X}, 1, v{T0}\n  v_add_u32 v{T1}, v{T1}, v{X}")
        a(f"  v_bfe_u32 v{X}, v0, 2, 1\n  v_mul_u32_u24 v{X}, 3, v{X}\n  v_add_u32 v{T1}, v{T1}, v{X}")
        a(f"  v_lshrrev_b32 v{X}, 1, v{T1}\n  v_lshlrev_b32 v{X}, 4, v{X}\n  v_and_b32 v{T1}, 1, v{T1}\n  v_lshl_add_u32 v{X}, v{T1}, 1, v{X}")
        a(f"  v_and_b32 v{T1}, 3, v0\n  v_lshl_add_u32 v{X}, v{T1}, 2, v{X}")
        a(f"  s_and_b32 s62, s{S_RHO}, 7\n  s_mul_i32 s62, s62, 48\n  v_add_u32 v{X}, s62, v{X}\n  v_lshlrev_b32 v{SA}, 1, v{X}")
        a(f"  v_lshrrev_b32 v{T1}, 4, v0\n  v_lshlrev_b32 v{T1}, 3, v{T1}\n  v_and_b32 v{X}, 7, v0\n  v_add_u32 v{T1}, v{T1}, v{X}\n  v_lshlrev_b32 v{Y}, 3, v{T1}")
        a(f"  s_lshl_b32 s62, s{S_WAVE}, 8\n  s_add_u32 s62, s62, {RED2}\n  v_add_u32 v{X}, s62, v{Y}\n  v_add_u32 v{Y}, {RED2}, v{Y}")

    RV = (80, 84, 85, 86, 87, 88, 89, 90)

    def reducer(self):
        a = self.a; cfg = self.cfg
        D, E, W, V = 16, 32, 40, 44
        AD, T0, T1, VM, SA, X, Y, KEY = self.RV
        MASK = 40
        BAD = 52
        self.reducer_addr()
        if cfg.rack: a("  s_waitcnt vmcnt(0)")
        if cfg.rdelay: a(f"  s_sleep {cfg.rdelay}")
        if cfg.rdiag: self.stamp(1)
        a(f"  s_mul_i32 s62, s{S_RHO}, {PART_STRIDE}\n  s_add_u32 s62, s62, {PART_OFF}")
        for it in range(4): a(f"  buffer_load_dwordx4 {vr(D+4*it)}, v{AD+it}, {sr(R_WS)}, s62 offen sc1")
        a("  s_mov_b32 s63, s62")
        self.reducer_setup()
        a("  s_mov_b32 s62, s63")
        for it in range(4): a(f"  v_mov_b32 v{E+2*it+1}, 0")
        lp, ck, dn = self.lab("red"), self.lab("redc"), self.lab("redd")
        BADS = (48, 50, 52, 54)
        a(f"  s_mov_b32 s{S_SPIN}, 0\n  s_branch {ck}\n{lp}:")
        for it in range(4):
            sk = self.lab("skipld")
            a(f"  s_mov_b64 exec, s[{BADS[it]}:{BADS[it]+1}]\n  s_cbranch_execz {sk}")
            a(f"  buffer_load_dwordx4 {vr(D+4*it)}, v{AD+it}, {sr(R_WS)}, s62 offen sc1")
            a(f"{sk}:")
        a("  s_mov_b64 exec, -1")
        self.spin_guard(dn)
        a(f"{ck}:\n  s_waitcnt vmcnt(0)")
        for it in range(4): a(f"  v_xor_b32 v{E+2*it}, v{KEY}, v{D+4*it+3}")
        for it in range(4): a(f"  v_mov_b32_dpp v{E+2*it+1}, v{E+2*it} quad_perm:[0,0,0,0] row_mask:0xf bank_mask:0xa")
        for it in range(4): a(f"  v_cmp_ne_u32 s[{BADS[it]}:{BADS[it]+1}], v{E+2*it}, v{E+2*it+1}")
        a(f"  s_or_b64 s[60:61], s[48:49], s[50:51]\n  s_or_b64 vcc, s[52:53], s[54:55]\n  s_or_b64 s[60:61], s[60:61], vcc\n  s_cbranch_scc0 {dn}")
        if cfg.selpoll == 2:
            for it in range(4): a(f"  v_xor_b32 v{W+it}, v{E+2*it}, v{E+2*it+1}")
            for ctrl in ("row_half_mirror", "quad_perm:[1,0,3,2]", "quad_perm:[2,3,0,1]"):
                for it in range(4): a(f"  v_or_b32_dpp v{W+it}, v{W+it}, v{W+it} {ctrl} row_mask:0xf bank_mask:0xf")
            for it in range(4): a(f"  v_cmp_ne_u32 s[{BADS[it]}:{BADS[it]+1}], 0, v{W+it}")
        else:
            for it in range(4):
                b = BADS[it]
                if cfg.selpoll: a(f"  s_cmp_lg_u64 s[{b}:{b+1}], 0\n  s_cselect_b64 s[{b}:{b+1}], -1, 0")
                else: a(f"  s_mov_b64 s[{b}:{b+1}], -1")
        if cfg.rsleep: a(f"  s_sleep {cfg.rsleep}")
        a(f"  s_branch {lp}")
        a(f"{dn}:\n  s_waitcnt vmcnt(0)")
        if cfg.rdiag:
            self.stamp(2)
            a(f"  s_mov_b32 s{STAMP0+6}, s{S_SPIN}")
        for it in range(4): a(f"  v_mov_b32_dpp v{E+2*it}, v{E+2*it} row_shl:4 row_mask:0xf bank_mask:0x5")
        a(f"  v_mov_b32 v{T1}, 0xff800000")
        for it in range(4):
            a(f"  v_cndmask_b32 v{E+2*it}, v{T1}, v{E+2*it}, s[{MASK+2*it}:{MASK+2*it+1}]")
        a(f"  v_max3_f32 v{T0}, v{E}, v{E+2}, v{E+4}\n  v_max_f32 v{T0}, v{T0}, v{E+6}")
        a(f"  v_max_f32_dpp v{T0}, v{T0}, v{T0} row_ror:8 row_mask:0xf bank_mask:0xf")
        self.allred_g(T0, T1, "v_max_f32")
        for it in range(4): a(f"  v_sub_f32 v{W+it}, v{E+2*it}, v{T0}")
        for it in range(4): a(f"  v_exp_f32 v{W+it}, v{W+it}")
        a(f"  s_lshl_b32 s62, s{S_WAVE}, 2\n  s_add_u32 s62, s62, {MXW}\n  v_mov_b32 v{T1}, s62\n  ds_write_b32 v{T1}, v{T0}")
        for it in range(4):
            for q in range(3):
                c0 = "0" if it == 0 else f"v{V+2*q}"; c1 = "0" if it == 0 else f"v{V+2*q+1}"
                a(f"  v_fma_mix_f32 v{V+2*q}, v{D+4*it+q}, v{W+it}, {c0} op_sel_hi:[1,0,0]")
                a(f"  v_fma_mix_f32 v{V+2*q+1}, v{D+4*it+q}, v{W+it}, {c1} op_sel:[1,0,0] op_sel_hi:[1,0,0]")
        self.pk("v_pk_add_f32", W, W, W + 2)
        a(f"  v_add_f32 v{V+6}, v{W}, v{W+1}\n  v_mov_b32 v{V+7}, 0")
        for x, y in ((0, 2), (1, 3), (4, 6), (5, 7)): a(f"  v_permlane32_swap_b32 v{V+x}, v{V+y}")
        for x, y in ((0, 2), (1, 3), (4, 6), (5, 7)): a(f"  v_add_f32 v{V+x}, v{V+x}, v{V+y}")
        for x, y in ((0, 4), (1, 5)): a(f"  v_permlane16_swap_b32 v{V+x}, v{V+y}")
        for x, y in ((0, 4), (1, 5)): a(f"  v_add_f32 v{V+x}, v{V+x}, v{V+y}")
        for x in (0, 1): a(f"  v_add_f32_dpp v{V+x}, v{V+x}, v{V+x} row_ror:8 row_mask:0xf bank_mask:0xf")
        a(f"  ds_write_b64 v{X}, {vr(V,2)}\n  s_waitcnt lgkmcnt(0)")
        if cfg.rdiag: self.stamp(4)
        a("  s_barrier")
        if cfg.rdiag: self.stamp(5)
        a(f"  s_cmp_lg_u32 s{S_WAVE}, 0\n  s_cbranch_scc1 L_sdone")
        a(f"  v_mov_b32 v{T1}, {MXW}\n  ds_read_b128 {vr(W)}, v{T1}\n  ds_read_b128 {vr(W+4)}, v{T1} offset:16")
        for w in range(8): a(f"  ds_read_b64 {vr(D+2*w,2)}, v{Y} offset:{256*w}")
        a(f"  s_lshr_b32 s63, s{S_RHO}, 3\n  s_mul_i32 s63, s63, 768\n  s_add_u32 s63, s63, {RCTX_OFF}")
        a(f"  v_and_b32 v{X}, 8, v0\n  v_cmp_eq_u32 vcc, 0, v{X}\n  v_cmp_gt_u32 s[64:65], 48, v0\n  s_and_b64 s[64:65], vcc, s[64:65]")
        a("  s_waitcnt lgkmcnt(8)")
        a(f"  v_max3_f32 v{T0}, v{W}, v{W+1}, v{W+2}\n  v_max3_f32 v{T1}, v{W+3}, v{W+4}, v{W+5}\n  v_max3_f32 v{T0}, v{T0}, v{W+6}, v{W+7}\n  v_max_f32 v{T0}, v{T0}, v{T1}")
        for w in range(0, 8, 2): self.pk("v_pk_add_f32", W + w, W + w, T0, bc=(1,), neg=(1,))
        for w in range(8): a(f"  v_exp_f32 v{W+w}, v{W+w}")
        a("  s_waitcnt lgkmcnt(0)")
        for w in range(8):
            base = W + (w & ~1)
            sel = "op_sel:[0,1,0] op_sel_hi:[1,1,1]" if w & 1 else "op_sel_hi:[1,0,1]"
            if w == 0: a(f"  v_pk_mul_f32 {vr(E,2)}, {vr(D,2)}, {vr(base,2)} op_sel_hi:[1,0]")
            else: a(f"  v_pk_fma_f32 {vr(E,2)}, {vr(D+2*w,2)}, {vr(base,2)}, {vr(E,2)} {sel}")
        a(f"  v_readlane_b32 s62, v{E}, 48\n  v_rcp_f32 v{T0}, s62")
        self.pk("v_pk_mul_f32", E, E, T0, bc=(1,))
        a(f"  v_cvt_pk_bf16_f32 v{E}, v{E}, v{E+1}\n  v_min_u32 v{E}, -2, v{E}")
        a("  s_mov_b64 exec, s[64:65]")
        a(f"  buffer_store_dword v{E}, v{SA}, {sr(R_WS)}, s63 offen sc1")
        a("  s_mov_b64 exec, -1")

    def img_dma(self, srdr, lds, soff, vs0, vs1):
        for th in range(3):
            for q4 in range(4):
                self.img_dma1(srdr, lds, soff, vs0, vs1, th, q4)
    def img_dma1(self, srdr, lds, soff, vs0, vs1, th, q4, ldsreg=None):
        a = self.a
        if ldsreg is None: a(f"  s_mov_b32 m0, {lds + th*4096 + q4*1024}")
        else: a(f"  s_add_u32 m0, s{ldsreg}, {th*4096 + q4*1024}")
        a(f"  s_add_u32 s62, s{soff}, {q4*3072 + th*256}")
        a(f"  buffer_load_dwordx4 v{vs1 if q4 & 1 else vs0}, {sr(srdr)}, s62 offen{' nt' if self.cfg.hnt else ''} lds")

    def helper(self):
        a = self.a; cfg = self.cfg
        L16, N, Gq, T0, T1, T2, T3 = 1, 2, 3, 4, 5, 6, 7
        FL, TA, DS, VS0, VS1, ZERO = 8, 10, 11, 12, 13, 14
        IA = 16
        QF, AF, TR = 20, 68, 160
        WKF = 116
        D1, D2, D3, ST, ONES = 208, 212, 216, 220, 224
        a("L_helper:      ; ---------------- helpers")
        if cfg.streamonly == 1:
            a("  s_waitcnt lgkmcnt(0)")
            srd(a, R_WS, P_WS, WS_BYTES)
            a("  s_branch L_hdone")
        a(f"  v_lshlrev_b32 v{L16}, 4, v0\n  v_and_b32 v{N}, 15, v0\n  v_lshrrev_b32 v{Gq}, 4, v0\n  v_mov_b32 v{ZERO}, 0")
        a(f"  v_lshlrev_b32 v{T0}, 1, v{Gq}\n  v_xor_b32 v{T0}, v{N}, v{T0}\n  v_mul_u32_u24 v{T1}, 768, v{Gq}")
        a(f"  v_lshl_add_u32 v{VS0}, v{T0}, 4, v{T1}\n  v_xor_b32 v{T0}, 8, v{T0}\n  v_lshl_add_u32 v{VS1}, v{T0}, 4, v{T1}")
        a(f"  v_lshrrev_b32 v{T0}, 1, v0\n  v_mul_u32_u24 v{T0}, 768, v{T0}\n  v_and_b32 v{T1}, 1, v0\n  v_lshl_add_u32 v{T0}, v{T1}, 4, v{T0}")
        a(f"  s_lshl_b32 s61, s{S_IDX}, 5\n  v_add_u32 v{DS}, s61, v{T0}")
        a(f"  s_lshr_b32 s60, s{S_IDX}, 1\n  s_lshl_b32 s60, s60, 10\n  s_and_b32 s61, s{S_IDX}, 1\n  s_lshl_b32 s61, s61, 9\n  s_add_u32 s60, s60, s61")
        a(f"  v_lshrrev_b32 v{T0}, 1, v{Gq}\n  v_lshlrev_b32 v{T0}, 8, v{T0}\n  v_lshl_add_u32 v{T0}, v{N}, 4, v{T0}")
        a(f"  v_and_b32 v{T1}, 1, v{Gq}\n  v_lshl_add_u32 v{T0}, v{T1}, 3, v{T0}\n  v_add_u32 v{FL}, s60, v{T0}")
        if cfg.hdiag: self.stamp(8)
        a("  s_waitcnt lgkmcnt(0)")
        if cfg.hdiag: self.stamp(2)
        srd(a, R_WS, P_WS, WS_BYTES)
        a(f"  s_cmp_eq_u32 s{S_WAVE}, 1\n  s_cbranch_scc1 L_h1a")
        a(f"  s_cmp_eq_u32 s{S_WAVE}, 0\n  s_cbranch_scc1 L_h0a")
        a("  s_branch L_hb1")
        a("L_h1a:")
        srd(a, R_B, P_WQ, W_BYTES)
        for k in range(12):
            a(f"  s_mov_b32 m0, {H_WQI + k*1024}\n  s_mov_b32 s62, {k*32*768}\n  buffer_load_dwordx4 v{DS}, {sr(R_B)}, s62 offen{' nt' if cfg.hnt else ''} lds")
        a(f"  buffer_load_dword v9, v{ZERO}, {sr(R_WS)}, 0 offen offset:{NONCE_OFF} sc1")
        a(f"  v_mov_b32 v{T0}, -1\n  v_mov_b32 v{T0+1}, -1\n  v_mov_b32 v{T0+2}, -1\n  v_mov_b32 v{T0+3}, -1")
        a(f"  s_lshl_b32 s60, s{S_IDX}, 9\n  s_add_u32 s62, s60, {RQ_OFF}\n  s_add_u32 s63, s60, {RQK_OFF}\n  s_add_u32 s61, s60, {RCTX_OFF}")
        a("  s_mov_b32 s64, -1\n  s_mov_b32 s65, 0\n  s_mov_b64 exec, s[64:65]")
        for r in ("s62", "s63", "s61"): a(f"  buffer_store_dwordx4 {vr(T0)}, v{L16}, {sr(R_WS)}, {r} offen sc1")
        if cfg.dualq: a(f"  s_add_u32 s62, s60, {RQ2_OFF}\n  buffer_store_dwordx4 {vr(T0)}, v{L16}, {sr(R_WS)}, s62 offen sc1")
        a("  s_mov_b64 exec, -1")
        a(f"  s_waitcnt vmcnt({5 if cfg.dualq else 4})\n  s_branch L_hb1")
        a("L_h0a:")
        srd(a, R_A, P_Q, Q_BYTES)
        a("  s_mov_b32 s60, 0")
        self.img_dma(R_A, H_QI, 60, VS0, VS1)
        a(f"  buffer_load_dword v15, v{ZERO}, {sr(R_WS)}, 0 offen offset:{NONCE_OFF} sc1")
        a("  s_waitcnt vmcnt(0)\n  s_branch L_hb1")
        a("L_hb1:")
        self.stamp(7)
        T0, T1, T2 = 228, 229, 230
        srd(a, R_A, P_Q, Q_BYTES); srd(a, R_D, P_WV, W_BYTES); srd(a, R_F, P_OUT, Q_BYTES)
        a(f"  v_and_b32 v{T0}, 7, v{N}\n  v_lshlrev_b32 v{T0}, 1, v{T0}\n  v_lshlrev_b32 v{T1}, 8, v{N}")
        for m in range(4):
            a(f"  v_add_u32 v{T2}, {4*m}, v{Gq}\n  v_xor_b32 v{T2}, v{T2}, v{T0}\n  v_lshl_add_u32 v{IA+m}, v{T2}, 4, v{T1}")
        a(f"  v_lshrrev_b32 v{T0}, 2, v{N}\n  v_lshl_add_u32 v{T0}, v{Gq}, 3, v{T0}\n  v_lshlrev_b32 v{T0}, 5, v{T0}")
        a(f"  v_and_b32 v{T1}, 3, v{N}\n  v_lshl_add_u32 v{TA}, v{T1}, 3, v{T0}")
        for i in range(4): a(f"  v_mov_b32 v{ONES+i}, 0x3f803f80")
        a("  s_barrier")
        T0, T1, T2 = 4, 5, 6
        self.stamp(1)
        if cfg.cut >= 3: a("  s_branch L_hdone")
        a(f"  s_cmp_eq_u32 s{S_WAVE}, 0\n  s_cbranch_scc1 L_h0b")
        n1 = self.lab("notw1")
        a(f"  s_cmp_eq_u32 s{S_WAVE}, 1\n  s_cbranch_scc0 {n1}")
        a(f"  s_waitcnt vmcnt(0)\n  v_add_u32 v9, 1, v9\n  s_lshl_b32 s62, s{S_IDX}, 7\n  s_add_u32 s62, s62, {FLAG_OFF}\n  s_mov_b64 exec, 1")
        a(f"  buffer_store_dword v9, v{ZERO}, {sr(R_WS)}, s62 offen sc1\n  s_mov_b64 exec, -1\n  s_branch L_hb1c\n{n1}:")
        a(f"  s_cmp_eq_u32 s{S_WAVE}, 3\n  s_cbranch_scc1 L_h3b")
        a(f"  s_cmp_eq_u32 s{S_WAVE}, 2\n  s_cbranch_scc0 L_hb1c")
        srd(a, R_C, P_WK, W_BYTES)
        a(f"  s_mul_i32 s60, s{S_IDX}, {16*768}")
        self.img_dma(R_C, H_WKI, 60, VS0, VS1)
        a("  s_branch L_hb1c")
        a("L_h3b:")
        for j in range(12):
            a(f"  ds_read_b128 {vr(QF+4*j)}, v{IA+(j&3)} offset:{H_QI + (j>>2)*4096}")
        for j in range(12):
            a(f"  s_waitcnt lgkmcnt({11-j})")
            for i in range(4):
                a(f"  v_dot2_f32_bf16 v{ST+i}, v{QF+4*j+i}, v{QF+4*j+i}, {'0' if j == 0 else 'v%d' % (ST+i)}")
                a(f"  v_dot2_f32_bf16 v{D3+i}, v{QF+4*j+i}, v{ONES}, {'0' if j == 0 else 'v%d' % (D3+i)}")
        self.pk("v_pk_add_f32", ST, ST, ST + 2); self.pk("v_pk_add_f32", D3, D3, D3 + 2)
        a(f"  v_add_f32 v{ST}, v{ST}, v{ST+1}\n  v_add_f32 v{ST+1}, v{D3}, v{D3+1}")
        a(f"  v_permlane16_swap_b32 v{ST}, v{ST+1}\n  v_add_f32 v{ST}, v{ST}, v{ST+1}")
        a(f"  v_mov_b32 v{ST+1}, v{ST}\n  v_permlane32_swap_b32 v{ST+1}, v{ST}\n  v_add_f32 v{ST}, v{ST}, v{ST+1}")
        a(f"  v_mul_f32 v{ST}, {f32(1.0/384.0)}, v{ST}")
        a(f"  v_mov_b32 v{ST+1}, v{ST}\n  v_mov_b32 v{ST+2}, v{ST}\n  v_permlane16_swap_b32 v{ST+1}, v{ST+2}")
        a(f"  v_fma_f32 v{ST+3}, -v{ST+2}, v{ST+2}, v{ST+1}\n  v_max_f32 v{ST+3}, 0, v{ST+3}\n  v_add_f32 v{ST+3}, {f32(1e-5)}, v{ST+3}\n  v_rsq_f32 v{ST+3}, v{ST+3}")
        a(f"  v_lshlrev_b32 v{T0}, 3, v{N}\n  v_add_u32 v{T0}, {H_QS}, v{T0}\n  ds_write_b64 v{T0}, {vr(ST+2,2)}\n  s_waitcnt lgkmcnt(0)")
        a("L_hb1c:\n  s_barrier")
        a("  s_branch L_hb2")
        a("L_h0b:")
        a(f"  v_add_u32 v15, 1, v15")
        self.flag_addr(T3)
        a(f"  v_readfirstlane_b32 s{S_NONCE}, v15\n  buffer_load_dword v9, v{T3}, {sr(R_WS)}, 0 offen sc1")
        for j in range(12):
            a(f"  ds_read_b128 {vr(QF+4*j)}, v{IA+(j&3)} offset:{H_QI + (j>>2)*4096}")
        def tr(j):
            a(f"  ds_read_b64_tr_b16 {vr(TR+4*j,2)}, v{TA} offset:{H_WQI + j*1024}")
            a(f"  ds_read_b64_tr_b16 {vr(TR+4*j+2,2)}, v{TA} offset:{H_WQI + j*1024 + 128}")
        a("  s_waitcnt lgkmcnt(3)")
        for j in range(6): tr(j)
        for j in range(12):
            left = min(12, j + 6) - j - 1
            a(f"  s_waitcnt lgkmcnt({2*left})")
            if j + 6 < 12: tr(j + 6)
            a(f"  v_mfma_f32_16x16x32_bf16 {vr(D1)}, {vr(TR+4*j)}, {vr(QF+4*j)}, {'0' if j == 0 else vr(D1)}")
            a(f"  v_mfma_f32_16x16x32_bf16 {vr(D2)}, {vr(TR+4*j)}, {vr(ONES)}, {'0' if j == 0 else vr(D2)}")
        a("  s_barrier")
        a(f"  v_lshlrev_b32 v{T0}, 3, v{N}\n  v_add_u32 v{T0}, {H_QS}, v{T0}\n  ds_read_b64 {vr(ST,2)}, v{T0}\n  s_waitcnt lgkmcnt(0)")
        for r in range(4): a(f"  v_fma_f32 v{D1+r}, -v{ST}, v{D2+r}, v{D1+r}")
        for r in range(4): a(f"  v_mul_f32 v{D1+r}, v{ST+1}, v{D1+r}")
        a(f"  v_cvt_pk_bf16_f32 v{D2}, v{D1}, v{D1+1}\n  v_cvt_pk_bf16_f32 v{D2+1}, v{D1+2}, v{D1+3}")
        a(f"  v_min_u32 v{D2}, -2, v{D2}\n  v_min_u32 v{D2+1}, -2, v{D2+1}\n  s_mov_b32 s62, {RQ_OFF}")
        if cfg.dualq: a(f"  s_mov_b32 s63, {RQ2_OFF}\n  buffer_store_dwordx2 {vr(D2,2)}, v{FL}, {sr(R_WS)}, s63 offen")
        a(f"  buffer_store_dwordx2 {vr(D2,2)}, v{FL}, {sr(R_WS)}, s62 offen sc1")
        self.stamp(2)
        hv = self.lab("haveflags")
        a(f"  s_waitcnt vmcnt({2 if cfg.dualq else 1})\n  v_cmp_ne_u32 vcc, s{S_NONCE}, v9\n  s_cbranch_vccz {hv}")
        self.wait_flags(9, T3)
        a(f"{hv}:\n  s_mov_b32 s62, {RQ_OFF}")
        if cfg.qdelay: a(f"  s_sleep {cfg.qdelay}")
        if cfg.dualq:
            lp, tryA, dn = self.lab("q2"), self.lab("q2a"), self.lab("q2d")
            a(f"  s_mov_b32 s{S_SPIN}, 0\n{lp}:")
            a(f"  s_mov_b32 s62, {RQ2_OFF}\n  s_mov_b32 s63, {RQ2_OFF+4096}\n  s_mov_b32 s64, {RQ2_OFF+8192}")
            for j in range(12): a(f"  buffer_load_dwordx4 {vr(AF+4*j)}, v{L16}, {sr(R_WS)}, s{62 + (j >> 2)} offen offset:{(j&3)*1024} sc1")
            self.spin_guard(dn)
            a("  s_waitcnt vmcnt(0)")
            self.valid_check(AF, 48, T0, tryA)
            a(f"  s_branch {dn}\n{tryA}:")
            if cfg.q2n > 1:
                a(f"  s_cmp_lt_u32 s{S_SPIN}, {cfg.q2n}\n  s_cbranch_scc1 {lp}")
            a(f"  s_mov_b32 s62, {RQ_OFF}\n  s_mov_b32 s63, {RQ_OFF+4096}\n  s_mov_b32 s64, {RQ_OFF+8192}")
            for j in range(12): a(f"  buffer_load_dwordx4 {vr(AF+4*j)}, v{L16}, {sr(R_WS)}, s{62 + (j >> 2)} offen offset:{(j&3)*1024} sc1")
            a("  s_waitcnt vmcnt(0)")
            self.valid_check(AF, 48, T0, lp)
            a(f"{dn}:\n  s_waitcnt vmcnt(0)")
        else:
            self.gather_frags(12, AF, L16, 62, T0, "q", sleep=cfg.qsleep)
        self.stamp(3)
        a("  s_barrier")
        for j in range(12):
            a(f"  ds_read_b128 {vr(WKF+4*j)}, v{IA+(j&3)} offset:{H_WKI + (j>>2)*4096}")
        for j in range(12):
            dd = D1 if j % 2 == 0 else D2
            a(f"  s_waitcnt lgkmcnt({11-j})")
            a(f"  v_mfma_f32_16x16x32_bf16 {vr(dd)}, {vr(WKF+4*j)}, {vr(AF+4*j)}, {'0' if j < 2 else vr(dd)}")
        sc = f32(384 ** -0.5 * LOG2E)
        for r in range(4): a(f"  v_add_f32 v{D1+r}, v{D1+r}, v{D2+r}")
        for r in range(4): a(f"  v_mul_f32 v{D1+r}, {sc}, v{D1+r}")
        a(f"  v_cvt_pk_bf16_f32 v{D2}, v{D1}, v{D1+1}\n  v_cvt_pk_bf16_f32 v{D2+1}, v{D1+2}, v{D1+3}")
        a(f"  v_min_u32 v{D2}, -2, v{D2}\n  v_min_u32 v{D2+1}, -2, v{D2+1}\n  s_mov_b32 s62, {RQK_OFF}")
        a(f"  buffer_store_dwordx2 {vr(D2,2)}, v{FL}, {sr(R_WS)}, s62 offen sc1")
        self.stamp(4)
        a("  s_branch L_hwvo")
        a("L_hb2:\n  s_waitcnt vmcnt(0)\n  s_barrier")
        a("L_hwvo:")
        if cfg.cut >= 2: a("  s_branch L_hdone")
        a(f"  s_cmp_eq_u32 s{S_WAVE}, 3\n  s_cbranch_scc0 L_hwv2")
        srd(a, R_E, P_WO, W_BYTES)
        for k in range(12):
            a(f"  s_mov_b32 m0, {H_WOI + k*1024}\n  s_mov_b32 s62, {k*32*768}\n  buffer_load_dwordx4 v{DS}, {sr(R_E)}, s62 offen{' nt' if cfg.hnt else ''} lds")
        a("L_hwv2:")
        a(f"  s_mul_i32 s60, s{S_WAVE}, {48*768}\n  s_mul_i32 s61, s{S_WAVE}, 12288\n  s_add_u32 s61, s61, {H_WV}")
        for th in range(3):
            for q4 in range(4): self.img_dma1(R_D, 0, 60, VS0, VS1, th, q4, ldsreg=61)
        a("  s_waitcnt vmcnt(12)\n  s_barrier")
        for j in range(12):
            a(f"  ds_read_b64_tr_b16 {vr(TR+4*j,2)}, v{TA} offset:{H_WOI + j*1024}")
            a(f"  ds_read_b64_tr_b16 {vr(TR+4*j+2,2)}, v{TA} offset:{H_WOI + j*1024 + 128}")
            if j == 6: a("  s_waitcnt lgkmcnt(0)")
        for m in range(4): a(f"  v_add_u32 v{IA+m}, s61, v{IA+m}")
        a(f"  v_mul_u32_u24 v{T0}, 784, v{N}\n  v_lshl_add_u32 v{T0}, v{Gq}, 3, v{T0}\n  s_mul_i32 s62, s{S_WAVE}, 96\n  s_add_u32 s62, s62, {H_WT}\n  v_add_u32 v{T3}, s62, v{T0}")
        for tau in range(3):
            if tau < 2: a(f"  s_add_u32 s60, s60, {16*768}")
            for th in range(3):
                a(f"  s_waitcnt vmcnt({8 if tau < 2 else 8 - 4*th})")
                for m in range(4): a(f"  ds_read_b128 {vr(WKF+4*m)}, v{IA+m} offset:{th*4096}")
                a("  s_waitcnt lgkmcnt(0)")
                if tau < 2:
                    for q4 in range(4): self.img_dma1(R_D, 0, 60, VS0, VS1, th, q4, ldsreg=61)
                for m in range(4):
                    j = 4 * th + m
                    a(f"  v_mfma_f32_16x16x32_bf16 {vr(D1)}, {vr(WKF+4*m)}, {vr(TR+4*j)}, {'0' if j == 0 else vr(D1)}")
            a(f"  v_cvt_pk_bf16_f32 v{D2}, v{D1}, v{D1+1}\n  v_cvt_pk_bf16_f32 v{D2+1}, v{D1+2}, v{D1+3}")
            a(f"  ds_write_b64 v{T3}, {vr(D2,2)} offset:{tau*32}")
        a("  s_waitcnt lgkmcnt(0)\n  s_barrier")
        self.stamp(5)
        if cfg.cut >= 1: a("  s_branch L_hdone")
        a(f"  s_cmp_lg_u32 s{S_WAVE}, 0\n  s_cbranch_scc1 L_hdone")
        a(f"  v_mul_u32_u24 v{T0}, 784, v{N}\n  v_lshl_add_u32 v{T0}, v{Gq}, 4, v{T0}\n  v_add_u32 v{T0}, {H_WT}, v{T0}")
        for j in range(12): a(f"  ds_read_b128 {vr(WKF+4*j)}, v{T0} offset:{j*64}")
        a(f"  v_mul_u32_u24 v{T3}, 768, v{N}\n  v_lshl_add_u32 v{T3}, v{Gq}, 3, v{T3}\n  s_lshl_b32 s61, s{S_IDX}, 5")
        a(f"  buffer_load_dwordx2 {vr(QF,2)}, v{T3}, {sr(R_A)}, s61 offen")
        a("  s_waitcnt vmcnt(0) lgkmcnt(0)")
        a(f"  v_lshlrev_b32 v{QF+4}, 16, v{QF}\n  v_and_b32 v{QF+5}, 0xffff0000, v{QF}\n  v_lshlrev_b32 v{QF+6}, 16, v{QF+1}\n  v_and_b32 v{QF+7}, 0xffff0000, v{QF+1}")
        a(f"  v_mul_u32_u24 v{T2}, 768, v{N}\n  v_lshl_add_u32 v{T2}, v{Gq}, 4, v{T2}\n  s_mov_b32 s62, {RCTX_OFF}")
        if cfg.c1sleep:
            lp, dn = self.lab("c1"), self.lab("c1d")
            a(f"  s_mov_b32 s{S_SPIN}, 0\n{lp}:\n  buffer_load_dword v{AF}, v{T2}, {sr(R_WS)}, s62 offen sc1")
            self.spin_guard(dn)
            if cfg.call: a(f"  s_waitcnt vmcnt(0)\n  v_cmp_eq_u32 vcc, -1, v{AF}\n  s_cbranch_vccz {dn}\n  s_sleep {cfg.c1sleep}\n  s_branch {lp}\n{dn}:\n  s_waitcnt vmcnt(0)")
            else: a(f"  s_waitcnt vmcnt(0)\n  v_cmp_ne_u32 vcc, -1, v{AF}\n  s_cbranch_vccnz {dn}\n  s_sleep {cfg.c1sleep}\n  s_branch {lp}\n{dn}:\n  s_waitcnt vmcnt(0)")
        if cfg.cdelay: a(f"  s_sleep {cfg.cdelay}")
        self.gather_frags(12, AF, T2, 62, T0, "c", rowmajor=True, sleep=cfg.csleep)
        self.stamp(6)
        for j in range(12):
            dd = D1 if j % 2 == 0 else D2
            c1 = vr(QF+4) if j == 0 else ("0" if j == 1 else vr(dd))
            a(f"  v_mfma_f32_16x16x32_bf16 {vr(dd)}, {vr(WKF+4*j)}, {vr(AF+4*j)}, {c1}")
        for h in (0, 2): self.pk("v_pk_add_f32", D1 + h, D1 + h, D2 + h)
        a(f"  v_cvt_pk_bf16_f32 v{D2}, v{D1}, v{D1+1}\n  v_cvt_pk_bf16_f32 v{D2+1}, v{D1+2}, v{D1+3}")
        a(f"  buffer_store_dwordx2 {vr(D2,2)}, v{T3}, {sr(R_F)}, s61 offen")
        nn = self.lab("nononce")
        a(f"  s_cmp_lg_u32 s{S_IDX}, 0\n  s_cbranch_scc1 {nn}")
        a(f"  buffer_store_dword v15, v{ZERO}, {sr(R_WS)}, 0 offen offset:{NONCE_OFF} sc1\n{nn}:")
        a("L_hdone:")
        self.stamp(9); self.stamp_flush((0, 0, 2, (0, 1, 3, 4, 5, 6)))
        a("  s_endpgm")

    def collector(self):
        a = self.a
        a("L_collect:     ; ---------------- collector")
        a(f"  s_cmp_lg_u32 s{S_WAVE}, 0\n  s_cbranch_scc1 L_end\n  s_waitcnt lgkmcnt(0)")
        srd(a, R_WS, P_WS, WS_BYTES)
        a(f"  v_mov_b32 v2, 0\n  buffer_load_dword v3, v2, {sr(R_WS)}, 0 offen offset:{NONCE_OFF} sc1")
        self.flag_addr(4)
        a(f"  s_waitcnt vmcnt(0)\n  v_add_u32 v3, 1, v3\n  v_readfirstlane_b32 s{S_NONCE}, v3")
        self.wait_flags(5, 4)
        a(f"  s_mov_b32 s62, {GO_OFF}\n  s_mov_b64 exec, 1\n  buffer_store_dword v3, v2, {sr(R_WS)}, s62 offen sc1")
        a("  s_endpgm")

    def build(self):
        a = self.a
        hdr = open("standalone__detection_seg_dino__vision.s.ref").read().split("\n")
        for line in hdr:
            if line.startswith("; @launch"): break
            a(line)
        a("; @" + f"launch grid=(256,1,1) block=(512,1,1) lds={LDS_BYTES}")
        for line in HEADER.strip("\n").split("\n"): a(("; " + line).rstrip())
        a('.amdgcn_target "amdgcn-amd-amdhsa--gfx950"\n.text')
        a(f".globl {KNAME}\n.p2align 8\n.type {KNAME},@function\n{KNAME}:")
        n0 = len(a.L)
        self.prologue(); self.streamer(); self.helper(); self.collector()
        a("L_end:\n  s_endpgm\nL_code_end:")
        body, added = hazard.fix(a.L[n0:])
        a.L = a.L[:n0] + body
        a('.section .rodata,"a"\n.p2align 6')
        a(f".amdhsa_kernel {KNAME}")
        a("  .amdhsa_next_free_vgpr 256\n  .amdhsa_next_free_sgpr 102\n  .amdhsa_accum_offset 256")
        a("  .amdhsa_group_segment_fixed_size 0\n  .amdhsa_kernarg_size 80\n  .amdhsa_user_sgpr_count 2")
        a("  .amdhsa_user_sgpr_kernarg_segment_ptr 1\n  .amdhsa_system_sgpr_workgroup_id_x 1")
        a("  .amdhsa_float_denorm_mode_32 3")
        a(".end_amdhsa_kernel")
        return a.text(), added

def generate(path, **kw):
    cfg = Cfg()
    for k, v in kw.items(): setattr(cfg, k, v)
    text, added = G(cfg).build()
    open(path, "w").write(text)
    return added

if __name__ == "__main__":
    path = sys.argv[1] if len(sys.argv) > 1 else "standalone__detection_seg_dino__vision.s"
    kw = {}
    for x in sys.argv[2:]:
        k, v = x.split("="); kw[k] = eval(v)
    print("nops added:", generate(path, **kw))
```

```python
import sys, struct
from asmlib import Asm
import hazard

KNAME = "standalone__detection_seg_dino__vision_kernel"

NH, NS, NPAIR = 24, 228, 9
F0_BYTES, F1_BYTES, W_BYTES, Q_BYTES = 50331648, 12582912, 294912, 12288
WS_BYTES = 268435456

NONCE_OFF = 0
HINT_OFF = 1024
RQ_OFF, RQK_OFF, RCTX_OFF = 4096, 20480, 36864
RQ2_OFF = 65536
GO_OFF = 53248
FLAG_OFF = 49152
LSE_OFF = 65536
PART_OFF = 131072
PART_STRIDE = NS * 128
STAMP_OFF = 8 << 20

SLOT = 12288
STG = 12 * SLOT
TOP = 13 * SLOT
STAT = TOP
STAT_S = 384
STAT2 = STG + 7168
NONCE_LDS = TOP + 3840
FLAG_LDS = TOP + 3844
QS_LDS = TOP + 3856
RED = STG + 5120
MX = STG + 6144
MXW = STG + 6656
RED2 = STG + 8192
LDS_BYTES = 163840
H_QI, H_WKI, H_WQI, H_WOI, H_WT, H_WV = 0, 12288, 24576, 36864, 49152, 65536
H_QS = 61952

LAG_LIMIT = 40.0
LOW_LIMIT = -60.0
KEYC = 0x9e3779b1
LOG2E = 1.4426950408889634
def f32(x): return "0x%08x" % struct.unpack("<I", struct.pack("<f", x))[0]

HEADER = """
Cross-attention of 16 queries over 65536 layer-normalised positions, one persistent launch of 256 workgroups.
  out = q + softmax(LN(q) wq wk^T LN(x)^T / sqrt(C)) LN(x) wv wo,  x = bf16(f0 + upsample(f1))
The weights are associated as Qk = LN(q) wq wk^T (16x384) and Wvo = wv wo, so x is read once and never projected.
LN(x) enters through its row statistics: logit = rstd (x.Qk - mean sum(Qk)), context = (sum P' x - sum P' mean) / L.
Roles by workgroup id (placement matters for speed only):
  helpers   (24: ids 0,8,..,184)  Q slice -> all helpers -> Qk slice -> all streamers; Wvo^T slice; final product
  streamers (228)                 nine pairs of 16-position tiles each; the first 128 also reduce one slice of the context
  collector (id 252)              folds the helpers' flags into one word
Streamer: waves 0..5 fuse f0+f1 into bf16 tiles in a ring of 12 LDS slots and accumulate row statistics, wave 6 fetches Qk.
  S^T = X Qk^T per tile, P' = 2^(logit - ref) rstd, context^T += X^T P'^T with the channels split over the eight waves.
  Softmax reference: 0 for the first eight tiles, then unchanged, while every logit stays inside [ref-60, ref+40]
  (lower bound: first eight tiles); any logit outside sends the workgroup to the path with exact running maxima.
  Partial results leave normalised (f16) with their log-sum-exp; the reducers weigh them with the exact global maximum.
Hand-offs through d_ws, all with sc1 stores and sc1 loads:
  nonce  = word 0 of d_ws at entry + 1, read by every role, written back by helper 0 after the last hand-off
  Q, Qk, context: words are set to 0xffffffff by their helper first (flag = nonce once acknowledged), data never equals that
  partial lines: every 16-byte unit carries the nonce (A units) or lse ^ (nonce + g*K) (B units, four must agree)
  Every poll loop is bounded.  s_sleep occurs only as back-off of a consumer that polls lines other workgroups are about
  to write: a line read too early has to be invalidated again, which delays its writer and the next read.
"""

class Cfg:
    nt = True
    stamp = False
    depth = 4
    hx0 = 0
    hnx = 1
    hint = True
    codepf = True
    nostream = False
    dbgstamp = False
    pfrows = 4
    cut = 0
    lite = False
    trig_a = 2
    trig_b = 4
    qsleep = 4
    c1sleep = 6
    lag = True
    prefuse = False
    late = False
    sched = 1
    streamonly = False
    rsleep = 0
    csleep = 0
    ext7 = 1
    ext8 = 1
    zref = True
    redsel = 0
    fdiag = False
    late8 = False
    dlate = 5
    xlate = 3
    pvfuse = False
    rdelay = 34
    rack = False
    cdelay = 16
    qdelay = 0
    kdelay = 0
    call = False
    noatom = False
    q2n = 4
    dualq = False
    wkearly = 2
    wvolate = 2
    hdiag = False
    gdiag = False
    rdiag = False
    bdiag_sb = 4
    bdiag = False
    selpoll = 2
    hnt = False

S_WAVE = 3
P_Q, P_F0, P_F1, P_WQ, P_WK, P_WV, P_WO, P_OUT, P_DBG, P_WS = 4, 6, 8, 10, 12, 14, 16, 18, 20, 22
R_A, R_B, R_WS, R_DBG, R_C, R_D, R_E, R_F = 24, 28, 32, 36, 40, 44, 48, 52
S_IDX, S_ONELO, S_ONEHI = 56, 57, 58
S_K, S_QBASE, S_LINK = 66, 67, 68
S_NONCE, S_SPIN = 70, 71
S_TI, S_TB, S_PB, S_BIAS, S_T, S_P0, S_SB, S_W0, S_NP, S_PVB, S_LAST = 72, 73, 74, 75, 76, 77, 78, 79, 80, 81, 59
S_SST = 48
S_STA, S_PAIR, S_POFF = 49, 52, 53
S_LINK2 = 54
S_LOW = 47
S_RHO = 79
S_QMASK = 50
SETA, SETB = 40, 44
STAMP0 = 82
SPIN_CAP = 200000
import os
if os.environ.get('CAP'): SPIN_CAP = int(os.environ['CAP'])

def srd(a, s, ptr, nbytes):
    a(f"  s_mov_b32 s{s}, s{ptr}\n  s_mov_b32 s{s+1}, s{ptr+1}\n  s_mov_b32 s{s+2}, {nbytes}\n  s_mov_b32 s{s+3}, 0x20000")
def vr(b, n=4): return f"v[{b}:{b+n-1}]"
def sr(b, n=4): return f"s[{b}:{b+n-1}]"

class G:
    def __init__(self, cfg):
        self.cfg = cfg; self.a = Asm(); self.uid = 0
        self.dsadd = 'ds_write_b32' if cfg.noatom else 'ds_add_f32'
    def lab(self, name):
        self.uid += 1
        return f"L_{name}_{self.uid}"
    def stamp(self, i):
        if self.cfg.fdiag: return
        if self.cfg.lite and i not in (0, 9): return
        if self.cfg.stamp and not self.cfg.bdiag:
            self.a(f"  s_memrealtime s[{STAMP0+2*i}:{STAMP0+2*i+1}]\n  s_waitcnt lgkmcnt(0)")
    def fstamp(self, i):
        if self.cfg.fdiag: self.a(f"  s_memtime s[{STAMP0+2*i}:{STAMP0+2*i+1}]\n  s_waitcnt lgkmcnt(0)")
    def cstamp(self, i):
        if self.cfg.bdiag:
            l = self.lab("cs")
            self.a(f"  s_cmp_lg_u32 s{S_SB}, {self.cfg.bdiag_sb}\n  s_cbranch_scc1 {l}\n  s_memtime s[{STAMP0+2*i}:{STAMP0+2*i+1}]\n  s_waitcnt lgkmcnt(0)\n{l}:")
    def stamp_init(self):
        if self.cfg.stamp:
            for i in range(20): self.a(f"  s_mov_b32 s{STAMP0+i}, 0")
    def stamp_flush(self, dbg=None):
        if not self.cfg.stamp: return
        a = self.a
        if self.cfg.dbgstamp and dbg:
            who, wave, first, which = dbg
            sk = self.lab("nodbg")
            a(f"  s_cmp_lg_u32 s{S_IDX}, {who}\n  s_cbranch_scc1 {sk}\n  s_cmp_lg_u32 s{S_WAVE}, {wave}\n  s_cbranch_scc1 {sk}")
            srd(a, R_DBG, P_DBG, 256)
            a("  v_mov_b32 v1, 0")
            for i, st in enumerate(which):
                a(f"  v_mov_b32 v2, s{STAMP0+2*st}\n  buffer_store_dword v2, v1, {sr(R_DBG)}, 0 offen offset:{4*(first+i)}\n  s_nop 0")
            a(f"{sk}:")
        if self.cfg.dbgstamp: return
        if self.cfg.lite:
            if dbg[0] != 0: return
            sk = self.lab("nolite")
            a(f"  s_cmp_lg_u32 s{S_WAVE}, 0\n  s_cbranch_scc1 {sk}")
            a("  s_lshl_b32 s60, s2, 3\n  s_lshl_b32 s60, s60, 6")
            a(f"  s_add_u32 s60, s60, {STAMP_OFF}\n  v_mov_b32 v1, 0\n  v_mov_b32 v2, s{STAMP0}\n  v_mov_b32 v3, s{STAMP0+18}")
            a(f"  buffer_store_dword v2, v1, {sr(R_WS)}, s60 offen\n  buffer_store_dword v3, v1, {sr(R_WS)}, s60 offen offset:36\n{sk}:")
            return
        a("  s_lshl_b32 s60, s2, 3\n  s_add_u32 s60, s60, s3\n  s_lshl_b32 s60, s60, 6")
        a(f"  s_add_u32 s60, s60, {STAMP_OFF}\n  v_mov_b32 v1, 0")
        for i in range(10):
            a(f"  v_mov_b32 v2, s{STAMP0+2*i}\n  buffer_store_dword v2, v1, {sr(R_WS)}, s60 offen offset:{4*i}\n  s_nop 0")

    def allred_g(self, x, t, op):
        a = self.a
        a(f"  v_mov_b32 v{t}, v{x}\n  v_permlane16_swap_b32 v{t}, v{x}\n  {op} v{x}, v{t}, v{x}")
        a(f"  v_mov_b32 v{t}, v{x}\n  v_permlane32_swap_b32 v{t}, v{x}\n  {op} v{x}, v{t}, v{x}")
    def valid_check(self, base, n, t, retry):
        a = self.a
        a(f"  v_max3_u32 v{t}, v{base}, v{base+1}, v{base+2}")
        h = n // 2
        a(f"  v_max3_u32 v{t+1}, v{base+h}, v{base+h+1}, v{base+h+2}")
        i, k = 3, h + 3
        while i < h or k < n:
            if i + 1 < h: a(f"  v_max3_u32 v{t}, v{t}, v{base+i}, v{base+i+1}"); i += 2
            elif i < h: a(f"  v_max_u32 v{t}, v{t}, v{base+i}"); i += 1
            if k + 1 < n: a(f"  v_max3_u32 v{t+1}, v{t+1}, v{base+k}, v{base+k+1}"); k += 2
            elif k < n: a(f"  v_max_u32 v{t+1}, v{t+1}, v{base+k}"); k += 1
        a(f"  v_max_u32 v{t}, v{t}, v{t+1}\n  v_cmp_eq_u32 vcc, -1, v{t}\n  s_cbranch_vccnz {retry}")
    def spin_guard(self, done):
        self.a(f"  s_add_u32 s{S_SPIN}, s{S_SPIN}, 1\n  s_cmp_gt_u32 s{S_SPIN}, {SPIN_CAP}\n  s_cbranch_scc1 {done}")
    def flag_addr(self, va):
        self.a(f"  v_min_u32 v{va}, {NH-1}, v0\n  v_lshlrev_b32 v{va}, 7, v{va}\n  v_add_u32 v{va}, {FLAG_OFF}, v{va}")
    def wait_flags(self, vd, va, first_issued=False):
        a = self.a
        lp, ck, dn = self.lab("flg"), self.lab("flgc"), self.lab("flgd")
        a(f"  s_mov_b32 s{S_SPIN}, 0")
        if first_issued: a(f"  s_branch {ck}")
        a(f"{lp}:\n  buffer_load_dword v{vd}, v{va}, {sr(R_WS)}, 0 offen sc1")
        self.spin_guard(dn)
        a(f"{ck}:\n  s_waitcnt vmcnt(0)\n  v_cmp_ne_u32 vcc, s{S_NONCE}, v{vd}\n  s_cbranch_vccnz {lp}")
        a(f"{dn}:\n  s_waitcnt vmcnt(0)")
    def gather_frags(self, nfr, dst, vaddr, off0, t, name, rowmajor=False, sleep=0):
        a = self.a
        lp, dn, l0 = self.lab(name), self.lab(name + "d"), self.lab(name + "0")
        a(f"  s_add_u32 s63, s{off0}, 4096\n  s_add_u32 s64, s{off0}, 8192\n  s_mov_b32 s{S_SPIN}, 0")
        if sleep: a(f"  s_branch {l0}\n{lp}:\n  s_sleep {sleep}\n{l0}:")
        else: a(f"{lp}:")
        for j in range(nfr):
            so = (f"s{off0}", "s63", "s64")[j >> 2]
            if rowmajor: a(f"  buffer_load_dwordx4 {vr(dst+4*j)}, v{vaddr}, {sr(R_WS)}, s{off0} offen offset:{j*64} sc1")
            else: a(f"  buffer_load_dwordx4 {vr(dst+4*j)}, v{vaddr}, {sr(R_WS)}, {so} offen offset:{(j&3)*1024} sc1")
        self.spin_guard(dn)
        a("  s_waitcnt vmcnt(0)")
        self.valid_check(dst, 4 * nfr, t, lp)
        a(f"{dn}:\n  s_waitcnt vmcnt(0)")

    def prologue(self):
        a = self.a; cfg = self.cfg
        a("  s_cmp_ge_u32 s2, 256\n  s_cbranch_scc1 L_end")
        a("  s_load_dwordx16 s[4:19], s[0:1], 0\n  s_load_dwordx4 s[20:23], s[0:1], 64")
        if cfg.codepf:
            l = self.lab("pc")
            a(f"  s_cmp_ge_u32 s2, {8*cfg.pfrows}\n  s_cbranch_scc1 L_nopf")
            a(f"  s_getpc_b64 s[60:61]\n{l}:\n  s_sub_u32 s60, s60, {l}-{KNAME}\n  s_subb_u32 s61, s61, 0")
            a(f"  s_bfe_u32 s62, s2, 0x20003\n  s_lshl_b32 s62, s62, 13\n  v_lshl_add_u32 v246, v0, 4, s62")
            a(f"  v_min_u32 v246, L_code_end-{KNAME}-16, v246\n  global_load_dwordx4 v[168:171], v246, s[60:61]")
            a("L_nopf:")
        a("  v_lshrrev_b32 v1, 6, v0\n  v_and_b32 v0, 63, v0")
        a(f"  v_readfirstlane_b32 s{S_WAVE}, v1")
        a(f"  s_mov_b32 s{S_ONELO}, 0x00003f80\n  s_mov_b32 s{S_ONEHI}, 0x3f800000")
        self.stamp_init(); self.stamp(0)
        rows = NH // cfg.hnx
        a(f"  s_and_b32 s60, s2, 7\n  s_lshr_b32 s61, s2, 3\n  s_sub_u32 s62, s60, {cfg.hx0}")
        a(f"  s_cmp_lt_u32 s61, {rows}\n  s_cbranch_scc0 L_late")
        a(f"  s_cmp_lt_u32 s62, {cfg.hnx}\n  s_cbranch_scc0 L_early")
        a(f"  s_mul_i32 s{S_IDX}, s61, {cfg.hnx}\n  s_add_u32 s{S_IDX}, s{S_IDX}, s62\n  s_branch L_helper")
        a("L_early:")
        a(f"  s_cmp_lt_u32 s60, {cfg.hx0}\n  s_cselect_b32 s62, 0, {cfg.hnx}\n  s_sub_u32 s62, s60, s62")
        a(f"  s_mul_i32 s{S_IDX}, s61, {8-cfg.hnx}\n  s_add_u32 s{S_IDX}, s{S_IDX}, s62\n  s_branch L_stream")
        a(f"L_late:\n  s_sub_u32 s{S_IDX}, s2, {NH}")
        a(f"  s_cmp_eq_u32 s{S_IDX}, {NS}\n  s_cbranch_scc1 L_collect")
        a(f"  s_cmp_ge_u32 s{S_IDX}, {NS}\n  s_cbranch_scc1 L_end")
        a("L_stream:      ; ---------------- streamers")
        if cfg.nostream: a("  s_branch L_end")

    def code_prefetch(self, vt, vd):
        if not self.cfg.codepf: return
        a = self.a
        l = self.lab("pc")
        a(f"  s_getpc_b64 s[60:61]\n{l}:")
        a(f"  s_sub_u32 s60, s60, {l}-{KNAME}\n  s_subb_u32 s61, s61, 0")
        a(f"  s_lshr_b32 s62, s2, 3\n  s_lshl_b32 s62, s62, 10\n  v_lshl_add_u32 v{vt}, v0, 4, s62")
        a(f"  v_min_u32 v{vt}, L_code_end-{KNAME}-16, v{vt}")
        a(f"  global_load_dwordx4 {vr(vd)}, v{vt}, s[60:61]")

    V_OFF1, V_OFF0, V_SA = 2, 3, 255
    V_WA = (4, 5, 253, 254)
    V_RA, V_PA = 6, 10
    V_PADDR, V_MXW, V_MXR = 13, 14, 15
    V_ST = 128
    V_BUF = (16, 36, 56)
    V_PU, V_TMP, V_OUT = 144, 152, 160
    V_LT, V_AT = 76, 78
    V_QK, V_A, V_ACC = 80, 128, 176
    V_S, V_SUM, V_SQ4, V_SQ, V_MU, V_RS, V_LG = 188, 192, 196, 200, 204, 208, 212
    V_ONES = 216
    V_M, V_AL, V_L2, V_AM2, V_QS, V_CINV, V_CEPS, V_BIAS = 220, 222, 224, 226, 228, 230, 232, 234
    V_T0, V_T1, V_T2, V_ONEF = 236, 237, 238, 239
    V_MXV, V_TA, V_L16 = 240, 248, 252
    V_PUB = 196
    V_REDW = 198
    V_STR = 1

    def task_bases(self, st, kconst, kreg=True):
        a = self.a
        if kreg: a(f"  s_add_u32 s62, s{S_K}, {kconst}")
        else: a(f"  s_mov_b32 s62, {kconst}")
        a(f"  s_lshl_b32 s63, s62, 1\n  s_add_u32 s63, s63, s{S_QBASE}")
        a(f"  s_mul_i32 s{st}, s63, 3072\n  s_lshr_b32 s64, s63, 5\n  s_mul_i32 s64, s64, 393216")
        a(f"  s_and_b32 s65, s63, 31\n  s_mul_i32 s65, s65, 6144\n  s_add_u32 s{st+1}, s64, s65")
        a(f"  s_cmp_gt_u32 s62, {NPAIR-1}\n  s_cselect_b32 s{st}, 0x80000000, s{st}\n  s_cselect_b32 s{st+1}, 0x80000000, s{st+1}")
        a(f"  s_add_u32 s{st+2}, s{st+1}, 196608")
    def issue_piece(self, st, par, i):
        a = self.a
        nt = " nt" if self.cfg.nt else ""
        b = self.V_BUF[par] + 4 * i
        if i == 0:
            a(f"  buffer_load_dwordx4 {vr(b)}, v{self.V_OFF1}, {sr(R_B)}, s{st} offen{nt}")
        else:
            t = i - 1
            off = " offset:768" if t & 1 else ""
            a(f"  buffer_load_dwordx4 {vr(b)}, v{self.V_OFF0}, {sr(R_A)}, s{st+1+(t>>1)} offen{off}{nt}")

    def fuse_sub(self, par, d, name, mode="roll"):
        a = self.a
        hold, roll = mode == "hold", mode == "roll"
        b = self.V_BUF[par]; u = self.V_PU; t8 = self.V_TMP
        SS, SQ, R, U = self.V_ST, self.V_ST + 4, self.V_ST + 8, self.V_ST + 12
        a0 = d // 5
        a(f"{name}:")
        if roll:
            a(f"  s_mov_b32 s{SETA}, s{SETB}\n  s_mov_b32 s{SETA+1}, s{SETB+1}\n  s_mov_b32 s{SETA+2}, s{SETB+2}")
            self.task_bases(SETB, a0 + 1)
        def nxt(i):
            if not roll: return
            aa, pi = (i + d) // 5, (i + d) % 5
            self.issue_piece(SETA if aa == a0 else SETB, par ^ (aa & 1), pi)
        def dpp(dst, src, ctrl, bank):
            a(f"  v_add_f32_dpp v{dst}, v{src}, v{src} {ctrl} row_mask:0xf bank_mask:{bank:#x}")
        a(f"  s_waitcnt vmcnt({d-1})")
        for i in range(4):
            a(f"  v_lshlrev_b32 v{u+2*i}, 16, v{b+i}\n  v_and_b32 v{u+2*i+1}, 0xffff0000, v{b+i}")
        nxt(0)
        for t in range(4):
            c = b + 4 + 4 * t; o = c if hold else self.V_OUT + 4 * (t & 1)
            a(f"  s_waitcnt vmcnt({d-1 if roll else d-2-t})")
            for i in range(4):
                a(f"  v_dot2_f32_bf16 v{t8+2*i}, v{c+i}, s{S_ONELO}, v{u+2*i}")
                a(f"  v_dot2_f32_bf16 v{t8+2*i+1}, v{c+i}, s{S_ONEHI}, v{u+2*i+1}")
            nxt(t + 1)
            for i in range(4):
                a(f"  v_cvt_pk_bf16_f32 v{o+i}, v{t8+2*i}, v{t8+2*i+1}")
            if not hold: a(f"  ds_write_b128 v{self.V_WA[t]}, {vr(o)} offset:{t*768}")
            if t > 0: dpp(R + t - 1, SS + t - 1, "row_ror:8", 0x3)
            for i in range(4):
                a(f"  v_dot2_f32_bf16 v{SS+t}, v{o+i}, v{self.V_ONES}, {'0' if i == 0 else 'v%d' % (SS+t)}")
                a(f"  v_dot2_f32_bf16 v{SQ+t}, v{o+i}, v{o+i}, {'0' if i == 0 else 'v%d' % (SQ+t)}")
            if t > 0: dpp(R + t - 1, SQ + t - 1, "row_ror:8", 0xc)
        WA = self.V_WA
        if hold: a("  s_mov_b32 s62, 0")
        else: a(f"  s_mov_b32 s62, 24576\n  s_cmp_eq_u32 s{S_K}, 5\n  s_cselect_b32 s62, {(-5*24576) & 0xffffffff:#x}, s62")
        dpp(U, R, "row_half_mirror", 0x5)
        dpp(R + 3, SS + 3, "row_ror:8", 0x3)
        a(f"  v_add_u32 v{WA[0]}, s62, v{WA[0]}")
        dpp(U, R + 1, "row_half_mirror", 0xa)
        dpp(R + 3, SQ + 3, "row_ror:8", 0xc)
        dpp(U + 1, R + 2, "row_half_mirror", 0x5)
        a(f"  v_add_u32 v{WA[1]}, s62, v{WA[1]}")
        dpp(U, U, "quad_perm:[1,0,3,2]", 0xf)
        dpp(U + 1, R + 3, "row_half_mirror", 0xa)
        a(f"  v_add_u32 v{WA[2]}, s62, v{WA[2]}")
        dpp(U, U, "quad_perm:[2,3,0,1]", 0xf)
        dpp(U + 1, U + 1, "quad_perm:[1,0,3,2]", 0xf)
        a(f"  v_add_u32 v{WA[3]}, s62, v{WA[3]}")
        if roll: a(f"  s_cmp_eq_u32 s{S_K}, 5\n  s_cselect_b32 s62, {(-5*2*STAT_S) & 0xffffffff:#x}, {2*STAT_S}" .replace(f", {2*STAT_S}", ", s63") .replace("  s_cmp_eq", f"  s_mov_b32 s63, {2*STAT_S}\n  s_cmp_eq"))
        else: a(f"  s_mov_b32 s62, {2*STAT_S}")
        dpp(U + 1, U + 1, "quad_perm:[2,3,0,1]", 0xf)
        if roll:
            sk = self.lab("keepst")
            a(f"  s_cbranch_scc1 {sk}")
        a(f"  s_mov_b64 exec, s[{S_QMASK}:{S_QMASK+1}]\n  ds_write_b32 v{self.V_SA}, v{U}\n  ds_write_b32 v{self.V_SA}, v{U+1} offset:8\n  s_mov_b64 exec, -1")
        if roll: a(f"{sk}:")
        a(f"  s_add_u32 s{S_K}, s{S_K}, 1\n  v_add_u32 v{self.V_SA}, s62, v{self.V_SA}")
        a(f"  s_setpc_b64 s[{S_LINK}:{S_LINK+1}]")

    def stream_consts(self):
        a = self.a
        a("  v_and_b32 v240, 15, v0\n  v_lshrrev_b32 v241, 4, v0")
        a("  v_and_b32 v242, 7, v240\n  v_lshlrev_b32 v242, 1, v242\n  v_mul_u32_u24 v243, 768, v240")
        for m in range(4):
            a(f"  v_add_u32 v244, {4*m}, v241\n  v_xor_b32 v244, v244, v242\n  v_lshl_add_u32 v{self.V_RA+m}, v244, 4, v243")
        a("  v_lshrrev_b32 v242, 2, v240\n  v_lshl_add_u32 v242, v241, 2, v242\n  v_mul_u32_u24 v243, 768, v242")
        a("  v_and_b32 v242, 7, v242\n  v_lshlrev_b32 v242, 1, v242")
        a("  v_and_b32 v244, 3, v240\n  v_lshrrev_b32 v245, 1, v244\n  v_and_b32 v244, 1, v244\n  v_lshl_add_u32 v243, v244, 3, v243")
        for tau in range(3):
            a(f"  s_mul_i32 s62, s{S_WAVE}, 3\n  s_add_u32 s62, s62, {tau}")
            a("  s_lshl_b32 s63, s62, 1\n  s_and_b32 s63, s63, 14\n  s_lshr_b32 s62, s62, 3\n  s_lshl_b32 s62, s62, 8")
            a(f"  v_xor_b32 v244, s63, v242\n  v_or_b32 v244, v244, v245\n  v_lshl_add_u32 v244, v244, 4, v243\n  v_add_u32 v{self.V_PA+tau}, s62, v244")
        a(f"  v_lshlrev_b32 v{self.V_L16}, 4, v0\n  v_add_u32 v{self.V_PADDR}, {STG}, v{self.V_L16}\n  v_lshlrev_b32 v{self.V_STR}, 4, v241")
        a(f"  v_lshlrev_b32 v244, 5, v240\n  v_add_u32 v{self.V_MXR}, {MX}, v244")
        a(f"  s_lshl_b32 s62, s{S_WAVE}, 2\n  v_add_u32 v{self.V_MXW}, s62, v{self.V_MXR}")
        for i in range(4): a(f"  v_mov_b32 v{self.V_ONES+i}, 0x3f803f80")
        a(f"  v_mov_b32 v{self.V_ONEF}, 1.0\n  v_mov_b32 v{self.V_CINV}, {f32(1/384)}\n  v_mov_b32 v{self.V_CEPS}, {f32(1e-5)}")
        for i in range(12): a(f"  v_mov_b32 v{self.V_ACC+i}, 0")
        a(f"  v_mov_b32 v{self.V_M}, 0xff800000")
        for r in (self.V_L2, self.V_L2+1, self.V_AM2, self.V_AM2+1, self.V_M+1, self.V_AL+1, self.V_QS+1, self.V_CINV+1, self.V_CEPS+1, self.V_BIAS+1):
            a(f"  v_mov_b32 v{r}, 0")

    def pk(self, op, d, x, y, z=None, bc=(), neg=()):
        n = 2 if z is None else 3
        ops = [x, y] + ([z] if z is not None else [])
        s = f"  {op} {vr(d,2)}, " + ", ".join(vr(o, 2) for o in ops)
        if bc: s += " op_sel_hi:[" + ",".join("0" if i in bc else "1" for i in range(n)) + "]"
        if neg:
            m = "[" + ",".join("1" if i in neg else "0" for i in range(n)) + "]"
            s += f" neg_lo:{m} neg_hi:{m}"
        self.a(s)

    def red_write(self, l, am, t):
        a = self.a
        a(f"  v_add_f32 v{t}, v{l}, v{l+1}\n  v_add_f32 v{t+1}, v{am}, v{am+1}")
        a(f"  v_permlane16_swap_b32 v{t}, v{t+1}\n  v_add_f32 v{t}, v{t}, v{t+1}")
        a(f"  v_mov_b32 v{t+1}, v{t}\n  v_permlane32_swap_b32 v{t+1}, v{t}\n  v_add_f32 v{t}, v{t}, v{t+1}")
        a(f"  ds_write_b32 v{self.V_REDW}, v{t}")

    def sphase_sub(self):
        a = self.a
        A, QK = self.V_A, self.V_QK
        S, SUM, SQ, MU, RS, LG, T1, T2 = self.V_S, self.V_SUM, self.V_SQ, self.V_MU, self.V_RS, self.V_LG, self.V_T1, self.V_T2
        a("L_sphase:")
        for m in range(4): a(f"  v_add_u32 v{self.V_TA+m}, s{S_TB}, v{self.V_RA+m}")
        a(f"  v_add_u32 v{T1}, s{S_STA}, v{self.V_STR}")
        X = self.V_MXV
        for reg, off in ((SUM, 0), (SQ, 64), (LG, 128), (RS, 192), (MU, 256), (X, 320)):
            a(f"  ds_read_b128 {vr(reg)}, v{T1} offset:{off}")
        for j in range(9): a(f"  ds_read_b128 {vr(A+4*j)}, v{self.V_TA+(j&3)} offset:{(j>>2)*256}")
        a(f"  s_cmp_lt_u32 s{S_PAIR}, 2048\n  s_cselect_b32 s{S_BIAS}, 0, {f32(-1e30)}")
        a(f"  v_mov_b32 v{self.V_BIAS}, s{S_BIAS}\n  v_add_u32 v{T2}, s{S_POFF}, v{self.V_PADDR}")
        a("  s_waitcnt lgkmcnt(9)")
        for j in range(9, 12): a(f"  ds_read_b128 {vr(A+4*j)}, v{self.V_TA+(j&3)} offset:{(j>>2)*256}")
        stat = []
        for h in (0, 2): stat.append(lambda h=h: self.pk("v_pk_add_f32", SUM + h, SUM + h, LG + h))
        for h in (0, 2): stat.append(lambda h=h: self.pk("v_pk_add_f32", SQ + h, SQ + h, RS + h))
        for h in (0, 2): stat.append(lambda h=h: self.pk("v_pk_add_f32", SUM + h, SUM + h, MU + h))
        for h in (0, 2): stat.append(lambda h=h: self.pk("v_pk_add_f32", SQ + h, SQ + h, X + h))
        for h in (0, 2): stat.append(lambda h=h: self.pk("v_pk_mul_f32", MU + h, SUM + h, self.V_CINV, bc=(1,)))
        for h in (0, 2): stat.append(lambda h=h: self.pk("v_pk_fma_f32", RS + h, SQ + h, self.V_CINV, self.V_CEPS, bc=(1, 2)))
        for h in (0, 2): stat.append(lambda h=h: self.pk("v_pk_fma_f32", RS + h, MU + h, MU + h, RS + h, neg=(0,)))
        for r in range(4): stat.append(lambda r=r: a(f"  v_max_f32 v{RS+r}, v{self.V_CEPS}, v{RS+r}"))
        for r in range(4): stat.append(lambda r=r: a(f"  v_rsq_f32 v{RS+r}, v{RS+r}"))
        for h in (0, 2): stat.append(lambda h=h: self.pk("v_pk_mul_f32", SUM + h, MU + h, self.V_QS, bc=(1,)))
        for j in range(12):
            a(f"  s_waitcnt lgkmcnt({11-j})")
            a(f"  v_mfma_f32_16x16x32_bf16 {vr(S)}, {vr(A+4*j)}, {vr(QK+4*j)}, {'0' if j == 0 else vr(S)}")
            for _ in range(2):
                if stat: stat.pop(0)()
        for h in (0, 2): self.pk("v_pk_add_f32", LG + h, S + h, SUM + h, neg=(1,))
        for h in (0, 2): self.pk("v_pk_fma_f32", LG + h, LG + h, RS + h, self.V_BIAS, bc=(2,))
        a(f"  s_setpc_b64 s[{S_LINK2}:{S_LINK2+1}]")

    def sp_sub(self):
        a = self.a
        MU, RS, LG, M, T0, T1, T2, MXV = self.V_MU, self.V_RS, self.V_LG, self.V_M, self.V_T0, self.V_T1, self.V_T2, self.V_MXV
        PT, LT, AT = MXV, self.V_LT, self.V_AT
        a("L_sp:")
        a(f"  s_call_b64 s[{S_LINK2}:{S_LINK2+1}], L_sphase")
        for h in (0, 2): self.pk("v_pk_add_f32", PT + h, LG + h, M, bc=(1,), neg=(1,))
        a(f"  v_max3_f32 v{T0}, v{PT}, v{PT+1}, v{PT+2}\n  v_max_f32 v{T0}, v{T0}, v{PT+3}")
        for r in range(4): a(f"  v_exp_f32 v{PT+r}, v{PT+r}")
        a(f"  v_cmp_lt_f32 vcc, {f32(LAG_LIMIT)}, v{T0}\n  v_cmp_gt_f32 s[60:61], s{S_LOW}, v{T0}\n  s_or_b64 vcc, vcc, s[60:61]")
        self.pk("v_pk_add_f32", LT, LT, PT); self.pk("v_pk_add_f32", LT, LT, PT + 2)
        for h in (0, 2): self.pk("v_pk_mul_f32", PT + h, PT + h, RS + h)
        a(f"  v_cvt_pk_bf16_f32 v{MXV+4}, v{PT}, v{PT+1}\n  v_cvt_pk_bf16_f32 v{MXV+5}, v{PT+2}, v{PT+3}")
        a(f"  ds_write_b64 v{T2}, {vr(MXV+4,2)}")
        for h in (0, 2): self.pk("v_pk_fma_f32", AT, PT + h, MU + h, AT)
        a(f"  s_cbranch_vccz L_sp_ret\n  v_mov_b32 v{T0}, {FLAG_LDS}\n  v_mov_b32 v{T1}, 1\n  ds_write_b32 v{T0}, v{T1}")
        a(f"L_sp_ret:\n  s_setpc_b64 s[{S_LINK}:{S_LINK+1}]")

    def batch_sub(self):
        a = self.a
        A = self.V_A
        MU, RS, LG = self.V_MU, self.V_RS, self.V_LG
        M, AL, L2, AM2, T0, T1, T2, MXV = self.V_M, self.V_AL, self.V_L2, self.V_AM2, self.V_T0, self.V_T1, self.V_T2, self.V_MXV
        PT = MXV
        a("L_batch:")
        self.cstamp(0)
        a(f"  s_sub_u32 s{S_TI}, s{S_WAVE}, s{S_W0}\n  s_cmp_ge_u32 s{S_TI}, s{S_T}\n  s_cbranch_scc1 L_b_bar2")
        a(f"  s_add_u32 s63, s{S_TI}, s{S_SB}\n  s_mul_i32 s{S_TB}, s63, {SLOT}")
        a(f"  s_mul_i32 s62, s63, {STAT_S}\n  s_add_u32 s{S_STA}, s62, {STAT}\n  s_add_u32 s62, s62, {STAT2 - 10*STAT_S}\n  s_cmp_ge_u32 s63, 10\n  s_cselect_b32 s{S_STA}, s62, s{S_STA}")
        a(f"  s_lshr_b32 s62, s{S_TI}, 1\n  s_add_u32 s{S_PAIR}, s62, s{S_PB}")
        a(f"  s_lshl_b32 s62, s62, 10\n  s_and_b32 s63, s{S_TI}, 1\n  s_lshl_b32 s63, s63, 3\n  s_add_u32 s{S_POFF}, s62, s63")
        a(f"  s_call_b64 s[{S_LINK2}:{S_LINK2+1}], L_sphase")
        self.cstamp(1)
        a(f"  v_max3_f32 v{T0}, v{LG}, v{LG+1}, v{LG+2}\n  v_max_f32 v{T0}, v{T0}, v{LG+3}")
        self.allred_g(T0, T1, "v_max_f32")
        a(f"  ds_write_b32 v{self.V_MXW}, v{T0}")
        a("L_b_bar2:\n  s_waitcnt lgkmcnt(0)")
        self.cstamp(2)
        a("  s_barrier")
        self.cstamp(3)
        a(f"  ds_read_b128 {vr(MXV)}, v{self.V_MXR}\n  ds_read_b128 {vr(MXV+4)}, v{self.V_MXR} offset:16")
        a(f"  v_mov_b32 v{T0}, {FLAG_LDS}\n  v_mov_b32 v{T1}, 0\n  ds_write_b32 v{T0}, v{T1}")
        a("  s_waitcnt lgkmcnt(1)")
        a(f"  v_max3_f32 v{T0}, v{MXV}, v{MXV+1}, v{MXV+2}\n  v_max3_f32 v{T1}, v{MXV+3}, v{MXV+4}, v{MXV+5}")
        a(f"  v_max3_f32 v{T0}, v{T0}, v{MXV+6}, v{MXV+7}\n  v_max3_f32 v{T0}, v{T0}, v{T1}, v{M}")
        a(f"  v_sub_f32 v{AL}, v{M}, v{T0}\n  v_mov_b32 v{M}, v{T0}\n  v_exp_f32 v{AL}, v{AL}")
        self.cstamp(4)
        a(f"  s_cmp_ge_u32 s{S_TI}, s{S_T}\n  s_cbranch_scc1 L_b_nop")
        for h in (0, 2): self.pk("v_pk_add_f32", PT + h, LG + h, M, bc=(1,), neg=(1,))
        for r in range(4): a(f"  v_exp_f32 v{PT+r}, v{PT+r}")
        self.pk("v_pk_mul_f32", L2, L2, AL, bc=(1,)); self.pk("v_pk_mul_f32", AM2, AM2, AL, bc=(1,))
        self.pk("v_pk_add_f32", L2, L2, PT); self.pk("v_pk_add_f32", L2, L2, PT + 2)
        for h in (0, 2): self.pk("v_pk_mul_f32", PT + h, PT + h, RS + h)
        a(f"  v_cvt_pk_bf16_f32 v{MXV+4}, v{PT}, v{PT+1}\n  v_cvt_pk_bf16_f32 v{MXV+5}, v{PT+2}, v{PT+3}")
        a(f"  ds_write_b64 v{T2}, {vr(MXV+4,2)}")
        for h in (0, 2): self.pk("v_pk_fma_f32", AM2, PT + h, MU + h, AM2)
        a("  s_branch L_b_acc")
        a("L_b_nop:")
        self.pk("v_pk_mul_f32", L2, L2, AL, bc=(1,)); self.pk("v_pk_mul_f32", AM2, AM2, AL, bc=(1,))
        a("L_b_acc:")
        for i in range(0, 12, 2): self.pk("v_pk_mul_f32", self.V_ACC + i, self.V_ACC + i, AL, bc=(1,))
        a(f"  s_cmp_eq_u32 s{S_LAST}, 0\n  s_cbranch_scc1 L_b_bar3")
        self.red_write(L2, AM2, MXV + 6)
        a("L_b_bar3:\n  s_waitcnt lgkmcnt(0)")
        self.cstamp(5)
        a("  s_barrier")
        self.cstamp(6)
        a(f"  s_lshr_b32 s{S_NP}, s{S_T}, 1")
        a(f"  s_mul_i32 s{S_PVB}, s{S_SB}, {SLOT}")
        self.pv_reads(0, S_PVB, 0)
        for k in range(3):
            a(f"  s_cmp_le_u32 s{S_NP}, {k+1}\n  s_cbranch_scc1 L_pvl{k & 1}")
            a(f"  s_add_u32 s{S_PVB}, s{S_PVB}, {2*SLOT}")
            self.pv_reads((k + 1) & 1, S_PVB, (k + 1) * 1024)
            self.pv_mfmas(k & 1, 7)
        a("L_pvl1:")
        self.pv_mfmas(1, 0)
        self.cstamp(7)
        a(f"  s_setpc_b64 s[{S_LINK}:{S_LINK+1}]")
        a("L_pvl0:")
        self.pv_mfmas(0, 0)
        self.cstamp(7)
        a(f"  s_setpc_b64 s[{S_LINK}:{S_LINK+1}]")

    def pv_reads(self, buf, s_, poff, imm=0):
        a = self.a; o = self.V_A + 16 * buf
        a(f"  ds_read_b128 {vr(o)}, v{self.V_PADDR} offset:{poff}")
        for tau in range(3):
            if s_ is None:
                ad = self.V_PA + tau
            else:
                ad = self.V_TA + tau
                a(f"  v_add_u32 v{ad}, s{s_}, v{self.V_PA+tau}")
            a(f"  ds_read_b64_tr_b16 {vr(o+4+4*tau,2)}, v{ad} offset:{imm}")
            a(f"  ds_read_b64_tr_b16 {vr(o+6+4*tau,2)}, v{ad} offset:{imm + SLOT}")
    def pv_mfmas(self, buf, base):
        a = self.a; o = self.V_A + 16 * buf
        for tau in range(3):
            a(f"  s_waitcnt lgkmcnt({base + 4 - 2*tau})")
            a(f"  v_mfma_f32_16x16x32_bf16 {vr(self.V_ACC+4*tau)}, {vr(o+4+4*tau)}, {vr(o)}, {vr(self.V_ACC+4*tau)}")

    def pv_final(self):
        a = self.a; T0, T1 = self.V_T0, self.V_T1
        a(f"  v_mov_b32 v{T0}, {FLAG_LDS}\n  ds_read_b32 v{T1}, v{T0}")
        a(f"  s_mov_b32 s{S_PVB}, {8*SLOT}")
        self.pv_reads(0, S_PVB, 0)
        a(f"  s_waitcnt lgkmcnt(7)\n  v_readfirstlane_b32 s62, v{T1}\n  s_cmp_lg_u32 s62, 0\n  s_cbranch_scc1 L_slow")
        a(f"  s_mov_b32 s{S_PVB}, {10*SLOT}")
        self.pv_reads(1, S_PVB, 1024); self.pv_mfmas(0, 7)
        self.pv_reads(0, None, 2048, 0); self.pv_mfmas(1, 7)
        self.pv_reads(1, None, 3072, 2*SLOT); self.pv_mfmas(0, 7)
        self.pv_reads(0, None, 4096, 4*SLOT); self.pv_mfmas(1, 7)
        self.sums_read()
        self.pv_mfmas(0, 4)
        self.sums_math()

    V_SR = 16
    def sums_read(self):
        for i in range(4): self.a(f"  ds_read_b128 {vr(self.V_SR+4*i)}, v{self.V_PUB+3} offset:{16*i}")
    def sums_math(self):
        a = self.a; R = self.V_SR
        a("  s_waitcnt lgkmcnt(0)")
        for i in (0, 4, 8, 12): self.pk("v_pk_add_f32", R + i, R + i, R + i + 2)
        self.pk("v_pk_add_f32", R, R, R + 4); self.pk("v_pk_add_f32", R + 8, R + 8, R + 12); self.pk("v_pk_add_f32", R, R, R + 8)
        a(f"  v_rcp_f32 v{R+2}, v{R}\n  v_log_f32 v{R+5}, v{R}\n  v_mul_f32 v{R+4}, v{R+1}, v{R+2}\n  v_add_f32 v{R+6}, v{self.V_M}, v{R+5}")

    def hold_chunks(self):
        a = self.a
        b = self.V_BUF[0]; u, t8, st = 160, 168, 56
        SS, SQ, R, U = st, st + 4, st + 8, st + 12
        def dpp(dst, src, ctrl, bank):
            a(f"  v_add_f32_dpp v{dst}, v{src}, v{src} {ctrl} row_mask:0xf bank_mask:{bank:#x}")
        def child(t):
            c = b + 4 + 4 * t
            if t == 0:
                a("  s_waitcnt vmcnt(9)")
                for i in range(4): a(f"  v_lshlrev_b32 v{u+2*i}, 16, v{b+i}\n  v_and_b32 v{u+2*i+1}, 0xffff0000, v{b+i}")
            a(f"  s_waitcnt vmcnt({8-t})")
            for i in range(4):
                a(f"  v_dot2_f32_bf16 v{t8+2*i}, v{c+i}, s{S_ONELO}, v{u+2*i}")
                a(f"  v_dot2_f32_bf16 v{t8+2*i+1}, v{c+i}, s{S_ONEHI}, v{u+2*i+1}")
            if t > 0: dpp(R + t - 1, SS + t - 1, "row_ror:8", 0x3)
            for i in range(4): a(f"  v_cvt_pk_bf16_f32 v{c+i}, v{t8+2*i}, v{t8+2*i+1}")
            if t > 0: dpp(R + t - 1, SQ + t - 1, "row_ror:8", 0xc)
            for i in range(4):
                a(f"  v_dot2_f32_bf16 v{SS+t}, v{c+i}, v{self.V_ONES}, {'0' if i == 0 else 'v%d' % (SS+t)}")
                a(f"  v_dot2_f32_bf16 v{SQ+t}, v{c+i}, v{c+i}, {'0' if i == 0 else 'v%d' % (SQ+t)}")
        def close():
            dpp(U, R, "row_half_mirror", 0x5)
            dpp(R + 3, SS + 3, "row_ror:8", 0x3)
            dpp(U + 1, R + 2, "row_half_mirror", 0x5)
            dpp(U, R + 1, "row_half_mirror", 0xa)
            dpp(R + 3, SQ + 3, "row_ror:8", 0xc)
            a(f"  s_add_u32 s{S_K}, s{S_K}, 1")
            dpp(U, U, "quad_perm:[1,0,3,2]", 0xf)
            dpp(U + 1, R + 3, "row_half_mirror", 0xa)
            dpp(U, U, "quad_perm:[2,3,0,1]", 0xf)
            dpp(U + 1, U + 1, "quad_perm:[1,0,3,2]", 0xf)
            a(f"  s_mov_b64 exec, s[{S_QMASK}:{S_QMASK+1}]\n  {self.dsadd} v{self.V_SA}, v{U}\n  s_mov_b64 exec, -1")
            dpp(U + 1, U + 1, "quad_perm:[2,3,0,1]", 0xf)
            a(f"  s_mov_b64 exec, s[{S_QMASK}:{S_QMASK+1}]\n  {self.dsadd} v{self.V_SA}, v{U+1} offset:8\n  s_mov_b64 exec, -1")
            a(f"  v_add_u32 v{self.V_SA}, 256, v{self.V_SA}")
        return [lambda t=t: child(t) for t in range(4)], close

    def pv_first(self):
        a = self.a; T0, T1 = self.V_T0, self.V_T1
        def body(chunks, close):
            self.pv_reads(1, None, 1024, 2*SLOT)
            self.pk("v_pk_add_f32", self.V_L2, self.V_L2, self.V_LT); self.pk("v_pk_add_f32", self.V_AM2, self.V_AM2, self.V_AT)
            if chunks: chunks[0]()
            self.pv_mfmas(0, 7)
            self.pv_reads(0, None, 2048, 4*SLOT)
            for r in range(4): a(f"  v_mov_b32 v{self.V_LT+r}, 0")
            if chunks: chunks[1]()
            self.pv_mfmas(1, 7)
            a(f"  s_mov_b32 s{S_PVB}, {6*SLOT}")
            self.pv_reads(1, S_PVB, 3072)
            if chunks: chunks[2]()
            self.pv_mfmas(0, 7)
            if chunks: chunks[3]()
            self.pv_mfmas(1, 0)
            if close: close()
        a(f"  v_mov_b32 v{T0}, {FLAG_LDS}\n  ds_read_b32 v{T1}, v{T0}")
        self.pv_reads(0, None, 0, 0)
        a(f"  s_waitcnt lgkmcnt(7)\n  v_readfirstlane_b32 s62, v{T1}\n  s_cmp_lg_u32 s62, 0\n  s_cbranch_scc1 L_slow1")
        if self.cfg.pvfuse:
            plain, join = self.lab("pvplain"), self.lab("pvjoin")
            a(f"  s_cmp_ge_u32 s{S_WAVE}, 6\n  s_cbranch_scc1 {plain}")
            body(*self.hold_chunks())
            a(f"  s_branch {join}\n{plain}:")
            body(None, None)
            a(f"{join}:")
        else:
            body(None, None)

    def call_batch(self, T, w0, slot0, pair_add, last):
        self.a(f"  s_mov_b32 s{S_T}, {T}\n  s_mov_b32 s{S_W0}, {w0}\n  s_mov_b32 s{S_SB}, {slot0}\n  s_add_u32 s{S_PB}, s{S_P0}, {pair_add}\n  s_mov_b32 s{S_LAST}, {int(last)}")
        self.a(f"  s_call_b64 s[{S_LINK}:{S_LINK+1}], L_batch")

    def streamer(self):
        a = self.a; cfg = self.cfg; d = cfg.depth
        CALL = f"  s_call_b64 s[{S_LINK}:{S_LINK+1}], "
        a("  s_waitcnt lgkmcnt(0)")
        srd(a, R_A, P_F0, F0_BYTES); srd(a, R_B, P_F1, F1_BYTES)
        a(f"  s_cmp_ge_u32 s{S_WAVE}, 6\n  s_cbranch_scc1 L_sgather")
        a(f"  s_cmp_ge_u32 s{S_WAVE}, 3\n  s_cselect_b32 s60, 1, 0\n  s_mul_i32 s62, s60, 3\n  s_sub_u32 s61, s{S_WAVE}, s62")
        a(f"  s_mul_i32 s{S_QBASE}, s{S_IDX}, {2*NPAIR}\n  s_add_u32 s{S_QBASE}, s{S_QBASE}, s60\n  s_lshl_b32 s61, s61, 8")
        a("  v_and_b32 v240, 15, v0\n  v_lshrrev_b32 v241, 4, v0\n  v_lshl_add_u32 v242, v240, 4, s61")
        a(f"  v_mul_u32_u24 v243, 768, v241\n  v_add_u32 v{self.V_OFF1}, v242, v243\n  v_lshl_add_u32 v{self.V_OFF0}, v243, 1, v242")
        a(f"  s_mov_b32 s{S_K}, 0\n  s_mov_b32 s{S_QMASK}, 0x11111111\n  s_mov_b32 s{S_QMASK+1}, 0x11111111")
        def first_loads(d):
            self.task_bases(SETA, 0, False)
            for x in range(min(d, 5)): self.issue_piece(SETA, 0, x)
            self.task_bases(SETB, d // 5, False)
        two = cfg.dlate != d
        def both(f):
            if not two:
                f(d); return
            l1, l2 = self.lab("dl"), self.lab("dj")
            a(f"  s_and_b32 s62, s2, 7\n  s_cmp_ge_u32 s62, {cfg.xlate}\n  s_cbranch_scc1 {l1}")
            f(d)
            a(f"  s_branch {l2}\n{l1}:")
            f(cfg.dlate)
            a(f"{l2}:")
        assert d <= 5 and cfg.dlate <= 5
        if not cfg.late: both(first_loads)
        a(f"  s_mul_i32 s60, s60, {SLOT}\n  s_add_u32 s60, s60, s61")
        srd(a, R_WS, P_WS, WS_BYTES)
        a("  v_and_b32 v240, 15, v0\n  v_lshrrev_b32 v241, 4, v0\n  v_and_b32 v242, 1, v241\n  v_lshlrev_b32 v242, 3, v242\n  v_xor_b32 v242, v240, v242")
        a(f"  v_mul_u32_u24 v243, 3072, v241\n  v_add_u32 v243, s60, v243")
        for t in range(4):
            a(f"  v_xor_b32 v244, {2*t}, v242\n  v_lshl_add_u32 v{self.V_WA[t]}, v244, 4, v243")
        a(f"  v_bfe_u32 v242, v0, 3, 1\n  v_lshlrev_b32 v242, 6, v242\n  v_bfe_u32 v243, v0, 2, 1\n  v_lshl_add_u32 v243, v241, 2, v243\n  v_lshl_add_u32 v242, v243, 2, v242")
        a(f"  s_cmp_ge_u32 s{S_WAVE}, 3\n  s_cselect_b32 s62, {STAT_S}, 0\n  s_add_u32 s62, s62, {STAT}\n  s_lshr_b32 s63, s61, 1\n  s_add_u32 s62, s62, s63\n  v_add_u32 v{self.V_SA}, s62, v242")
        a("  s_barrier")
        self.stream_consts()
        if cfg.late: both(first_loads)
        if cfg.streamonly:
            for k in range(9):
                a(CALL + f"L_fuse{k & 1}")
                if k == 5: self.stamp(3)
            self.stamp(7); self.stamp(8)
            a("  s_branch L_sdone")
        def phase1(dd):
            sfx = "" if dd == d else "L"
            for k in range(6):
                if k == cfg.trig_a: a("  s_barrier")
                if k == cfg.trig_b: a("  s_barrier")
                a(CALL + f"L_fuse{sfx}{k & 1}")
            if cfg.trig_a >= 6: a("  s_barrier")
            if cfg.trig_b >= 6: a("  s_barrier")
            if dd < 5:
                self.task_bases(SETA, 6, False)
                for x in range(30 + dd, 35): self.issue_piece(SETA, 0, x % 5)
        both(phase1)
        assert not (cfg.pvfuse and (cfg.prefuse or not cfg.zref or cfg.ext7 != 1 or cfg.ext8 != 1))
        self.stamp(3)
        if cfg.prefuse: a(CALL + "L_fuseH")
        if cfg.ext7 == 0:
            self.task_bases(SETA, 7, False)
            for x in range(5): self.issue_piece(SETA, 1, x)
        a("  s_waitcnt lgkmcnt(0)")
        a("  s_branch L_sb0")
        a("L_sgather:     ; waves 6,7: nonce, GO word, Qk into the staging area")
        if cfg.streamonly == 3:
            pass
        elif cfg.streamonly:
            srd(a, R_WS, P_WS, WS_BYTES)
            for i in range(4): a(f"  v_mov_b32 v{20+i}, 0")
            a("  s_barrier\n  s_branch L_sdone")
        for r in (self.V_OFF1, self.V_OFF0, self.V_SA) + self.V_WA: a(f"  v_mov_b32 v{r}, 0")
        a(f"  v_mov_b32 v20, 0\n  v_mov_b32 v24, {FLAG_LDS}\n  ds_write_b32 v24, v20\n  s_waitcnt lgkmcnt(0)\n  s_barrier")
        a(f"  s_mov_b32 s{S_QBASE}, 0\n  s_mov_b32 s{S_K}, 0\n  s_mov_b32 s{S_QMASK}, 0\n  s_mov_b32 s{S_QMASK+1}, 0")
        for r in range(3): a(f"  s_mov_b32 s{SETA+r}, 0\n  s_mov_b32 s{SETB+r}, 0")
        srd(a, R_WS, P_WS, WS_BYTES)
        a(f"  s_cmp_eq_u32 s{S_WAVE}, 7\n  s_cbranch_scc1 L_sw7")
        a(f"  buffer_load_dword v17, v{self.V_OFF1}, {sr(R_WS)}, 0 offen offset:{NONCE_OFF} sc1")
        a(f"  v_mov_b32 v18, {GO_OFF}")
        self.stream_consts()
        a(f"  s_waitcnt vmcnt(0)\n  v_add_u32 v17, 1, v17\n  v_mov_b32 v{self.V_T0}, {NONCE_LDS}\n  ds_write_b32 v{self.V_T0}, v17\n  v_readfirstlane_b32 s{S_NONCE}, v17")
        if cfg.streamonly != 3: a("  s_barrier")
        a(f"  buffer_load_dword v16, v18, {sr(R_WS)}, 0 offen sc1")
        if cfg.streamonly != 3: a("  s_barrier")
        self.wait_flags(16, 18, first_issued=True)
        self.stamp(1)
        a(f"  s_mov_b32 s62, {RQK_OFF}")
        if cfg.kdelay: a(f"  s_sleep {cfg.kdelay}")
        self.gather_frags(12, self.V_QK, self.V_L16, 62, self.V_T0, "qk")
        if cfg.gdiag:
            a(f"  s_mov_b32 s{STAMP0+4}, s{S_SPIN}")
            self.stamp(5)
        for j in range(12): a(f"  ds_write_b128 v{self.V_PADDR}, {vr(self.V_QK+4*j)} offset:{j*1024}")
        SQ4 = self.V_SQ4
        for j in range(12):
            for i in range(4):
                a(f"  v_dot2_f32_bf16 v{SQ4+i}, v{self.V_QK+4*j+i}, v{self.V_ONES}, {'0' if j == 0 else 'v%d' % (SQ4+i)}")
        self.pk("v_pk_add_f32", SQ4, SQ4, SQ4 + 2)
        a(f"  v_add_f32 v{self.V_QS}, v{SQ4}, v{SQ4+1}")
        self.allred_g(self.V_QS, self.V_T0, "v_add_f32")
        a(f"  v_and_b32 v{self.V_T0}, 15, v0\n  v_lshlrev_b32 v{self.V_T0}, 2, v{self.V_T0}\n  v_add_u32 v{self.V_T0}, {QS_LDS}, v{self.V_T0}\n  ds_write_b32 v{self.V_T0}, v{self.V_QS}")
        a("  s_waitcnt lgkmcnt(0)")
        self.stamp(3)
        if cfg.streamonly == 3: a("  s_branch L_sdone")
        a("  s_branch L_sb0")
        a("L_sw7:")
        if cfg.streamonly == 3: a("  s_branch L_sdone")
        self.stream_consts()
        a("  s_waitcnt vmcnt(0)\n  s_barrier\n  s_barrier")
        a("L_sb0:         ; tiles 0..11 and Qk are in LDS\n  s_barrier")
        a(f"  v_and_b32 v{self.V_T2}, 15, v0\n  v_lshlrev_b32 v{self.V_T2}, 2, v{self.V_T2}\n  v_add_u32 v{self.V_T2}, {QS_LDS}, v{self.V_T2}")
        a(f"  v_mov_b32 v{self.V_T0}, {NONCE_LDS}\n  ds_read_b32 v{self.V_T1}, v{self.V_T0}\n  ds_read_b32 v{self.V_QS}, v{self.V_T2}")
        for j in range(12): a(f"  ds_read_b128 {vr(self.V_QK+4*j)}, v{self.V_PADDR} offset:{j*1024}")
        a(f"  s_mul_i32 s{S_P0}, s{S_IDX}, {NPAIR}")
        for r in range(4): a(f"  v_mov_b32 v{self.V_LT+r}, 0")
        a(f"  s_waitcnt lgkmcnt(0)\n  v_readfirstlane_b32 s{S_NONCE}, v{self.V_T1}")
        if cfg.zref: a("  s_barrier")
        sk = self.lab("noext")
        a(f"  s_cmp_ge_u32 s{S_WAVE}, 6\n  s_cbranch_scc1 {sk}")
        U = self.V_ST + 12
        a(f"  v_add_u32 v{self.V_T0}, {(STAT2 - STAT) & 0xffffffff:#x}, v{self.V_SA}\n  s_mov_b64 exec, s[{S_QMASK}:{S_QMASK+1}]")
        a(f"  ds_write_b32 v{self.V_T0}, v{U}\n  ds_write_b32 v{self.V_T0}, v{U+1} offset:8\n  s_mov_b64 exec, -1")
        if cfg.ext7 == 1:
            self.task_bases(SETA, 7, False)
            for x in range(5): self.issue_piece(SETA, 1, x)
        if cfg.ext8 == 0:
            self.task_bases(SETB, 8, False)
            for x in range(5): self.issue_piece(SETB, 2, x)
        a(f"{sk}:")
        self.stamp(4)
        if cfg.zref:
            a(f"  s_mov_b32 s{S_LOW}, {f32(LOW_LIMIT)}\n  v_mov_b32 v{self.V_M}, 0")
            a(f"  s_mul_i32 s{S_TB}, s{S_WAVE}, {SLOT}\n  s_mul_i32 s62, s{S_WAVE}, {STAT_S}\n  s_add_u32 s{S_STA}, s62, {STAT}")
            a(f"  s_lshr_b32 s62, s{S_WAVE}, 1\n  s_add_u32 s{S_PAIR}, s62, s{S_P0}")
            a(f"  s_lshl_b32 s62, s62, 10\n  s_and_b32 s63, s{S_WAVE}, 1\n  s_lshl_b32 s63, s63, 3\n  s_add_u32 s{S_POFF}, s62, s63")
            a(CALL + "L_sp")
            if cfg.ext8 == 2:
                sk = self.lab("noe8")
                a(f"  s_cmp_ge_u32 s{S_WAVE}, 6\n  s_cbranch_scc1 {sk}")
                self.task_bases(SETB, 8, False)
                for x in range(5): self.issue_piece(SETB, 2, x)
                a(f"{sk}:")
            a("  s_waitcnt lgkmcnt(0)\n  s_barrier")
            self.pv_first()
            a("L_safter1:")
        else:
            self.call_batch(8, 0, 0, 0, False)
        a(f"  s_mov_b32 s{S_LOW}, {f32(-3.0e38)}")
        a("  s_barrier")
        if not cfg.gdiag: self.stamp(5)
        a(f"  s_cmp_ge_u32 s{S_WAVE}, 6\n  s_cbranch_scc1 L_s67")
        if cfg.ext8 == 1:
            self.task_bases(SETB, 8, False)
            if cfg.late8:
                a(f"  s_and_b32 s62, s2, 4\n  s_cmp_lg_u32 s62, 0\n  s_cselect_b32 s{SETB}, 0x80000000, s{SETB}\n  s_cselect_b32 s{SETB+1}, 0x80000000, s{SETB+1}\n  s_cselect_b32 s{SETB+2}, 0x80000000, s{SETB+2}")
            for x in range(5): self.issue_piece(SETB, 2, x)
        self.fstamp(0)
        if cfg.prefuse or cfg.pvfuse:
            b = self.V_BUF[0]
            for t in range(4): a(f"  ds_write_b128 v{self.V_WA[t]}, {vr(b+4+4*t)} offset:{t*768}")
            for t in range(4): a(f"  v_add_u32 v{self.V_WA[t]}, 24576, v{self.V_WA[t]}")
        else:
            a(CALL + "L_fuseR0")
        self.fstamp(1)
        a(CALL + "L_fuseR1")
        self.fstamp(2)
        if cfg.late8:
            sk8 = self.lab("skip8")
            a(f"  s_and_b32 s62, s2, 4\n  s_cmp_lg_u32 s62, 0\n  s_cbranch_scc1 {sk8}")
            a(CALL + "L_fuseR2")
            a(f"{sk8}:\n  s_waitcnt vmcnt(0)")
        else:
            a(CALL + "L_fuseR2")
        self.fstamp(3)
        a("  s_branch L_sx")
        a("L_s67:         ; waves 6,7: logits and P of tiles 8..11 beside the fuse steps of tasks 6..8")
        for i in range(2):
            a(f"  s_and_b32 s63, s{S_WAVE}, 1\n  s_add_u32 s62, s63, {8 + 2*i}\n  s_mul_i32 s{S_TB}, s62, {SLOT}")
            a(f"  s_mul_i32 s62, s63, {STAT_S}\n  s_add_u32 s{S_STA}, s62, {STAT + 8*STAT_S if i == 0 else STAT2}\n  s_add_u32 s{S_PAIR}, s{S_P0}, {4 + i}")
            a(f"  s_lshl_b32 s63, s63, 3\n  s_add_u32 s{S_POFF}, s63, {i*1024}")
            a(CALL + "L_sp")
        a("L_sx:")
        self.publish_setup()
        a("  s_waitcnt lgkmcnt(0)\n  s_barrier")
        if not cfg.gdiag: self.stamp(2)
        sk = self.lab("nosp")
        a(f"  s_cmp_ge_u32 s{S_WAVE}, 6\n  s_cbranch_scc1 {sk}")
        a(f"  s_mul_i32 s{S_TB}, s{S_WAVE}, {SLOT}\n  s_mul_i32 s62, s{S_WAVE}, {STAT_S}\n  s_add_u32 s{S_STA}, s62, {STAT}")
        a(f"  s_lshr_b32 s62, s{S_WAVE}, 1\n  s_add_u32 s{S_PAIR}, s62, s{S_P0}\n  s_add_u32 s{S_PAIR}, s{S_PAIR}, 6")
        a(f"  s_lshl_b32 s62, s62, 10\n  s_and_b32 s63, s{S_WAVE}, 1\n  s_lshl_b32 s63, s63, 3\n  s_add_u32 s62, s62, s63\n  s_add_u32 s{S_POFF}, s62, 2048")
        a(CALL + "L_sp")
        a(f"{sk}:")
        MXV = self.V_MXV
        self.pk("v_pk_add_f32", MXV, self.V_L2, self.V_LT); self.pk("v_pk_add_f32", MXV + 2, self.V_AM2, self.V_AT)
        self.red_write(MXV, MXV + 2, MXV + 6)
        a("  s_waitcnt lgkmcnt(0)")
        if not cfg.gdiag: self.stamp(1)
        a("  s_barrier")
        self.stamp(6)
        self.pv_final()
        a("L_spub:        ; partial result of this workgroup")
        self.stamp(7)
        self.publish()
        self.cstamp(8)
        self.stamp(8)
        if cfg.cut >= 1: a("  s_branch L_sdone")
        self.reducer_index()
        a(f"  s_cmp_ge_u32 s{S_RHO}, 128\n  s_cbranch_scc1 L_sdone")
        self.reducer()
        a("L_sdone:")
        self.stamp(9); self.stamp_flush((5, 6, 8, (0, 1, 3, 5, 6, 7, 8, 9)))
        a("  s_endpgm")
        if cfg.zref:
            a("L_slow1:       ; a logit of tiles 0..7 left the range of the zero reference: exact maximum\n  s_waitcnt lgkmcnt(0)")
            a(f"  v_mov_b32 v{self.V_M}, 0xff800000")
            for r in range(4): a(f"  v_mov_b32 v{self.V_LT+r}, 0")
            self.call_batch(8, 0, 0, 0, False)
            if cfg.pvfuse:
                a(f"  s_cmp_ge_u32 s{S_WAVE}, 6\n  s_cbranch_scc1 L_safter1")
                a(CALL + "L_fuseH")
            a("  s_branch L_safter1")
        a("L_slow:        ; a later logit left the range of the reference: tiles 8..17 with exact maxima\n  s_waitcnt lgkmcnt(0)")
        self.call_batch(4, 4, 8, 4, False)
        self.call_batch(6, 0, 0, 6, True)
        self.sums_read(); self.sums_math()
        a("  s_branch L_spub")
        self.sp_sub(); self.sphase_sub(); self.batch_sub()
        self.fuse_sub(1, 10, "L_fuseR1", "drain"); self.fuse_sub(2, 5, "L_fuseR2", "drain")
        if cfg.pvfuse: self.fuse_sub(0, 10, "L_fuseH", "hold")
        elif cfg.prefuse: self.fuse_sub(0, 5, "L_fuseH", "hold")
        else: self.fuse_sub(0, 15, "L_fuseR0", "drain")
        self.fuse_sub(0, d, "L_fuse0"); self.fuse_sub(1, d, "L_fuse1")
        if cfg.dlate != d: self.fuse_sub(0, cfg.dlate, "L_fuseL0"); self.fuse_sub(1, cfg.dlate, "L_fuseL1")

    def publish_setup(self):
        a = self.a
        T0, T1, T2 = self.V_T0, self.V_T1, self.V_T2
        PA0, TAGB = self.V_PUB, self.V_PUB + 1
        a(f"  v_and_b32 v{T0}, 7, v0\n  v_lshlrev_b32 v{T0}, 3, v{T0}\n  v_add_u32 v{T0}, s{S_WAVE}, v{T0}\n  s_mov_b32 s62, {PART_STRIDE}\n  v_mul_lo_u32 v{T0}, v{T0}, s62")
        a(f"  v_bfe_u32 v{T1}, v0, 3, 1\n  v_lshl_add_u32 v{T0}, v{T1}, 6, v{T0}\n  v_lshrrev_b32 v{T1}, 4, v0\n  v_lshl_add_u32 v{PA0}, v{T1}, 4, v{T0}")
        a(f"  s_mov_b32 s62, {KEYC}\n  v_mul_lo_u32 v{T1}, v{T1}, s62\n  v_add_u32 v{TAGB}, s{S_NONCE}, v{T1}")
        a(f"  v_and_b32 v{T0}, 15, v0\n  v_lshlrev_b32 v{T0}, 6, v{T0}\n  v_bfe_u32 v{T1}, v0, 4, 1\n  v_lshl_add_u32 v{T0}, v{T1}, 2, v{T0}")
        a(f"  s_lshl_b32 s62, s{S_WAVE}, 3\n  s_add_u32 s62, s62, {RED}\n  v_add_u32 v{self.V_PUB+2}, s62, v{T0}")
        a(f"  v_and_b32 v{T0}, 15, v0\n  v_lshlrev_b32 v{T0}, 6, v{T0}\n  v_add_u32 v{self.V_PUB+3}, {RED}, v{T0}")

    def publish(self):
        a = self.a; cfg = self.cfg
        A, ACC, R = self.V_A, self.V_ACC, self.V_SR
        PA0, TAGB = self.V_PUB, self.V_PUB + 1
        UA, UB, TB = A + 24, A + 28, A + 32
        a(f"  s_lshl_b32 s62, s{S_IDX}, 7\n  s_add_u32 s62, s62, {PART_OFF}\n  s_add_u32 s63, s62, {64*PART_STRIDE}")
        a(f"  v_mov_b32 v{UA+3}, s{S_NONCE}\n  v_xor_b32 v{UB+3}, v{R+6}, v{TAGB}")
        for i in range(0, 12, 2): self.pk("v_pk_fma_f32", ACC + i, ACC + i, R + 2, R + 4, bc=(1, 2), neg=(2,))
        for i in range(3): a(f"  v_cvt_pk_f16_f32 v{UA+i}, v{ACC+2*i}, v{ACC+2*i+1}")
        for i in range(3): a(f"  v_cvt_pk_f16_f32 v{UB+i}, v{ACC+6+2*i}, v{ACC+7+2*i}")
        for i in range(4): a(f"  v_mov_b32 v{TB+i}, v{UB+i}")
        for i in range(3): a(f"  v_mov_b32_dpp v{UB+i}, v{UA+i} row_ror:8 row_mask:0xf bank_mask:0x3")
        a(f"  v_mov_b32_dpp v{UB+3}, v{UA+3} quad_perm:[0,1,2,3] row_mask:0xf bank_mask:0x3")
        for i in range(4): a(f"  v_mov_b32_dpp v{UA+i}, v{TB+i} row_ror:8 row_mask:0xf bank_mask:0xc")
        a(f"  buffer_store_dwordx4 {vr(UA)}, v{PA0}, {sr(R_WS)}, s62 offen sc1")
        a(f"  buffer_store_dwordx4 {vr(UB)}, v{PA0}, {sr(R_WS)}, s63 offen sc1")

    def reducer_index(self):
        a = self.a; cfg = self.cfg
        if cfg.redsel == 0:
            a(f"  s_mov_b32 s{S_RHO}, s{S_IDX}")
            return
        assert cfg.hnx == 4 and cfg.hx0 == 0
        a("  s_and_b32 s60, s2, 7\n  s_lshr_b32 s61, s2, 3")
        a("  s_and_b32 s62, s60, 3\n  s_cmp_ge_u32 s60, 4\n  s_cselect_b32 s63, 1, 0")
        a("  s_lshl_b32 s64, s61, 2\n  s_add_u32 s64, s64, s62")
        a("  s_sub_u32 s65, s64, 24")
        if cfg.redsel == 1:
            a(f"  s_add_u32 s64, s64, 104\n  s_cmp_eq_u32 s63, 0\n  s_cselect_b32 s{S_RHO}, s65, s64")
        else:
            a(f"  s_add_u32 s65, s65, 124\n  s_cmp_eq_u32 s63, 0\n  s_cselect_b32 s{S_RHO}, s65, s64")

    def reducer_addr(self):
        a = self.a
        AD, T0, T1, VM, SA, X, Y, KEY = self.RV
        MASK = 40
        a(f"  v_lshrrev_b32 v{T0}, 3, v0\n  s_lshl_b32 s62, s{S_WAVE}, 5\n  v_add_u32 v{VM}, s62, v{T0}")
        a(f"  v_and_b32 v{T1}, 7, v0\n  v_lshlrev_b32 v{T1}, 4, v{T1}\n  s_mov_b32 s62, {NS}")
        for it in range(4):
            a(f"  v_add_u32 v{T0}, {8*it}, v{VM}\n  v_cmp_gt_u32 s[{MASK+2*it}:{MASK+2*it+1}], s62, v{T0}\n  v_cndmask_b32 v{T0}, 0, v{T0}, s[{MASK+2*it}:{MASK+2*it+1}]")
            a(f"  v_lshl_add_u32 v{AD+it}, v{T0}, 7, v{T1}")

    def reducer_setup(self):
        a = self.a
        AD, T0, T1, VM, SA, X, Y, KEY = self.RV
        a(f"  v_and_b32 v{T0}, 3, v0\n  v_bfe_u32 v{T1}, v0, 2, 1\n  v_mul_u32_u24 v{T0}, v{T0}, v{T1}\n  s_mov_b32 s62, {KEYC}\n  v_mul_lo_u32 v{T0}, v{T0}, s62\n  v_add_u32 v{KEY}, s{S_NONCE}, v{T0}")
        a(f"  v_lshrrev_b32 v{T0}, 4, v0\n  v_and_b32 v{T1}, 1, v{T0}\n  v_lshlrev_b32 v{T1}, 1, v{T1}\n  v_lshrrev_b32 v{X}, 1, v{T0}\n  v_add_u32 v{T1}, v{T1}, v{X}")
        a(f"  v_bfe_u32 v{X}, v0, 2, 1\n  v_mul_u32_u24 v{X}, 3, v{X}\n  v_add_u32 v{T1}, v{T1}, v{X}")
        a(f"  v_lshrrev_b32 v{X}, 1, v{T1}\n  v_lshlrev_b32 v{X}, 4, v{X}\n  v_and_b32 v{T1}, 1, v{T1}\n  v_lshl_add_u32 v{X}, v{T1}, 1, v{X}")
        a(f"  v_and_b32 v{T1}, 3, v0\n  v_lshl_add_u32 v{X}, v{T1}, 2, v{X}")
        a(f"  s_and_b32 s62, s{S_RHO}, 7\n  s_mul_i32 s62, s62, 48\n  v_add_u32 v{X}, s62, v{X}\n  v_lshlrev_b32 v{SA}, 1, v{X}")
        a(f"  v_lshrrev_b32 v{T1}, 4, v0\n  v_lshlrev_b32 v{T1}, 3, v{T1}\n  v_and_b32 v{X}, 7, v0\n  v_add_u32 v{T1}, v{T1}, v{X}\n  v_lshlrev_b32 v{Y}, 3, v{T1}")
        a(f"  s_lshl_b32 s62, s{S_WAVE}, 8\n  s_add_u32 s62, s62, {RED2}\n  v_add_u32 v{X}, s62, v{Y}\n  v_add_u32 v{Y}, {RED2}, v{Y}")

    RV = (80, 84, 85, 86, 87, 88, 89, 90)

    def reducer(self):
        a = self.a; cfg = self.cfg
        D, E, W, V = 16, 32, 40, 44
        AD, T0, T1, VM, SA, X, Y, KEY = self.RV
        MASK = 40
        BAD = 52
        self.reducer_addr()
        if cfg.rack: a("  s_waitcnt vmcnt(0)")
        if cfg.rdelay: a(f"  s_sleep {cfg.rdelay}")
        if cfg.rdiag: self.stamp(1)
        a(f"  s_mul_i32 s62, s{S_RHO}, {PART_STRIDE}\n  s_add_u32 s62, s62, {PART_OFF}")
        for it in range(4): a(f"  buffer_load_dwordx4 {vr(D+4*it)}, v{AD+it}, {sr(R_WS)}, s62 offen sc1")
        a("  s_mov_b32 s63, s62")
        self.reducer_setup()
        a("  s_mov_b32 s62, s63")
        for it in range(4): a(f"  v_mov_b32 v{E+2*it+1}, 0")
        lp, ck, dn = self.lab("red"), self.lab("redc"), self.lab("redd")
        BADS = (48, 50, 52, 54)
        a(f"  s_mov_b32 s{S_SPIN}, 0\n  s_branch {ck}\n{lp}:")
        for it in range(4):
            sk = self.lab("skipld")
            a(f"  s_mov_b64 exec, s[{BADS[it]}:{BADS[it]+1}]\n  s_cbranch_execz {sk}")
            a(f"  buffer_load_dwordx4 {vr(D+4*it)}, v{AD+it}, {sr(R_WS)}, s62 offen sc1")
            a(f"{sk}:")
        a("  s_mov_b64 exec, -1")
        self.spin_guard(dn)
        a(f"{ck}:\n  s_waitcnt vmcnt(0)")
        for it in range(4): a(f"  v_xor_b32 v{E+2*it}, v{KEY}, v{D+4*it+3}")
        for it in range(4): a(f"  v_mov_b32_dpp v{E+2*it+1}, v{E+2*it} quad_perm:[0,0,0,0] row_mask:0xf bank_mask:0xa")
        for it in range(4): a(f"  v_cmp_ne_u32 s[{BADS[it]}:{BADS[it]+1}], v{E+2*it}, v{E+2*it+1}")
        a(f"  s_or_b64 s[60:61], s[48:49], s[50:51]\n  s_or_b64 vcc, s[52:53], s[54:55]\n  s_or_b64 s[60:61], s[60:61], vcc\n  s_cbranch_scc0 {dn}")
        if cfg.selpoll == 2:
            for it in range(4): a(f"  v_xor_b32 v{W+it}, v{E+2*it}, v{E+2*it+1}")
            for ctrl in ("row_half_mirror", "quad_perm:[1,0,3,2]", "quad_perm:[2,3,0,1]"):
                for it in range(4): a(f"  v_or_b32_dpp v{W+it}, v{W+it}, v{W+it} {ctrl} row_mask:0xf bank_mask:0xf")
            for it in range(4): a(f"  v_cmp_ne_u32 s[{BADS[it]}:{BADS[it]+1}], 0, v{W+it}")
        else:
            for it in range(4):
                b = BADS[it]
                if cfg.selpoll: a(f"  s_cmp_lg_u64 s[{b}:{b+1}], 0\n  s_cselect_b64 s[{b}:{b+1}], -1, 0")
                else: a(f"  s_mov_b64 s[{b}:{b+1}], -1")
        if cfg.rsleep: a(f"  s_sleep {cfg.rsleep}")
        a(f"  s_branch {lp}")
        a(f"{dn}:\n  s_waitcnt vmcnt(0)")
        if cfg.rdiag:
            self.stamp(2)
            a(f"  s_mov_b32 s{STAMP0+6}, s{S_SPIN}")
        for it in range(4): a(f"  v_mov_b32_dpp v{E+2*it}, v{E+2*it} row_shl:4 row_mask:0xf bank_mask:0x5")
        a(f"  v_mov_b32 v{T1}, 0xff800000")
        for it in range(4):
            a(f"  v_cndmask_b32 v{E+2*it}, v{T1}, v{E+2*it}, s[{MASK+2*it}:{MASK+2*it+1}]")
        a(f"  v_max3_f32 v{T0}, v{E}, v{E+2}, v{E+4}\n  v_max_f32 v{T0}, v{T0}, v{E+6}")
        a(f"  v_max_f32_dpp v{T0}, v{T0}, v{T0} row_ror:8 row_mask:0xf bank_mask:0xf")
        self.allred_g(T0, T1, "v_max_f32")
        for it in range(4): a(f"  v_sub_f32 v{W+it}, v{E+2*it}, v{T0}")
        for it in range(4): a(f"  v_exp_f32 v{W+it}, v{W+it}")
        a(f"  s_lshl_b32 s62, s{S_WAVE}, 2\n  s_add_u32 s62, s62, {MXW}\n  v_mov_b32 v{T1}, s62\n  ds_write_b32 v{T1}, v{T0}")
        for it in range(4):
            for q in range(3):
                c0 = "0" if it == 0 else f"v{V+2*q}"; c1 = "0" if it == 0 else f"v{V+2*q+1}"
                a(f"  v_fma_mix_f32 v{V+2*q}, v{D+4*it+q}, v{W+it}, {c0} op_sel_hi:[1,0,0]")
                a(f"  v_fma_mix_f32 v{V+2*q+1}, v{D+4*it+q}, v{W+it}, {c1} op_sel:[1,0,0] op_sel_hi:[1,0,0]")
        self.pk("v_pk_add_f32", W, W, W + 2)
        a(f"  v_add_f32 v{V+6}, v{W}, v{W+1}\n  v_mov_b32 v{V+7}, 0")
        for x, y in ((0, 2), (1, 3), (4, 6), (5, 7)): a(f"  v_permlane32_swap_b32 v{V+x}, v{V+y}")
        for x, y in ((0, 2), (1, 3), (4, 6), (5, 7)): a(f"  v_add_f32 v{V+x}, v{V+x}, v{V+y}")
        for x, y in ((0, 4), (1, 5)): a(f"  v_permlane16_swap_b32 v{V+x}, v{V+y}")
        for x, y in ((0, 4), (1, 5)): a(f"  v_add_f32 v{V+x}, v{V+x}, v{V+y}")
        for x in (0, 1): a(f"  v_add_f32_dpp v{V+x}, v{V+x}, v{V+x} row_ror:8 row_mask:0xf bank_mask:0xf")
        a(f"  ds_write_b64 v{X}, {vr(V,2)}\n  s_waitcnt lgkmcnt(0)")
        if cfg.rdiag: self.stamp(4)
        a("  s_barrier")
        if cfg.rdiag: self.stamp(5)
        a(f"  s_cmp_lg_u32 s{S_WAVE}, 0\n  s_cbranch_scc1 L_sdone")
        a(f"  v_mov_b32 v{T1}, {MXW}\n  ds_read_b128 {vr(W)}, v{T1}\n  ds_read_b128 {vr(W+4)}, v{T1} offset:16")
        for w in range(8): a(f"  ds_read_b64 {vr(D+2*w,2)}, v{Y} offset:{256*w}")
        a(f"  s_lshr_b32 s63, s{S_RHO}, 3\n  s_mul_i32 s63, s63, 768\n  s_add_u32 s63, s63, {RCTX_OFF}")
        a(f"  v_and_b32 v{X}, 8, v0\n  v_cmp_eq_u32 vcc, 0, v{X}\n  v_cmp_gt_u32 s[64:65], 48, v0\n  s_and_b64 s[64:65], vcc, s[64:65]")
        a("  s_waitcnt lgkmcnt(8)")
        a(f"  v_max3_f32 v{T0}, v{W}, v{W+1}, v{W+2}\n  v_max3_f32 v{T1}, v{W+3}, v{W+4}, v{W+5}\n  v_max3_f32 v{T0}, v{T0}, v{W+6}, v{W+7}\n  v_max_f32 v{T0}, v{T0}, v{T1}")
        for w in range(0, 8, 2): self.pk("v_pk_add_f32", W + w, W + w, T0, bc=(1,), neg=(1,))
        for w in range(8): a(f"  v_exp_f32 v{W+w}, v{W+w}")
        a("  s_waitcnt lgkmcnt(0)")
        for w in range(8):
            base = W + (w & ~1)
            sel = "op_sel:[0,1,0] op_sel_hi:[1,1,1]" if w & 1 else "op_sel_hi:[1,0,1]"
            if w == 0: a(f"  v_pk_mul_f32 {vr(E,2)}, {vr(D,2)}, {vr(base,2)} op_sel_hi:[1,0]")
            else: a(f"  v_pk_fma_f32 {vr(E,2)}, {vr(D+2*w,2)}, {vr(base,2)}, {vr(E,2)} {sel}")
        a(f"  v_readlane_b32 s62, v{E}, 48\n  v_rcp_f32 v{T0}, s62")
        self.pk("v_pk_mul_f32", E, E, T0, bc=(1,))
        a(f"  v_cvt_pk_bf16_f32 v{E}, v{E}, v{E+1}\n  v_min_u32 v{E}, -2, v{E}")
        a("  s_mov_b64 exec, s[64:65]")
        a(f"  buffer_store_dword v{E}, v{SA}, {sr(R_WS)}, s63 offen sc1")
        a("  s_mov_b64 exec, -1")

    def img_dma(self, srdr, lds, soff, vs0, vs1):
        for th in range(3):
            for q4 in range(4):
                self.img_dma1(srdr, lds, soff, vs0, vs1, th, q4)
    def img_dma1(self, srdr, lds, soff, vs0, vs1, th, q4, ldsreg=None):
        a = self.a
        if ldsreg is None: a(f"  s_mov_b32 m0, {lds + th*4096 + q4*1024}")
        else: a(f"  s_add_u32 m0, s{ldsreg}, {th*4096 + q4*1024}")
        a(f"  s_add_u32 s62, s{soff}, {q4*3072 + th*256}")
        a(f"  buffer_load_dwordx4 v{vs1 if q4 & 1 else vs0}, {sr(srdr)}, s62 offen{' nt' if self.cfg.hnt else ''} lds")

    def helper(self):
        a = self.a; cfg = self.cfg
        L16, N, Gq, T0, T1, T2, T3 = 1, 2, 3, 4, 5, 6, 7
        FL, TA, DS, VS0, VS1, ZERO = 8, 10, 11, 12, 13, 14
        IA = 16
        QF, AF, TR = 20, 68, 160
        WKF = 116
        D1, D2, D3, ST, ONES = 208, 212, 216, 220, 224
        a("L_helper:      ; ---------------- helpers")
        if cfg.streamonly == 1:
            a("  s_waitcnt lgkmcnt(0)")
            srd(a, R_WS, P_WS, WS_BYTES)
            a("  s_branch L_hdone")
        a(f"  v_lshlrev_b32 v{L16}, 4, v0\n  v_and_b32 v{N}, 15, v0\n  v_lshrrev_b32 v{Gq}, 4, v0\n  v_mov_b32 v{ZERO}, 0")
        a(f"  v_lshlrev_b32 v{T0}, 1, v{Gq}\n  v_xor_b32 v{T0}, v{N}, v{T0}\n  v_mul_u32_u24 v{T1}, 768, v{Gq}")
        a(f"  v_lshl_add_u32 v{VS0}, v{T0}, 4, v{T1}\n  v_xor_b32 v{T0}, 8, v{T0}\n  v_lshl_add_u32 v{VS1}, v{T0}, 4, v{T1}")
        a(f"  v_lshrrev_b32 v{T0}, 1, v0\n  v_mul_u32_u24 v{T0}, 768, v{T0}\n  v_and_b32 v{T1}, 1, v0\n  v_lshl_add_u32 v{T0}, v{T1}, 4, v{T0}")
        a(f"  s_lshl_b32 s61, s{S_IDX}, 5\n  v_add_u32 v{DS}, s61, v{T0}")
        a(f"  s_lshr_b32 s60, s{S_IDX}, 1\n  s_lshl_b32 s60, s60, 10\n  s_and_b32 s61, s{S_IDX}, 1\n  s_lshl_b32 s61, s61, 9\n  s_add_u32 s60, s60, s61")
        a(f"  v_lshrrev_b32 v{T0}, 1, v{Gq}\n  v_lshlrev_b32 v{T0}, 8, v{T0}\n  v_lshl_add_u32 v{T0}, v{N}, 4, v{T0}")
        a(f"  v_and_b32 v{T1}, 1, v{Gq}\n  v_lshl_add_u32 v{T0}, v{T1}, 3, v{T0}\n  v_add_u32 v{FL}, s60, v{T0}")
        if cfg.hdiag: self.stamp(8)
        a("  s_waitcnt lgkmcnt(0)")
        if cfg.hdiag: self.stamp(2)
        srd(a, R_WS, P_WS, WS_BYTES)
        a(f"  s_cmp_eq_u32 s{S_WAVE}, 1\n  s_cbranch_scc1 L_h1a")
        a(f"  s_cmp_eq_u32 s{S_WAVE}, 0\n  s_cbranch_scc1 L_h0a")
        if cfg.wkearly == 1:
            a(f"  s_cmp_eq_u32 s{S_WAVE}, 2\n  s_cbranch_scc0 L_hb1")
            srd(a, R_C, P_WK, W_BYTES)
            a(f"  s_mul_i32 s60, s{S_IDX}, {16*768}")
            self.img_dma(R_C, H_WKI, 60, VS0, VS1)
        a("  s_branch L_hb1")
        a("L_h1a:")
        srd(a, R_B, P_WQ, W_BYTES)
        for k in range(12):
            a(f"  s_mov_b32 m0, {H_WQI + k*1024}\n  s_mov_b32 s62, {k*32*768}\n  buffer_load_dwordx4 v{DS}, {sr(R_B)}, s62 offen{' nt' if cfg.hnt else ''} lds")
        a(f"  buffer_load_dword v9, v{ZERO}, {sr(R_WS)}, 0 offen offset:{NONCE_OFF} sc1")
        a(f"  v_mov_b32 v{T0}, -1\n  v_mov_b32 v{T0+1}, -1\n  v_mov_b32 v{T0+2}, -1\n  v_mov_b32 v{T0+3}, -1")
        a(f"  s_lshl_b32 s60, s{S_IDX}, 9\n  s_add_u32 s62, s60, {RQ_OFF}\n  s_add_u32 s63, s60, {RQK_OFF}\n  s_add_u32 s61, s60, {RCTX_OFF}")
        a("  s_mov_b32 s64, -1\n  s_mov_b32 s65, 0\n  s_mov_b64 exec, s[64:65]")
        for r in ("s62", "s63", "s61"): a(f"  buffer_store_dwordx4 {vr(T0)}, v{L16}, {sr(R_WS)}, {r} offen sc1")
        if cfg.dualq: a(f"  s_add_u32 s62, s60, {RQ2_OFF}\n  buffer_store_dwordx4 {vr(T0)}, v{L16}, {sr(R_WS)}, s62 offen sc1")
        a("  s_mov_b64 exec, -1")
        a(f"  s_waitcnt vmcnt({5 if cfg.dualq else 4})\n  s_branch L_hb1")
        a("L_h0a:")
        srd(a, R_A, P_Q, Q_BYTES)
        a("  s_mov_b32 s60, 0")
        self.img_dma(R_A, H_QI, 60, VS0, VS1)
        a(f"  buffer_load_dword v15, v{ZERO}, {sr(R_WS)}, 0 offen offset:{NONCE_OFF} sc1")
        a("  s_waitcnt vmcnt(0)\n  s_branch L_hb1")
        a("L_hb1:")
        self.stamp(7)
        T0, T1, T2 = 228, 229, 230
        srd(a, R_A, P_Q, Q_BYTES); srd(a, R_D, P_WV, W_BYTES); srd(a, R_F, P_OUT, Q_BYTES)
        a(f"  v_and_b32 v{T0}, 7, v{N}\n  v_lshlrev_b32 v{T0}, 1, v{T0}\n  v_lshlrev_b32 v{T1}, 8, v{N}")
        for m in range(4):
            a(f"  v_add_u32 v{T2}, {4*m}, v{Gq}\n  v_xor_b32 v{T2}, v{T2}, v{T0}\n  v_lshl_add_u32 v{IA+m}, v{T2}, 4, v{T1}")
        a(f"  v_lshrrev_b32 v{T0}, 2, v{N}\n  v_lshl_add_u32 v{T0}, v{Gq}, 3, v{T0}\n  v_lshlrev_b32 v{T0}, 5, v{T0}")
        a(f"  v_and_b32 v{T1}, 3, v{N}\n  v_lshl_add_u32 v{TA}, v{T1}, 3, v{T0}")
        for i in range(4): a(f"  v_mov_b32 v{ONES+i}, 0x3f803f80")
        if cfg.wkearly == 2:
            nw = self.lab("nowk")
            a(f"  s_cmp_eq_u32 s{S_WAVE}, 2\n  s_cbranch_scc0 {nw}")
            srd(a, R_C, P_WK, W_BYTES)
            a(f"  s_mul_i32 s60, s{S_IDX}, {16*768}")
            self.img_dma(R_C, H_WKI, 60, VS0, VS1)
            a(f"{nw}:")
        a("  s_barrier")
        T0, T1, T2 = 4, 5, 6
        self.stamp(1)
        if cfg.cut >= 3: a("  s_branch L_hdone")
        a(f"  s_cmp_eq_u32 s{S_WAVE}, 0\n  s_cbranch_scc1 L_h0b")
        n1 = self.lab("notw1")
        a(f"  s_cmp_eq_u32 s{S_WAVE}, 1\n  s_cbranch_scc0 {n1}")
        a(f"  s_waitcnt vmcnt(0)\n  v_add_u32 v9, 1, v9\n  s_lshl_b32 s62, s{S_IDX}, 7\n  s_add_u32 s62, s62, {FLAG_OFF}\n  s_mov_b64 exec, 1")
        a(f"  buffer_store_dword v9, v{ZERO}, {sr(R_WS)}, s62 offen sc1\n  s_mov_b64 exec, -1\n  s_branch L_hb1c\n{n1}:")
        a(f"  s_cmp_eq_u32 s{S_WAVE}, 3\n  s_cbranch_scc1 L_h3b")
        if cfg.wkearly:
            a("  s_branch L_hb1c")
        else:
            a(f"  s_cmp_eq_u32 s{S_WAVE}, 2\n  s_cbranch_scc0 L_hb1c")
            srd(a, R_C, P_WK, W_BYTES)
            a(f"  s_mul_i32 s60, s{S_IDX}, {16*768}")
            self.img_dma(R_C, H_WKI, 60, VS0, VS1)
            a("  s_branch L_hb1c")
        a("L_h3b:")
        for j in range(12):
            a(f"  ds_read_b128 {vr(QF+4*j)}, v{IA+(j&3)} offset:{H_QI + (j>>2)*4096}")
        for j in range(12):
            a(f"  s_waitcnt lgkmcnt({11-j})")
            for i in range(4):
                a(f"  v_dot2_f32_bf16 v{ST+i}, v{QF+4*j+i}, v{QF+4*j+i}, {'0' if j == 0 else 'v%d' % (ST+i)}")
                a(f"  v_dot2_f32_bf16 v{D3+i}, v{QF+4*j+i}, v{ONES}, {'0' if j == 0 else 'v%d' % (D3+i)}")
        self.pk("v_pk_add_f32", ST, ST, ST + 2); self.pk("v_pk_add_f32", D3, D3, D3 + 2)
        a(f"  v_add_f32 v{ST}, v{ST}, v{ST+1}\n  v_add_f32 v{ST+1}, v{D3}, v{D3+1}")
        a(f"  v_permlane16_swap_b32 v{ST}, v{ST+1}\n  v_add_f32 v{ST}, v{ST}, v{ST+1}")
        a(f"  v_mov_b32 v{ST+1}, v{ST}\n  v_permlane32_swap_b32 v{ST+1}, v{ST}\n  v_add_f32 v{ST}, v{ST}, v{ST+1}")
        a(f"  v_mul_f32 v{ST}, {f32(1.0/384.0)}, v{ST}")
        a(f"  v_mov_b32 v{ST+1}, v{ST}\n  v_mov_b32 v{ST+2}, v{ST}\n  v_permlane16_swap_b32 v{ST+1}, v{ST+2}")
        a(f"  v_fma_f32 v{ST+3}, -v{ST+2}, v{ST+2}, v{ST+1}\n  v_max_f32 v{ST+3}, 0, v{ST+3}\n  v_add_f32 v{ST+3}, {f32(1e-5)}, v{ST+3}\n  v_rsq_f32 v{ST+3}, v{ST+3}")
        a(f"  v_lshlrev_b32 v{T0}, 3, v{N}\n  v_add_u32 v{T0}, {H_QS}, v{T0}\n  ds_write_b64 v{T0}, {vr(ST+2,2)}\n  s_waitcnt lgkmcnt(0)")
        a("L_hb1c:\n  s_barrier")
        a("  s_branch L_hb2")
        a("L_h0b:")
        a(f"  v_add_u32 v15, 1, v15")
        self.flag_addr(T3)
        a(f"  v_readfirstlane_b32 s{S_NONCE}, v15\n  buffer_load_dword v9, v{T3}, {sr(R_WS)}, 0 offen sc1")
        for j in range(12):
            a(f"  ds_read_b128 {vr(QF+4*j)}, v{IA+(j&3)} offset:{H_QI + (j>>2)*4096}")
        def tr(j):
            a(f"  ds_read_b64_tr_b16 {vr(TR+4*j,2)}, v{TA} offset:{H_WQI + j*1024}")
            a(f"  ds_read_b64_tr_b16 {vr(TR+4*j+2,2)}, v{TA} offset:{H_WQI + j*1024 + 128}")
        a("  s_waitcnt lgkmcnt(3)")
        for j in range(6): tr(j)
        for j in range(12):
            left = min(12, j + 6) - j - 1
            a(f"  s_waitcnt lgkmcnt({2*left})")
            if j + 6 < 12: tr(j + 6)
            a(f"  v_mfma_f32_16x16x32_bf16 {vr(D1)}, {vr(TR+4*j)}, {vr(QF+4*j)}, {'0' if j == 0 else vr(D1)}")
            a(f"  v_mfma_f32_16x16x32_bf16 {vr(D2)}, {vr(TR+4*j)}, {vr(ONES)}, {'0' if j == 0 else vr(D2)}")
        a("  s_barrier")
        a(f"  v_lshlrev_b32 v{T0}, 3, v{N}\n  v_add_u32 v{T0}, {H_QS}, v{T0}\n  ds_read_b64 {vr(ST,2)}, v{T0}\n  s_waitcnt lgkmcnt(0)")
        for r in range(4): a(f"  v_fma_f32 v{D1+r}, -v{ST}, v{D2+r}, v{D1+r}")
        for r in range(4): a(f"  v_mul_f32 v{D1+r}, v{ST+1}, v{D1+r}")
        a(f"  v_cvt_pk_bf16_f32 v{D2}, v{D1}, v{D1+1}\n  v_cvt_pk_bf16_f32 v{D2+1}, v{D1+2}, v{D1+3}")
        a(f"  v_min_u32 v{D2}, -2, v{D2}\n  v_min_u32 v{D2+1}, -2, v{D2+1}\n  s_mov_b32 s62, {RQ_OFF}")
        if cfg.dualq: a(f"  s_mov_b32 s63, {RQ2_OFF}\n  buffer_store_dwordx2 {vr(D2,2)}, v{FL}, {sr(R_WS)}, s63 offen")
        a(f"  buffer_store_dwordx2 {vr(D2,2)}, v{FL}, {sr(R_WS)}, s62 offen sc1")
        self.stamp(2)
        hv = self.lab("haveflags")
        a(f"  s_waitcnt vmcnt({2 if cfg.dualq else 1})\n  v_cmp_ne_u32 vcc, s{S_NONCE}, v9\n  s_cbranch_vccz {hv}")
        self.wait_flags(9, T3)
        a(f"{hv}:\n  s_mov_b32 s62, {RQ_OFF}")
        if cfg.qdelay: a(f"  s_sleep {cfg.qdelay}")
        if cfg.dualq:
            lp, tryA, dn = self.lab("q2"), self.lab("q2a"), self.lab("q2d")
            a(f"  s_mov_b32 s{S_SPIN}, 0\n{lp}:")
            a(f"  s_mov_b32 s62, {RQ2_OFF}\n  s_mov_b32 s63, {RQ2_OFF+4096}\n  s_mov_b32 s64, {RQ2_OFF+8192}")
            for j in range(12): a(f"  buffer_load_dwordx4 {vr(AF+4*j)}, v{L16}, {sr(R_WS)}, s{62 + (j >> 2)} offen offset:{(j&3)*1024} sc1")
            self.spin_guard(dn)
            a("  s_waitcnt vmcnt(0)")
            self.valid_check(AF, 48, T0, tryA)
            a(f"  s_branch {dn}\n{tryA}:")
            if cfg.q2n > 1:
                a(f"  s_cmp_lt_u32 s{S_SPIN}, {cfg.q2n}\n  s_cbranch_scc1 {lp}")
            a(f"  s_mov_b32 s62, {RQ_OFF}\n  s_mov_b32 s63, {RQ_OFF+4096}\n  s_mov_b32 s64, {RQ_OFF+8192}")
            for j in range(12): a(f"  buffer_load_dwordx4 {vr(AF+4*j)}, v{L16}, {sr(R_WS)}, s{62 + (j >> 2)} offen offset:{(j&3)*1024} sc1")
            a("  s_waitcnt vmcnt(0)")
            self.valid_check(AF, 48, T0, lp)
            a(f"{dn}:\n  s_waitcnt vmcnt(0)")
        else:
            self.gather_frags(12, AF, L16, 62, T0, "q", sleep=cfg.qsleep)
        self.stamp(3)
        a("  s_barrier")
        for j in range(12):
            a(f"  ds_read_b128 {vr(WKF+4*j)}, v{IA+(j&3)} offset:{H_WKI + (j>>2)*4096}")
        for j in range(12):
            dd = D1 if j % 2 == 0 else D2
            a(f"  s_waitcnt lgkmcnt({11-j})")
            a(f"  v_mfma_f32_16x16x32_bf16 {vr(dd)}, {vr(WKF+4*j)}, {vr(AF+4*j)}, {'0' if j < 2 else vr(dd)}")
        sc = f32(384 ** -0.5 * LOG2E)
        for r in range(4): a(f"  v_add_f32 v{D1+r}, v{D1+r}, v{D2+r}")
        for r in range(4): a(f"  v_mul_f32 v{D1+r}, {sc}, v{D1+r}")
        a(f"  v_cvt_pk_bf16_f32 v{D2}, v{D1}, v{D1+1}\n  v_cvt_pk_bf16_f32 v{D2+1}, v{D1+2}, v{D1+3}")
        a(f"  v_min_u32 v{D2}, -2, v{D2}\n  v_min_u32 v{D2+1}, -2, v{D2+1}\n  s_mov_b32 s62, {RQK_OFF}")
        a(f"  buffer_store_dwordx2 {vr(D2,2)}, v{FL}, {sr(R_WS)}, s62 offen sc1")
        self.stamp(4)
        if cfg.wvolate == 2: a("  s_waitcnt vmcnt(0)")
        if cfg.wvolate: a("  s_barrier")
        a("  s_branch L_hwvo")
        a("L_hb2:\n  s_waitcnt vmcnt(0)\n  s_barrier")
        if cfg.wvolate: a("  s_barrier")
        a("L_hwvo:")
        if cfg.cut >= 2: a("  s_branch L_hdone")
        a(f"  s_cmp_eq_u32 s{S_WAVE}, 3\n  s_cbranch_scc0 L_hwv2")
        srd(a, R_E, P_WO, W_BYTES)
        for k in range(12):
            a(f"  s_mov_b32 m0, {H_WOI + k*1024}\n  s_mov_b32 s62, {k*32*768}\n  buffer_load_dwordx4 v{DS}, {sr(R_E)}, s62 offen{' nt' if cfg.hnt else ''} lds")
        a("L_hwv2:")
        a(f"  s_mul_i32 s60, s{S_WAVE}, {48*768}\n  s_mul_i32 s61, s{S_WAVE}, 12288\n  s_add_u32 s61, s61, {H_WV}")
        for th in range(3):
            for q4 in range(4): self.img_dma1(R_D, 0, 60, VS0, VS1, th, q4, ldsreg=61)
        a("  s_waitcnt vmcnt(12)\n  s_barrier")
        for j in range(12):
            a(f"  ds_read_b64_tr_b16 {vr(TR+4*j,2)}, v{TA} offset:{H_WOI + j*1024}")
            a(f"  ds_read_b64_tr_b16 {vr(TR+4*j+2,2)}, v{TA} offset:{H_WOI + j*1024 + 128}")
            if j == 6: a("  s_waitcnt lgkmcnt(0)")
        for m in range(4): a(f"  v_add_u32 v{IA+m}, s61, v{IA+m}")
        a(f"  v_mul_u32_u24 v{T0}, 784, v{N}\n  v_lshl_add_u32 v{T0}, v{Gq}, 3, v{T0}\n  s_mul_i32 s62, s{S_WAVE}, 96\n  s_add_u32 s62, s62, {H_WT}\n  v_add_u32 v{T3}, s62, v{T0}")
        for tau in range(3):
            if tau < 2: a(f"  s_add_u32 s60, s60, {16*768}")
            for th in range(3):
                a(f"  s_waitcnt vmcnt({8 if tau < 2 else 8 - 4*th})")
                for m in range(4): a(f"  ds_read_b128 {vr(WKF+4*m)}, v{IA+m} offset:{th*4096}")
                a("  s_waitcnt lgkmcnt(0)")
                if tau < 2:
                    for q4 in range(4): self.img_dma1(R_D, 0, 60, VS0, VS1, th, q4, ldsreg=61)
                for m in range(4):
                    j = 4 * th + m
                    a(f"  v_mfma_f32_16x16x32_bf16 {vr(D1)}, {vr(WKF+4*m)}, {vr(TR+4*j)}, {'0' if j == 0 else vr(D1)}")
            a(f"  v_cvt_pk_bf16_f32 v{D2}, v{D1}, v{D1+1}\n  v_cvt_pk_bf16_f32 v{D2+1}, v{D1+2}, v{D1+3}")
            a(f"  ds_write_b64 v{T3}, {vr(D2,2)} offset:{tau*32}")
        a("  s_waitcnt lgkmcnt(0)\n  s_barrier")
        self.stamp(5)
        if cfg.cut >= 1: a("  s_branch L_hdone")
        a(f"  s_cmp_lg_u32 s{S_WAVE}, 0\n  s_cbranch_scc1 L_hdone")
        a(f"  v_mul_u32_u24 v{T0}, 784, v{N}\n  v_lshl_add_u32 v{T0}, v{Gq}, 4, v{T0}\n  v_add_u32 v{T0}, {H_WT}, v{T0}")
        for j in range(12): a(f"  ds_read_b128 {vr(WKF+4*j)}, v{T0} offset:{j*64}")
        a(f"  v_mul_u32_u24 v{T3}, 768, v{N}\n  v_lshl_add_u32 v{T3}, v{Gq}, 3, v{T3}\n  s_lshl_b32 s61, s{S_IDX}, 5")
        a(f"  buffer_load_dwordx2 {vr(QF,2)}, v{T3}, {sr(R_A)}, s61 offen")
        a("  s_waitcnt vmcnt(0) lgkmcnt(0)")
        a(f"  v_lshlrev_b32 v{QF+4}, 16, v{QF}\n  v_and_b32 v{QF+5}, 0xffff0000, v{QF}\n  v_lshlrev_b32 v{QF+6}, 16, v{QF+1}\n  v_and_b32 v{QF+7}, 0xffff0000, v{QF+1}")
        a(f"  v_mul_u32_u24 v{T2}, 768, v{N}\n  v_lshl_add_u32 v{T2}, v{Gq}, 4, v{T2}\n  s_mov_b32 s62, {RCTX_OFF}")
        if cfg.c1sleep:
            lp, dn = self.lab("c1"), self.lab("c1d")
            a(f"  s_mov_b32 s{S_SPIN}, 0\n{lp}:\n  buffer_load_dword v{AF}, v{T2}, {sr(R_WS)}, s62 offen sc1")
            self.spin_guard(dn)
            if cfg.call: a(f"  s_waitcnt vmcnt(0)\n  v_cmp_eq_u32 vcc, -1, v{AF}\n  s_cbranch_vccz {dn}\n  s_sleep {cfg.c1sleep}\n  s_branch {lp}\n{dn}:\n  s_waitcnt vmcnt(0)")
            else: a(f"  s_waitcnt vmcnt(0)\n  v_cmp_ne_u32 vcc, -1, v{AF}\n  s_cbranch_vccnz {dn}\n  s_sleep {cfg.c1sleep}\n  s_branch {lp}\n{dn}:\n  s_waitcnt vmcnt(0)")
        if cfg.cdelay: a(f"  s_sleep {cfg.cdelay}")
        self.gather_frags(12, AF, T2, 62, T0, "c", rowmajor=True, sleep=cfg.csleep)
        self.stamp(6)
        for j in range(12):
            dd = D1 if j % 2 == 0 else D2
            c1 = vr(QF+4) if j == 0 else ("0" if j == 1 else vr(dd))
            a(f"  v_mfma_f32_16x16x32_bf16 {vr(dd)}, {vr(WKF+4*j)}, {vr(AF+4*j)}, {c1}")
        for h in (0, 2): self.pk("v_pk_add_f32", D1 + h, D1 + h, D2 + h)
        a(f"  v_cvt_pk_bf16_f32 v{D2}, v{D1}, v{D1+1}\n  v_cvt_pk_bf16_f32 v{D2+1}, v{D1+2}, v{D1+3}")
        a(f"  buffer_store_dwordx2 {vr(D2,2)}, v{T3}, {sr(R_F)}, s61 offen")
        nn = self.lab("nononce")
        a(f"  s_cmp_lg_u32 s{S_IDX}, 0\n  s_cbranch_scc1 {nn}")
        a(f"  buffer_store_dword v15, v{ZERO}, {sr(R_WS)}, 0 offen offset:{NONCE_OFF} sc1\n{nn}:")
        a("L_hdone:")
        self.stamp(9); self.stamp_flush((0, 0, 2, (0, 1, 3, 4, 5, 6)))
        a("  s_endpgm")

    def collector(self):
        a = self.a
        a("L_collect:     ; ---------------- collector")
        a(f"  s_cmp_lg_u32 s{S_WAVE}, 0\n  s_cbranch_scc1 L_end\n  s_waitcnt lgkmcnt(0)")
        srd(a, R_WS, P_WS, WS_BYTES)
        a(f"  v_mov_b32 v2, 0\n  buffer_load_dword v3, v2, {sr(R_WS)}, 0 offen offset:{NONCE_OFF} sc1")
        self.flag_addr(4)
        a(f"  s_waitcnt vmcnt(0)\n  v_add_u32 v3, 1, v3\n  v_readfirstlane_b32 s{S_NONCE}, v3")
        self.wait_flags(5, 4)
        a(f"  s_mov_b32 s62, {GO_OFF}\n  s_mov_b64 exec, 1\n  buffer_store_dword v3, v2, {sr(R_WS)}, s62 offen sc1")
        a("  s_endpgm")

    def build(self):
        a = self.a
        hdr = open("standalone__detection_seg_dino__vision.s.ref").read().split("\n")
        for line in hdr:
            if line.startswith("; @launch"): break
            a(line)
        a("; @" + f"launch grid=(256,1,1) block=(512,1,1) lds={LDS_BYTES}")
        for line in HEADER.strip("\n").split("\n"): a(("; " + line).rstrip())
        a('.amdgcn_target "amdgcn-amd-amdhsa--gfx950"\n.text')
        a(f".globl {KNAME}\n.p2align 8\n.type {KNAME},@function\n{KNAME}:")
        n0 = len(a.L)
        self.prologue(); self.streamer(); self.helper(); self.collector()
        a("L_end:\n  s_endpgm\nL_code_end:")
        body, added = hazard.fix(a.L[n0:])
        a.L = a.L[:n0] + body
        a('.section .rodata,"a"\n.p2align 6')
        a(f".amdhsa_kernel {KNAME}")
        a("  .amdhsa_next_free_vgpr 256\n  .amdhsa_next_free_sgpr 102\n  .amdhsa_accum_offset 256")
        a("  .amdhsa_group_segment_fixed_size 0\n  .amdhsa_kernarg_size 80\n  .amdhsa_user_sgpr_count 2")
        a("  .amdhsa_user_sgpr_kernarg_segment_ptr 1\n  .amdhsa_system_sgpr_workgroup_id_x 1")
        a("  .amdhsa_float_denorm_mode_32 3")
        a(".end_amdhsa_kernel")
        return a.text(), added

def generate(path, **kw):
    cfg = Cfg()
    for k, v in kw.items(): setattr(cfg, k, v)
    text, added = G(cfg).build()
    open(path, "w").write(text)
    return added

if __name__ == "__main__":
    path = sys.argv[1] if len(sys.argv) > 1 else "standalone__detection_seg_dino__vision.s"
    kw = {}
    for x in sys.argv[2:]:
        k, v = x.split("="); kw[k] = eval(v)
    print("nops added:", generate(path, **kw))
```
